```python
import torch

def _softmax(x, axis=-1):
    return torch.softmax(x, dim=axis)
def _gelu(x):
    return torch.nn.functional.gelu(x, approximate="tanh")
def _silu(x):
    return torch.nn.functional.silu(x)
def _sigmoid(x):
    return torch.sigmoid(x)
def _layernorm(x, axis=-1, eps=1e-5):
    m = x.mean(dim=axis, keepdim=True)
    v = x.var(dim=axis, keepdim=True, unbiased=False)
    return (x - m) / torch.sqrt(v + eps)
def _scatter_add(tgt, idx, src, axis=0):
    return tgt.clone().index_add_(axis, idx, src)
def _segment_sum(src, seg, n):
    out = torch.zeros((n,) + src.shape[1:], dtype=src.dtype)
    return out.index_add_(0, seg, src)
def _pad(x, pw):
    flat = tuple(v for pair in reversed(pw) for v in pair)
    return torch.nn.functional.pad(x, flat)

kernel_name = 'sequential_preLN__gqa_block_cached__geglu_ffn__decode'

def setup_inputs():

    _w = (lambda a: (lambda t: t.to(torch.bfloat16) if t.is_floating_point() else t)(torch.as_tensor(a)))
    def _A_setup():
        B, Sq, D = 2, 1, 448
        Hq, Hkv, Sk, Dh = 16, 8, 32768, 256
        assert Hq % Hkv == 0, (Hq, Hkv)
        return {
            "x": _w((lambda *s: torch.randn(*s, dtype=torch.bfloat16) * 0.05)(B, Sq, D)),
            "k_cache": _w((lambda *s: torch.randn(*s, dtype=torch.bfloat16) * 3.2)(B, Hkv, Sk, Dh)),
            "v_cache": _w((lambda *s: torch.randn(*s, dtype=torch.bfloat16) * 0.4)(B, Hkv, Sk, Dh)),
            "wq": _w((lambda *s: torch.randn(*s, dtype=torch.bfloat16) * 3.2)(D, Hq * Dh) * (D ** -0.5)),
            "wo": _w((lambda *s: torch.randn(*s, dtype=torch.bfloat16) * 0.4)(Hq * Dh, D) * ((Hq * Dh) ** -0.5)),
        }
    _A_in = _A_setup()

    def _B_setup():
        B, S, D, F = 2, 1, 448, 1792
        return {
            "x": _w((lambda *s: torch.randn(*s, dtype=torch.bfloat16) * 0.05)(B, S, D)),
            "w_gate": _w((lambda *s: torch.randn(*s, dtype=torch.bfloat16) * 0.05)(D, F)),
            "w_up": _w((lambda *s: torch.randn(*s, dtype=torch.bfloat16) * 0.05)(D, F)),
            "w_down": _w((lambda *s: torch.randn(*s, dtype=torch.bfloat16) * 0.05)(F, D)),
        }
    _B_in = _B_setup()

    return {
        "A_x": _A_in["x"],
        "A_k_cache": _A_in["k_cache"],
        "A_v_cache": _A_in["v_cache"],
        "A_wq": _A_in["wq"],
        "A_wo": _A_in["wo"],
        "B_x": _B_in["x"],
        "B_w_gate": _B_in["w_gate"],
        "B_w_up": _B_in["w_up"],
        "B_w_down": _B_in["w_down"],
    }

def reference(A_x, A_k_cache, A_v_cache, A_wq, A_wo, B_x, B_w_gate, B_w_up, B_w_down):
    def _A_ref(x, k_cache, v_cache, wq, wo):
        B, Sq, D = x.shape
        Hq, Dh = 16, 256
        Hkv = k_cache.shape[1]
        rep = Hq // Hkv
        q = (lambda x, *d: x.permute(*d))((x @ wq).reshape(B, Sq, Hq, Dh), 0, 2, 1, 3)
        k = (lambda x, n, axis: torch.repeat_interleave(x, n, dim=axis))(k_cache, rep, axis=1)
        v = (lambda x, n, axis: torch.repeat_interleave(x, n, dim=axis))(v_cache, rep, axis=1)
        scores = torch.einsum("bhqd,bhkd->bhqk", q, k) * (Dh ** -0.5)
        p = _softmax(scores, axis=-1)
        o = torch.einsum("bhqk,bhkd->bhqd", p, v)
        return (lambda x, *d: x.permute(*d))(o, 0, 2, 1, 3).reshape(B, Sq, Hq * Dh) @ wo

    def _B_ref(x, w_gate, w_up, w_down):
        return (_gelu(x @ w_gate) * (x @ w_up)) @ w_down

    x = A_x
    h = x + _A_ref(_layernorm(x, axis=-1), A_k_cache, A_v_cache, A_wq, A_wo)
    h2 = h + _B_ref(_layernorm(h, axis=-1), B_w_gate, B_w_up, B_w_down)
    return h2
```

```python
import re

TRANS = ("v_exp_f32", "v_log_f32", "v_rcp_f32", "v_rsq_f32", "v_sqrt_f32", "v_sin_f32", "v_cos_f32")

def regs_of(tok):
    tok = tok.strip()
    tok = tok.lstrip("-")
    if tok.startswith("abs(") or tok.startswith("|"):
        tok = tok.replace("abs(", "").replace(")", "").replace("|", "")
    m = re.fullmatch(r"([vsa])(\d+)", tok)
    if m: return {(m.group(1), int(m.group(2)))}
    m = re.fullmatch(r"([vsa])\[(\d+):(\d+)\]", tok)
    if m: return {(m.group(1), i) for i in range(int(m.group(2)), int(m.group(3)) + 1)}
    if tok in ("vcc",): return {("x", "vcc_lo"), ("x", "vcc_hi")}
    if tok in ("vcc_lo", "vcc_hi", "m0", "exec_lo", "exec_hi"): return {("x", tok)}
    if tok == "exec": return {("x", "exec_lo"), ("x", "exec_hi")}
    return set()

class Ins:
    def __init__(self, text):
        self.text = text
        t = text.split(";")[0].strip()
        self.op = t.split()[0] if t else ""
        rest = t[len(self.op):].strip()
        ops, depth, cur = [], 0, ""
        for ch in rest:
            if ch == "[": depth += 1
            if ch == "]": depth -= 1
            if ch == "," and depth == 0:
                ops.append(cur.strip()); cur = ""
            else: cur += ch
        if cur.strip(): ops.append(cur.strip())
        mods = ""
        if ops:
            parts = ops[-1].split(None, 1)
            ops[-1] = parts[0]
            mods = parts[1] if len(parts) > 1 else ""
        self.ops, self.mods = ops, mods
        op = self.op
        self.kind = "other"
        self.w, self.r = set(), set()
        R = [regs_of(o) for o in ops]
        allr = set().union(*R) if R else set()
        if op.startswith("v_mfma"):
            self.kind = "mfma"; self.w = R[0]; self.a = R[1] | R[2]; self.c = R[3]; self.r = self.a | self.c
            self.passes = 8 if "32x32" in op else 4
        elif op.startswith("v_permlane"):
            self.kind = "valu"; self.sub = "permlane"; self.w = allr; self.r = allr
        elif op.startswith("v_readlane") or op.startswith("v_readfirstlane"):
            self.kind = "valu"; self.sub = "readlane"; self.w = R[0]; self.r = set().union(*R[1:])
        elif op.startswith("v_cmp"):
            self.kind = "valu"; self.sub = "cmp"; self.w = R[0]; self.r = set().union(*R[1:])
        elif op.startswith("v_"):
            self.kind = "valu"; self.sub = "trans" if any(op.startswith(x) for x in TRANS) else ("dpp" if "_dpp" in op else "")
            if op == "v_nop": return
            self.w = R[0]; self.r = set().union(*R[1:]) if len(R) > 1 else set()
            if op.startswith("v_fmac") or "_dpp" in op or op.startswith("v_writelane"): self.r |= R[0]
            if op.startswith("v_cndmask") and len(ops) == 3: self.r |= regs_of("vcc")
        elif op.startswith("buffer_") or op.startswith("global_"):
            self.kind = "vmem"
            islds = " lds" in (" " + mods)
            self.islds = islds
            if "load" in op and not islds:
                self.w = R[0]; self.r = set().union(*R[1:])
            elif "atomic" in op and "sc0" in mods and op.startswith("global_"):
                self.w = R[0]; self.r = set().union(*R[1:])
            else:
                self.r = allr
            if islds: self.r |= {("x", "m0")}
            self.wide_store = ("store" in op and ("x4" in op or "x3" in op))
            self.data = (R[0] if op.startswith("buffer_") else (R[1] if len(R) > 1 else set())) if self.wide_store else set()
        elif op.startswith("ds_"):
            self.kind = "ds"
            if op.startswith("ds_read") or "_rtn" in op or "permute" in op or "swizzle" in op:
                self.w = R[0]; self.r = set().union(*R[1:])
            else: self.r = allr
        elif op.startswith("s_"):
            self.kind = "salu"
            if op.startswith(("s_cmp", "s_bitcmp", "s_cbranch", "s_branch", "s_waitcnt", "s_nop", "s_barrier", "s_sleep", "s_endpgm", "s_setprio")):
                self.r = allr
            else:
                self.w = R[0] if R else set(); self.r = set().union(*R[1:]) if len(R) > 1 else set()
        if not hasattr(self, "sub"): self.sub = ""
    def states(self):
        if self.op == "s_nop": return int(self.ops[0], 0) + 1
        return 1

def isv(s): return {x for x in s if x[0] in "va"}
def iss(s): return {x for x in s if x[0] in "sx"}

def need(p, c):
    n = 0
    if p.kind == "valu":
        wv = isv(p.w); ws = iss(p.w)
        if c.kind == "valu":
            if wv & c.r:
                if c.sub == "dpp": n = max(n, 2)
                if c.sub == "permlane": n = max(n, 2)
                if c.sub == "readlane": n = max(n, 1)
                if p.sub == "trans" and c.sub != "trans": n = max(n, 1)
            if ws & c.r:
                n = max(n, 4 if c.sub == "readlane" else 2)
        if c.kind == "mfma" and wv & c.r: n = max(n, 2)
        if c.kind == "vmem" and ws & c.r: n = max(n, 5)
        if c.kind == "salu" and ws & c.r: n = max(n, 1)
    if p.kind == "mfma":
        big = 12 if p.passes == 8 else 8
        if c.kind == "mfma":
            if p.w & c.a: n = max(n, big)
            if p.w & c.c and p.w != c.c: n = max(n, big - 2)
            if p.w & c.w and not (p.w & c.c): n = max(n, big)
        elif c.kind in ("valu", "vmem", "ds"):
            if p.w & (c.r | c.w): n = max(n, big)
            if c.kind == "valu" and p.c & c.w: n = max(n, 7 if p.passes == 8 else 3)
    if p.kind == "salu" and ("x", "m0") in p.w and c.kind == "vmem" and getattr(c, "islds", False): n = max(n, 1)
    if p.kind == "vmem" and getattr(p, "wide_store", False) and (p.data & c.w):
        n = max(n, 2)
    return n

class Emitter:
    def __init__(self):
        self.lines = []
        self.hist = []
        self.npad = 0
    def raw(self, text):
        self.lines.append(text)
    def label(self, name):
        self.lines.append(name + ":")
    def __call__(self, text):
        for t in text.split("\n"):
            t = t.strip()
            if not t or t.startswith(";"):
                continue
            if t.endswith(":"):
                self.label(t[:-1]); continue
            c = Ins(t)
            dist = 0; pad = 0
            for p in reversed(self.hist[-24:]):
                n = need(p, c)
                if n > dist: pad = max(pad, n - dist)
                dist += p.states()
                if dist > 20: break
            if pad:
                self.npad += 1
                nop = Ins(f"s_nop {pad-1}")
                self.lines.append(f"  s_nop {pad-1}"); self.hist.append(nop)
            self.lines.append("  " + t); self.hist.append(c)
    def fence(self, n=8):
        self(f"s_nop {n-1}")
    def text(self):
        return "\n".join(self.lines) + "\n"
```

```python
import sys, struct, math
from emit import Emitter

NAME = "sequential_preLN__gqa_block_cached__geglu_ffn__decode_kernel"
def f2u(x): return struct.unpack("<I", struct.pack("<f", x))[0]

EPOCH = 0
QBUF = 0x1000
HBUF = 0x12000
YBUF = 0x14000
GBUF = 0x22000
PBUF = 0x40000
STAMP = 0x200000
WS_SIZE = 0x400000
QL = 0x0000
MISC = 0x0400
SML = 0x0500
STATS = 0x0600
AV = 0x0800
AVS = 1056
RED = 0x2A00
SO = 0x3000
STG = 0x5000
STGW = 28 * 1024
LDS_SIZE = STG + 4 * STGW

CSC = f2u(0.0625 * math.log2(math.e))
GOLD = 0x9E3779B9
TIMEOUT = 200000

S_WAVE, S_GRP, S_SPL, S_B, S_HKV, S_HW, S_TAG = 3, 4, 5, 6, 7, 8, 9
P_X, P_K, P_V, P_WQ, P_WO, P_BX, P_WG, P_WU, P_WD, P_OUT, P_DBG, P_WS = [16 + 2 * i for i in range(12)]
R_K, R_V, R_WS, R_W, R_X, R_W2 = 40, 44, 48, 52, 56, 60
S_C = 10
S_TO = 11
ST0 = 72

class Gen:
    def __init__(self, diag=False, npro=32, kvflags="nt", wflags=""):
        self.e = Emitter()
        self.diag = diag
        self.npro = npro
        self.kvflags = kvflags
        self.wflags = wflags
        self.uid = 0
    def lab(self, s):
        self.uid += 1
        return f"L_{s}_{self.uid}"
    def srd(self, r, p, size):
        e = self.e
        e(f"s_mov_b32 s{r}, s{p}")
        e(f"s_mov_b32 s{r+1}, s{p+1}")
        e(f"s_mov_b32 s{r+2}, {size}")
        e(f"s_mov_b32 s{r+3}, 0x20000")
    def stamp(self, i):
        if self.diag:
            self.e(f"s_memrealtime s[{ST0+2*i}:{ST0+2*i+1}]")
            self.e("s_waitcnt lgkmcnt(0)")
    def stamp_init(self):
        if self.diag:
            for i in range(12):
                self.e(f"s_mov_b64 s[{ST0+2*i}:{ST0+2*i+1}], 0")
    def stamp_flush(self):
        if not self.diag: return
        e = self.e
        e("s_mov_b64 exec, -1")
        e(f"s_lshl_b32 s64, s2, 3")
        e(f"s_add_u32 s64, s64, s{S_WAVE}")
        e(f"s_lshl_b32 s64, s64, 6")
        e(f"s_add_u32 s64, s64, {STAMP}")
        e(f"s_getreg_b32 s65, hwreg(HW_REG_XCC_ID)")
        e(f"s_getreg_b32 s66, hwreg(HW_REG_HW_ID)")
        for i in range(12):
            e(f"v_mov_b32 v{2+i}, s{ST0+2*i}")
        e("v_mov_b32 v14, s65")
        e("v_mov_b32 v15, s66")
        e("v_mov_b32 v16, 0")
        e("v_mov_b32 v17, 0")
        e("s_mov_b64 exec, 1")
        for i in range(4):
            e(f"buffer_store_dwordx4 v[{2+4*i}:{5+4*i}], off, s[{R_WS}:{R_WS+3}], s64 offset:{16*i}")
        e("s_waitcnt vmcnt(0)")
    def endpgm(self):
        self.stamp_flush()
        self.e("s_endpgm")

    def rnd(self, v):
        self.e(f"v_cvt_pk_bf16_f32 v{v}, v{v}, v{v}")
        self.e(f"v_lshlrev_b32 v{v}, 16, v{v}")
    def rnd_many(self, vs):
        for v in vs: self.e(f"v_cvt_pk_bf16_f32 v{v}, v{v}, v{v}")
        for v in vs: self.e(f"v_lshlrev_b32 v{v}, 16, v{v}")
    def row_reduce(self, vs, op="add"):
        e = self.e
        for ctl in ("quad_perm:[1,0,3,2]", "quad_perm:[2,3,0,1]", "row_half_mirror", "row_mirror"):
            for v in vs:
                e(f"v_{op}_f32_dpp v{v}, v{v}, v{v} {ctl} row_mask:0xf bank_mask:0xf")
    def wave_sum_to_sgpr(self, vs, ss):
        e = self.e
        self.row_reduce(vs)
        for v in vs: e(f"v_add_f32_dpp v{v}, v{v}, v{v} row_bcast:15 row_mask:0xa bank_mask:0xf")
        for v in vs: e(f"v_add_f32_dpp v{v}, v{v}, v{v} row_bcast:31 row_mask:0xc bank_mask:0xf")
        for v, s in zip(vs, ss): e(f"v_readlane_b32 s{s}, v{v}, 63")
    def cross_rows(self, v, t, op):
        e = self.e
        e(f"v_mov_b32 v{t}, v{v}")
        e(f"v_permlane16_swap_b32 v{v}, v{t}")
        e(f"v_{op}_f32 v{v}, v{v}, v{t}")
        e(f"v_mov_b32 v{t}, v{v}")
        e(f"v_permlane32_swap_b32 v{v}, v{t}")
        e(f"v_{op}_f32 v{v}, v{v}, v{t}")

    def s_path(self):
        e = self.e
        KO0, KO1, VO = 2, 3, 4
        MK = 5
        MRUN, LRUN, NRUN = 9, 10, 11
        T = 12; PK = 16; MX, MX2, AL, ALD, NN = 18, 19, 20, 21, 22
        P = 24
        D0, D1, ACC0, ACC1, AF, QF, SLOT = 28, 32, 36, 40, 44, 60, 80
        S_BASE, S_O1, S_O2, S_CNT = 64, 65, 66, 67
        NT = 32
        e("v_and_b32 v12, 15, v1")
        e("v_lshrrev_b32 v13, 4, v1")
        e("v_and_b32 v14, 7, v12")
        e("v_lshrrev_b32 v15, 3, v12")
        e(f"v_lshlrev_b32 v{KO0}, 9, v14")
        e("v_lshl_add_u32 v16, v15, 2, v13")
        e(f"v_lshl_add_u32 v{KO0}, v16, 4, v{KO0}")
        e(f"v_add_u32 v{KO1}, 0x1000, v{KO0}")
        e(f"v_lshlrev_b32 v{VO}, 11, v13")
        e(f"v_lshl_add_u32 v{VO}, v12, 4, v{VO}")
        e(f"s_lshl_b32 s{S_BASE}, s2, 20")
        e(f"s_lshl_b32 s65, s{S_WAVE}, 13")
        e(f"s_add_u32 s{S_BASE}, s{S_BASE}, s65")
        e("s_waitcnt lgkmcnt(0)")
        self.srd(R_K, P_K, 1 << 28)
        self.srd(R_V, P_V, 1 << 28)
        state = dict(issued=-1)
        def slot_regs(s): return f"v[{SLOT+4*s}:{SLOT+4*s+3}]"
        def issue(n, slot, soff):
            i = n % 16
            if i < 8:
                G, j = i >> 2, i & 3
                e(f"buffer_load_dwordx4 {slot_regs(slot)}, v{KO0+G}, s[{R_K}:{R_K+3}], s{soff} offen offset:{j*128} {self.kvflags}")
            else:
                i -= 8
                e(f"buffer_load_dwordx4 {slot_regs(slot)}, v{VO}, s[{R_V}:{R_V+3}], s{soff} offen offset:{(i>>1)*512+(i&1)*256} {self.kvflags}")
        npro = self.npro
        assert npro in (8, 16, 24, 32)
        for n in range(npro):
            if n % 16 == 0:
                e(f"s_add_u32 s{S_O1}, s{S_BASE}, {(n//16)*32768}")
            if n >= 8: e("s_waitcnt vmcnt(7)")
            issue(n, n, S_O1)
            if n == 7:
                self.srd(R_WS, P_WS, WS_SIZE)
                e(f"s_mov_b32 s{S_C}, {CSC:#x}")
                e("v_lshrrev_b32 v16, 1, v14")
                e("v_and_b32 v17, 1, v14")
                e("v_mov_b32 v18, 0xffff")
                e("v_lshlrev_b32 v17, 4, v17")
                e("v_lshlrev_b32 v18, v17, v18")
                for i in range(4):
                    e(f"v_cmp_eq_u32 vcc, {i}, v16")
                    e(f"v_cndmask_b32 v{MK+i}, 0, v18, vcc")
                e(f"v_mov_b32 v{MRUN}, 0xff800000")
                e(f"v_mov_b32 v{NRUN}, 0x7f800000")
                e(f"v_mov_b32 v{LRUN}, 0")
                for i in range(8): e(f"v_mov_b32 v{ACC0+i}, 0")
                e("v_bfe_u32 v16, v12, 2, 1")
                e("v_lshl_add_u32 v16, v16, 2, v13")
                e("v_lshlrev_b32 v23, 9, v15")
                e("v_lshl_add_u32 v23, v16, 4, v23")
        e("s_barrier")
        self.stamp(1)
        for j in range(4):
            e(f"ds_read_b128 v[{QF+4*j}:{QF+4*j+3}], v23 offset:{QL+j*128}")
        e("s_waitcnt lgkmcnt(0)")

        def softmax():
            for r in range(4): e(f"v_permlane32_swap_b32 v{D0+r}, v{D1+r}")
            for r in range(4): e(f"v_add_f32_dpp v{T+r}, v{D1+r}, v{D0+r} row_half_mirror row_mask:0xf bank_mask:0x5")
            for r in range(4): e(f"v_add_f32_dpp v{T+r}, v{D0+r}, v{D1+r} row_half_mirror row_mask:0xf bank_mask:0xa")
            e(f"v_cvt_pk_bf16_f32 v{PK}, v{T}, v{T+1}")
            e(f"v_cvt_pk_bf16_f32 v{PK+1}, v{T+2}, v{T+3}")
            e(f"v_lshlrev_b32 v{T}, 16, v{PK}")
            e(f"v_and_b32 v{T+1}, 0xffff0000, v{PK}")
            e(f"v_lshlrev_b32 v{T+2}, 16, v{PK+1}")
            e(f"v_and_b32 v{T+3}, 0xffff0000, v{PK+1}")
            e(f"v_max3_f32 v{MX}, v{T}, v{T+1}, v{T+2}")
            e(f"v_max3_f32 v{MX}, v{MX}, v{T+3}, v{MRUN}")
            self.cross_rows(MX, MX2, "max")
            e(f"v_mov_b32 v{MRUN}, v{MX}")
            e(f"v_mul_f32 v{NN}, s{S_C}, v{MX}")
            e(f"v_sub_f32 v{AL}, 0, v{NN}")
            for r in range(4): e(f"v_fma_f32 v{P+r}, v{T+r}, s{S_C}, v{AL}")
            e(f"v_sub_f32 v{NN}, v{AL}, v{NRUN}")
            e(f"v_mov_b32 v{NRUN}, v{AL}")
            e(f"v_exp_f32 v{AL}, v{NN}")
            for r in range(4): e(f"v_exp_f32 v{P+r}, v{P+r}")
            e(f"v_mov_b32 v{ALD}, v{AL}")
            e(f"v_mul_f32 v{LRUN}, v{LRUN}, v{AL}")
            e(f"v_mov_b32_dpp v{ALD}, v{AL} row_shr:8 row_mask:0x3 bank_mask:0xc")
            e(f"v_mov_b32_dpp v{ALD}, v{AL} row_shl:8 row_mask:0xc bank_mask:0x3")
            for r in range(4): e(f"v_cvt_pk_bf16_f32 v{T+r}, v{P+r}, v{P+r}")
            e(f"v_add_f32 v{P}, v{P}, v{P+1}")
            e(f"v_add_f32 v{P+2}, v{P+2}, v{P+3}")
            for i in range(4): e(f"v_and_b32 v{AF+i}, v{T}, v{MK+i}")
            for i in range(8): e(f"v_mul_f32 v{ACC0+i}, v{ACC0+i}, v{ALD}")
            e(f"v_add_f32 v{P}, v{P}, v{P+2}")
            for r in range(1, 4):
                for i in range(4): e(f"v_and_b32 v{AF+4*r+i}, v{T+r}, v{MK+i}")
            e(f"v_add_f32 v{LRUN}, v{LRUN}, v{P}")

        def tile(kslots, vslots, kwait, vwait, kissue, vissue):
            for i in range(8):
                G, j = i >> 2, i & 3
                D = D0 if G == 0 else D1
                e(f"s_waitcnt vmcnt({kwait[i]})")
                c = "0" if j == 0 else f"v[{D}:{D+3}]"
                e(f"v_mfma_f32_16x16x32_bf16 v[{D}:{D+3}], {slot_regs(kslots[i])}, v[{QF+4*j}:{QF+4*j+3}], {c}")
                if kissue[i]:
                    n, sl, so, thr = kissue[i]
                    if thr: e("s_waitcnt vmcnt(7)")
                    issue(n, sl, so)
            softmax()
            for i in range(8):
                j, hf = i >> 1, i & 1
                A = ACC0 if hf == 0 else ACC1
                e(f"s_waitcnt vmcnt({vwait[i]})")
                e(f"v_mfma_f32_16x16x32_bf16 v[{A}:{A+3}], v[{AF+4*j}:{AF+4*j+3}], {slot_regs(vslots[i])}, v[{A}:{A+3}]")
                if vissue[i]:
                    n, sl, so, thr = vissue[i]
                    if thr: e("s_waitcnt vmcnt(7)")
                    issue(n, sl, so)

        P0 = npro // 8
        slotbase = {q: 8 * q for q in range(P0)}
        issued = npro - 1
        t = 0
        nextph = P0
        while True:
            kp, vp = 2 * t, 2 * t + 1
            dist = nextph - kp
            if dist == 1 and slotbase[kp] == 0:
                break
            kiss, viss = [None] * 8, [None] * 8
            kw, vw = [], []
            if vp >= nextph:
                assert vp == nextph
                sb = slotbase[kp]
                slotbase[vp] = sb
                e(f"s_add_u32 s{S_O1}, s{S_BASE}, {(vp//2)*32768}")
                kiss = [(8 * vp + i, sb + i, S_O1, True) for i in range(8)]
                nextph += 1
            for i in range(8):
                kw.append(min(63, issued - (8 * kp + i)))
                if kiss[i]: issued += 1
            q = nextph
            used = {slotbase[x] for x in range(vp, nextph)}
            free = [s for s in range(0, npro, 8) if s not in used]
            sb = free[0] if free else slotbase[vp]
            slotbase[q] = sb
            e(f"s_add_u32 s{S_O2}, s{S_BASE}, {(q//2)*32768}")
            viss = [(8 * q + i, sb + i, S_O2, True) for i in range(8)]
            nextph += 1
            for i in range(8):
                vw.append(min(63, issued - (8 * vp + i)))
                issued += 1
            tile([slotbase[kp] + i for i in range(8)], [slotbase[vp] + i for i in range(8)], kw, vw, kiss, viss)
            t += 1
        tfirst = t
        e(f"s_add_u32 s{S_O1}, s{S_BASE}, {tfirst*32768}")
        e(f"s_mov_b32 s{S_CNT}, {NT-1-tfirst}")
        L = self.lab("sloop")
        e.label(L)
        e(f"s_add_u32 s{S_O2}, s{S_O1}, 32768")
        tile(list(range(8)), list(range(8)), [7] * 8, [7] * 8,
             [(8 + i, i, S_O1, False) for i in range(8)], [(i, i, S_O2, False) for i in range(8)])
        e(f"s_mov_b32 s{S_O1}, s{S_O2}")
        e(f"s_sub_u32 s{S_CNT}, s{S_CNT}, 1")
        e(f"s_cmp_lg_u32 s{S_CNT}, 0")
        e(f"s_cbranch_scc1 {L}")
        tile(list(range(8)), list(range(8)), [7] * 8, [7 - i for i in range(8)],
             [(8 + i, i, S_O1, False) for i in range(8)], [None] * 8)
        self.stamp(2)
        self.cross_rows(LRUN, MX2, "add")
        e("v_and_b32 v12, 15, v1")
        e("v_lshrrev_b32 v13, 4, v1")
        e("v_lshrrev_b32 v14, 1, v13")
        e("v_and_b32 v15, 1, v13")
        e("v_lshlrev_b32 v16, 10, v14")
        e("v_lshl_add_u32 v16, v12, 5, v16")
        e("v_lshl_add_u32 v16, v15, 4, v16")
        e(f"s_lshl_b32 s64, s{S_WAVE}, 11")
        e("v_add_u32 v16, s64, v16")
        e(f"ds_write_b128 v16, v[{ACC0}:{ACC0+3}] offset:{SO}")
        e(f"ds_write_b128 v16, v[{ACC1}:{ACC1+3}] offset:{SO+512}")
        e(f"s_lshl_b32 s64, s{S_WAVE}, 4")
        e("v_add_u32 v17, s64, v1")
        e(f"v_mov_b32 v18, v{NRUN}")
        e(f"v_mov_b32 v19, v{LRUN}")
        e("s_mov_b64 exec, 0x101")
        e(f"ds_write_b64 v17, v[18:19] offset:{SML}")
        e("s_mov_b64 exec, 1")
        e("v_mov_b32 v20, 0")
        e("v_mov_b32 v21, 1")
        e("s_waitcnt lgkmcnt(0)")
        e(f"ds_add_rtn_u32 v22, v20, v21 offset:{MISC+4}")
        e(f"ds_read_b32 v23, v20 offset:{MISC}")
        e("s_waitcnt lgkmcnt(0)")
        e("v_readfirstlane_b32 s64, v22")
        e(f"v_readfirstlane_b32 s{S_TAG}, v23")
        e("s_mov_b64 exec, -1")
        e("s_cmp_eq_u32 s64, 3")
        Ld = self.lab("slast")
        e(f"s_cbranch_scc1 {Ld}")
        self.endpgm()
        e.label(Ld)
        e("v_mov_b32 v20, 0")
        e("v_lshlrev_b32 v21, 3, v1")
        for w in range(4):
            e(f"ds_read_b128 v[{24+4*w}:{27+4*w}], v20 offset:{SML+16*w}")
        OB = 80
        for w in range(4):
            for hk in range(4):
                r = OB + (w * 4 + hk) * 2
                e(f"ds_read_b64 v[{r}:{r+1}], v21 offset:{SO + w*2048 + hk*512}")
            if w == 1: e("s_waitcnt lgkmcnt(4)")
        for h in range(2):
            n = [24 + 4 * w + 2 * h for w in range(4)]
            e(f"v_min3_f32 v{40+h}, v{n[0]}, v{n[1]}, v{n[2]}")
            e(f"v_min_f32 v{40+h}, v{40+h}, v{n[3]}")
        for h in range(2):
            for w in range(4):
                e(f"v_sub_f32 v{44+4*h+w}, v{40+h}, v{24+4*w+2*h}")
        for i in range(8): e(f"v_exp_f32 v{44+i}, v{44+i}")
        for h in range(2):
            e(f"v_mul_f32 v{42+h}, v{44+4*h}, v{25+2*h}")
        for w in range(1, 4):
            for h in range(2):
                e(f"v_fmac_f32 v{42+h}, v{44+4*h+w}, v{25+4*w+2*h}")
        for h in range(2): e(f"v_rcp_f32 v{52+h}, v{42+h}")
        for h in range(2): e(f"v_log_f32 v{54+h}, v{42+h}")
        for h in range(2):
            for w in range(4): e(f"v_mul_f32 v{44+4*h+w}, v{44+4*h+w}, v{52+h}")
        for h in range(2): e(f"v_sub_f32 v{54+h}, v{54+h}, v{40+h}")
        e("s_waitcnt lgkmcnt(0)")
        e(f"v_lshlrev_b32 v22, 4, v1")
        e(f"s_lshl_b32 s64, s2, 12")
        e(f"s_add_u32 s64, s64, {PBUF}")
        for hk in range(4):
            h = hk >> 1
            o = 56 + 4 * hk
            e(f"v_mul_f32 v{o}, v{44+4*h}, v{OB+hk*2}")
            e(f"v_mul_f32 v{o+2}, v{44+4*h}, v{OB+hk*2+1}")
            e(f"v_mov_b32 v{o+1}, s{S_TAG}")
            e(f"v_mov_b32 v{o+3}, s{S_TAG}")
            for w in range(1, 4):
                r = OB + (w * 4 + hk) * 2
                e(f"v_fmac_f32 v{o}, v{44+4*h+w}, v{r}")
                e(f"v_fmac_f32 v{o+2}, v{44+4*h+w}, v{r+1}")
            e(f"buffer_store_dwordx4 v[{o}:{o+3}], v22, s[{R_WS}:{R_WS+3}], s64 offen offset:{hk*1024} sc1")
        e("v_cmp_eq_u32 vcc, 1, v1")
        e("v_cndmask_b32 v72, v54, v55, vcc")
        e(f"v_mov_b32 v73, s{S_TAG}")
        e("v_lshlrev_b32 v23, 11, v1")
        e("s_lshl_b32 s65, s2, 3")
        e(f"s_add_u32 s65, s65, {HBUF}")
        e("s_mov_b64 exec, 3")
        e(f"buffer_store_dwordx2 v[72:73], v23, s[{R_WS}:{R_WS+3}], s65 offen sc1")
        self.stamp(3)
        self.endpgm()

    def h_consts(self):
        e = self.e
        e("v_and_b32 v4, 15, v1")
        e("v_lshrrev_b32 v5, 4, v1")
        e("v_lshrrev_b32 v6, 2, v4")
        e("v_lshl_add_u32 v6, v5, 3, v6")
        e("v_and_b32 v7, 3, v4")
        e("v_lshlrev_b32 v7, 3, v7")
        e("v_lshl_add_u32 v2, v6, 5, v7")
        e(f"s_mul_i32 s68, s{S_HW}, {STGW}")
        e(f"s_add_u32 s68, s68, {STG}")
        e("v_add_u32 v2, s68, v2")
        e("v_and_b32 v6, 1, v1")
        e(f"v_mul_u32_u24 v6, {AVS}, v6")
        e("v_lshl_add_u32 v3, v5, 4, v6")
    def dma_slice(self, srd, rowbytes, nsteps, s_off, stg_off, vtmp):
        e = self.e
        e(f"v_lshrrev_b32 v{vtmp}, 1, v1")
        e(f"v_mul_u32_u24 v{vtmp}, {rowbytes}, v{vtmp}")
        e(f"v_and_b32 v{vtmp+1}, 1, v1")
        e(f"v_lshl_add_u32 v{vtmp}, v{vtmp+1}, 4, v{vtmp}")
        for st in range(nsteps):
            e(f"s_add_u32 m0, s68, {stg_off + st*1024}")
            if st: e(f"s_add_u32 s{s_off}, s{s_off}, {32*rowbytes}")
            e(f"buffer_load_dwordx4 v{vtmp}, s[{srd}:{srd+3}], s{s_off} offen {self.wflags} lds")
    def tr_frags(self, nsteps, stg_off, fbase):
        e = self.e
        for st in range(nsteps):
            f = fbase + 4 * st
            e(f"ds_read_b64_tr_b16 v[{f}:{f+1}], v2 offset:{stg_off+st*1024}")
            e(f"ds_read_b64_tr_b16 v[{f+2}:{f+3}], v2 offset:{stg_off+st*1024+128}")
            if st % 4 == 3: e("s_waitcnt lgkmcnt(0)")
        e("s_waitcnt lgkmcnt(0)")
    def gemv(self, nsteps, abase, a_lds_off, chains, vaddr=3):
        e = self.e
        AHEAD = 12
        def rd(st): e(f"ds_read_b128 v[{abase+4*st}:{abase+4*st+3}], v{vaddr} offset:{a_lds_off+st*64}")
        issued = min(nsteps, AHEAD)
        for st in range(issued): rd(st)
        for st in range(nsteps):
            e(f"s_waitcnt lgkmcnt({issued - 1 - st})")
            for D, fb in chains:
                c = "0" if st == 0 else f"v[{D}:{D+3}]"
                e(f"v_mfma_f32_16x16x32_bf16 v[{D}:{D+3}], v[{abase+4*st}:{abase+4*st+3}], v[{fb+4*st}:{fb+4*st+3}], {c}")
            if issued < nsteps:
                rd(issued); issued += 1
    def wait_own_s(self, n=1):
        e = self.e
        L = self.lab("wown"); Lx = self.lab("wownx")
        e("v_mov_b32 v8, 0")
        e.label(L)
        e(f"ds_read_b32 v9, v8 offset:{MISC+4}")
        e("s_waitcnt lgkmcnt(0)")
        e("v_readfirstlane_b32 s64, v9")
        e(f"s_cmp_ge_u32 s64, {n}")
        e(f"s_cbranch_scc1 {Lx}")
        e("s_sleep 8")
        e(f"s_sub_u32 s{S_TO}, s{S_TO}, 1")
        e(f"s_cmp_lg_u32 s{S_TO}, 0")
        e(f"s_cbranch_scc1 {L}")
        e(f"s_branch L_hfail")
        e.label(Lx)
    def gate_all(self):
        e = self.e
        L = self.lab("gate"); Lx = self.lab("gatex")
        e("v_lshlrev_b32 v8, 4, v1")
        e(f"s_mov_b32 s64, {HBUF}")
        e.label(L)
        e(f"buffer_load_dwordx4 v[40:43], v8, s[{R_WS}:{R_WS+3}], s64 offen sc1")
        e(f"buffer_load_dwordx4 v[44:47], v8, s[{R_WS}:{R_WS+3}], s64 offen offset:1024 sc1")
        e("s_waitcnt vmcnt(0)")
        e(f"v_xor_b32 v41, s{S_TAG}, v41")
        e(f"v_xor_b32 v43, s{S_TAG}, v43")
        e(f"v_xor_b32 v45, s{S_TAG}, v45")
        e(f"v_xor_b32 v47, s{S_TAG}, v47")
        e("v_or3_b32 v41, v41, v43, v45")
        e("v_or_b32 v41, v41, v47")
        e("v_cmp_ne_u32 vcc, 0, v41")
        e(f"s_cbranch_vccz {Lx}")
        e("s_sleep 4")
        e(f"s_sub_u32 s{S_TO}, s{S_TO}, 1")
        e(f"s_cmp_lg_u32 s{S_TO}, 0")
        e(f"s_cbranch_scc1 {L}")
        e(f"s_branch L_hfail")
        e.label(Lx)
    def sweep(self, units, extra_load=None, extra_check=None, smask=69):
        e = self.e
        n = len(units)
        L = self.lab("sweep"); Lx = self.lab("sweepx")
        e(f"s_mov_b32 s{smask}, {(1<<n)-1:#x}")
        e.label(L)
        for i, (loads, tags) in enumerate(units):
            sk = self.lab("sk")
            e(f"s_bitcmp1_b32 s{smask}, {i}")
            e(f"s_cbranch_scc0 {sk}")
            for l in loads: e(l)
            e.label(sk)
        if extra_load: e(extra_load)
        e("s_waitcnt vmcnt(0)")
        for i, (loads, tags) in enumerate(units):
            sk = self.lab("ck")
            e(f"s_bitcmp1_b32 s{smask}, {i}")
            e(f"s_cbranch_scc0 {sk}")
            e(f"v_cmp_ne_u32 vcc, s{S_TAG}, v{tags[0]}")
            for k, tg in enumerate(tags[1:]):
                e(f"v_cmp_ne_u32 s[66:67], s{S_TAG}, v{tg}")
                e("s_or_b64 vcc, vcc, s[66:67]")
            e("s_cmp_lg_u64 vcc, 0")
            e(f"s_cbranch_scc1 {sk}")
            e(f"s_bitset0_b32 s{smask}, {i}")
            e.label(sk)
        if extra_check:
            extra_check()
            e(f"s_or_b32 s64, s64, s{smask}")
            e("s_cmp_eq_u32 s64, 0")
        else:
            e(f"s_cmp_eq_u32 s{smask}, 0")
        e(f"s_cbranch_scc1 {Lx}")
        e(f"s_sub_u32 s{S_TO}, s{S_TO}, 1")
        e(f"s_cmp_lg_u32 s{S_TO}, 0")
        e(f"s_cbranch_scc1 {L}")
        e(f"s_branch L_hfail")
        e.label(Lx)

    def ln_finish(self, mean, var, out_mb, out_rs):
        e = self.e
        for m, o in zip(mean, out_mb):
            if m != o: e(f"v_mov_b32 v{o}, v{m}")
        self.rnd_many(list(out_mb) + list(var))
        for v in var: e(f"v_add_f32 v{v}, {f2u(1e-5):#x}, v{v}")
        self.rnd_many(var)
        for v in var: e(f"v_sqrt_f32 v{v}, v{v}")
        self.rnd_many(var)
        for v, o in zip(var, out_rs): e(f"v_rcp_f32 v{o}, v{v}")

    def q_path(self):
        e = self.e
        e("v_lshlrev_b32 v8, 4, v1")
        e("v_cmp_gt_u32 s[70:71], 56, v1")
        e("v_mov_b32 v9, 0x10000")
        e("v_cndmask_b32 v8, v9, v8, s[70:71]")
        e(f"buffer_load_dwordx4 v[12:15], v8, s[{R_X}:{R_X+3}], 0 offen")
        e(f"buffer_load_dwordx4 v[16:19], v8, s[{R_X}:{R_X+3}], 0 offen offset:896")
        e(f"buffer_load_dword v10, off, s[{R_WS}:{R_WS+3}], 0 offset:{EPOCH} sc1")
        e(f"s_and_b32 s64, s{S_SPL}, 7")
        e("s_lshl_b32 s64, s64, 2")
        e(f"s_lshl_b32 s65, s{S_B}, 1")
        e("s_add_u32 s64, s64, s65")
        e(f"s_lshr_b32 s65, s{S_SPL}, 3")
        e("s_add_u32 s64, s64, s65")
        e(f"s_lshl_b32 s65, s{S_HKV}, 5")
        e("s_add_u32 s12, s64, s65")
        e("s_lshl_b32 s64, s12, 5")
        self.srd(R_W, P_WQ, 448 * 8192)
        self.dma_slice(R_W, 8192, 14, 64, 0, 20)
        e("v_mov_b32 v20, 0")
        e(f"ds_write_b32 v20, v20 offset:{MISC+4}")
        e("s_waitcnt vmcnt(15)")
        for b in range(2):
            for i in range(4):
                e(f"v_lshlrev_b32 v{24+8*b+2*i}, 16, v{12+4*b+i}")
                e(f"v_and_b32 v{25+8*b+2*i}, 0xffff0000, v{12+4*b+i}")
        for b in range(2):
            x = 24 + 8 * b
            e(f"v_add_f32 v{40+b}, v{x}, v{x+1}")
            for i in range(2, 8): e(f"v_add_f32 v{40+b}, v{40+b}, v{x+i}")
        self.wave_sum_to_sgpr([40, 41], [64, 65])
        inv = f2u(1.0 / 448)
        for b in range(2):
            e(f"v_mov_b32 v{42+b}, {inv:#x}")
            e(f"v_mul_f32 v{42+b}, s{64+b}, v{42+b}")
        for b in range(2):
            x = 24 + 8 * b
            e(f"v_sub_f32 v44, v{x}, v{42+b}")
            e(f"v_mul_f32 v{40+b}, v44, v44")
            for i in range(1, 8):
                e(f"v_sub_f32 v44, v{x+i}, v{42+b}")
                e(f"v_fmac_f32 v{40+b}, v44, v44")
            e(f"v_cndmask_b32 v{40+b}, 0, v{40+b}, s[70:71]")
        self.wave_sum_to_sgpr([40, 41], [64, 65])
        for b in range(2):
            e(f"v_mov_b32 v{44+b}, {inv:#x}")
            e(f"v_mul_f32 v{44+b}, s{64+b}, v{44+b}")
        self.ln_finish([42, 43], [44, 45], [42, 43], [46, 47])
        for b in range(2):
            x = 24 + 8 * b
            for i in range(8): e(f"v_sub_f32 v{x+i}, v{x+i}, v{42+b}")
            for i in range(4): e(f"v_cvt_pk_bf16_f32 v{12+4*b+i}, v{x+2*i}, v{x+2*i+1}")
            for i in range(4):
                e(f"v_lshlrev_b32 v{x+2*i}, 16, v{12+4*b+i}")
                e(f"v_and_b32 v{x+2*i+1}, 0xffff0000, v{12+4*b+i}")
            for i in range(8): e(f"v_mul_f32 v{x+i}, v{x+i}, v{46+b}")
            for i in range(4): e(f"v_cvt_pk_bf16_f32 v{12+4*b+i}, v{x+2*i}, v{x+2*i+1}")
        e("v_lshlrev_b32 v8, 4, v1")
        e("s_mov_b64 exec, s[70:71]")
        e(f"ds_write_b128 v8, v[12:15] offset:{AV}")
        e(f"ds_write_b128 v8, v[16:19] offset:{AV+AVS}")
        e("s_mov_b64 exec, -1")
        e("s_waitcnt vmcnt(14)")
        e("v_readfirstlane_b32 s64, v10")
        e(f"s_add_u32 s{S_TAG}, s64, {GOLD:#x}")
        e(f"v_mov_b32 v21, s{S_TAG}")
        e(f"ds_write_b32 v20, v21 offset:{MISC}")
        e("s_waitcnt vmcnt(0) lgkmcnt(0)")
        self.stamp(1)
        self.tr_frags(14, 0, 64)
        self.gemv(14, 128, AV, [(48, 64)])
        e("v_cvt_pk_bf16_f32 v52, v48, v48")
        e("v_cvt_pk_bf16_f32 v54, v49, v49")
        e(f"v_mov_b32 v53, s{S_TAG}")
        e(f"v_mov_b32 v55, s{S_TAG}")
        e("v_lshlrev_b32 v8, 3, v1")
        e("s_lshl_b32 s64, s12, 7")
        e(f"s_add_u32 s64, s64, {QBUF}")
        e(f"s_add_u32 s65, s64, {4096*8}")
        e("s_mov_b64 exec, 0xffff")
        e(f"buffer_store_dwordx2 v[52:53], v8, s[{R_WS}:{R_WS+3}], s64 offen sc1")
        e(f"buffer_store_dwordx2 v[54:55], v8, s[{R_WS}:{R_WS+3}], s65 offen sc1")
        e("s_mov_b64 exec, -1")
        self.stamp(2)
        e("v_lshlrev_b32 v8, 4, v1")
        e(f"s_lshl_b32 s13, s{S_GRP}, 12")
        e(f"s_add_u32 s13, s13, {QBUF}")
        units = [([f"buffer_load_dwordx4 v[{24+4*k}:{27+4*k}], v8, s[{R_WS}:{R_WS+3}], s13 offen offset:{k*1024} sc1"],
                  [25 + 4 * k, 27 + 4 * k]) for k in range(4)]
        self.sweep(units)
        e("s_mov_b32 s64, 0x05040100")
        e("v_lshlrev_b32 v8, 2, v1")
        for k in range(4):
            e(f"v_perm_b32 v{24+4*k}, v{26+4*k}, v{24+4*k}, s64")
            e(f"ds_write_b32 v8, v{24+4*k} offset:{QL+k*256}")
        e("s_waitcnt lgkmcnt(0)")

    def stage_a(self):
        e = self.e
        FB, PB = 64, 128
        self.srd(R_W, P_WO, 4096 * 896)
        e(f"s_mul_i32 s64, s{S_HKV}, {512*896}")
        e(f"s_lshl_b32 s65, s{S_SPL}, 7")
        e("s_add_u32 s64, s64, s65")
        e(f"s_lshl_b32 s65, s{S_HW}, 5")
        e("s_add_u32 s64, s64, s65")
        self.dma_slice(R_W, 896, 16, 64, 0, 20)
        e("s_waitcnt vmcnt(0)")
        self.tr_frags(16, 0, FB)
        self.stamp(4)
        e(f"s_lshr_b32 s12, s{S_HW}, 1")
        e(f"s_and_b32 s13, s{S_HW}, 1")
        e("s_lshl_b32 s14, s12, 3")
        e(f"s_add_u32 s14, s14, s{S_HKV}")
        e("s_lshl_b32 s15, s14, 16")
        e("s_lshl_b32 s64, s13, 11")
        e("s_add_u32 s15, s15, s64")
        e(f"s_add_u32 s15, s15, {PBUF}")
        e("s_lshl_b32 s14, s14, 7")
        e("s_add_u32 s14, s14, s64")
        e(f"s_add_u32 s14, s14, {HBUF}")
        e("v_lshlrev_b32 v5, 4, v1")
        e("v_lshlrev_b32 v6, 3, v4")
        e(f"s_mul_i32 s64, s12, {AVS}")
        e("s_lshl_b32 s65, s13, 9")
        e("s_add_u32 s64, s64, s65")
        e("v_lshlrev_b32 v7, 2, v1")
        e("v_add_u32 v7, s64, v7")
        self.wait_own_s(1)
        self.stamp(5)
        hload = f"buffer_load_dwordx2 v[10:11], v6, s[{R_WS}:{R_WS+3}], s14 offen sc1"
        L = self.lab("ag"); Lx = self.lab("agx")
        e.label(L)
        e(hload)
        e("s_waitcnt vmcnt(0)")
        e(f"v_cmp_eq_u32 vcc, s{S_TAG}, v11")
        e("s_and_b32 s64, vcc_lo, 0xffff")
        e("s_bcnt1_i32_b32 s64, s64")
        e("s_cmp_ge_u32 s64, 13")
        e(f"s_cbranch_scc1 {Lx}")
        e("s_sleep 4")
        e(f"s_sub_u32 s{S_TO}, s{S_TO}, 1")
        e(f"s_cmp_lg_u32 s{S_TO}, 0")
        e(f"s_cbranch_scc1 {L}")
        e("s_branch L_hfail")
        e.label(Lx)
        self.stamp(6)
        units = []
        for s in range(16):
            r = PB + 8 * s
            units.append(([f"s_add_u32 s65, s15, {s*4096}",
                           f"buffer_load_dwordx4 v[{r}:{r+3}], v5, s[{R_WS}:{R_WS+3}], s65 offen sc1",
                           f"buffer_load_dwordx4 v[{r+4}:{r+7}], v5, s[{R_WS}:{R_WS+3}], s65 offen offset:1024 sc1"],
                          [r + 1, r + 3, r + 5, r + 7]))
        def xc():
            e(f"v_cmp_ne_u32 vcc, s{S_TAG}, v11")
            e("s_and_b32 s64, vcc_lo, 0xffff")
        self.sweep(units, hload, xc)
        self.stamp(7)
        e("v_mov_b32 v12, v10")
        self.row_reduce([12], "max")
        e("v_sub_f32 v12, v10, v12")
        e("v_exp_f32 v12, v12")
        e("v_mov_b32 v13, v12")
        self.row_reduce([13], "add")
        e("v_rcp_f32 v13, v13")
        e("v_mul_f32 v12, v12, v13")
        sregs = [40, 41, 42, 43, 44, 45, 46, 47, 52, 53, 54, 55, 56, 57, 58, 59]
        for s in range(16): e(f"v_readlane_b32 s{sregs[s]}, v12, {s}")
        for s in range(16):
            r = PB + 8 * s
            for i in range(4):
                if s == 0: e(f"v_mul_f32 v{14+i}, s{sregs[s]}, v{r+2*i}")
                else: e(f"v_fmac_f32 v{14+i}, s{sregs[s]}, v{r+2*i}")
        e("v_cvt_pk_bf16_f32 v14, v14, v15")
        e("v_cvt_pk_bf16_f32 v16, v16, v17")
        e(f"ds_write_b32 v7, v14 offset:{AV}")
        e(f"ds_write_b32 v7, v16 offset:{AV+256}")
        e("s_waitcnt lgkmcnt(0)")
        e("s_barrier")
        self.gemv(16, PB, AV, [(20, FB)])
        e(f"s_mul_i32 s64, s{S_HKV}, {448*16}")
        e(f"s_lshl_b32 s65, s{S_SPL}, 10")
        e("s_add_u32 s64, s64, s65")
        e(f"s_lshl_b32 s65, s{S_HW}, 8")
        e("s_add_u32 s64, s64, s65")
        e(f"s_add_u32 s64, s64, {YBUF}")
        e("v_mov_b32 v24, v20")
        e(f"v_mov_b32 v25, s{S_TAG}")
        e("v_mov_b32 v26, v21")
        e(f"v_mov_b32 v27, s{S_TAG}")
        e("s_mov_b64 exec, 0xffff")
        e(f"buffer_store_dwordx4 v[24:27], v5, s[{R_WS}:{R_WS+3}], s64 offen sc1")
        self.stamp(8)
        self.endpgm()

    def stage_b(self):
        e = self.e
        FG, FU, GB = 64, 120, 176
        self.srd(R_W, P_WG, 448 * 3584)
        self.srd(R_W2, P_WU, 448 * 3584)
        e("s_lshl_b32 s13, s12, 2")
        e(f"s_add_u32 s13, s13, s{S_HW}")
        e("s_lshl_b32 s64, s13, 5")
        self.dma_slice(R_W, 3584, 14, 64, 0, 20)
        e("s_lshl_b32 s64, s13, 5")
        self.dma_slice(R_W2, 3584, 14, 64, 14 * 1024, 20)
        e(f"s_mul_i32 s64, s{S_HW}, 112")
        e("v_add_u32 v5, s64, v1")
        e("v_add_u32 v6, 64, v5")
        e("v_cmp_gt_u32 s[70:71], 48, v1")
        e("v_cndmask_b32 v6, v5, v6, s[70:71]")
        e("v_lshlrev_b32 v14, 1, v5")
        e("v_lshlrev_b32 v15, 1, v6")
        e(f"buffer_load_ushort v16, v14, s[{R_X}:{R_X+3}], 0 offen")
        e(f"buffer_load_ushort v17, v14, s[{R_X}:{R_X+3}], 0 offen offset:896")
        e(f"buffer_load_ushort v18, v15, s[{R_X}:{R_X+3}], 0 offen")
        e(f"buffer_load_ushort v19, v15, s[{R_X}:{R_X+3}], 0 offen offset:896")
        e("v_lshlrev_b32 v5, 4, v5")
        e("v_lshlrev_b32 v6, 4, v6")
        e("s_waitcnt vmcnt(0)")
        for i in range(4): e(f"v_lshlrev_b32 v{16+i}, 16, v{16+i}")
        self.tr_frags(14, 0, FG)
        self.tr_frags(14, 14 * 1024, FU)
        for k in range(8): e(f"s_mov_b32 s{40+k}, {YBUF + k*7168}")
        self.stamp(4)
        self.wait_own_s(1)
        self.stamp(5)
        self.gate_all()
        self.stamp(6)
        units = []
        for r in range(2):
            for k in range(8):
                g = GB + 4 * (r * 8 + k)
                units.append(([f"buffer_load_dwordx4 v[{g}:{g+3}], v{5+r}, s[{R_WS}:{R_WS+3}], s{40+k} offen sc1"], [g + 1, g + 3]))
        self.sweep(units)
        self.stamp(7)
        for k in range(1, 8):
            for r in range(2):
                for b in range(2):
                    g0 = GB + 4 * (r * 8) + 2 * b
                    e(f"v_add_f32 v{20+2*r+b}, v{g0 if k == 1 else 20+2*r+b}, v{GB+4*(r*8+k)+2*b}")
        self.rnd_many([20, 21, 22, 23])
        for i in range(4): e(f"v_add_f32 v{20+i}, v{20+i}, v{16+i}")
        self.rnd_many([20, 21, 22, 23])
        for b in range(2):
            e(f"v_cndmask_b32 v{24+b}, 0, v{22+b}, s[70:71]")
            e(f"v_add_f32 v{24+b}, v{24+b}, v{20+b}")
        self.wave_sum_to_sgpr([24, 25], [64, 65])
        inv112 = f2u(1.0 / 112)
        for b in range(2):
            e(f"v_mov_b32 v{28+2*b}, {inv112:#x}")
            e(f"v_mul_f32 v{28+2*b}, s{64+b}, v{28+2*b}")
        for b in range(2):
            e(f"v_sub_f32 v26, v{22+b}, v{28+2*b}")
            e(f"v_sub_f32 v27, v{20+b}, v{28+2*b}")
            e(f"v_mul_f32 v26, v26, v26")
            e(f"v_cndmask_b32 v{24+b}, 0, v26, s[70:71]")
            e(f"v_fmac_f32 v{24+b}, v27, v27")
        self.wave_sum_to_sgpr([24, 25], [64, 65])
        e("v_mov_b32 v29, s64")
        e("v_mov_b32 v31, s65")
        e(f"s_lshl_b32 s64, s{S_HW}, 4")
        e("v_mov_b32 v26, s64")
        e("v_mov_b32 v27, 0")
        e("s_mov_b64 exec, 1")
        e(f"ds_write_b128 v26, v[28:31] offset:{STATS}")
        e("s_mov_b64 exec, -1")
        e("s_waitcnt lgkmcnt(0)")
        e("s_barrier")
        for w in range(4): e(f"ds_read_b128 v[{32+4*w}:{35+4*w}], v27 offset:{STATS+16*w}")
        e("s_waitcnt lgkmcnt(0)")
        for b in range(2):
            m = [32 + 4 * w + 2 * b for w in range(4)]
            e(f"v_add_f32 v{48+b}, v{m[0]}, v{m[1]}")
            e(f"v_add_f32 v{50+b}, v{m[2]}, v{m[3]}")
            e(f"v_add_f32 v{48+b}, v{48+b}, v{50+b}")
            e(f"v_mul_f32 v{48+b}, 0.25, v{48+b}") if False else e(f"v_mul_f32 v{48+b}, {f2u(0.25):#x}, v{48+b}")
            for w in range(4): e(f"v_sub_f32 v{m[w]}, v{m[w]}, v{48+b}")
            e(f"v_mul_f32 v{50+b}, v{m[0]}, v{m[0]}")
            for w in range(1, 4): e(f"v_fmac_f32 v{50+b}, v{m[w]}, v{m[w]}")
            e(f"v_mul_f32 v{50+b}, {f2u(112.0):#x}, v{50+b}")
            for w in range(4): e(f"v_add_f32 v{50+b}, v{50+b}, v{m[w]+1}")
            e(f"v_mul_f32 v{50+b}, {f2u(1.0/448):#x}, v{50+b}")
        self.ln_finish([48, 49], [50, 51], [48, 49], [52, 53])
        for i in range(4): e(f"v_sub_f32 v{20+i}, v{20+i}, v{48+(i&1)}")
        self.rnd_many([20, 21, 22, 23])
        for i in range(4): e(f"v_mul_f32 v{20+i}, v{20+i}, v{52+(i&1)}")
        for i in range(4): e(f"v_cvt_pk_bf16_f32 v{20+i}, v{20+i}, v{20+i}")
        e(f"ds_write_b16 v14, v20 offset:{AV}")
        e(f"ds_write_b16 v14, v21 offset:{AV+AVS}")
        e("s_mov_b64 exec, s[70:71]")
        e(f"ds_write_b16 v15, v22 offset:{AV}")
        e(f"ds_write_b16 v15, v23 offset:{AV+AVS}")
        e("s_mov_b64 exec, -1")
        e("s_waitcnt lgkmcnt(0)")
        e("s_barrier")
        self.gemv(14, GB, AV, [(24, FG), (28, FU)])
        self.rnd_many([24, 25, 28, 29])
        k0 = math.sqrt(2.0 / math.pi)
        c1 = f2u(-2.0 * k0 * math.log2(math.e)); c3 = f2u(0.044715)
        e(f"s_mov_b32 s64, {c3:#x}")
        for b in range(2): e(f"v_mul_f32 v{32+b}, v{24+b}, v{24+b}")
        for b in range(2): e(f"v_mul_f32 v{32+b}, v{32+b}, v{24+b}")
        for b in range(2): e(f"v_fma_f32 v{32+b}, v{32+b}, s64, v{24+b}")
        for b in range(2): e(f"v_mul_f32 v{32+b}, {c1:#x}, v{32+b}")
        for b in range(2): e(f"v_exp_f32 v{32+b}, v{32+b}")
        for b in range(2): e(f"v_add_f32 v{32+b}, 1.0, v{32+b}")
        for b in range(2): e(f"v_rcp_f32 v{32+b}, v{32+b}")
        for b in range(2): e(f"v_mul_f32 v{32+b}, v{32+b}, v{24+b}")
        self.rnd_many([32, 33])
        for b in range(2): e(f"v_mul_f32 v{32+b}, v{32+b}, v{28+b}")
        e("v_cvt_pk_bf16_f32 v34, v32, v33")
        e(f"v_mov_b32 v35, s{S_TAG}")
        e("v_lshlrev_b32 v8, 3, v1")
        e("s_lshl_b32 s64, s13, 7")
        e(f"s_add_u32 s64, s64, {GBUF}")
        e("s_mov_b64 exec, 0xffff")
        e(f"buffer_store_dwordx2 v[34:35], v8, s[{R_WS}:{R_WS+3}], s64 offen sc1")
        self.stamp(8)
        self.endpgm()

    def stage_c(self):
        e = self.e
        F0, F1, GB = 64, 120, 176
        self.srd(R_W, P_WD, 1792 * 896)
        self.srd(R_W2, P_OUT, 2 * 448 * 2)
        for cg in range(2):
            e(f"s_mul_i32 s64, s{S_HW}, {448*896}")
            e("s_lshl_b32 s65, s12, 6")
            e("s_add_u32 s64, s64, s65")
            if cg: e("s_add_u32 s64, s64, 32")
            self.dma_slice(R_W, 896, 14, 64, cg * 14 * 1024, 20)
        e("v_and_b32 v5, 31, v1")
        e("v_lshrrev_b32 v6, 5, v1")
        e("s_lshl_b32 s64, s12, 5")
        e("v_add_u32 v7, s64, v5")
        e("v_mul_u32_u24 v14, 448, v6")
        e("v_add_lshl_u32 v14, v14, v7, 1")
        e(f"buffer_load_ushort v16, v14, s[{R_X}:{R_X+3}], 0 offen")
        e("v_lshlrev_b32 v7, 4, v7")
        e("s_waitcnt vmcnt(0)")
        e("v_lshlrev_b32 v16, 16, v16")
        self.tr_frags(14, 0, F0)
        self.tr_frags(14, 14 * 1024, F1)
        e("v_lshlrev_b32 v10, 4, v1")
        e("v_lshlrev_b32 v11, 4, v5")
        e(f"s_mul_i32 s13, s{S_HW}, 3584")
        e(f"s_add_u32 s13, s13, {GBUF}")
        e(f"s_mul_i32 s14, s{S_HW}, {2*AVS}")
        e("v_lshlrev_b32 v12, 2, v1")
        e("v_add_u32 v12, s14, v12")
        e("v_lshlrev_b32 v13, 2, v5")
        e("v_add_u32 v13, s14, v13")
        e("v_add_u32 v3, s14, v3")
        self.stamp(4)
        self.wait_own_s(1)
        self.stamp(5)
        self.gate_all()
        self.stamp(6)
        Ln = self.lab("cnres")
        e(f"s_cmp_lg_u32 s{S_HW}, 0")
        e(f"s_cbranch_scc1 {Ln}")
        for k in range(8): e(f"s_mov_b32 s{40+k}, {YBUF + k*7168}")
        units = [([f"buffer_load_dwordx4 v[{GB+4*k}:{GB+4*k+3}], v7, s[{R_WS}:{R_WS+3}], s{40+k} offen sc1"], [GB + 4 * k + 1, GB + 4 * k + 3]) for k in range(8)]
        self.sweep(units)
        e("v_cmp_lt_u32 vcc, 31, v1")
        for k in range(8): e(f"v_cndmask_b32 v{GB+4*k}, v{GB+4*k}, v{GB+4*k+2}, vcc")
        for k in range(1, 8): e(f"v_add_f32 v17, v{GB if k == 1 else 17}, v{GB+4*k}")
        self.rnd(17)
        e("v_add_f32 v17, v17, v16")
        self.rnd(17)
        e.label(Ln)
        units = [([f"buffer_load_dwordx4 v[{24+4*k}:{27+4*k}], v{10 if k < 3 else 11}, s[{R_WS}:{R_WS+3}], s13 offen offset:{k*1024} sc1"],
                  [25 + 4 * k, 27 + 4 * k]) for k in range(4)]
        self.sweep(units)
        self.stamp(7)
        e("s_mov_b32 s64, 0x05040100")
        e("s_mov_b32 s65, 0x07060302")
        for k in range(4):
            e(f"v_perm_b32 v{25+4*k}, v{26+4*k}, v{24+4*k}, s64")
            e(f"v_perm_b32 v{27+4*k}, v{26+4*k}, v{24+4*k}, s65")
            a = 12 if k < 3 else 13
            e(f"ds_write_b32 v{a}, v{25+4*k} offset:{AV+k*256}")
            e(f"ds_write_b32 v{a}, v{27+4*k} offset:{AV+AVS+k*256}")
        e("s_waitcnt lgkmcnt(0)")
        self.gemv(14, GB, AV, [(40, F0), (44, F1)])
        e(f"s_lshl_b32 s64, s{S_HW}, 8")
        e("v_lshlrev_b32 v8, 3, v1")
        e("v_add_u32 v8, s64, v8")
        e("s_mov_b64 exec, 0xffff")
        e(f"ds_write_b64 v8, v[40:41] offset:{RED}")
        e(f"ds_write_b64 v8, v[44:45] offset:{RED+128}")
        e("s_mov_b64 exec, -1")
        e("s_waitcnt lgkmcnt(0)")
        e("s_barrier")
        Le = self.lab("cend")
        e(f"s_cmp_lg_u32 s{S_HW}, 0")
        e(f"s_cbranch_scc1 {Le}")
        e("v_lshlrev_b32 v8, 3, v5")
        e("v_lshl_add_u32 v8, v6, 2, v8")
        for w in range(4): e(f"ds_read_b32 v{20+w}, v8 offset:{RED+256*w}")
        e("s_waitcnt lgkmcnt(0)")
        e("v_add_f32 v20, v20, v21")
        e("v_add_f32 v22, v22, v23")
        e("v_add_f32 v20, v20, v22")
        self.rnd(20)
        e("v_add_f32 v20, v20, v17")
        e("v_cvt_pk_bf16_f32 v20, v20, v20")
        e(f"buffer_store_short v20, v14, s[{R_W2}:{R_W2+3}], 0 offen")
        e("s_cmp_lg_u32 s12, 0")
        e(f"s_cbranch_scc1 {Le}")
        e(f"v_mov_b32 v21, s{S_TAG}")
        e("s_mov_b64 exec, 1")
        e(f"buffer_store_dword v21, off, s[{R_WS}:{R_WS+3}], 0 offset:{EPOCH} sc1")
        e.label(Le)
        self.stamp(8)
        self.endpgm()

    def build(self):
        e = self.e
        e("s_cmp_ge_u32 s2, 256")
        e("s_cbranch_scc1 L_exit")
        e("s_load_dwordx16 s[16:31], s[0:1], 0")
        e("s_load_dwordx8 s[32:39], s[0:1], 64")
        self.stamp_init()
        e("v_lshrrev_b32 v2, 6, v0")
        e("v_and_b32 v1, 63, v0")
        e(f"v_readfirstlane_b32 s{S_WAVE}, v2")
        self.stamp(0)
        e(f"s_cmp_ge_u32 s{S_WAVE}, 4")
        e("s_cbranch_scc1 L_hpath")
        self.s_path()
        e.label("L_hpath")
        e(f"s_sub_u32 s{S_HW}, s{S_WAVE}, 4")
        e(f"s_lshr_b32 s{S_GRP}, s2, 4")
        e(f"s_and_b32 s{S_SPL}, s2, 15")
        e(f"s_lshr_b32 s{S_B}, s2, 7")
        e(f"s_and_b32 s{S_HKV}, s{S_GRP}, 7")
        e(f"s_mov_b32 s{S_TO}, {TIMEOUT}")
        self.h_consts()
        e("s_waitcnt lgkmcnt(0)")
        self.srd(R_WS, P_WS, WS_SIZE)
        self.srd(R_X, P_X, 1792)
        e(f"s_cmp_lg_u32 s{S_HW}, 0")
        e("s_cbranch_scc1 L_hbar")
        e("s_setprio 2")
        self.q_path()
        e("s_setprio 0")
        e.label("L_hbar")
        e("s_barrier")
        self.stamp(3)
        e("v_mov_b32 v8, 0")
        e(f"ds_read_b32 v9, v8 offset:{MISC}")
        e("s_waitcnt lgkmcnt(0)")
        e(f"v_readfirstlane_b32 s{S_TAG}, v9")
        e(f"s_cmp_eq_u32 s{S_B}, 0")
        e("s_cbranch_scc0 L_b1")
        e(f"s_cmp_lt_u32 s{S_SPL}, 7")
        e("s_cbranch_scc0 L_hdone")
        self.stage_a()
        e.label("L_b1")
        e(f"s_cmp_lt_u32 s{S_SPL}, 4")
        e("s_cbranch_scc0 L_notb")
        e(f"s_lshl_b32 s12, s{S_HKV}, 2")
        e(f"s_add_u32 s12, s12, s{S_SPL}")
        e("s_cmp_lt_u32 s12, 28")
        e("s_cbranch_scc0 L_hdone")
        self.stage_b()
        e.label("L_notb")
        e(f"s_lshr_b32 s64, s{S_SPL}, 1")
        e("s_cmp_eq_u32 s64, 4")
        e("s_cbranch_scc0 L_hdone")
        e(f"s_lshl_b32 s12, s{S_HKV}, 1")
        e(f"s_and_b32 s64, s{S_SPL}, 1")
        e("s_add_u32 s12, s12, s64")
        e("s_cmp_lt_u32 s12, 14")
        e("s_cbranch_scc0 L_hdone")
        self.stage_c()
        e.label("L_hfail")
        e.label("L_hdone")
        self.endpgm()
        e.label("L_exit")
        e("s_endpgm")
        return e.text()

HEAD = """; fused pre-LN GQA decode attention + GEGLU FFN, one persistent launch (256 workgroups, one per CU).
; @launch grid=(256,1,1) block=(512,1,1) lds={lds}
.amdgcn_target "amdgcn-amd-amdhsa--gfx950"
.text
.globl {name}
.p2align 8
.type {name},@function
{name}:
"""
TAIL = """.section .rodata,"a"
.p2align 6
.amdhsa_kernel {name}
  .amdhsa_next_free_vgpr 256
  .amdhsa_next_free_sgpr 102
  .amdhsa_accum_offset 256
  .amdhsa_group_segment_fixed_size 0
  .amdhsa_kernarg_size 96
  .amdhsa_user_sgpr_count 2
  .amdhsa_user_sgpr_kernarg_segment_ptr 1
  .amdhsa_system_sgpr_workgroup_id_x 1
.end_amdhsa_kernel
"""

def make(path, **kw):
    g = Gen(**kw)
    body = g.build()
    open(path, "w").write(HEAD.format(lds=LDS_SIZE, name=NAME) + body + TAIL.format(name=NAME))
    return g

if __name__ == "__main__":
    import argparse
    ap = argparse.ArgumentParser()
    ap.add_argument("out")
    ap.add_argument("--diag", action="store_true")
    ap.add_argument("--npro", type=int, default=32)
    ap.add_argument("--kvflags", default="nt")
    ap.add_argument("--wflags", default="")
    a = ap.parse_args()
    g = make(a.out, diag=a.diag, npro=a.npro, kvflags=a.kvflags, wflags=a.wflags)
    print("pads inserted:", g.e.npad, "lines:", len(g.e.lines))
```

```python
import sys, struct, math
from emit import Emitter

NAME = "sequential_preLN__gqa_block_cached__geglu_ffn__decode_kernel"
def f2u(x): return struct.unpack("<I", struct.pack("<f", x))[0]

EPOCH = 0
QBUF = 0x140000
HBUF = 0x12000
YBUF = 0x14000
GBUF = 0x22000
PBUF = 0x40000
STAMP = 0x200000
WS_SIZE = 0x400000
QL = 0x0000
MISC = 0x0400
SML = 0x0500
STATS = 0x0600
AV = 0x0800
AVS = 1056
RED = 0x2A00
SO = 0x3000
STG = 0x5000
STGW = 28 * 1024
LDS_SIZE = STG + 4 * STGW

CSC = f2u(0.0625 * math.log2(math.e))
GOLD = 0x9E3779B9
TIMEOUT = 200000

S_WAVE, S_GRP, S_SPL, S_B, S_HKV, S_HW, S_TAG = 3, 4, 5, 6, 7, 8, 9
P_X, P_K, P_V, P_WQ, P_WO, P_BX, P_WG, P_WU, P_WD, P_OUT, P_DBG, P_WS = [16 + 2 * i for i in range(12)]
R_K, R_V, R_WS, R_W, R_X, R_W2 = 40, 44, 48, 52, 56, 60
S_C = 10
S_TO = 11
ST0 = 72

class Gen:
    def __init__(self, diag=False, npro=32, kvflags="nt", wflags="", qflags="", noroles=False, athr=13, gsleep=4, winfl=1, dist=8, nosoft=False, noq=False, trig=2, aspec=2):
        self.e = Emitter()
        self.diag = diag
        self.npro = npro
        self.kvflags = kvflags
        self.wflags = wflags
        self.qflags = qflags
        self.noroles = noroles
        self.athr = athr
        self.gsleep = gsleep
        self.winfl = winfl
        self.dist = dist
        self.nosoft = nosoft
        self.noq = noq
        self.trig = trig
        self.aspec = aspec
        self.uid = 0
    def lab(self, s):
        self.uid += 1
        return f"L_{s}_{self.uid}"
    def srd(self, r, p, size):
        e = self.e
        e(f"s_mov_b32 s{r}, s{p}")
        e(f"s_mov_b32 s{r+1}, s{p+1}")
        e(f"s_mov_b32 s{r+2}, {size}")
        e(f"s_mov_b32 s{r+3}, 0x20000")
    def stamp(self, i):
        if self.diag and i in (6, 7):
            self.e(f"s_mov_b32 s{ST0+2*(i+3)}, s{S_TO}")
        if self.diag:
            self.e(f"s_memrealtime s[{ST0+2*i}:{ST0+2*i+1}]")
            self.e("s_waitcnt lgkmcnt(0)")
    def stamp_init(self):
        if self.diag:
            for i in range(12):
                self.e(f"s_mov_b64 s[{ST0+2*i}:{ST0+2*i+1}], 0")
    def stamp_flush(self):
        if not self.diag: return
        e = self.e
        e("s_mov_b64 exec, -1")
        e(f"s_lshl_b32 s64, s2, 3")
        e(f"s_add_u32 s64, s64, s{S_WAVE}")
        e(f"s_lshl_b32 s64, s64, 6")
        e(f"s_add_u32 s64, s64, {STAMP}")
        e(f"s_getreg_b32 s65, hwreg(HW_REG_XCC_ID)")
        e(f"s_getreg_b32 s66, hwreg(HW_REG_HW_ID)")
        for i in range(12):
            e(f"v_mov_b32 v{2+i}, s{ST0+2*i}")
        e("v_mov_b32 v14, s65")
        e("v_mov_b32 v15, s66")
        e("v_mov_b32 v16, 0")
        e("v_mov_b32 v17, 0")
        e("s_mov_b64 exec, 1")
        for i in range(4):
            e(f"buffer_store_dwordx4 v[{2+4*i}:{5+4*i}], off, s[{R_WS}:{R_WS+3}], s64 offset:{16*i}")
        e("s_waitcnt vmcnt(0)")
    def endpgm(self):
        self.stamp_flush()
        self.e("s_endpgm")

    def rnd(self, v):
        self.e(f"v_cvt_pk_bf16_f32 v{v}, v{v}, v{v}")
        self.e(f"v_lshlrev_b32 v{v}, 16, v{v}")
    def rnd_many(self, vs):
        for v in vs: self.e(f"v_cvt_pk_bf16_f32 v{v}, v{v}, v{v}")
        for v in vs: self.e(f"v_lshlrev_b32 v{v}, 16, v{v}")
    def row_reduce(self, vs, op="add"):
        e = self.e
        for ctl in ("quad_perm:[1,0,3,2]", "quad_perm:[2,3,0,1]", "row_half_mirror", "row_mirror"):
            for v in vs:
                e(f"v_{op}_f32_dpp v{v}, v{v}, v{v} {ctl} row_mask:0xf bank_mask:0xf")
    def wave_sum_to_sgpr(self, vs, ss):
        e = self.e
        self.row_reduce(vs)
        for v in vs: e(f"v_add_f32_dpp v{v}, v{v}, v{v} row_bcast:15 row_mask:0xa bank_mask:0xf")
        for v in vs: e(f"v_add_f32_dpp v{v}, v{v}, v{v} row_bcast:31 row_mask:0xc bank_mask:0xf")
        for v, s in zip(vs, ss): e(f"v_readlane_b32 s{s}, v{v}, 63")
    def cross_rows(self, v, t, op):
        e = self.e
        e(f"v_mov_b32 v{t}, v{v}")
        e(f"v_permlane16_swap_b32 v{v}, v{t}")
        e(f"v_{op}_f32 v{v}, v{v}, v{t}")
        e(f"v_mov_b32 v{t}, v{v}")
        e(f"v_permlane32_swap_b32 v{v}, v{t}")
        e(f"v_{op}_f32 v{v}, v{v}, v{t}")

    def s_path(self):
        e = self.e
        KO0, KO1, VO = 2, 3, 4
        MK = 5
        MRUN, LRUN, NRUN = 9, 10, 11
        T = 12; PK = 16; MX, MX2, AL, ALD, NN = 18, 19, 20, 21, 22
        P = 24
        D0, D1, ACC0, ACC1, AF, QF, SLOT = 28, 32, 36, 40, 44, 60, 80
        S_BASE, S_O1, S_O2, S_CNT = 64, 65, 66, 67
        NT = 32
        e("v_and_b32 v12, 15, v1")
        e("v_lshrrev_b32 v13, 4, v1")
        e("v_and_b32 v14, 7, v12")
        e("v_lshrrev_b32 v15, 3, v12")
        e(f"v_lshlrev_b32 v{KO0}, 9, v14")
        e("v_lshl_add_u32 v16, v15, 2, v13")
        e(f"v_lshl_add_u32 v{KO0}, v16, 4, v{KO0}")
        e(f"v_add_u32 v{KO1}, 0x1000, v{KO0}")
        e(f"v_lshlrev_b32 v{VO}, 11, v13")
        e(f"v_lshl_add_u32 v{VO}, v12, 4, v{VO}")
        e("s_mov_b32 s68, 0")
        e(f"s_lshl_b32 s{S_BASE}, s2, 20")
        e(f"s_lshl_b32 s65, s{S_HW}, 13")
        e(f"s_add_u32 s{S_BASE}, s{S_BASE}, s65")
        e("s_waitcnt lgkmcnt(0)")
        self.srd(R_K, P_K, 1 << 28)
        self.srd(R_V, P_V, 1 << 28)
        state = dict(issued=-1)
        def slot_regs(s): return f"v[{SLOT+4*s}:{SLOT+4*s+3}]"
        def issue(n, slot, soff):
            i = n % 16
            if i < 8:
                G, j = i >> 2, i & 3
                e(f"buffer_load_dwordx4 {slot_regs(slot)}, v{KO0+G}, s[{R_K}:{R_K+3}], s{soff} offen offset:{j*128} {self.kvflags}")
            else:
                i -= 8
                e(f"buffer_load_dwordx4 {slot_regs(slot)}, v{VO}, s[{R_V}:{R_V+3}], s{soff} offen offset:{(i>>1)*512+(i&1)*256} {self.kvflags}")
        npro = self.npro
        assert 16 <= npro <= 44
        for n in range(npro):
            if n % 16 == 0:
                e(f"s_add_u32 s{S_O1}, s{S_BASE}, {(n//16)*32768}")
            if n >= self.dist: e(f"s_waitcnt vmcnt({self.dist-1})")
            issue(n, n, S_O1)
            if n == 7:
                self.stamp(4)
                self.srd(R_WS, P_WS, WS_SIZE)
                e(f"s_mov_b32 s{S_C}, {CSC:#x}")
                e("v_lshrrev_b32 v16, 1, v14")
                e("v_and_b32 v17, 1, v14")
                e("v_mov_b32 v18, 0xffff")
                e("v_lshlrev_b32 v17, 4, v17")
                e("v_lshlrev_b32 v18, v17, v18")
                for i in range(4):
                    e(f"v_cmp_eq_u32 vcc, {i}, v16")
                    e(f"v_cndmask_b32 v{MK+i}, 0, v18, vcc")
                e(f"v_mov_b32 v{MRUN}, 0xff800000")
                e(f"v_mov_b32 v{NRUN}, 0x7f800000")
                e(f"v_mov_b32 v{LRUN}, 0")
                for i in range(8): e(f"v_mov_b32 v{ACC0+i}, 0")
                e("v_bfe_u32 v16, v12, 2, 1")
                e("v_lshl_add_u32 v16, v16, 2, v13")
                e("v_lshlrev_b32 v23, 9, v15")
                e("v_lshl_add_u32 v23, v16, 4, v23")
        self.stamp(5)
        if not self.noq: e("s_barrier")
        self.stamp(1)
        for j in range(4):
            e(f"ds_read_b128 v[{QF+4*j}:{QF+4*j+3}], v23 offset:{QL+j*128}")
        e("s_waitcnt lgkmcnt(0)")

        def softmax():
            if self.nosoft: return
            for r in range(4): e(f"v_permlane32_swap_b32 v{D0+r}, v{D1+r}")
            for r in range(4): e(f"v_add_f32_dpp v{T+r}, v{D1+r}, v{D0+r} row_half_mirror row_mask:0xf bank_mask:0x5")
            for r in range(4): e(f"v_add_f32_dpp v{T+r}, v{D0+r}, v{D1+r} row_half_mirror row_mask:0xf bank_mask:0xa")
            e(f"v_cvt_pk_bf16_f32 v{PK}, v{T}, v{T+1}")
            e(f"v_cvt_pk_bf16_f32 v{PK+1}, v{T+2}, v{T+3}")
            e(f"v_lshlrev_b32 v{T}, 16, v{PK}")
            e(f"v_and_b32 v{T+1}, 0xffff0000, v{PK}")
            e(f"v_lshlrev_b32 v{T+2}, 16, v{PK+1}")
            e(f"v_and_b32 v{T+3}, 0xffff0000, v{PK+1}")
            e(f"v_max3_f32 v{MX}, v{T}, v{T+1}, v{T+2}")
            e(f"v_max3_f32 v{MX}, v{MX}, v{T+3}, v{MRUN}")
            self.cross_rows(MX, MX2, "max")
            e(f"v_mov_b32 v{MRUN}, v{MX}")
            e(f"v_mul_f32 v{NN}, s{S_C}, v{MX}")
            e(f"v_sub_f32 v{AL}, 0, v{NN}")
            for r in range(4): e(f"v_fma_f32 v{P+r}, v{T+r}, s{S_C}, v{AL}")
            e(f"v_sub_f32 v{NN}, v{AL}, v{NRUN}")
            e(f"v_mov_b32 v{NRUN}, v{AL}")
            e(f"v_exp_f32 v{AL}, v{NN}")
            for r in range(4): e(f"v_exp_f32 v{P+r}, v{P+r}")
            e(f"v_mov_b32 v{ALD}, v{AL}")
            e(f"v_mul_f32 v{LRUN}, v{LRUN}, v{AL}")
            e(f"v_mov_b32_dpp v{ALD}, v{AL} row_shr:8 row_mask:0x3 bank_mask:0xc")
            e(f"v_mov_b32_dpp v{ALD}, v{AL} row_shl:8 row_mask:0xc bank_mask:0x3")
            for r in range(4): e(f"v_cvt_pk_bf16_f32 v{T+r}, v{P+r}, v{P+r}")
            e(f"v_add_f32 v{P}, v{P}, v{P+1}")
            e(f"v_add_f32 v{P+2}, v{P+2}, v{P+3}")
            for i in range(4): e(f"v_and_b32 v{AF+i}, v{T}, v{MK+i}")
            for i in range(8): e(f"v_mul_f32 v{ACC0+i}, v{ACC0+i}, v{ALD}")
            e(f"v_add_f32 v{P}, v{P}, v{P+2}")
            for r in range(1, 4):
                for i in range(4): e(f"v_and_b32 v{AF+4*r+i}, v{T+r}, v{MK+i}")
            e(f"v_add_f32 v{LRUN}, v{LRUN}, v{P}")

        d = self.dist
        NL = NT * 16
        def slot_of(n): return n if n < npro else n % 16
        def consume(n):
            i = n % 16
            if i < 8:
                G, j = i >> 2, i & 3
                D = D0 if G == 0 else D1
                c = "0" if j == 0 else f"v[{D}:{D+3}]"
                e(f"v_mfma_f32_16x16x32_bf16 v[{D}:{D+3}], {slot_regs(slot_of(n))}, v[{QF+4*j}:{QF+4*j+3}], {c}")
            else:
                i -= 8
                j, hf = i >> 1, i & 1
                A = ACC0 if hf == 0 else ACC1
                e(f"v_mfma_f32_16x16x32_bf16 v[{A}:{A+3}], v[{AF+4*j}:{AF+4*j+3}], {slot_regs(slot_of(n))}, v[{A}:{A+3}]")
        st = dict(k=npro)
        def tile(t, steady):
            for i in range(16):
                n = 16 * t + i
                if i == 8: softmax()
                e(f"s_waitcnt vmcnt({min(63, st['k'] - 1 - n)})")
                consume(n)
                k = st["k"]
                if k >= NL: continue
                prev = k - 16 if k - 16 >= npro else k % 16
                free = prev <= n
                if free and (k - n <= d or n % 2 == 1):
                    if steady:
                        assert k - n == d
                        so = S_O1 if k // 16 == t else S_O2
                    else:
                        if k % 16 == 0 or st.get("so") != k // 16:
                            e(f"s_add_u32 s{S_O2}, s{S_BASE}, {(k//16)*32768}")
                            st["so"] = k // 16
                        so = S_O2
                        e(f"s_waitcnt vmcnt({d-1})")
                    issue(k, slot_of(k), so)
                    st["k"] = k + 1
        t = 0
        while not (st["k"] - 16 * t == d and 16 * t >= npro):
            tile(t, False)
            t += 1
        tfirst = t
        self.stamp(8)
        e(f"s_add_u32 s{S_O1}, s{S_BASE}, {tfirst*32768}")
        e(f"s_mov_b32 s{S_CNT}, {NT-tfirst}")
        e("v_mov_b32 v79, 0")
        L = self.lab("sloop")
        e.label(L)
        e(f"s_add_u32 s{S_O2}, s{S_O1}, 32768")
        e(f"v_mov_b32 v23, s{S_CNT}")
        e(f"s_cmp_eq_u32 s{S_CNT}, 1")
        e(f"s_cselect_b32 s{S_O2}, 0x80000000, s{S_O2}")
        e(f"ds_write_b32 v79, v23 offset:{MISC+12}")
        tile(tfirst, True)
        e(f"s_mov_b32 s{S_O1}, s{S_O2}")
        e(f"s_sub_u32 s{S_CNT}, s{S_CNT}, 1")
        e(f"s_cmp_lg_u32 s{S_CNT}, 0")
        e(f"s_cbranch_scc1 {L}")
        self.stamp(2)
        self.cross_rows(LRUN, MX2, "add")
        e("v_and_b32 v12, 15, v1")
        e("v_lshrrev_b32 v13, 4, v1")
        e("v_lshrrev_b32 v14, 1, v13")
        e("v_and_b32 v15, 1, v13")
        e("v_lshlrev_b32 v16, 10, v14")
        e("v_lshl_add_u32 v16, v12, 5, v16")
        e("v_lshl_add_u32 v16, v15, 4, v16")
        e(f"s_lshl_b32 s64, s{S_HW}, 11")
        e("v_add_u32 v16, s64, v16")
        e(f"ds_write_b128 v16, v[{ACC0}:{ACC0+3}] offset:{SO}")
        e(f"ds_write_b128 v16, v[{ACC1}:{ACC1+3}] offset:{SO+512}")
        e(f"s_lshl_b32 s64, s{S_HW}, 4")
        e("v_add_u32 v17, s64, v1")
        e(f"v_mov_b32 v18, v{NRUN}")
        e(f"v_mov_b32 v19, v{LRUN}")
        e("s_mov_b64 exec, 0x101")
        e(f"ds_write_b64 v17, v[18:19] offset:{SML}")
        e("s_mov_b64 exec, 1")
        e("v_mov_b32 v20, 0")
        e("v_mov_b32 v21, 1")
        e("s_waitcnt lgkmcnt(0)")
        e(f"ds_add_rtn_u32 v22, v20, v21 offset:{MISC+4}")
        e(f"ds_read_b32 v23, v20 offset:{MISC}")
        e("s_waitcnt lgkmcnt(0)")
        e("v_readfirstlane_b32 s64, v22")
        e(f"v_readfirstlane_b32 s{S_TAG}, v23")
        e("s_mov_b64 exec, -1")
        e("s_cmp_eq_u32 s64, 3")
        Ld = self.lab("slast")
        e(f"s_cbranch_scc1 {Ld}")
        self.endpgm()
        e.label(Ld)
        e("s_waitcnt vmcnt(0)")
        e.label("L_sfinal")
        e("v_mov_b32 v20, 0")
        e("v_lshlrev_b32 v21, 3, v1")
        for w in range(4):
            e(f"ds_read_b128 v[{24+4*w}:{27+4*w}], v20 offset:{SML+16*w}")
        OB = 80
        for w in range(4):
            for hk in range(4):
                r = OB + (w * 4 + hk) * 2
                e(f"ds_read_b64 v[{r}:{r+1}], v21 offset:{SO + w*2048 + hk*512}")
            if w == 1: e("s_waitcnt lgkmcnt(4)")
        for h in range(2):
            n = [24 + 4 * w + 2 * h for w in range(4)]
            e(f"v_min3_f32 v{40+h}, v{n[0]}, v{n[1]}, v{n[2]}")
            e(f"v_min_f32 v{40+h}, v{40+h}, v{n[3]}")
        for h in range(2):
            for w in range(4):
                e(f"v_sub_f32 v{44+4*h+w}, v{40+h}, v{24+4*w+2*h}")
        for i in range(8): e(f"v_exp_f32 v{44+i}, v{44+i}")
        for h in range(2):
            e(f"v_mul_f32 v{42+h}, v{44+4*h}, v{25+2*h}")
        for w in range(1, 4):
            for h in range(2):
                e(f"v_fmac_f32 v{42+h}, v{44+4*h+w}, v{25+4*w+2*h}")
        for h in range(2): e(f"v_rcp_f32 v{52+h}, v{42+h}")
        for h in range(2): e(f"v_log_f32 v{54+h}, v{42+h}")
        for h in range(2):
            for w in range(4): e(f"v_mul_f32 v{44+4*h+w}, v{44+4*h+w}, v{52+h}")
        for h in range(2): e(f"v_sub_f32 v{54+h}, v{54+h}, v{40+h}")
        e("s_waitcnt lgkmcnt(0)")
        e(f"v_lshlrev_b32 v22, 4, v1")
        e(f"s_lshl_b32 s64, s2, 12")
        e(f"s_add_u32 s64, s64, {PBUF}")
        for hk in range(4):
            h = hk >> 1
            o = 56 + 4 * hk
            e(f"v_mul_f32 v{o}, v{44+4*h}, v{OB+hk*2}")
            e(f"v_mul_f32 v{o+2}, v{44+4*h}, v{OB+hk*2+1}")
            e(f"v_mov_b32 v{o+1}, s{S_TAG}")
            e(f"v_mov_b32 v{o+3}, s{S_TAG}")
            for w in range(1, 4):
                r = OB + (w * 4 + hk) * 2
                e(f"v_fmac_f32 v{o}, v{44+4*h+w}, v{r}")
                e(f"v_fmac_f32 v{o+2}, v{44+4*h+w}, v{r+1}")
        e("v_cmp_eq_u32 vcc, 1, v1")
        e("v_cndmask_b32 v72, v54, v55, vcc")
        e(f"v_mov_b32 v73, s{S_TAG}")
        e("v_lshlrev_b32 v23, 11, v1")
        e("s_lshl_b32 s65, s2, 3")
        e(f"s_add_u32 s65, s65, {HBUF}")
        e("s_cmp_eq_u32 s68, 1")
        e("s_cbranch_scc1 L_sfinal_back")
        for hk in range(4):
            o = 56 + 4 * hk
            e(f"buffer_store_dwordx4 v[{o}:{o+3}], v22, s[{R_WS}:{R_WS+3}], s64 offen offset:{hk*1024} sc1")
        e("s_mov_b64 exec, 3")
        e(f"buffer_store_dwordx2 v[72:73], v23, s[{R_WS}:{R_WS+3}], s65 offen sc1")
        self.stamp(3)
        self.endpgm()

    def h_consts(self):
        e = self.e
        e("v_and_b32 v4, 15, v1")
        e("v_lshrrev_b32 v5, 4, v1")
        e("v_lshrrev_b32 v6, 2, v4")
        e("v_lshl_add_u32 v6, v5, 3, v6")
        e("v_and_b32 v7, 3, v4")
        e("v_lshlrev_b32 v7, 3, v7")
        e("v_and_b32 v8, 1, v1")
        e(f"v_mul_u32_u24 v8, {AVS}, v8")
        e("v_lshl_add_u32 v3, v5, 4, v8")
    def tr_addr(self, lgpitch, sbase):
        e = self.e
        e(f"v_lshl_add_u32 v2, v6, {lgpitch}, v7")
        e(f"v_add_u32 v2, s{sbase}, v2")
    def dma_voff(self, rowbytes, lgpitch, vout):
        e = self.e
        sh = lgpitch - 4
        e(f"v_lshrrev_b32 v{vout}, {sh}, v1")
        e(f"v_mul_u32_u24 v{vout}, {rowbytes}, v{vout}")
        e(f"v_and_b32 v{vout+1}, {(1<<sh)-1}, v1")
        e(f"v_lshl_add_u32 v{vout}, v{vout+1}, 4, v{vout}")
    def dma_loop(self, srd, voff, n, s_src, src_step, s_dst, inflight=None):
        e = self.e
        L = self.lab("dma")
        inflight = self.winfl
        e(f"s_mov_b32 s66, {n}")
        e.label(L)
        e(f"s_mov_b32 m0, s{s_dst}")
        e(f"s_add_u32 s{s_dst}, s{s_dst}, 1024")
        e(f"buffer_load_dwordx4 v{voff}, s[{srd}:{srd+3}], s{s_src} offen {self.wflags} lds")
        e(f"s_add_u32 s{s_src}, s{s_src}, {src_step}")
        if inflight < 32: e(f"s_waitcnt vmcnt({inflight-1})")
        e("s_sub_u32 s66, s66, 1")
        e("s_cmp_lg_u32 s66, 0")
        e(f"s_cbranch_scc1 {L}")
    def h_sync(self):
        e = self.e
        L = self.lab("hs"); Lx = self.lab("hsx")
        e("s_waitcnt vmcnt(0)")
        e("v_mov_b32 v8, 0")
        e("v_mov_b32 v9, 1")
        e("s_mov_b64 exec, 1")
        e(f"ds_add_u32 v8, v9 offset:{MISC+8}")
        e("s_mov_b64 exec, -1")
        e.label(L)
        e(f"ds_read_b32 v9, v8 offset:{MISC+8}")
        e("s_waitcnt lgkmcnt(0)")
        e("v_readfirstlane_b32 s64, v9")
        e("s_cmp_ge_u32 s64, 4")
        e(f"s_cbranch_scc1 {Lx}")
        e("s_sleep 2")
        e(f"s_sub_u32 s{S_TO}, s{S_TO}, 1")
        e(f"s_cmp_lg_u32 s{S_TO}, 0")
        e(f"s_cbranch_scc1 {L}")
        e(f"s_branch L_hfail")
        e.label(Lx)
    def tr_frags(self, nsteps, off, fbase, lgpitch):
        e = self.e
        for st in range(nsteps):
            f = fbase + 4 * st
            o = off + st * (32 << lgpitch)
            assert o + (4 << lgpitch) < 65536
            e(f"ds_read_b64_tr_b16 v[{f}:{f+1}], v2 offset:{o}")
            e(f"ds_read_b64_tr_b16 v[{f+2}:{f+3}], v2 offset:{o + (4 << lgpitch)}")
            if st % 4 == 3: e("s_waitcnt lgkmcnt(0)")
        e("s_waitcnt lgkmcnt(0)")
    def gemv(self, nsteps, abase, a_lds_off, chains, vaddr=3):
        e = self.e
        AHEAD = 12
        def rd(st): e(f"ds_read_b128 v[{abase+4*st}:{abase+4*st+3}], v{vaddr} offset:{a_lds_off+st*64}")
        issued = min(nsteps, AHEAD)
        for st in range(issued): rd(st)
        for st in range(nsteps):
            e(f"s_waitcnt lgkmcnt({issued - 1 - st})")
            for D, fb in chains:
                c = "0" if st == 0 else f"v[{D}:{D+3}]"
                e(f"v_mfma_f32_16x16x32_bf16 v[{D}:{D+3}], v[{abase+4*st}:{abase+4*st+3}], v[{fb+4*st}:{fb+4*st+3}], {c}")
            if issued < nsteps:
                rd(issued); issued += 1
    def lds_wait(self, off, cmp, val, sleep=4, sreg=64):
        e = self.e
        L = self.lab("lw"); Lx = self.lab("lwx")
        e("v_mov_b32 v8, 0")
        e.label(L)
        e(f"ds_read_b32 v9, v8 offset:{off}")
        e("s_waitcnt lgkmcnt(0)")
        e(f"v_readfirstlane_b32 s{sreg}, v9")
        e(f"s_cmp_{cmp}_u32 s{sreg}, {val}")
        e(f"s_cbranch_scc1 {Lx}")
        e(f"s_sleep {sleep}")
        e(f"s_sub_u32 s{S_TO}, s{S_TO}, 1")
        e(f"s_cmp_lg_u32 s{S_TO}, 0")
        e(f"s_cbranch_scc1 {L}")
        e(f"s_branch L_hfail")
        e.label(Lx)
    def lds_set(self, off, src):
        e = self.e
        e("v_mov_b32 v8, 0")
        e(f"v_mov_b32 v9, {src}")
        e(f"ds_write_b32 v8, v9 offset:{off}")
    def bar(self):
        e = self.e
        L = self.lab("nb")
        e("s_cmp_eq_u32 s68, 1")
        e(f"s_cbranch_scc1 {L}")
        e("s_barrier")
        e.label(L)
    def gate_all(self):
        e = self.e
        L = self.lab("gate"); Lx = self.lab("gatex"); Lo = self.lab("gateo"); Le = self.lab("gatee")
        e(f"s_cmp_lg_u32 s{S_HW}, 0")
        e(f"s_cbranch_scc1 {Lo}")
        e("v_lshlrev_b32 v8, 5, v1")
        e(f"s_mov_b32 s64, {HBUF}")
        e.label(L)
        e(f"buffer_load_dwordx4 v[40:43], v8, s[{R_WS}:{R_WS+3}], s64 offen sc1")
        e(f"buffer_load_dwordx4 v[44:47], v8, s[{R_WS}:{R_WS+3}], s64 offen offset:16 sc1")
        e("s_waitcnt vmcnt(0)")
        e(f"v_xor_b32 v41, s{S_TAG}, v41")
        e(f"v_xor_b32 v43, s{S_TAG}, v43")
        e(f"v_xor_b32 v45, s{S_TAG}, v45")
        e(f"v_xor_b32 v47, s{S_TAG}, v47")
        e("v_or3_b32 v41, v41, v43, v45")
        e("v_or_b32 v41, v41, v47")
        e("v_cmp_ne_u32 vcc, 0, v41")
        e(f"s_cbranch_vccz {Lx}")
        e("s_mov_b64 exec, vcc")
        e(f"s_sleep {self.gsleep}")
        e(f"s_sub_u32 s{S_TO}, s{S_TO}, 1")
        e(f"s_cmp_lg_u32 s{S_TO}, 0")
        e(f"s_cbranch_scc1 {L}")
        e(f"s_branch L_hfail")
        e.label(Lx)
        e("s_mov_b64 exec, -1")
        self.lds_set(MISC + 20, 1)
        e(f"s_branch {Le}")
        e.label(Lo)
        self.lds_wait(MISC + 20, "eq", 1, 2)
        e.label(Le)
    def sweep(self, units, extra_load=None, extra_check=None, smask=69):
        e = self.e
        n = len(units)
        L = self.lab("sweep"); Lx = self.lab("sweepx")
        e(f"s_mov_b32 s{smask}, {(1<<n)-1:#x}")
        e.label(L)
        for i, (loads, tags) in enumerate(units):
            sk = self.lab("sk")
            e(f"s_bitcmp1_b32 s{smask}, {i}")
            e(f"s_cbranch_scc0 {sk}")
            for l in loads: e(l)
            e.label(sk)
        if extra_load: e(extra_load)
        e("s_waitcnt vmcnt(0)")
        for i, (loads, tags) in enumerate(units):
            sk = self.lab("ck")
            e(f"s_bitcmp1_b32 s{smask}, {i}")
            e(f"s_cbranch_scc0 {sk}")
            e(f"v_cmp_ne_u32 vcc, s{S_TAG}, v{tags[0]}")
            for k, tg in enumerate(tags[1:]):
                e(f"v_cmp_ne_u32 s[66:67], s{S_TAG}, v{tg}")
                e("s_or_b64 vcc, vcc, s[66:67]")
            e("s_cmp_lg_u64 vcc, 0")
            e(f"s_cbranch_scc1 {sk}")
            e(f"s_bitset0_b32 s{smask}, {i}")
            e.label(sk)
        if extra_check:
            extra_check()
            e(f"s_or_b32 s64, s64, s{smask}")
            e("s_cmp_eq_u32 s64, 0")
        else:
            e(f"s_cmp_eq_u32 s{smask}, 0")
        e(f"s_cbranch_scc1 {Lx}")
        e(f"s_sub_u32 s{S_TO}, s{S_TO}, 1")
        e(f"s_cmp_lg_u32 s{S_TO}, 0")
        e(f"s_cbranch_scc1 {L}")
        e(f"s_branch L_hfail")
        e.label(Lx)

    def ln_finish(self, mean, var, out_mb, out_rs):
        e = self.e
        for m, o in zip(mean, out_mb):
            if m != o: e(f"v_mov_b32 v{o}, v{m}")
        self.rnd_many(list(out_mb) + list(var))
        for v in var: e(f"v_add_f32 v{v}, {f2u(1e-5):#x}, v{v}")
        self.rnd_many(var)
        for v in var: e(f"v_sqrt_f32 v{v}, v{v}")
        self.rnd_many(var)
        for v, o in zip(var, out_rs): e(f"v_rcp_f32 v{o}, v{v}")

    def q_path(self):
        e = self.e
        e("v_lshlrev_b32 v8, 4, v1")
        e("v_cmp_gt_u32 s[70:71], 56, v1")
        e("v_mov_b32 v9, 0x10000")
        e("v_cndmask_b32 v8, v9, v8, s[70:71]")
        e(f"buffer_load_dwordx4 v[12:15], v8, s[{R_X}:{R_X+3}], 0 offen")
        e(f"buffer_load_dwordx4 v[16:19], v8, s[{R_X}:{R_X+3}], 0 offen offset:896")
        e(f"buffer_load_dword v10, off, s[{R_WS}:{R_WS+3}], 0 offset:{EPOCH} sc1")
        e(f"s_and_b32 s12, s{S_SPL}, 3")
        e(f"s_lshr_b32 s13, s{S_SPL}, 2")
        e(f"s_lshl_b32 s64, s{S_B}, 2")
        e("s_add_u32 s13, s13, s64")
        e(f"s_mul_i32 s64, s12, {112*8192}")
        e(f"s_lshl_b32 s65, s{S_HKV}, 10")
        e("s_add_u32 s64, s64, s65")
        e("s_lshl_b32 s65, s13, 7")
        e("s_add_u32 s64, s64, s65")
        self.srd(R_W, P_WQ, 448 * 8192)
        self.dma_voff(8192, 7, 20)
        for st in range(14):
            e(f"s_mov_b32 m0, {STG + st*1024}")
            if st: e(f"s_add_u32 s64, s64, {8*8192}")
            e(f"buffer_load_dwordx4 v20, s[{R_W}:{R_W+3}], s64 offen {self.qflags} lds")
        self.stamp(9)
        self.h_consts()
        e("v_mov_b32 v20, 0")
        e("v_mov_b32 v21, 0")
        e("v_mov_b32 v21, 0x7fff")
        e(f"ds_write_b64 v20, v[20:21] offset:{MISC+8}")
        e("v_mov_b32 v21, 0")
        e(f"ds_write_b64 v20, v[20:21] offset:{MISC+16}")
        e(f"ds_write_b32 v20, v20 offset:{MISC+4}")
        e("s_waitcnt vmcnt(15)")
        self.stamp(10)
        for b in range(2):
            for i in range(4):
                e(f"v_lshlrev_b32 v{24+8*b+2*i}, 16, v{12+4*b+i}")
                e(f"v_and_b32 v{25+8*b+2*i}, 0xffff0000, v{12+4*b+i}")
        for b in range(2):
            x = 24 + 8 * b
            e(f"v_add_f32 v{40+b}, v{x}, v{x+1}")
            for i in range(2, 8): e(f"v_add_f32 v{40+b}, v{40+b}, v{x+i}")
        self.wave_sum_to_sgpr([40, 41], [64, 65])
        inv = f2u(1.0 / 448)
        for b in range(2):
            e(f"v_mov_b32 v{42+b}, {inv:#x}")
            e(f"v_mul_f32 v{42+b}, s{64+b}, v{42+b}")
        for b in range(2):
            x = 24 + 8 * b
            e(f"v_sub_f32 v44, v{x}, v{42+b}")
            e(f"v_mul_f32 v{40+b}, v44, v44")
            for i in range(1, 8):
                e(f"v_sub_f32 v44, v{x+i}, v{42+b}")
                e(f"v_fmac_f32 v{40+b}, v44, v44")
            e(f"v_cndmask_b32 v{40+b}, 0, v{40+b}, s[70:71]")
        self.wave_sum_to_sgpr([40, 41], [64, 65])
        for b in range(2):
            e(f"v_mov_b32 v{44+b}, {inv:#x}")
            e(f"v_mul_f32 v{44+b}, s{64+b}, v{44+b}")
        self.ln_finish([42, 43], [44, 45], [42, 43], [46, 47])
        for b in range(2):
            x = 24 + 8 * b
            for i in range(8): e(f"v_sub_f32 v{x+i}, v{x+i}, v{42+b}")
            for i in range(4): e(f"v_cvt_pk_bf16_f32 v{12+4*b+i}, v{x+2*i}, v{x+2*i+1}")
            for i in range(4):
                e(f"v_lshlrev_b32 v{x+2*i}, 16, v{12+4*b+i}")
                e(f"v_and_b32 v{x+2*i+1}, 0xffff0000, v{12+4*b+i}")
            for i in range(8): e(f"v_mul_f32 v{x+i}, v{x+i}, v{46+b}")
            for i in range(4): e(f"v_cvt_pk_bf16_f32 v{12+4*b+i}, v{x+2*i}, v{x+2*i+1}")
        e("v_lshlrev_b32 v8, 4, v1")
        e("s_mov_b64 exec, s[70:71]")
        e(f"ds_write_b128 v8, v[12:15] offset:{AV}")
        e(f"ds_write_b128 v8, v[16:19] offset:{AV+AVS}")
        e("s_mov_b64 exec, -1")
        e("s_waitcnt vmcnt(14)")
        e("v_readfirstlane_b32 s64, v10")
        e(f"s_add_u32 s{S_TAG}, s64, {GOLD:#x}")
        e(f"v_mov_b32 v21, s{S_TAG}")
        e(f"ds_write_b32 v20, v21 offset:{MISC}")
        e("s_waitcnt vmcnt(0) lgkmcnt(0)")
        self.stamp(1)
        e(f"s_mov_b32 s64, {STG}")
        self.tr_addr(7, 64)
        e("s_mul_i32 s64, s12, 224")
        e("v_add_u32 v9, s64, v3")
        for st in range(4): e(f"ds_read_b128 v[{128+4*st}:{131+4*st}], v9 offset:{AV+st*64}")
        for cg in range(4): self.tr_frags(4, cg * 32, 64 + 16 * cg, 7)
        e("v_cmp_gt_u32 vcc, 32, v1")
        for i in range(4): e(f"v_cndmask_b32 v{140+i}, 0, v{140+i}, vcc")
        for cg in range(4):
            for i in range(4): e(f"v_cndmask_b32 v{76+16*cg+i}, 0, v{76+16*cg+i}, vcc")
        for st in range(4):
            for cg in range(4):
                D = 144 + 4 * cg
                c = "0" if st == 0 else f"v[{D}:{D+3}]"
                e(f"v_mfma_f32_16x16x32_bf16 v[{D}:{D+3}], v[{128+4*st}:{131+4*st}], v[{64+16*cg+4*st}:{67+16*cg+4*st}], {c}")
        e("v_cmp_lt_u32 s[64:65], 15, v1")
        e("v_cmp_lt_u32 s[66:67], 31, v1")
        e("v_cmp_lt_u32 vcc, 47, v1")
        e(f"v_mov_b32 v53, s{S_TAG}")
        e(f"v_mov_b32 v55, s{S_TAG}")
        e("v_lshlrev_b32 v8, 3, v1")
        for b in range(2):
            e(f"v_cndmask_b32 v{52+2*b}, v{144+b}, v{148+b}, s[64:65]")
        for b in range(2):
            e(f"v_cndmask_b32 v{52+2*b}, v{52+2*b}, v{152+b}, s[66:67]")
        for b in range(2):
            e(f"v_cndmask_b32 v{52+2*b}, v{52+2*b}, v{156+b}, vcc")
        e(f"s_lshl_b32 s64, s{S_HKV}, 14")
        e("s_lshl_b32 s65, s12, 12")
        e("s_add_u32 s64, s64, s65")
        e("s_lshl_b32 s65, s13, 9")
        e("s_add_u32 s64, s64, s65")
        e(f"s_add_u32 s64, s64, {QBUF}")
        e(f"s_add_u32 s65, s64, {8*16384}")
        e(f"buffer_store_dwordx2 v[52:53], v8, s[{R_WS}:{R_WS+3}], s64 offen sc1")
        e(f"buffer_store_dwordx2 v[54:55], v8, s[{R_WS}:{R_WS+3}], s65 offen sc1")
        self.lds_set(MISC + 24, f"s{S_TAG}")
        self.stamp(2)

    def q_gather(self):
        e = self.e
        e("v_lshlrev_b32 v8, 4, v1")
        e(f"s_lshl_b32 s13, s{S_GRP}, 14")
        e(f"s_lshl_b32 s64, s{S_HW}, 10")
        e("s_add_u32 s13, s13, s64")
        e(f"s_add_u32 s13, s13, {QBUF}")
        for k in range(1, 4): e(f"s_add_u32 s{12+2*k}, s13, {k*4096}") if False else None
        units = [([f"s_add_u32 s65, s13, {k*4096}",
                   f"buffer_load_dwordx4 v[{24+4*k}:{27+4*k}], v8, s[{R_WS}:{R_WS+3}], s65 offen sc1"],
                  [25 + 4 * k, 27 + 4 * k]) for k in range(4)]
        self.sweep(units)
        e("v_add_f32 v24, v24, v28")
        e("v_add_f32 v26, v26, v30")
        e("v_add_f32 v32, v32, v36")
        e("v_add_f32 v34, v34, v38")
        e("v_add_f32 v24, v24, v32")
        e("v_add_f32 v26, v26, v34")
        e("v_cvt_pk_bf16_f32 v24, v24, v26")
        e("v_lshlrev_b32 v8, 2, v1")
        e(f"s_lshl_b32 s64, s{S_HW}, 8")
        e("v_add_u32 v8, s64, v8")
        e(f"ds_write_b32 v8, v24 offset:{QL}")
        e("s_waitcnt lgkmcnt(0)")

    def stage_a(self):
        e = self.e
        FB, PB = 64, 128
        self.srd(R_W, P_WO, 4096 * 896)
        e(f"s_mul_i32 s64, s{S_HKV}, {512*896}")
        e(f"s_lshl_b32 s65, s{S_SPL}, 7")
        e("s_add_u32 s64, s64, s65")
        e(f"s_mul_i32 s65, s{S_HW}, {128*896}")
        e("s_add_u32 s64, s64, s65")
        e(f"s_lshl_b32 s65, s{S_HW}, 14")
        e(f"s_add_u32 s65, s65, {STG}")
        self.dma_voff(896, 7, 20)
        self.dma_loop(R_W, 20, 16, 64, 8 * 896, 65)
        self.h_sync()
        e(f"s_lshl_b32 s64, s{S_HW}, 5")
        e(f"s_add_u32 s64, s64, {STG}")
        self.tr_addr(7, 64)
        self.tr_frags(16, 0, FB, 7)
        self.stamp(4)
        e(f"s_lshr_b32 s12, s{S_HW}, 1")
        e(f"s_and_b32 s13, s{S_HW}, 1")
        e("s_lshl_b32 s14, s12, 3")
        e(f"s_add_u32 s14, s14, s{S_HKV}")
        e("s_lshl_b32 s15, s14, 16")
        e("s_lshl_b32 s64, s13, 11")
        e("s_add_u32 s15, s15, s64")
        e(f"s_add_u32 s15, s15, {PBUF}")
        e("s_lshl_b32 s14, s14, 7")
        e("s_add_u32 s14, s14, s64")
        e(f"s_add_u32 s14, s14, {HBUF}")
        e("v_lshlrev_b32 v5, 4, v1")
        e("v_lshlrev_b32 v6, 3, v4")
        e(f"s_mul_i32 s64, s12, {AVS}")
        e("s_lshl_b32 s65, s13, 9")
        e("s_add_u32 s64, s64, s65")
        e("v_lshlrev_b32 v7, 2, v1")
        e("v_add_u32 v7, s64, v7")
        e("s_mov_b32 s68, 1")
        e("s_branch L_a_go")
        e.label("L_a_poll")
        e("s_mov_b32 s68, 0")
        self.stamp(5)
        self.stamp(6)
        L = self.lab("asw"); Lz = self.lab("anl")
        e("s_mov_b32 s69, 0xffff")
        e("s_mov_b32 s70, 0")
        e.label(L)
        e(f"buffer_load_dwordx2 v[10:11], v6, s[{R_WS}:{R_WS+3}], s14 offen sc1")
        for p in range(16):
            r = PB + 8 * p
            sk = self.lab("sk")
            e(f"s_bitcmp1_b32 s70, {p}")
            e(f"s_cbranch_scc0 {sk}")
            e(f"s_add_u32 s65, s15, {p*4096}")
            e(f"buffer_load_dwordx4 v[{r}:{r+3}], v5, s[{R_WS}:{R_WS+3}], s65 offen sc1")
            e(f"buffer_load_dwordx4 v[{r+4}:{r+7}], v5, s[{R_WS}:{R_WS+3}], s65 offen offset:1024 sc1")
            e.label(sk)
        e("s_waitcnt vmcnt(0)")
        e(f"v_cmp_eq_u32 s[66:67], s{S_TAG}, v11")
        e("s_and_b32 s71, s66, 0xffff")
        for p in range(16):
            r = PB + 8 * p
            sk = self.lab("ck")
            e(f"s_bitcmp1_b32 s70, {p}")
            e(f"s_cbranch_scc0 {sk}")
            e(f"v_xor_b32 v12, s{S_TAG}, v{r+1}")
            e(f"v_xor_b32 v13, s{S_TAG}, v{r+3}")
            e(f"v_xor_b32 v14, s{S_TAG}, v{r+5}")
            e(f"v_xor_b32 v15, s{S_TAG}, v{r+7}")
            e("v_or3_b32 v12, v12, v13, v14")
            e("v_or_b32 v12, v12, v15")
            e("v_cmp_ne_u32 vcc, 0, v12")
            e(f"s_cbranch_vccnz {sk}")
            e(f"s_bitset0_b32 s69, {p}")
            e.label(sk)
        e("s_xor_b32 s64, s71, 0xffff")
        e("s_or_b32 s64, s64, s69")
        e("s_cmp_eq_u32 s64, 0")
        e("s_cbranch_scc1 L_a_got")
        e("s_and_b32 s70, s69, s71")
        e("s_bcnt1_i32_b32 s64, s69")
        e(f"s_cmp_le_u32 s64, {self.aspec}")
        e("s_cselect_b32 s70, s69, s70")
        e("s_cmp_lg_u32 s70, 0")
        e(f"s_cbranch_scc1 {Lz}")
        e(f"s_sleep {self.gsleep}")
        e.label(Lz)
        e(f"s_sub_u32 s{S_TO}, s{S_TO}, 1")
        e(f"s_cmp_lg_u32 s{S_TO}, 0")
        e(f"s_cbranch_scc1 {L}")
        e("s_branch L_hfail")
        e.label("L_a_got")
        self.stamp(7)
        e.label("L_a_go")
        e("v_mov_b32 v12, v10")
        self.row_reduce([12], "max")
        e("v_sub_f32 v12, v10, v12")
        e("v_exp_f32 v12, v12")
        e("v_mov_b32 v13, v12")
        self.row_reduce([13], "add")
        e("v_rcp_f32 v13, v13")
        e("v_mul_f32 v12, v12, v13")
        sregs = [40, 41, 42, 43, 44, 45, 46, 47, 52, 53, 54, 55, 56, 57, 58, 59]
        for s in range(16): e(f"v_readlane_b32 s{sregs[s]}, v12, {s}")
        for s in range(16):
            r = PB + 8 * s
            for i in range(4):
                if s == 0: e(f"v_mul_f32 v{14+i}, s{sregs[s]}, v{r+2*i}")
                else: e(f"v_fmac_f32 v{14+i}, s{sregs[s]}, v{r+2*i}")
        e("v_cvt_pk_bf16_f32 v14, v14, v15")
        e("v_cvt_pk_bf16_f32 v16, v16, v17")
        e(f"ds_write_b32 v7, v14 offset:{AV}")
        e(f"ds_write_b32 v7, v16 offset:{AV+256}")
        e("s_waitcnt lgkmcnt(0)")
        self.bar()
        self.gemv(16, PB, AV, [(20, FB)])
        e(f"s_mul_i32 s64, s{S_HKV}, {448*16}")
        e(f"s_lshl_b32 s65, s{S_SPL}, 10")
        e("s_add_u32 s64, s64, s65")
        e(f"s_lshl_b32 s65, s{S_HW}, 8")
        e("s_add_u32 s64, s64, s65")
        e(f"s_add_u32 s64, s64, {YBUF}")
        e("v_mov_b32 v24, v20")
        e(f"v_mov_b32 v25, s{S_TAG}")
        e("v_mov_b32 v26, v21")
        e(f"v_mov_b32 v27, s{S_TAG}")
        e("s_cmp_eq_u32 s68, 1")
        e("s_cbranch_scc1 L_a_poll")
        e("s_mov_b64 exec, 0xffff")
        e(f"buffer_store_dwordx4 v[24:27], v5, s[{R_WS}:{R_WS+3}], s64 offen sc1")
        self.stamp(8)
        self.endpgm()

    def stage_b(self):
        e = self.e
        FG, FU, GB = 64, 120, 176
        self.srd(R_W, P_WG, 448 * 3584)
        self.srd(R_W2, P_WU, 448 * 3584)
        e("s_lshl_b32 s13, s12, 2")
        e(f"s_add_u32 s13, s13, s{S_HW}")
        self.dma_voff(3584, 7, 20)
        for m_, srd_ in enumerate((R_W, R_W2)):
            e("s_lshl_b32 s64, s12, 7")
            e(f"s_mul_i32 s65, s{S_HW}, {112*3584}")
            e("s_add_u32 s64, s64, s65")
            e(f"s_mul_i32 s65, s{S_HW}, {112*128}")
            e(f"s_add_u32 s65, s65, {STG + m_*448*128}")
            self.dma_loop(srd_, 20, 14, 64, 8 * 3584, 65)
        self.h_sync()
        e(f"s_lshl_b32 s64, s{S_HW}, 5")
        e(f"s_add_u32 s64, s64, {STG}")
        self.tr_addr(7, 64)
        self.tr_frags(14, 0, FG, 7)
        e(f"v_add_u32 v2, {448*128}, v2")
        self.tr_frags(14, 0, FU, 7)
        e(f"s_mul_i32 s64, s{S_HW}, 112")
        e("v_add_u32 v5, s64, v1")
        e("v_add_u32 v6, 64, v5")
        e("v_cmp_gt_u32 s[70:71], 48, v1")
        e("v_cndmask_b32 v6, v5, v6, s[70:71]")
        e("v_lshlrev_b32 v14, 1, v5")
        e("v_lshlrev_b32 v15, 1, v6")
        e(f"buffer_load_ushort v16, v14, s[{R_X}:{R_X+3}], 0 offen")
        e(f"buffer_load_ushort v17, v14, s[{R_X}:{R_X+3}], 0 offen offset:896")
        e(f"buffer_load_ushort v18, v15, s[{R_X}:{R_X+3}], 0 offen")
        e(f"buffer_load_ushort v19, v15, s[{R_X}:{R_X+3}], 0 offen offset:896")
        e("v_lshlrev_b32 v5, 4, v5")
        e("v_lshlrev_b32 v6, 4, v6")
        e("s_waitcnt vmcnt(0)")
        for i in range(4): e(f"v_lshlrev_b32 v{16+i}, 16, v{16+i}")
        for k in range(8): e(f"s_mov_b32 s{40+k}, {YBUF + k*7168}")
        self.stamp(4)
        e("s_mov_b32 s68, 1")
        e("s_branch L_b_go")
        e.label("L_b_poll")
        e("s_mov_b32 s68, 0")
        self.stamp(5)
        self.gate_all()
        self.stamp(6)
        units = []
        for r in range(2):
            for k in range(8):
                g = GB + 4 * (r * 8 + k)
                units.append(([f"buffer_load_dwordx4 v[{g}:{g+3}], v{5+r}, s[{R_WS}:{R_WS+3}], s{40+k} offen sc1"], [g + 1, g + 3]))
        self.sweep(units)
        self.stamp(7)
        e.label("L_b_go")
        for k in range(1, 8):
            for r in range(2):
                for b in range(2):
                    g0 = GB + 4 * (r * 8) + 2 * b
                    e(f"v_add_f32 v{20+2*r+b}, v{g0 if k == 1 else 20+2*r+b}, v{GB+4*(r*8+k)+2*b}")
        self.rnd_many([20, 21, 22, 23])
        for i in range(4): e(f"v_add_f32 v{20+i}, v{20+i}, v{16+i}")
        self.rnd_many([20, 21, 22, 23])
        for b in range(2):
            e(f"v_cndmask_b32 v{24+b}, 0, v{22+b}, s[70:71]")
            e(f"v_add_f32 v{24+b}, v{24+b}, v{20+b}")
        self.wave_sum_to_sgpr([24, 25], [64, 65])
        inv112 = f2u(1.0 / 112)
        for b in range(2):
            e(f"v_mov_b32 v{28+2*b}, {inv112:#x}")
            e(f"v_mul_f32 v{28+2*b}, s{64+b}, v{28+2*b}")
        for b in range(2):
            e(f"v_sub_f32 v26, v{22+b}, v{28+2*b}")
            e(f"v_sub_f32 v27, v{20+b}, v{28+2*b}")
            e(f"v_mul_f32 v26, v26, v26")
            e(f"v_cndmask_b32 v{24+b}, 0, v26, s[70:71]")
            e(f"v_fmac_f32 v{24+b}, v27, v27")
        self.wave_sum_to_sgpr([24, 25], [64, 65])
        e("v_mov_b32 v29, s64")
        e("v_mov_b32 v31, s65")
        e(f"s_lshl_b32 s64, s{S_HW}, 4")
        e("v_mov_b32 v26, s64")
        e("v_mov_b32 v27, 0")
        e("s_mov_b64 exec, 1")
        e(f"ds_write_b128 v26, v[28:31] offset:{STATS}")
        e("s_mov_b64 exec, -1")
        e("s_waitcnt lgkmcnt(0)")
        self.bar()
        for w in range(4): e(f"ds_read_b128 v[{32+4*w}:{35+4*w}], v27 offset:{STATS+16*w}")
        e("s_waitcnt lgkmcnt(0)")
        for b in range(2):
            m = [32 + 4 * w + 2 * b for w in range(4)]
            e(f"v_add_f32 v{48+b}, v{m[0]}, v{m[1]}")
            e(f"v_add_f32 v{50+b}, v{m[2]}, v{m[3]}")
            e(f"v_add_f32 v{48+b}, v{48+b}, v{50+b}")
            e(f"v_mul_f32 v{48+b}, 0.25, v{48+b}") if False else e(f"v_mul_f32 v{48+b}, {f2u(0.25):#x}, v{48+b}")
            for w in range(4): e(f"v_sub_f32 v{m[w]}, v{m[w]}, v{48+b}")
            e(f"v_mul_f32 v{50+b}, v{m[0]}, v{m[0]}")
            for w in range(1, 4): e(f"v_fmac_f32 v{50+b}, v{m[w]}, v{m[w]}")
            e(f"v_mul_f32 v{50+b}, {f2u(112.0):#x}, v{50+b}")
            for w in range(4): e(f"v_add_f32 v{50+b}, v{50+b}, v{m[w]+1}")
            e(f"v_mul_f32 v{50+b}, {f2u(1.0/448):#x}, v{50+b}")
        self.ln_finish([48, 49], [50, 51], [48, 49], [52, 53])
        for i in range(4): e(f"v_sub_f32 v{20+i}, v{20+i}, v{48+(i&1)}")
        self.rnd_many([20, 21, 22, 23])
        for i in range(4): e(f"v_mul_f32 v{20+i}, v{20+i}, v{52+(i&1)}")
        for i in range(4): e(f"v_cvt_pk_bf16_f32 v{20+i}, v{20+i}, v{20+i}")
        e(f"ds_write_b16 v14, v20 offset:{AV}")
        e(f"ds_write_b16 v14, v21 offset:{AV+AVS}")
        e("s_mov_b64 exec, s[70:71]")
        e(f"ds_write_b16 v15, v22 offset:{AV}")
        e(f"ds_write_b16 v15, v23 offset:{AV+AVS}")
        e("s_mov_b64 exec, -1")
        e("s_waitcnt lgkmcnt(0)")
        self.bar()
        self.gemv(14, GB, AV, [(24, FG), (28, FU)])
        self.rnd_many([24, 25, 28, 29])
        k0 = math.sqrt(2.0 / math.pi)
        c1 = f2u(-2.0 * k0 * math.log2(math.e)); c3 = f2u(0.044715)
        e(f"s_mov_b32 s64, {c3:#x}")
        for b in range(2): e(f"v_mul_f32 v{32+b}, v{24+b}, v{24+b}")
        for b in range(2): e(f"v_mul_f32 v{32+b}, v{32+b}, v{24+b}")
        for b in range(2): e(f"v_fma_f32 v{32+b}, v{32+b}, s64, v{24+b}")
        for b in range(2): e(f"v_mul_f32 v{32+b}, {c1:#x}, v{32+b}")
        for b in range(2): e(f"v_exp_f32 v{32+b}, v{32+b}")
        for b in range(2): e(f"v_add_f32 v{32+b}, 1.0, v{32+b}")
        for b in range(2): e(f"v_rcp_f32 v{32+b}, v{32+b}")
        for b in range(2): e(f"v_mul_f32 v{32+b}, v{32+b}, v{24+b}")
        self.rnd_many([32, 33])
        for b in range(2): e(f"v_mul_f32 v{32+b}, v{32+b}, v{28+b}")
        e("v_cvt_pk_bf16_f32 v34, v32, v33")
        e(f"v_mov_b32 v35, s{S_TAG}")
        e("v_lshlrev_b32 v8, 3, v1")
        e("s_lshl_b32 s64, s13, 7")
        e(f"s_add_u32 s64, s64, {GBUF}")
        e("s_cmp_eq_u32 s68, 1")
        e("s_cbranch_scc1 L_b_poll")
        e("s_mov_b64 exec, 0xffff")
        e(f"buffer_store_dwordx2 v[34:35], v8, s[{R_WS}:{R_WS+3}], s64 offen sc1")
        self.stamp(8)
        self.endpgm()

    def stage_c(self):
        e = self.e
        F0, F1, GB = 64, 120, 176
        self.srd(R_W, P_WD, 1792 * 896)
        self.srd(R_W2, P_OUT, 2 * 448 * 2)
        e(f"s_mul_i32 s64, s{S_HW}, {448*896}")
        e("s_lshl_b32 s65, s12, 6")
        e("s_add_u32 s64, s64, s65")
        e(f"s_mul_i32 s65, s{S_HW}, {STGW}")
        e(f"s_add_u32 s65, s65, {STG}")
        self.tr_addr(6, 65)
        self.dma_voff(896, 6, 20)
        self.dma_loop(R_W, 20, 28, 64, 16 * 896, 65)
        e("s_waitcnt vmcnt(0)")
        self.tr_frags(14, 0, F0, 6)
        self.tr_frags(14, 32, F1, 6)
        e("v_and_b32 v5, 31, v1")
        e("v_lshrrev_b32 v6, 5, v1")
        e("s_lshl_b32 s64, s12, 5")
        e("v_add_u32 v7, s64, v5")
        e("v_mul_u32_u24 v14, 448, v6")
        e("v_add_lshl_u32 v14, v14, v7, 1")
        e(f"buffer_load_ushort v16, v14, s[{R_X}:{R_X+3}], 0 offen")
        e("v_lshlrev_b32 v7, 4, v7")
        e("s_waitcnt vmcnt(0)")
        e("v_lshlrev_b32 v16, 16, v16")
        e("v_lshlrev_b32 v10, 4, v1")
        e("v_lshlrev_b32 v11, 4, v5")
        e(f"s_mul_i32 s13, s{S_HW}, 3584")
        e(f"s_add_u32 s13, s13, {GBUF}")
        e(f"s_mul_i32 s14, s{S_HW}, {2*AVS}")
        e("v_lshlrev_b32 v12, 2, v1")
        e("v_add_u32 v12, s14, v12")
        e("v_lshlrev_b32 v13, 2, v5")
        e("v_add_u32 v13, s14, v13")
        e("v_add_u32 v3, s14, v3")
        self.stamp(4)
        e("v_mov_b32 v17, 0")
        e("s_mov_b32 s68, 1")
        e("s_branch L_c_go")
        e.label("L_c_poll")
        e("s_mov_b32 s68, 0")
        self.stamp(5)
        self.gate_all()
        self.stamp(6)
        Ln = self.lab("cnres")
        e(f"s_cmp_lg_u32 s{S_HW}, 0")
        e(f"s_cbranch_scc1 {Ln}")
        for k in range(8): e(f"s_mov_b32 s{40+k}, {YBUF + k*7168}")
        units = [([f"buffer_load_dwordx4 v[{GB+4*k}:{GB+4*k+3}], v7, s[{R_WS}:{R_WS+3}], s{40+k} offen sc1"], [GB + 4 * k + 1, GB + 4 * k + 3]) for k in range(8)]
        self.sweep(units)
        e("v_cmp_lt_u32 vcc, 31, v1")
        for k in range(8): e(f"v_cndmask_b32 v{GB+4*k}, v{GB+4*k}, v{GB+4*k+2}, vcc")
        for k in range(1, 8): e(f"v_add_f32 v17, v{GB if k == 1 else 17}, v{GB+4*k}")
        self.rnd(17)
        e("v_add_f32 v17, v17, v16")
        self.rnd(17)
        e.label(Ln)
        units = [([f"buffer_load_dwordx4 v[{24+4*k}:{27+4*k}], v{10 if k < 3 else 11}, s[{R_WS}:{R_WS+3}], s13 offen offset:{k*1024} sc1"],
                  [25 + 4 * k, 27 + 4 * k]) for k in range(4)]
        self.sweep(units)
        self.stamp(7)
        e.label("L_c_go")
        e("s_mov_b32 s64, 0x05040100")
        e("s_mov_b32 s65, 0x07060302")
        for k in range(4):
            e(f"v_perm_b32 v{25+4*k}, v{26+4*k}, v{24+4*k}, s64")
            e(f"v_perm_b32 v{27+4*k}, v{26+4*k}, v{24+4*k}, s65")
            a = 12 if k < 3 else 13
            e(f"ds_write_b32 v{a}, v{25+4*k} offset:{AV+k*256}")
            e(f"ds_write_b32 v{a}, v{27+4*k} offset:{AV+AVS+k*256}")
        e("s_waitcnt lgkmcnt(0)")
        self.gemv(14, GB, AV, [(40, F0), (44, F1)])
        e(f"s_lshl_b32 s64, s{S_HW}, 8")
        e("v_lshlrev_b32 v8, 3, v1")
        e("v_add_u32 v8, s64, v8")
        e("s_mov_b64 exec, 0xffff")
        e(f"ds_write_b64 v8, v[40:41] offset:{RED}")
        e(f"ds_write_b64 v8, v[44:45] offset:{RED+128}")
        e("s_mov_b64 exec, -1")
        e("s_waitcnt lgkmcnt(0)")
        self.bar()
        Le = self.lab("cend")
        e(f"s_sub_u32 s64, s{S_HW}, s68")
        e(f"s_cmp_eq_u32 s68, 1")
        e(f"s_cselect_b32 s64, 0, s{S_HW}")
        e(f"s_cmp_lg_u32 s64, 0")
        e(f"s_cbranch_scc1 {Le}")
        e("v_lshlrev_b32 v8, 3, v5")
        e("v_lshl_add_u32 v8, v6, 2, v8")
        for w in range(4): e(f"ds_read_b32 v{20+w}, v8 offset:{RED+256*w}")
        e("s_waitcnt lgkmcnt(0)")
        e("v_add_f32 v20, v20, v21")
        e("v_add_f32 v22, v22, v23")
        e("v_add_f32 v20, v20, v22")
        self.rnd(20)
        e("v_add_f32 v20, v20, v17")
        e("v_cvt_pk_bf16_f32 v20, v20, v20")
        e("s_cmp_eq_u32 s68, 1")
        e("s_cbranch_scc1 L_c_poll")
        e(f"buffer_store_short v20, v14, s[{R_W2}:{R_W2+3}], 0 offen")
        e("s_cmp_lg_u32 s12, 0")
        e(f"s_cbranch_scc1 {Le}")
        e(f"v_mov_b32 v21, s{S_TAG}")
        e("s_mov_b64 exec, 1")
        e(f"buffer_store_dword v21, off, s[{R_WS}:{R_WS+3}], 0 offset:{EPOCH} sc1")
        e.label(Le)
        self.stamp(8)
        self.endpgm()

    def build(self):
        e = self.e
        e("s_cmp_ge_u32 s2, 256")
        e("s_cbranch_scc1 L_exit")
        e("s_load_dwordx16 s[16:31], s[0:1], 0")
        e("s_load_dwordx8 s[32:39], s[0:1], 64")
        self.stamp_init()
        e("v_lshrrev_b32 v2, 6, v0")
        e("v_and_b32 v1, 63, v0")
        e(f"v_readfirstlane_b32 s{S_WAVE}, v2")
        self.stamp(0)
        e(f"s_and_b32 s{S_HW}, s{S_WAVE}, 3")
        e(f"s_cmp_lt_u32 s{S_WAVE}, 4")
        e("s_cbranch_scc1 L_hpath")
        self.s_path()
        e.label("L_hpath")
        e(f"s_lshr_b32 s{S_GRP}, s2, 4")
        e(f"s_and_b32 s{S_SPL}, s2, 15")
        e(f"s_lshr_b32 s{S_B}, s2, 7")
        e(f"s_and_b32 s{S_HKV}, s{S_GRP}, 7")
        e(f"s_mov_b32 s{S_TO}, {TIMEOUT}")
        e("s_waitcnt lgkmcnt(0)")
        self.srd(R_WS, P_WS, WS_SIZE)
        self.srd(R_X, P_X, 1792)
        if self.noq: e("s_branch L_hdone")
        e("s_setprio 2")
        e(f"s_cmp_lg_u32 s{S_HW}, 0")
        e("s_cbranch_scc1 L_hnq")
        self.q_path()
        e("s_branch L_hq")
        e.label("L_hnq")
        e(f"buffer_load_dword v10, off, s[{R_WS}:{R_WS+3}], 0 offset:{EPOCH} sc1")
        self.h_consts()
        e("s_waitcnt vmcnt(0)")
        e("v_readfirstlane_b32 s64, v10")
        e(f"s_add_u32 s{S_TAG}, s64, {GOLD:#x}")
        self.lds_wait(MISC + 24, "eq", f"s{S_TAG}", 2)
        e.label("L_hq")
        self.q_gather()
        e("s_setprio 0")
        e("s_barrier")
        self.stamp(3)
        e(f"s_cmp_lg_u32 s{S_HW}, 1")
        e("s_cbranch_scc1 L_sfinal_back")
        e("s_mov_b32 s68, 1")
        e("s_branch L_sfinal")
        e.label("L_sfinal_back")
        if self.noroles: e("s_branch L_hdone")
        e(f"s_cmp_lg_u32 s{S_HW}, 0")
        e("s_cbranch_scc1 L_rwait")
        self.lds_wait(MISC + 12, "le", self.trig, 8)
        self.srd(R_W, P_DBG, 256)
        e("v_mov_b32 v10, 1")
        e("s_mov_b64 exec, 1")
        e(f"buffer_atomic_add v10, off, s[{R_W}:{R_W+3}], 0 sc0 sc1")
        e("s_waitcnt vmcnt(0)")
        e("s_mov_b64 exec, -1")
        e("v_readfirstlane_b32 s12, v10")
        e("s_add_u32 s12, s12, 1")
        self.lds_set(MISC + 16, "s12")
        e("s_branch L_rgot")
        e.label("L_rwait")
        self.lds_wait(MISC + 16, "lg", 0, 8, 12)
        e.label("L_rgot")
        e("s_sub_u32 s12, s12, 1")
        if self.diag: e(f"s_mov_b32 s{ST0+22}, s12")
        e("s_cmp_ge_u32 s12, 98")
        e("s_cbranch_scc1 L_hdone")
        self.h_consts()
        e("s_cmp_lt_u32 s12, 14")
        e("s_cbranch_scc0 L_notc")
        self.stage_c()
        e.label("L_notc")
        e("s_sub_u32 s12, s12, 14")
        e("s_cmp_lt_u32 s12, 28")
        e("s_cbranch_scc0 L_notb")
        self.stage_b()
        e.label("L_notb")
        e("s_sub_u32 s12, s12, 28")
        e(f"s_mul_i32 s{S_HKV}, s12, 37")
        e(f"s_lshr_b32 s{S_HKV}, s{S_HKV}, 8")
        e(f"s_mul_i32 s64, s{S_HKV}, 7")
        e(f"s_sub_u32 s{S_SPL}, s12, s64")
        self.stage_a()
        e.label("L_hfail")
        e.label("L_hdone")
        self.endpgm()
        e.label("L_exit")
        e("s_endpgm")
        return e.text()

HEAD = """; fused pre-LN GQA decode attention + GEGLU FFN, one persistent launch (256 workgroups, one per CU).
; @launch grid=(256,1,1) block=(512,1,1) lds={lds}
.amdgcn_target "amdgcn-amd-amdhsa--gfx950"
.text
.globl {name}
.p2align 8
.type {name},@function
{name}:
"""
TAIL = """.section .rodata,"a"
.p2align 6
.amdhsa_kernel {name}
  .amdhsa_next_free_vgpr 256
  .amdhsa_next_free_sgpr 102
  .amdhsa_accum_offset 256
  .amdhsa_group_segment_fixed_size 0
  .amdhsa_kernarg_size 96
  .amdhsa_user_sgpr_count 2
  .amdhsa_user_sgpr_kernarg_segment_ptr 1
  .amdhsa_system_sgpr_workgroup_id_x 1
.end_amdhsa_kernel
"""

def make(path, **kw):
    g = Gen(**kw)
    body = g.build()
    open(path, "w").write(HEAD.format(lds=LDS_SIZE, name=NAME) + body + TAIL.format(name=NAME))
    return g

if __name__ == "__main__":
    import argparse
    ap = argparse.ArgumentParser()
    ap.add_argument("out")
    ap.add_argument("--diag", action="store_true")
    ap.add_argument("--npro", type=int, default=32)
    ap.add_argument("--kvflags", default="nt")
    ap.add_argument("--wflags", default="nt")
    ap.add_argument("--qflags", default="nt")
    ap.add_argument("--noroles", action="store_true")
    ap.add_argument("--athr", type=int, default=13)
    ap.add_argument("--gsleep", type=int, default=4)
    ap.add_argument("--winfl", type=int, default=4)
    ap.add_argument("--dist", type=int, default=6)
    ap.add_argument("--nosoft", action="store_true")
    ap.add_argument("--noq", action="store_true")
    ap.add_argument("--trig", type=int, default=2)
    ap.add_argument("--aspec", type=int, default=2)
    a = ap.parse_args()
    g = make(a.out, diag=a.diag, npro=a.npro, kvflags=a.kvflags, wflags=a.wflags, qflags=a.qflags, noroles=a.noroles, athr=a.athr, gsleep=a.gsleep, winfl=a.winfl, dist=a.dist, nosoft=a.nosoft, noq=a.noq, trig=a.trig, aspec=a.aspec)
    print("pads inserted:", g.e.npad, "lines:", len(g.e.lines))
```

```python
import sys, struct, math
from emit import Emitter

NAME = "sequential_preLN__gqa_block_cached__geglu_ffn__decode_kernel"
def f2u(x): return struct.unpack("<I", struct.pack("<f", x))[0]

EPOCH = 0
QBUF = 0x140000
HBUF = 0x12000
YBUF = 0x14000
GBUF = 0x22000
PBUF = 0x40000
STAMP = 0x200000
WS_SIZE = 0x400000
QL = 0x0000
MISC = 0x0400
SML = 0x0500
STATS = 0x0600
AV = 0x0800
AVS = 1056
RED = 0x2A00
SO = 0x3000
STG = 0x5000
STGW = 28 * 1024
LDS_SIZE = STG + 4 * STGW

CSC = f2u(0.0625 * math.log2(math.e))
GOLD = 0x9E3779B9
TIMEOUT = 200000

S_WAVE, S_GRP, S_SPL, S_B, S_HKV, S_HW, S_TAG = 3, 4, 5, 6, 7, 8, 9
P_X, P_K, P_V, P_WQ, P_WO, P_BX, P_WG, P_WU, P_WD, P_OUT, P_DBG, P_WS = [16 + 2 * i for i in range(12)]
R_K, R_V, R_WS, R_W, R_X, R_W2 = 40, 44, 48, 52, 56, 60
S_C = 10
S_TO = 11
ST0 = 72
S_TM = 96

class Gen:
    def __init__(self, diag=False, npro=32, kvflags="nt", wflags="", qflags="", noroles=False, athr=13, gsleep=4, winfl=1, dist=8, nosoft=False, noq=False, trig=2, aspec=2, thr=5):
        self.e = Emitter()
        self.diag = diag
        self.npro = npro
        self.kvflags = kvflags
        self.wflags = wflags
        self.qflags = qflags
        self.noroles = noroles
        self.athr = athr
        self.gsleep = gsleep
        self.winfl = winfl
        self.dist = dist
        self.nosoft = nosoft
        self.noq = noq
        self.trig = trig
        self.aspec = aspec
        self.thr = thr
        self.uid = 0
    def lab(self, s):
        self.uid += 1
        return f"L_{s}_{self.uid}"
    def srd(self, r, p, size):
        e = self.e
        e(f"s_mov_b32 s{r}, s{p}")
        e(f"s_mov_b32 s{r+1}, s{p+1}")
        e(f"s_mov_b32 s{r+2}, {size}")
        e(f"s_mov_b32 s{r+3}, 0x20000")
    def stamp(self, i):
        if self.diag and i in (6, 7):
            self.e(f"s_mov_b32 s{ST0+2*(i+3)}, s{S_TO}")
        if self.diag:
            self.e(f"s_memrealtime s[{ST0+2*i}:{ST0+2*i+1}]")
            self.e("s_waitcnt lgkmcnt(0)")
    def stamp_init(self):
        if self.diag:
            for i in range(12):
                self.e(f"s_mov_b64 s[{ST0+2*i}:{ST0+2*i+1}], 0")
    def stamp_flush(self):
        if not self.diag: return
        e = self.e
        e("s_mov_b64 exec, -1")
        e(f"s_lshl_b32 s64, s2, 3")
        e(f"s_add_u32 s64, s64, s{S_WAVE}")
        e(f"s_lshl_b32 s64, s64, 6")
        e(f"s_add_u32 s64, s64, {STAMP}")
        e(f"s_getreg_b32 s65, hwreg(HW_REG_XCC_ID)")
        e(f"s_getreg_b32 s66, hwreg(HW_REG_HW_ID)")
        for i in range(12):
            e(f"v_mov_b32 v{2+i}, s{ST0+2*i}")
        e("v_mov_b32 v14, s65")
        e("v_mov_b32 v15, s66")
        e("v_mov_b32 v16, 0")
        e("v_mov_b32 v17, 0")
        e("s_mov_b64 exec, 1")
        for i in range(4):
            e(f"buffer_store_dwordx4 v[{2+4*i}:{5+4*i}], off, s[{R_WS}:{R_WS+3}], s64 offset:{16*i}")
        e("s_waitcnt vmcnt(0)")
    def endpgm(self):
        self.stamp_flush()
        self.e("s_endpgm")

    def rnd(self, v):
        self.e(f"v_cvt_pk_bf16_f32 v{v}, v{v}, v{v}")
        self.e(f"v_lshlrev_b32 v{v}, 16, v{v}")
    def rnd_many(self, vs):
        for v in vs: self.e(f"v_cvt_pk_bf16_f32 v{v}, v{v}, v{v}")
        for v in vs: self.e(f"v_lshlrev_b32 v{v}, 16, v{v}")
    def set_tag(self, src):
        self.e(f"s_add_u32 s{S_TAG}, s{src}, {GOLD:#x}")
        self.e(f"s_and_b32 s{S_TM}, s{S_TAG}, 0x3f")
    def tagw(self, dst, src, vmask):
        self.e(f"v_and_or_b32 v{dst}, v{src}, v{vmask}, s{S_TM}")
    def check_words(self, words, tmp):
        e = self.e
        e(f"v_xor_b32 v{tmp}, s{S_TM}, v{words[0]}")
        for w in words[1:]:
            e(f"v_bitop3_b32 v{tmp}, v{w}, s{S_TM}, v{tmp} bitop3:0xbe")
        e(f"v_and_b32 v{tmp}, 0x3f, v{tmp}")
        e(f"v_cmp_ne_u32 vcc, 0, v{tmp}")
    def row_reduce(self, vs, op="add"):
        e = self.e
        for ctl in ("quad_perm:[1,0,3,2]", "quad_perm:[2,3,0,1]", "row_half_mirror", "row_mirror"):
            for v in vs:
                e(f"v_{op}_f32_dpp v{v}, v{v}, v{v} {ctl} row_mask:0xf bank_mask:0xf")
    def wave_sum_to_sgpr(self, vs, ss):
        e = self.e
        self.row_reduce(vs)
        for v in vs: e(f"v_add_f32_dpp v{v}, v{v}, v{v} row_bcast:15 row_mask:0xa bank_mask:0xf")
        for v in vs: e(f"v_add_f32_dpp v{v}, v{v}, v{v} row_bcast:31 row_mask:0xc bank_mask:0xf")
        for v, s in zip(vs, ss): e(f"v_readlane_b32 s{s}, v{v}, 63")
    def cross_rows(self, v, t, op):
        e = self.e
        e(f"v_mov_b32 v{t}, v{v}")
        e(f"v_permlane16_swap_b32 v{v}, v{t}")
        e(f"v_{op}_f32 v{v}, v{v}, v{t}")
        e(f"v_mov_b32 v{t}, v{v}")
        e(f"v_permlane32_swap_b32 v{v}, v{t}")
        e(f"v_{op}_f32 v{v}, v{v}, v{t}")

    def s_path(self):
        e = self.e
        KO0, KO1, VO = 2, 3, 4
        MK = 5
        MRUN, LRUN, NRUN = 9, 10, 11
        T = 12; PK = 16; MX, MX2, AL, ALD, NN = 18, 19, 20, 21, 22
        P = 24
        D0, D1, ACC0, ACC1, AF, QF, SLOT = 28, 32, 36, 40, 44, 60, 80
        S_BASE, S_O1, S_O2, S_CNT = 64, 65, 66, 67
        NT = 32
        e("v_and_b32 v12, 15, v1")
        e("v_lshrrev_b32 v13, 4, v1")
        e("v_and_b32 v14, 7, v12")
        e("v_lshrrev_b32 v15, 3, v12")
        e(f"v_lshlrev_b32 v{KO0}, 9, v14")
        e("v_lshl_add_u32 v16, v15, 2, v13")
        e(f"v_lshl_add_u32 v{KO0}, v16, 4, v{KO0}")
        e(f"v_add_u32 v{KO1}, 0x1000, v{KO0}")
        e(f"v_lshlrev_b32 v{VO}, 11, v13")
        e(f"v_lshl_add_u32 v{VO}, v12, 4, v{VO}")
        e("s_mov_b32 s68, 0")
        e(f"s_lshl_b32 s{S_BASE}, s2, 20")
        e(f"s_lshl_b32 s65, s{S_HW}, 13")
        e(f"s_add_u32 s{S_BASE}, s{S_BASE}, s65")
        e("s_waitcnt lgkmcnt(0)")
        self.srd(R_K, P_K, 1 << 28)
        self.srd(R_V, P_V, 1 << 28)
        state = dict(issued=-1)
        def slot_regs(s): return f"v[{SLOT+4*s}:{SLOT+4*s+3}]"
        def issue(n, slot, soff):
            i = n % 16
            if i < 8:
                G, j = i >> 2, i & 3
                e(f"buffer_load_dwordx4 {slot_regs(slot)}, v{KO0+G}, s[{R_K}:{R_K+3}], s{soff} offen offset:{j*128} {self.kvflags}")
            else:
                i -= 8
                e(f"buffer_load_dwordx4 {slot_regs(slot)}, v{VO}, s[{R_V}:{R_V+3}], s{soff} offen offset:{(i>>1)*512+(i&1)*256} {self.kvflags}")
        npro = self.npro
        assert 16 <= npro <= 44
        for n in range(npro):
            if n % 16 == 0:
                e(f"s_add_u32 s{S_O1}, s{S_BASE}, {(n//16)*32768}")
            if n >= self.thr: e(f"s_waitcnt vmcnt({self.thr-1})")
            issue(n, n, S_O1)
            if n == 7:
                self.stamp(4)
                self.srd(R_WS, P_WS, WS_SIZE)
                e(f"s_mov_b32 s{S_C}, {CSC:#x}")
                e("v_lshrrev_b32 v16, 1, v14")
                e("v_and_b32 v17, 1, v14")
                e("v_mov_b32 v18, 0xffff")
                e("v_lshlrev_b32 v17, 4, v17")
                e("v_lshlrev_b32 v18, v17, v18")
                for i in range(4):
                    e(f"v_cmp_eq_u32 vcc, {i}, v16")
                    e(f"v_cndmask_b32 v{MK+i}, 0, v18, vcc")
                e(f"v_mov_b32 v{MRUN}, 0xff800000")
                e(f"v_mov_b32 v{NRUN}, 0x7f800000")
                e(f"v_mov_b32 v{LRUN}, 0")
                for i in range(8): e(f"v_mov_b32 v{ACC0+i}, 0")
                e("v_bfe_u32 v16, v12, 2, 1")
                e("v_lshl_add_u32 v16, v16, 2, v13")
                e("v_lshlrev_b32 v23, 9, v15")
                e("v_lshl_add_u32 v23, v16, 4, v23")
        self.stamp(5)
        if not self.noq: e("s_barrier")
        self.stamp(1)
        for j in range(4):
            e(f"ds_read_b128 v[{QF+4*j}:{QF+4*j+3}], v23 offset:{QL+j*128}")
        e("s_waitcnt lgkmcnt(0)")

        def softmax(point):
            for r in range(4): e(f"v_permlane32_swap_b32 v{D0+r}, v{D1+r}")
            for r in range(4): e(f"v_add_f32_dpp v{T+r}, v{D1+r}, v{D0+r} row_half_mirror row_mask:0xf bank_mask:0x5")
            for r in range(4): e(f"v_add_f32_dpp v{T+r}, v{D0+r}, v{D1+r} row_half_mirror row_mask:0xf bank_mask:0xa")
            e(f"v_cvt_pk_bf16_f32 v{PK}, v{T}, v{T+1}")
            e(f"v_cvt_pk_bf16_f32 v{PK+1}, v{T+2}, v{T+3}")
            e(f"v_lshlrev_b32 v{T}, 16, v{PK}")
            e(f"v_and_b32 v{T+1}, 0xffff0000, v{PK}")
            e(f"v_lshlrev_b32 v{T+2}, 16, v{PK+1}")
            e(f"v_and_b32 v{T+3}, 0xffff0000, v{PK+1}")
            point()
            e(f"v_max3_f32 v{MX}, v{T}, v{T+1}, v{T+2}")
            e(f"v_max3_f32 v{MX}, v{MX}, v{T+3}, v{MRUN}")
            self.cross_rows(MX, MX2, "max")
            e(f"v_mov_b32 v{MRUN}, v{MX}")
            e(f"v_mul_f32 v{NN}, s{S_C}, v{MX}")
            e(f"v_sub_f32 v{AL}, 0, v{NN}")
            for r in range(4): e(f"v_fma_f32 v{P+r}, v{T+r}, s{S_C}, v{AL}")
            e(f"v_sub_f32 v{NN}, v{AL}, v{NRUN}")
            e(f"v_mov_b32 v{NRUN}, v{AL}")
            e(f"v_exp_f32 v{AL}, v{NN}")
            for r in range(4): e(f"v_exp_f32 v{P+r}, v{P+r}")
            point()
            e(f"v_mov_b32 v{ALD}, v{AL}")
            e(f"v_mul_f32 v{LRUN}, v{LRUN}, v{AL}")
            e(f"v_mov_b32_dpp v{ALD}, v{AL} row_shr:8 row_mask:0x3 bank_mask:0xc")
            e(f"v_mov_b32_dpp v{ALD}, v{AL} row_shl:8 row_mask:0xc bank_mask:0x3")
            for r in range(4): e(f"v_cvt_pk_bf16_f32 v{T+r}, v{P+r}, v{P+r}")
            e(f"v_add_f32 v{P}, v{P}, v{P+1}")
            e(f"v_add_f32 v{P+2}, v{P+2}, v{P+3}")
            for i in range(4): e(f"v_and_b32 v{AF+i}, v{T}, v{MK+i}")
            for i in range(8): e(f"v_mul_f32 v{ACC0+i}, v{ACC0+i}, v{ALD}")
            e(f"v_add_f32 v{P}, v{P}, v{P+2}")
            for r in range(1, 4):
                for i in range(4): e(f"v_and_b32 v{AF+4*r+i}, v{T+r}, v{MK+i}")
            e(f"v_add_f32 v{LRUN}, v{LRUN}, v{P}")

        d = self.dist
        NL = NT * 16
        def slot_of(n): return n if n < npro else n % 16
        def consume(n):
            i = n % 16
            if i < 8:
                G, j = i >> 2, i & 3
                D = D0 if G == 0 else D1
                c = "0" if j == 0 else f"v[{D}:{D+3}]"
                e(f"v_mfma_f32_16x16x32_bf16 v[{D}:{D+3}], {slot_regs(slot_of(n))}, v[{QF+4*j}:{QF+4*j+3}], {c}")
            else:
                i -= 8
                j, hf = i >> 1, i & 1
                A = ACC0 if hf == 0 else ACC1
                e(f"v_mfma_f32_16x16x32_bf16 v[{A}:{A+3}], v[{AF+4*j}:{AF+4*j+3}], {slot_regs(slot_of(n))}, v[{A}:{A+3}]")
        st = dict(k=npro)
        def tile(t, steady):
            st["j"] = 0
            st["last"] = 16 * t - 1
            def point():
                j = st["j"]; st["j"] += 1
                k = st["k"]
                want = 16 * t + d + j
                prev = k - 16 if k - 16 >= npro else k % 16
                if prev > st["last"]:
                    assert not steady
                    return
                if k > want and j % 2 == 0: return
                if steady:
                    assert k == want
                    so = S_O1 if k // 16 == t else S_O2
                else:
                    if st.get("so") != k // 16:
                        e(f"s_add_u32 s{S_O2}, s{S_BASE}, {(k//16)*32768}")
                        st["so"] = k // 16
                    so = S_O2
                e(f"s_waitcnt vmcnt({self.thr-1})")
                issue(k, slot_of(k), so)
                st["k"] = k + 1
            for i in range(16):
                n = 16 * t + i
                if i == 8: softmax(point)
                w = st["k"] - 1 - n
                assert w >= 0
                if w < self.thr or not steady: e(f"s_waitcnt vmcnt({min(63, w)})")
                consume(n)
                st["last"] = n
                if i % 8 != 7: point()
        t = 0
        while not (st["k"] - 16 * t == d and 16 * t >= npro):
            tile(t, False)
            t += 1
        tfirst = t
        self.stamp(8)
        e(f"s_add_u32 s{S_O1}, s{S_BASE}, {tfirst*32768}")
        e(f"s_mov_b32 s{S_CNT}, {NT-tfirst}")
        e("v_mov_b32 v79, 0")
        L = self.lab("sloop")
        e.label(L)
        e(f"s_add_u32 s{S_O2}, s{S_O1}, 32768")
        e(f"v_mov_b32 v23, s{S_CNT}")
        e(f"s_cmp_eq_u32 s{S_CNT}, 1")
        e(f"s_cselect_b32 s{S_O2}, 0x80000000, s{S_O2}")
        e(f"ds_write_b32 v79, v23 offset:{MISC+12}")
        tile(tfirst, True)
        e(f"s_mov_b32 s{S_O1}, s{S_O2}")
        e(f"s_sub_u32 s{S_CNT}, s{S_CNT}, 1")
        e(f"s_cmp_lg_u32 s{S_CNT}, 0")
        e(f"s_cbranch_scc1 {L}")
        self.stamp(2)
        self.cross_rows(LRUN, MX2, "add")
        e("v_and_b32 v12, 15, v1")
        e("v_lshrrev_b32 v13, 4, v1")
        e("v_lshrrev_b32 v14, 1, v13")
        e("v_and_b32 v15, 1, v13")
        e("v_lshlrev_b32 v16, 10, v14")
        e("v_lshl_add_u32 v16, v12, 5, v16")
        e("v_lshl_add_u32 v16, v15, 4, v16")
        e(f"s_lshl_b32 s64, s{S_HW}, 11")
        e("v_add_u32 v16, s64, v16")
        e(f"ds_write_b128 v16, v[{ACC0}:{ACC0+3}] offset:{SO}")
        e(f"ds_write_b128 v16, v[{ACC1}:{ACC1+3}] offset:{SO+512}")
        e(f"s_lshl_b32 s64, s{S_HW}, 4")
        e("v_add_u32 v17, s64, v1")
        e(f"v_mov_b32 v18, v{NRUN}")
        e(f"v_mov_b32 v19, v{LRUN}")
        e("s_mov_b64 exec, 0x101")
        e(f"ds_write_b64 v17, v[18:19] offset:{SML}")
        e("s_mov_b64 exec, 1")
        e("v_mov_b32 v20, 0")
        e("v_mov_b32 v21, 1")
        e("s_waitcnt lgkmcnt(0)")
        e(f"ds_add_rtn_u32 v22, v20, v21 offset:{MISC+4}")
        e(f"ds_read_b32 v23, v20 offset:{MISC}")
        e("s_waitcnt lgkmcnt(0)")
        e("v_readfirstlane_b32 s64, v22")
        e(f"v_readfirstlane_b32 s{S_TAG}, v23")
        e("s_mov_b64 exec, -1")
        e("s_cmp_eq_u32 s64, 3")
        Ld = self.lab("slast")
        e(f"s_cbranch_scc1 {Ld}")
        self.endpgm()
        e.label(Ld)
        e("s_waitcnt vmcnt(0)")
        e.label("L_sfinal")
        e("v_mov_b32 v20, 0")
        e("v_lshlrev_b32 v22, 4, v1")
        for w in range(4):
            e(f"ds_read_b128 v[{24+4*w}:{27+4*w}], v20 offset:{SML+16*w}")
        OB = 80
        for h in range(2):
            for w in range(4):
                r = OB + (h * 4 + w) * 4
                e(f"ds_read_b128 v[{r}:{r+3}], v22 offset:{SO + w*2048 + h*1024}")
        e(f"s_and_b32 s{S_TM}, s{S_TAG}, 0x3f")
        e("v_mov_b32 v21, 0xffffffc0")
        e("s_waitcnt lgkmcnt(8)")
        for h in range(2):
            n = [24 + 4 * w + 2 * h for w in range(4)]
            e(f"v_min3_f32 v{40+h}, v{n[0]}, v{n[1]}, v{n[2]}")
            e(f"v_min_f32 v{40+h}, v{40+h}, v{n[3]}")
        for h in range(2):
            for w in range(4):
                e(f"v_sub_f32 v{44+4*h+w}, v{40+h}, v{24+4*w+2*h}")
        for i in range(8): e(f"v_exp_f32 v{44+i}, v{44+i}")
        for h in range(2):
            e(f"v_mul_f32 v{42+h}, v{44+4*h}, v{25+2*h}")
        for w in range(1, 4):
            for h in range(2):
                e(f"v_fmac_f32 v{42+h}, v{44+4*h+w}, v{25+4*w+2*h}")
        for h in range(2): e(f"v_rcp_f32 v{52+h}, v{42+h}")
        for h in range(2): e(f"v_log_f32 v{54+h}, v{42+h}")
        for h in range(2):
            for w in range(4): e(f"v_mul_f32 v{44+4*h+w}, v{44+4*h+w}, v{52+h}")
        for h in range(2): e(f"v_sub_f32 v{54+h}, v{54+h}, v{40+h}")
        e(f"s_lshl_b32 s64, s2, 11")
        e(f"s_add_u32 s64, s64, {PBUF}")
        for h in range(2):
            e(f"s_waitcnt lgkmcnt({4-4*h})")
            o = 56 + 4 * h
            for i in range(4): e(f"v_mul_f32 v{o+i}, v{44+4*h}, v{OB+h*16+i}")
            for w in range(1, 4):
                for i in range(4): e(f"v_fmac_f32 v{o+i}, v{44+4*h+w}, v{OB+h*16+w*4+i}")
            for i in range(4): self.tagw(o + i, o + i, 21)
        e("v_cmp_eq_u32 vcc, 1, v1")
        e("v_cndmask_b32 v72, v54, v55, vcc")
        e(f"v_mov_b32 v73, s{S_TAG}")
        e("v_lshlrev_b32 v23, 11, v1")
        e("s_lshl_b32 s65, s2, 3")
        e(f"s_add_u32 s65, s65, {HBUF}")
        e("s_cmp_eq_u32 s68, 1")
        e("s_cbranch_scc1 L_sfinal_back")
        for h in range(2):
            o = 56 + 4 * h
            e(f"buffer_store_dwordx4 v[{o}:{o+3}], v22, s[{R_WS}:{R_WS+3}], s64 offen offset:{h*1024} sc1")
        e("s_mov_b64 exec, 3")
        e(f"buffer_store_dwordx2 v[72:73], v23, s[{R_WS}:{R_WS+3}], s65 offen sc1")
        self.stamp(3)
        self.endpgm()

    def h_consts(self):
        e = self.e
        e("v_and_b32 v4, 15, v1")
        e("v_lshrrev_b32 v5, 4, v1")
        e("v_lshrrev_b32 v6, 2, v4")
        e("v_lshl_add_u32 v6, v5, 3, v6")
        e("v_and_b32 v7, 3, v4")
        e("v_lshlrev_b32 v7, 3, v7")
        e("v_and_b32 v8, 1, v1")
        e(f"v_mul_u32_u24 v8, {AVS}, v8")
        e("v_lshl_add_u32 v3, v5, 4, v8")
    def tr_addr(self, lgpitch, sbase):
        e = self.e
        e(f"v_lshl_add_u32 v2, v6, {lgpitch}, v7")
        e(f"v_add_u32 v2, s{sbase}, v2")
    def dma_voff(self, rowbytes, lgpitch, vout):
        e = self.e
        sh = lgpitch - 4
        e(f"v_lshrrev_b32 v{vout}, {sh}, v1")
        e(f"v_mul_u32_u24 v{vout}, {rowbytes}, v{vout}")
        e(f"v_and_b32 v{vout+1}, {(1<<sh)-1}, v1")
        e(f"v_lshl_add_u32 v{vout}, v{vout+1}, 4, v{vout}")
    def dma_loop(self, srd, voff, n, s_src, src_step, s_dst, inflight=None):
        e = self.e
        L = self.lab("dma")
        inflight = self.winfl
        e(f"s_mov_b32 s66, {n}")
        e.label(L)
        e(f"s_mov_b32 m0, s{s_dst}")
        e(f"s_add_u32 s{s_dst}, s{s_dst}, 1024")
        e(f"buffer_load_dwordx4 v{voff}, s[{srd}:{srd+3}], s{s_src} offen {self.wflags} lds")
        e(f"s_add_u32 s{s_src}, s{s_src}, {src_step}")
        if inflight < 32: e(f"s_waitcnt vmcnt({inflight-1})")
        e("s_sub_u32 s66, s66, 1")
        e("s_cmp_lg_u32 s66, 0")
        e(f"s_cbranch_scc1 {L}")
    def h_sync(self):
        e = self.e
        L = self.lab("hs"); Lx = self.lab("hsx")
        e("s_waitcnt vmcnt(0)")
        e("v_mov_b32 v8, 0")
        e("v_mov_b32 v9, 1")
        e("s_mov_b64 exec, 1")
        e(f"ds_add_u32 v8, v9 offset:{MISC+8}")
        e("s_mov_b64 exec, -1")
        e.label(L)
        e(f"ds_read_b32 v9, v8 offset:{MISC+8}")
        e("s_waitcnt lgkmcnt(0)")
        e("v_readfirstlane_b32 s64, v9")
        e("s_cmp_ge_u32 s64, 4")
        e(f"s_cbranch_scc1 {Lx}")
        e("s_sleep 2")
        e(f"s_sub_u32 s{S_TO}, s{S_TO}, 1")
        e(f"s_cmp_lg_u32 s{S_TO}, 0")
        e(f"s_cbranch_scc1 {L}")
        e(f"s_branch L_hfail")
        e.label(Lx)
    def tr_frags(self, nsteps, off, fbase, lgpitch):
        e = self.e
        for st in range(nsteps):
            f = fbase + 4 * st
            o = off + st * (32 << lgpitch)
            assert o + (4 << lgpitch) < 65536
            e(f"ds_read_b64_tr_b16 v[{f}:{f+1}], v2 offset:{o}")
            e(f"ds_read_b64_tr_b16 v[{f+2}:{f+3}], v2 offset:{o + (4 << lgpitch)}")
            if st % 4 == 3: e("s_waitcnt lgkmcnt(0)")
        e("s_waitcnt lgkmcnt(0)")
    def gemv(self, nsteps, abase, a_lds_off, chains, vaddr=3):
        e = self.e
        AHEAD = 12
        def rd(st): e(f"ds_read_b128 v[{abase+4*st}:{abase+4*st+3}], v{vaddr} offset:{a_lds_off+st*64}")
        issued = min(nsteps, AHEAD)
        for st in range(issued): rd(st)
        for st in range(nsteps):
            e(f"s_waitcnt lgkmcnt({issued - 1 - st})")
            for D, fb in chains:
                c = "0" if st == 0 else f"v[{D}:{D+3}]"
                e(f"v_mfma_f32_16x16x32_bf16 v[{D}:{D+3}], v[{abase+4*st}:{abase+4*st+3}], v[{fb+4*st}:{fb+4*st+3}], {c}")
            if issued < nsteps:
                rd(issued); issued += 1
    def lds_wait(self, off, cmp, val, sleep=4, sreg=64):
        e = self.e
        L = self.lab("lw"); Lx = self.lab("lwx")
        e("v_mov_b32 v8, 0")
        e.label(L)
        e(f"ds_read_b32 v9, v8 offset:{off}")
        e("s_waitcnt lgkmcnt(0)")
        e(f"v_readfirstlane_b32 s{sreg}, v9")
        e(f"s_cmp_{cmp}_u32 s{sreg}, {val}")
        e(f"s_cbranch_scc1 {Lx}")
        e(f"s_sleep {sleep}")
        e(f"s_sub_u32 s{S_TO}, s{S_TO}, 1")
        e(f"s_cmp_lg_u32 s{S_TO}, 0")
        e(f"s_cbranch_scc1 {L}")
        e(f"s_branch L_hfail")
        e.label(Lx)
    def lds_set(self, off, src):
        e = self.e
        e("v_mov_b32 v8, 0")
        e(f"v_mov_b32 v9, {src}")
        e(f"ds_write_b32 v8, v9 offset:{off}")
    def bar(self):
        e = self.e
        L = self.lab("nb")
        e("s_cmp_eq_u32 s68, 1")
        e(f"s_cbranch_scc1 {L}")
        e("s_barrier")
        e.label(L)
    def gate_all(self):
        e = self.e
        L = self.lab("gate"); Lx = self.lab("gatex"); Lo = self.lab("gateo"); Le = self.lab("gatee")
        e(f"s_cmp_lg_u32 s{S_HW}, 0")
        e(f"s_cbranch_scc1 {Lo}")
        e("v_lshlrev_b32 v8, 5, v1")
        e(f"s_mov_b32 s64, {HBUF}")
        e.label(L)
        e(f"buffer_load_dwordx4 v[40:43], v8, s[{R_WS}:{R_WS+3}], s64 offen sc1")
        e(f"buffer_load_dwordx4 v[44:47], v8, s[{R_WS}:{R_WS+3}], s64 offen offset:16 sc1")
        e("s_waitcnt vmcnt(0)")
        e(f"v_xor_b32 v41, s{S_TAG}, v41")
        e(f"v_xor_b32 v43, s{S_TAG}, v43")
        e(f"v_xor_b32 v45, s{S_TAG}, v45")
        e(f"v_xor_b32 v47, s{S_TAG}, v47")
        e("v_or3_b32 v41, v41, v43, v45")
        e("v_or_b32 v41, v41, v47")
        e("v_cmp_ne_u32 vcc, 0, v41")
        e(f"s_cbranch_vccz {Lx}")
        e("s_mov_b64 exec, vcc")
        e(f"s_sleep {self.gsleep}")
        e(f"s_sub_u32 s{S_TO}, s{S_TO}, 1")
        e(f"s_cmp_lg_u32 s{S_TO}, 0")
        e(f"s_cbranch_scc1 {L}")
        e(f"s_branch L_hfail")
        e.label(Lx)
        e("s_mov_b64 exec, -1")
        self.lds_set(MISC + 20, 1)
        e(f"s_branch {Le}")
        e.label(Lo)
        self.lds_wait(MISC + 20, "eq", 1, 2)
        e.label(Le)
    def sweep(self, units, mant=True, smask=69, tmp=9):
        e = self.e
        n = len(units)
        L = self.lab("sweep"); Lx = self.lab("sweepx")
        e(f"s_mov_b32 s{smask}, {(1<<n)-1:#x}")
        e.label(L)
        for i, (loads, tags) in enumerate(units):
            sk = self.lab("sk")
            e(f"s_bitcmp1_b32 s{smask}, {i}")
            e(f"s_cbranch_scc0 {sk}")
            for l in loads: e(l)
            e.label(sk)
        e("s_waitcnt vmcnt(0)")
        for i, (loads, tags) in enumerate(units):
            sk = self.lab("ck")
            e(f"s_bitcmp1_b32 s{smask}, {i}")
            e(f"s_cbranch_scc0 {sk}")
            if mant:
                self.check_words(tags, tmp)
            else:
                e(f"v_xor_b32 v{tmp}, s{S_TAG}, v{tags[0]}")
                for tg in tags[1:]: e(f"v_bitop3_b32 v{tmp}, v{tg}, s{S_TAG}, v{tmp} bitop3:0xbe")
                e(f"v_cmp_ne_u32 vcc, 0, v{tmp}")
            e(f"s_cbranch_vccnz {sk}")
            e(f"s_bitset0_b32 s{smask}, {i}")
            e.label(sk)
        e(f"s_cmp_eq_u32 s{smask}, 0")
        e(f"s_cbranch_scc1 {Lx}")
        e(f"s_sub_u32 s{S_TO}, s{S_TO}, 1")
        e(f"s_cmp_lg_u32 s{S_TO}, 0")
        e(f"s_cbranch_scc1 {L}")
        e(f"s_branch L_hfail")
        e.label(Lx)

    def ln_finish(self, mean, var, out_mb, out_rs):
        e = self.e
        for m, o in zip(mean, out_mb):
            if m != o: e(f"v_mov_b32 v{o}, v{m}")
        self.rnd_many(list(out_mb) + list(var))
        for v in var: e(f"v_add_f32 v{v}, {f2u(1e-5):#x}, v{v}")
        self.rnd_many(var)
        for v in var: e(f"v_sqrt_f32 v{v}, v{v}")
        self.rnd_many(var)
        for v, o in zip(var, out_rs): e(f"v_rcp_f32 v{o}, v{v}")

    def q_path(self):
        e = self.e
        e("v_lshlrev_b32 v8, 4, v1")
        e("v_cmp_gt_u32 s[70:71], 56, v1")
        e("v_mov_b32 v9, 0x10000")
        e("v_cndmask_b32 v8, v9, v8, s[70:71]")
        e(f"buffer_load_dwordx4 v[12:15], v8, s[{R_X}:{R_X+3}], 0 offen")
        e(f"buffer_load_dwordx4 v[16:19], v8, s[{R_X}:{R_X+3}], 0 offen offset:896")
        e(f"buffer_load_dword v10, off, s[{R_WS}:{R_WS+3}], 0 offset:{EPOCH} sc1")
        e(f"s_and_b32 s12, s{S_SPL}, 3")
        e(f"s_lshr_b32 s13, s{S_SPL}, 2")
        e(f"s_lshl_b32 s64, s{S_B}, 2")
        e("s_add_u32 s13, s13, s64")
        e(f"s_mul_i32 s64, s12, {112*8192}")
        e(f"s_lshl_b32 s65, s{S_HKV}, 10")
        e("s_add_u32 s64, s64, s65")
        e("s_lshl_b32 s65, s13, 7")
        e("s_add_u32 s64, s64, s65")
        self.srd(R_W, P_WQ, 448 * 8192)
        self.dma_voff(8192, 7, 20)
        for st in range(14):
            e(f"s_mov_b32 m0, {STG + st*1024}")
            if st: e(f"s_add_u32 s64, s64, {8*8192}")
            e(f"buffer_load_dwordx4 v20, s[{R_W}:{R_W+3}], s64 offen {self.qflags} lds")
        self.stamp(9)
        self.h_consts()
        e("v_mov_b32 v20, 0")
        e("v_mov_b32 v21, 0")
        e("v_mov_b32 v21, 0x7fff")
        e(f"ds_write_b64 v20, v[20:21] offset:{MISC+8}")
        e("v_mov_b32 v21, 0")
        e(f"ds_write_b64 v20, v[20:21] offset:{MISC+16}")
        e(f"ds_write_b32 v20, v20 offset:{MISC+4}")
        e("s_waitcnt vmcnt(15)")
        self.stamp(10)
        for b in range(2):
            for i in range(4):
                e(f"v_lshlrev_b32 v{24+8*b+2*i}, 16, v{12+4*b+i}")
                e(f"v_and_b32 v{25+8*b+2*i}, 0xffff0000, v{12+4*b+i}")
        for b in range(2):
            x = 24 + 8 * b
            e(f"v_add_f32 v{40+b}, v{x}, v{x+1}")
            for i in range(2, 8): e(f"v_add_f32 v{40+b}, v{40+b}, v{x+i}")
        self.wave_sum_to_sgpr([40, 41], [64, 65])
        inv = f2u(1.0 / 448)
        for b in range(2):
            e(f"v_mov_b32 v{42+b}, {inv:#x}")
            e(f"v_mul_f32 v{42+b}, s{64+b}, v{42+b}")
        for b in range(2):
            x = 24 + 8 * b
            e(f"v_sub_f32 v44, v{x}, v{42+b}")
            e(f"v_mul_f32 v{40+b}, v44, v44")
            for i in range(1, 8):
                e(f"v_sub_f32 v44, v{x+i}, v{42+b}")
                e(f"v_fmac_f32 v{40+b}, v44, v44")
            e(f"v_cndmask_b32 v{40+b}, 0, v{40+b}, s[70:71]")
        self.wave_sum_to_sgpr([40, 41], [64, 65])
        for b in range(2):
            e(f"v_mov_b32 v{44+b}, {inv:#x}")
            e(f"v_mul_f32 v{44+b}, s{64+b}, v{44+b}")
        self.ln_finish([42, 43], [44, 45], [42, 43], [46, 47])
        for b in range(2):
            x = 24 + 8 * b
            for i in range(8): e(f"v_sub_f32 v{x+i}, v{x+i}, v{42+b}")
            for i in range(4): e(f"v_cvt_pk_bf16_f32 v{12+4*b+i}, v{x+2*i}, v{x+2*i+1}")
            for i in range(4):
                e(f"v_lshlrev_b32 v{x+2*i}, 16, v{12+4*b+i}")
                e(f"v_and_b32 v{x+2*i+1}, 0xffff0000, v{12+4*b+i}")
            for i in range(8): e(f"v_mul_f32 v{x+i}, v{x+i}, v{46+b}")
            for i in range(4): e(f"v_cvt_pk_bf16_f32 v{12+4*b+i}, v{x+2*i}, v{x+2*i+1}")
        e("v_lshlrev_b32 v8, 4, v1")
        e("s_mov_b64 exec, s[70:71]")
        e(f"ds_write_b128 v8, v[12:15] offset:{AV}")
        e(f"ds_write_b128 v8, v[16:19] offset:{AV+AVS}")
        e("s_mov_b64 exec, -1")
        e("s_waitcnt vmcnt(14)")
        e("v_readfirstlane_b32 s64, v10")
        self.set_tag(64)
        e(f"v_mov_b32 v21, s{S_TAG}")
        e(f"ds_write_b32 v20, v21 offset:{MISC}")
        e("s_waitcnt vmcnt(0) lgkmcnt(0)")
        self.stamp(1)
        e(f"s_mov_b32 s64, {STG}")
        self.tr_addr(7, 64)
        e("s_mul_i32 s64, s12, 224")
        e("v_add_u32 v9, s64, v3")
        for st in range(4): e(f"ds_read_b128 v[{128+4*st}:{131+4*st}], v9 offset:{AV+st*64}")
        for cg in range(4): self.tr_frags(4, cg * 32, 64 + 16 * cg, 7)
        e("v_cmp_gt_u32 vcc, 32, v1")
        for i in range(4): e(f"v_cndmask_b32 v{140+i}, 0, v{140+i}, vcc")
        for cg in range(4):
            for i in range(4): e(f"v_cndmask_b32 v{76+16*cg+i}, 0, v{76+16*cg+i}, vcc")
        for st in range(4):
            for cg in range(4):
                D = 144 + 4 * cg
                c = "0" if st == 0 else f"v[{D}:{D+3}]"
                e(f"v_mfma_f32_16x16x32_bf16 v[{D}:{D+3}], v[{128+4*st}:{131+4*st}], v[{64+16*cg+4*st}:{67+16*cg+4*st}], {c}")
        e("v_cmp_lt_u32 s[64:65], 15, v1")
        e("v_cmp_lt_u32 s[66:67], 31, v1")
        e("v_cmp_lt_u32 vcc, 47, v1")
        e(f"v_mov_b32 v53, s{S_TAG}")
        e(f"v_mov_b32 v55, s{S_TAG}")
        e("v_lshlrev_b32 v8, 3, v1")
        for b in range(2):
            e(f"v_cndmask_b32 v{52+2*b}, v{144+b}, v{148+b}, s[64:65]")
        for b in range(2):
            e(f"v_cndmask_b32 v{52+2*b}, v{52+2*b}, v{152+b}, s[66:67]")
        for b in range(2):
            e(f"v_cndmask_b32 v{52+2*b}, v{52+2*b}, v{156+b}, vcc")
        e(f"s_lshl_b32 s64, s{S_HKV}, 14")
        e("s_lshl_b32 s65, s12, 12")
        e("s_add_u32 s64, s64, s65")
        e("s_lshl_b32 s65, s13, 9")
        e("s_add_u32 s64, s64, s65")
        e(f"s_add_u32 s64, s64, {QBUF}")
        e(f"s_add_u32 s65, s64, {8*16384}")
        e(f"buffer_store_dwordx2 v[52:53], v8, s[{R_WS}:{R_WS+3}], s64 offen sc1")
        e(f"buffer_store_dwordx2 v[54:55], v8, s[{R_WS}:{R_WS+3}], s65 offen sc1")
        self.lds_set(MISC + 24, f"s{S_TAG}")
        self.stamp(2)

    def q_gather(self):
        e = self.e
        e("v_lshlrev_b32 v8, 4, v1")
        e(f"s_lshl_b32 s13, s{S_GRP}, 14")
        e(f"s_lshl_b32 s64, s{S_HW}, 10")
        e("s_add_u32 s13, s13, s64")
        e(f"s_add_u32 s13, s13, {QBUF}")
        units = [([f"s_add_u32 s65, s13, {k*4096}",
                   f"buffer_load_dwordx4 v[{24+4*k}:{27+4*k}], v8, s[{R_WS}:{R_WS+3}], s65 offen sc1"],
                  [25 + 4 * k, 27 + 4 * k]) for k in range(4)]
        self.sweep(units, mant=False)
        e("v_add_f32 v24, v24, v28")
        e("v_add_f32 v26, v26, v30")
        e("v_add_f32 v32, v32, v36")
        e("v_add_f32 v34, v34, v38")
        e("v_add_f32 v24, v24, v32")
        e("v_add_f32 v26, v26, v34")
        e("v_cvt_pk_bf16_f32 v24, v24, v26")
        e("v_lshlrev_b32 v8, 2, v1")
        e(f"s_lshl_b32 s64, s{S_HW}, 8")
        e("v_add_u32 v8, s64, v8")
        e(f"ds_write_b32 v8, v24 offset:{QL}")
        e("s_waitcnt lgkmcnt(0)")

    def stage_a(self):
        e = self.e
        FB, PB = 64, 128
        self.srd(R_W, P_WO, 4096 * 896)
        e(f"s_mul_i32 s64, s{S_HKV}, {512*896}")
        e(f"s_lshl_b32 s65, s{S_SPL}, 7")
        e("s_add_u32 s64, s64, s65")
        e(f"s_mul_i32 s65, s{S_HW}, {128*896}")
        e("s_add_u32 s64, s64, s65")
        e(f"s_lshl_b32 s65, s{S_HW}, 14")
        e(f"s_add_u32 s65, s65, {STG}")
        self.dma_voff(896, 7, 20)
        self.dma_loop(R_W, 20, 16, 64, 8 * 896, 65)
        self.h_sync()
        e(f"s_lshl_b32 s64, s{S_HW}, 5")
        e(f"s_add_u32 s64, s64, {STG}")
        self.tr_addr(7, 64)
        self.tr_frags(16, 0, FB, 7)
        self.stamp(4)
        e(f"s_lshr_b32 s12, s{S_HW}, 1")
        e(f"s_and_b32 s13, s{S_HW}, 1")
        e("s_lshl_b32 s14, s12, 3")
        e(f"s_add_u32 s14, s14, s{S_HKV}")
        e("s_lshl_b32 s15, s14, 15")
        e("s_lshl_b32 s64, s13, 10")
        e("s_add_u32 s15, s15, s64")
        e(f"s_add_u32 s15, s15, {PBUF}")
        e("s_lshl_b32 s64, s13, 11")
        e("s_lshl_b32 s14, s14, 7")
        e("s_add_u32 s14, s14, s64")
        e(f"s_add_u32 s14, s14, {HBUF}")
        e("v_lshlrev_b32 v5, 4, v1")
        e("v_lshlrev_b32 v6, 3, v4")
        e(f"s_mul_i32 s64, s12, {AVS}")
        e("s_lshl_b32 s65, s13, 9")
        e("s_add_u32 s64, s64, s65")
        e("v_lshlrev_b32 v7, 3, v1")
        e("v_add_u32 v7, s64, v7")
        e("v_lshlrev_b32 v18, 3, v1")
        e("v_mov_b32 v19, 0xffffffc0")
        for p in range(8): e(f"s_add_u32 s{52+p}, s15, {p*4096}")
        e("s_mov_b32 s68, 1")
        e("s_branch L_a_go")
        e.label("L_a_poll")
        e("s_mov_b32 s68, 0")
        self.stamp(5)
        self.stamp(6)
        L = self.lab("asw"); Lz = self.lab("anl")
        e("s_mov_b32 s69, 0xffff")
        e("s_mov_b32 s70, 0")
        e.label(L)
        e(f"buffer_load_dwordx2 v[10:11], v6, s[{R_WS}:{R_WS+3}], s14 offen sc1")
        def grouped(body):
            for g in range(4):
                gk = self.lab("gk")
                e(f"s_and_b32 s64, s70, {0xf << (4*g):#x}")
                e(f"s_cbranch_scc0 {gk}")
                for p in range(4 * g, 4 * g + 4):
                    sk = self.lab("sk")
                    e(f"s_bitcmp1_b32 s70, {p}")
                    e(f"s_cbranch_scc0 {sk}")
                    body(p, sk)
                    e.label(sk)
                e.label(gk)
        def ld(p, sk):
            r = PB + 4 * p
            e(f"buffer_load_dwordx4 v[{r}:{r+3}], v5, s[{R_WS}:{R_WS+3}], s{52 + (p >> 1)} offen offset:{(p & 1)*2048} sc1")
        def ck(p, sk):
            r = PB + 4 * p
            self.check_words([r, r + 1, r + 2, r + 3], 12)
            e(f"s_cbranch_vccnz {sk}")
            e(f"s_bitset0_b32 s69, {p}")
        grouped(ld)
        e("s_waitcnt vmcnt(0)")
        e(f"v_cmp_eq_u32 s[66:67], s{S_TAG}, v11")
        grouped(ck)
        e("s_and_b32 s71, s66, 0xffff")
        e("s_xor_b32 s64, s71, 0xffff")
        e("s_or_b32 s64, s64, s69")
        e("s_cmp_eq_u32 s64, 0")
        e("s_cbranch_scc1 L_a_got")
        e("s_and_b32 s70, s69, s71")
        e("s_bcnt1_i32_b32 s64, s69")
        e(f"s_cmp_le_u32 s64, {self.aspec}")
        e("s_cselect_b32 s70, s69, s70")
        e("s_cmp_lg_u32 s70, 0")
        e(f"s_cbranch_scc1 {Lz}")
        e(f"s_sleep {self.gsleep}")
        e.label(Lz)
        e(f"s_sub_u32 s{S_TO}, s{S_TO}, 1")
        e(f"s_cmp_lg_u32 s{S_TO}, 0")
        e(f"s_cbranch_scc1 {L}")
        e("s_branch L_hfail")
        e.label("L_a_got")
        self.stamp(7)
        e.label("L_a_go")
        e("v_mov_b32 v12, v10")
        self.row_reduce([12], "max")
        e("v_sub_f32 v12, v10, v12")
        e("v_exp_f32 v12, v12")
        e("v_mov_b32 v13, v12")
        sregs = list(range(16, 32))
        for p in range(16): e(f"v_readlane_b32 s{sregs[p]}, v12, {p}")
        self.row_reduce([13], "add")
        e("v_rcp_f32 v13, v13")
        for p in range(16):
            r = PB + 4 * p
            for i in range(4):
                if p == 0: e(f"v_mul_f32 v{14+i}, s{sregs[p]}, v{r+i}")
                else: e(f"v_fmac_f32 v{14+i}, s{sregs[p]}, v{r+i}")
        for i in range(4): e(f"v_mul_f32 v{14+i}, v{14+i}, v13")
        e("v_cvt_pk_bf16_f32 v14, v14, v15")
        e("v_cvt_pk_bf16_f32 v15, v16, v17")
        e(f"ds_write_b64 v7, v[14:15] offset:{AV}")
        e("s_waitcnt lgkmcnt(0)")
        self.bar()
        self.gemv(16, PB + 64, AV, [(20, FB)])
        e(f"s_mul_i32 s64, s{S_HKV}, {448*8}")
        e(f"s_lshl_b32 s65, s{S_SPL}, 9")
        e("s_add_u32 s64, s64, s65")
        e(f"s_lshl_b32 s65, s{S_HW}, 7")
        e("s_add_u32 s64, s64, s65")
        e(f"s_add_u32 s64, s64, {YBUF}")
        self.tagw(24, 20, 19)
        self.tagw(25, 21, 19)
        e("s_cmp_eq_u32 s68, 1")
        e("s_cbranch_scc1 L_a_poll")
        e("s_mov_b64 exec, 0xffff")
        e(f"buffer_store_dwordx2 v[24:25], v18, s[{R_WS}:{R_WS+3}], s64 offen sc1")
        self.stamp(8)
        self.endpgm()

    def stage_b(self):
        e = self.e
        FG, FU, GB = 64, 120, 176
        self.srd(R_W, P_WG, 448 * 3584)
        self.srd(R_W2, P_WU, 448 * 3584)
        e("s_lshl_b32 s13, s12, 2")
        e(f"s_add_u32 s13, s13, s{S_HW}")
        self.dma_voff(3584, 7, 20)
        for m_, srd_ in enumerate((R_W, R_W2)):
            e("s_lshl_b32 s64, s12, 7")
            e(f"s_mul_i32 s65, s{S_HW}, {112*3584}")
            e("s_add_u32 s64, s64, s65")
            e(f"s_mul_i32 s65, s{S_HW}, {112*128}")
            e(f"s_add_u32 s65, s65, {STG + m_*448*128}")
            self.dma_loop(srd_, 20, 14, 64, 8 * 3584, 65)
        self.h_sync()
        e(f"s_lshl_b32 s64, s{S_HW}, 5")
        e(f"s_add_u32 s64, s64, {STG}")
        self.tr_addr(7, 64)
        self.tr_frags(14, 0, FG, 7)
        e(f"v_add_u32 v2, {448*128}, v2")
        self.tr_frags(14, 0, FU, 7)
        e(f"s_mul_i32 s64, s{S_HW}, 56")
        e("v_min_u32 v5, 55, v1")
        e("v_add_u32 v5, s64, v5")
        e("v_cmp_gt_u32 s[70:71], 56, v1")
        e("v_lshlrev_b32 v14, 2, v5")
        e(f"buffer_load_dword v16, v14, s[{R_X}:{R_X+3}], 0 offen")
        e(f"buffer_load_dword v17, v14, s[{R_X}:{R_X+3}], 0 offen offset:896")
        e("v_lshlrev_b32 v5, 4, v5")
        e("s_waitcnt vmcnt(0)")
        e("v_and_b32 v18, 0xffff0000, v16")
        e("v_and_b32 v19, 0xffff0000, v17")
        e("v_lshlrev_b32 v16, 16, v16")
        e("v_lshlrev_b32 v17, 16, v17")
        for k in range(8): e(f"s_mov_b32 s{40+k}, {YBUF + k*3584}")
        self.stamp(4)
        e("s_mov_b32 s68, 1")
        e("s_branch L_b_go")
        e.label("L_b_poll")
        e("s_mov_b32 s68, 0")
        self.stamp(5)
        self.gate_all()
        self.stamp(6)
        units = []
        for k in range(8):
            g = GB + 4 * k
            units.append(([f"buffer_load_dwordx4 v[{g}:{g+3}], v5, s[{R_WS}:{R_WS+3}], s{40+k} offen sc1"], [g, g + 1, g + 2, g + 3]))
        self.sweep(units)
        self.stamp(7)
        e.label("L_b_go")
        for k in range(1, 8):
            for i in range(4):
                e(f"v_add_f32 v{20+i}, v{GB+i if k == 1 else 20+i}, v{GB+4*k+i}")
        self.rnd_many([20, 21, 22, 23])
        for i in range(4): e(f"v_add_f32 v{20+i}, v{20+i}, v{16+i}")
        self.rnd_many([20, 21, 22, 23])
        for b in range(2): e(f"v_add_f32 v{24+b}, v{22+b}, v{20+b}")
        for b in range(2): e(f"v_cndmask_b32 v{24+b}, 0, v{24+b}, s[70:71]")
        self.wave_sum_to_sgpr([24, 25], [64, 65])
        inv112 = f2u(1.0 / 112)
        for b in range(2):
            e(f"v_mov_b32 v{28+2*b}, {inv112:#x}")
            e(f"v_mul_f32 v{28+2*b}, s{64+b}, v{28+2*b}")
        for b in range(2):
            e(f"v_sub_f32 v{24+b}, v{22+b}, v{28+2*b}")
            e(f"v_sub_f32 v{26+b}, v{20+b}, v{28+2*b}")
        for b in range(2): e(f"v_mul_f32 v{24+b}, v{24+b}, v{24+b}")
        for b in range(2): e(f"v_fmac_f32 v{24+b}, v{26+b}, v{26+b}")
        for b in range(2): e(f"v_cndmask_b32 v{24+b}, 0, v{24+b}, s[70:71]")
        self.wave_sum_to_sgpr([24, 25], [64, 65])
        e("v_mov_b32 v29, s64")
        e("v_mov_b32 v31, s65")
        e(f"s_lshl_b32 s64, s{S_HW}, 4")
        e("v_mov_b32 v26, s64")
        e("v_mov_b32 v27, 0")
        e("s_mov_b64 exec, 1")
        e(f"ds_write_b128 v26, v[28:31] offset:{STATS}")
        e("s_mov_b64 exec, -1")
        e("s_waitcnt lgkmcnt(0)")
        self.bar()
        for w in range(4): e(f"ds_read_b128 v[{32+4*w}:{35+4*w}], v27 offset:{STATS+16*w}")
        e("s_waitcnt lgkmcnt(0)")
        for b in range(2):
            m = [32 + 4 * w + 2 * b for w in range(4)]
            e(f"v_add_f32 v{48+b}, v{m[0]}, v{m[1]}")
            e(f"v_add_f32 v{50+b}, v{m[2]}, v{m[3]}")
            e(f"v_add_f32 v{48+b}, v{48+b}, v{50+b}")
            e(f"v_mul_f32 v{48+b}, 0.25, v{48+b}") if False else e(f"v_mul_f32 v{48+b}, {f2u(0.25):#x}, v{48+b}")
            for w in range(4): e(f"v_sub_f32 v{m[w]}, v{m[w]}, v{48+b}")
            e(f"v_mul_f32 v{50+b}, v{m[0]}, v{m[0]}")
            for w in range(1, 4): e(f"v_fmac_f32 v{50+b}, v{m[w]}, v{m[w]}")
            e(f"v_mul_f32 v{50+b}, {f2u(112.0):#x}, v{50+b}")
            for w in range(4): e(f"v_add_f32 v{50+b}, v{50+b}, v{m[w]+1}")
            e(f"v_mul_f32 v{50+b}, {f2u(1.0/448):#x}, v{50+b}")
        self.ln_finish([48, 49], [50, 51], [48, 49], [52, 53])
        for i in range(4): e(f"v_sub_f32 v{20+i}, v{20+i}, v{48+(i&1)}")
        self.rnd_many([20, 21, 22, 23])
        for i in range(4): e(f"v_mul_f32 v{20+i}, v{20+i}, v{52+(i&1)}")
        for b in range(2): e(f"v_cvt_pk_bf16_f32 v{20+b}, v{20+b}, v{22+b}")
        e(f"ds_write_b32 v14, v20 offset:{AV}")
        e(f"ds_write_b32 v14, v21 offset:{AV+AVS}")
        e("s_waitcnt lgkmcnt(0)")
        self.bar()
        self.gemv(14, GB, AV, [(24, FG), (28, FU)])
        self.rnd_many([24, 25, 28, 29])
        k0 = math.sqrt(2.0 / math.pi)
        c1 = f2u(-2.0 * k0 * math.log2(math.e)); c3 = f2u(0.044715)
        e(f"s_mov_b32 s64, {c3:#x}")
        for b in range(2): e(f"v_mul_f32 v{32+b}, v{24+b}, v{24+b}")
        for b in range(2): e(f"v_mul_f32 v{32+b}, v{32+b}, v{24+b}")
        for b in range(2): e(f"v_fma_f32 v{32+b}, v{32+b}, s64, v{24+b}")
        for b in range(2): e(f"v_mul_f32 v{32+b}, {c1:#x}, v{32+b}")
        for b in range(2): e(f"v_exp_f32 v{32+b}, v{32+b}")
        for b in range(2): e(f"v_add_f32 v{32+b}, 1.0, v{32+b}")
        for b in range(2): e(f"v_rcp_f32 v{32+b}, v{32+b}")
        for b in range(2): e(f"v_mul_f32 v{32+b}, v{32+b}, v{24+b}")
        self.rnd_many([32, 33])
        for b in range(2): e(f"v_mul_f32 v{32+b}, v{32+b}, v{28+b}")
        e("v_cvt_pk_bf16_f32 v34, v32, v33")
        e(f"v_mov_b32 v35, s{S_TAG}")
        e("v_lshlrev_b32 v8, 3, v1")
        e("s_lshl_b32 s64, s13, 7")
        e(f"s_add_u32 s64, s64, {GBUF}")
        e("s_cmp_eq_u32 s68, 1")
        e("s_cbranch_scc1 L_b_poll")
        e("s_mov_b64 exec, 0xffff")
        e(f"buffer_store_dwordx2 v[34:35], v8, s[{R_WS}:{R_WS+3}], s64 offen sc1")
        self.stamp(8)
        self.endpgm()

    def stage_c(self):
        e = self.e
        F0, F1, GB = 64, 120, 176
        self.srd(R_W, P_WD, 1792 * 896)
        self.srd(R_W2, P_OUT, 2 * 448 * 2)
        e(f"s_mul_i32 s64, s{S_HW}, {448*896}")
        e("s_lshl_b32 s65, s12, 6")
        e("s_add_u32 s64, s64, s65")
        e(f"s_mul_i32 s65, s{S_HW}, {STGW}")
        e(f"s_add_u32 s65, s65, {STG}")
        self.tr_addr(6, 65)
        self.dma_voff(896, 6, 20)
        self.dma_loop(R_W, 20, 28, 64, 16 * 896, 65)
        e("s_waitcnt vmcnt(0)")
        self.tr_frags(14, 0, F0, 6)
        self.tr_frags(14, 32, F1, 6)
        e("v_and_b32 v5, 31, v1")
        e("v_lshrrev_b32 v6, 5, v1")
        e("s_lshl_b32 s64, s12, 5")
        e("v_add_u32 v7, s64, v5")
        e("v_mul_u32_u24 v14, 448, v6")
        e("v_add_lshl_u32 v14, v14, v7, 1")
        e(f"buffer_load_ushort v16, v14, s[{R_X}:{R_X+3}], 0 offen")
        e("v_lshlrev_b32 v7, 3, v7")
        e("v_lshl_add_u32 v7, v6, 2, v7")
        e("s_waitcnt vmcnt(0)")
        e("v_lshlrev_b32 v16, 16, v16")
        e("v_lshlrev_b32 v10, 4, v1")
        e("v_lshlrev_b32 v11, 4, v5")
        e(f"s_mul_i32 s13, s{S_HW}, 3584")
        e(f"s_add_u32 s13, s13, {GBUF}")
        e(f"s_mul_i32 s14, s{S_HW}, {2*AVS}")
        e("v_lshlrev_b32 v12, 2, v1")
        e("v_add_u32 v12, s14, v12")
        e("v_lshlrev_b32 v13, 2, v5")
        e("v_add_u32 v13, s14, v13")
        e("v_add_u32 v3, s14, v3")
        self.stamp(4)
        e("v_mov_b32 v17, 0")
        e("s_mov_b32 s68, 1")
        e("s_branch L_c_go")
        e.label("L_c_poll")
        e("s_mov_b32 s68, 0")
        self.stamp(5)
        self.gate_all()
        self.stamp(6)
        Ln = self.lab("cnres")
        e(f"s_cmp_lg_u32 s{S_HW}, 0")
        e(f"s_cbranch_scc1 {Ln}")
        for k in range(8): e(f"s_mov_b32 s{40+k}, {YBUF + k*3584}")
        units = [([f"buffer_load_dword v{GB+k}, v7, s[{R_WS}:{R_WS+3}], s{40+k} offen sc1"], [GB + k]) for k in range(8)]
        self.sweep(units)
        for k in range(1, 8): e(f"v_add_f32 v17, v{GB if k == 1 else 17}, v{GB+k}")
        self.rnd(17)
        e("v_add_f32 v17, v17, v16")
        self.rnd(17)
        e.label(Ln)
        units = [([f"buffer_load_dwordx4 v[{24+4*k}:{27+4*k}], v{10 if k < 3 else 11}, s[{R_WS}:{R_WS+3}], s13 offen offset:{k*1024} sc1"],
                  [25 + 4 * k, 27 + 4 * k]) for k in range(4)]
        self.sweep(units, mant=False)
        self.stamp(7)
        e.label("L_c_go")
        e("s_mov_b32 s64, 0x05040100")
        e("s_mov_b32 s65, 0x07060302")
        for k in range(4):
            e(f"v_perm_b32 v{25+4*k}, v{26+4*k}, v{24+4*k}, s64")
            e(f"v_perm_b32 v{27+4*k}, v{26+4*k}, v{24+4*k}, s65")
            a = 12 if k < 3 else 13
            e(f"ds_write_b32 v{a}, v{25+4*k} offset:{AV+k*256}")
            e(f"ds_write_b32 v{a}, v{27+4*k} offset:{AV+AVS+k*256}")
        e("s_waitcnt lgkmcnt(0)")
        self.gemv(14, GB, AV, [(40, F0), (44, F1)])
        e(f"s_lshl_b32 s64, s{S_HW}, 8")
        e("v_lshlrev_b32 v8, 3, v1")
        e("v_add_u32 v8, s64, v8")
        e("s_mov_b64 exec, 0xffff")
        e(f"ds_write_b64 v8, v[40:41] offset:{RED}")
        e(f"ds_write_b64 v8, v[44:45] offset:{RED+128}")
        e("s_mov_b64 exec, -1")
        e("s_waitcnt lgkmcnt(0)")
        self.bar()
        Le = self.lab("cend")
        e(f"s_sub_u32 s64, s{S_HW}, s68")
        e(f"s_cmp_eq_u32 s68, 1")
        e(f"s_cselect_b32 s64, 0, s{S_HW}")
        e(f"s_cmp_lg_u32 s64, 0")
        e(f"s_cbranch_scc1 {Le}")
        e("v_lshlrev_b32 v8, 3, v5")
        e("v_lshl_add_u32 v8, v6, 2, v8")
        for w in range(4): e(f"ds_read_b32 v{20+w}, v8 offset:{RED+256*w}")
        e("s_waitcnt lgkmcnt(0)")
        e("v_add_f32 v20, v20, v21")
        e("v_add_f32 v22, v22, v23")
        e("v_add_f32 v20, v20, v22")
        self.rnd(20)
        e("v_add_f32 v20, v20, v17")
        e("v_cvt_pk_bf16_f32 v20, v20, v20")
        e("s_cmp_eq_u32 s68, 1")
        e("s_cbranch_scc1 L_c_poll")
        e(f"buffer_store_short v20, v14, s[{R_W2}:{R_W2+3}], 0 offen")
        e("s_cmp_lg_u32 s12, 0")
        e(f"s_cbranch_scc1 {Le}")
        e(f"v_mov_b32 v21, s{S_TAG}")
        e("s_mov_b64 exec, 1")
        e(f"buffer_store_dword v21, off, s[{R_WS}:{R_WS+3}], 0 offset:{EPOCH} sc1")
        e.label(Le)
        self.stamp(8)
        self.endpgm()

    def build(self):
        e = self.e
        e("s_cmp_ge_u32 s2, 256")
        e("s_cbranch_scc1 L_exit")
        e("s_load_dwordx16 s[16:31], s[0:1], 0")
        e("s_load_dwordx8 s[32:39], s[0:1], 64")
        self.stamp_init()
        e("v_lshrrev_b32 v2, 6, v0")
        e("v_and_b32 v1, 63, v0")
        e(f"v_readfirstlane_b32 s{S_WAVE}, v2")
        self.stamp(0)
        e(f"s_and_b32 s{S_HW}, s{S_WAVE}, 3")
        e(f"s_cmp_lt_u32 s{S_WAVE}, 4")
        e("s_cbranch_scc1 L_hpath")
        self.s_path()
        e.label("L_hpath")
        e(f"s_lshr_b32 s{S_GRP}, s2, 4")
        e(f"s_and_b32 s{S_SPL}, s2, 15")
        e(f"s_lshr_b32 s{S_B}, s2, 7")
        e(f"s_and_b32 s{S_HKV}, s{S_GRP}, 7")
        e(f"s_mov_b32 s{S_TO}, {TIMEOUT}")
        e("s_waitcnt lgkmcnt(0)")
        self.srd(R_WS, P_WS, WS_SIZE)
        self.srd(R_X, P_X, 1792)
        if self.noq: e("s_branch L_hdone")
        e("s_setprio 2")
        e(f"s_cmp_lg_u32 s{S_HW}, 0")
        e("s_cbranch_scc1 L_hnq")
        self.q_path()
        e("s_branch L_hq")
        e.label("L_hnq")
        e(f"buffer_load_dword v10, off, s[{R_WS}:{R_WS+3}], 0 offset:{EPOCH} sc1")
        self.h_consts()
        e("s_waitcnt vmcnt(0)")
        e("v_readfirstlane_b32 s64, v10")
        self.set_tag(64)
        self.lds_wait(MISC + 24, "eq", f"s{S_TAG}", 2)
        e.label("L_hq")
        self.q_gather()
        e("s_setprio 0")
        e("s_barrier")
        self.stamp(3)
        e(f"s_cmp_lg_u32 s{S_HW}, 1")
        e("s_cbranch_scc1 L_sfinal_back")
        e("s_mov_b32 s68, 1")
        e("s_branch L_sfinal")
        e.label("L_sfinal_back")
        if self.noroles: e("s_branch L_hdone")
        e(f"s_cmp_lg_u32 s{S_HW}, 0")
        e("s_cbranch_scc1 L_rwait")
        self.lds_wait(MISC + 12, "le", self.trig, 8)
        self.srd(R_W, P_DBG, 256)
        e("v_mov_b32 v10, 1")
        e("s_mov_b64 exec, 1")
        e(f"buffer_atomic_add v10, off, s[{R_W}:{R_W+3}], 0 sc0 sc1")
        e("s_waitcnt vmcnt(0)")
        e("s_mov_b64 exec, -1")
        e("v_readfirstlane_b32 s12, v10")
        e("s_add_u32 s12, s12, 1")
        self.lds_set(MISC + 16, "s12")
        e("s_branch L_rgot")
        e.label("L_rwait")
        self.lds_wait(MISC + 16, "lg", 0, 8, 12)
        e.label("L_rgot")
        e("s_sub_u32 s12, s12, 1")
        if self.diag: e(f"s_mov_b32 s{ST0+22}, s12")
        e("s_cmp_ge_u32 s12, 98")
        e("s_cbranch_scc1 L_hdone")
        self.h_consts()
        e("s_cmp_lt_u32 s12, 14")
        e("s_cbranch_scc0 L_notc")
        self.stage_c()
        e.label("L_notc")
        e("s_sub_u32 s12, s12, 14")
        e("s_cmp_lt_u32 s12, 28")
        e("s_cbranch_scc0 L_notb")
        self.stage_b()
        e.label("L_notb")
        e("s_sub_u32 s12, s12, 28")
        e(f"s_mul_i32 s{S_HKV}, s12, 37")
        e(f"s_lshr_b32 s{S_HKV}, s{S_HKV}, 8")
        e(f"s_mul_i32 s64, s{S_HKV}, 7")
        e(f"s_sub_u32 s{S_SPL}, s12, s64")
        self.stage_a()
        e.label("L_hfail")
        e.label("L_hdone")
        self.endpgm()
        e.label("L_exit")
        e("s_endpgm")
        return e.text()

HEAD = """; fused pre-LN GQA decode attention + GEGLU FFN, one persistent launch (256 workgroups, one per CU).
; @launch grid=(256,1,1) block=(512,1,1) lds={lds}
.amdgcn_target "amdgcn-amd-amdhsa--gfx950"
.text
.globl {name}
.p2align 8
.type {name},@function
{name}:
"""
TAIL = """.section .rodata,"a"
.p2align 6
.amdhsa_kernel {name}
  .amdhsa_next_free_vgpr 256
  .amdhsa_next_free_sgpr 102
  .amdhsa_accum_offset 256
  .amdhsa_group_segment_fixed_size 0
  .amdhsa_kernarg_size 96
  .amdhsa_user_sgpr_count 2
  .amdhsa_user_sgpr_kernarg_segment_ptr 1
  .amdhsa_system_sgpr_workgroup_id_x 1
.end_amdhsa_kernel
"""

def make(path, **kw):
    g = Gen(**kw)
    body = g.build()
    open(path, "w").write(HEAD.format(lds=LDS_SIZE, name=NAME) + body + TAIL.format(name=NAME))
    return g

if __name__ == "__main__":
    import argparse
    ap = argparse.ArgumentParser()
    ap.add_argument("out")
    ap.add_argument("--diag", action="store_true")
    ap.add_argument("--npro", type=int, default=32)
    ap.add_argument("--kvflags", default="nt")
    ap.add_argument("--wflags", default="nt")
    ap.add_argument("--qflags", default="nt")
    ap.add_argument("--noroles", action="store_true")
    ap.add_argument("--athr", type=int, default=13)
    ap.add_argument("--gsleep", type=int, default=4)
    ap.add_argument("--winfl", type=int, default=4)
    ap.add_argument("--dist", type=int, default=9)
    ap.add_argument("--thr", type=int, default=6)
    ap.add_argument("--nosoft", action="store_true")
    ap.add_argument("--noq", action="store_true")
    ap.add_argument("--trig", type=int, default=2)
    ap.add_argument("--aspec", type=int, default=2)
    a = ap.parse_args()
    g = make(a.out, diag=a.diag, npro=a.npro, kvflags=a.kvflags, wflags=a.wflags, qflags=a.qflags, noroles=a.noroles, athr=a.athr, gsleep=a.gsleep, winfl=a.winfl, dist=a.dist, nosoft=a.nosoft, noq=a.noq, trig=a.trig, aspec=a.aspec, thr=a.thr)
    print("pads inserted:", g.e.npad, "lines:", len(g.e.lines))
```

```python
import sys, struct, math
from emit import Emitter

NAME = "sequential_preLN__gqa_block_cached__geglu_ffn__decode_kernel"
def f2u(x): return struct.unpack("<I", struct.pack("<f", x))[0]

EPOCH = 0
QBUF = 0x140000
HBUF = 0x12000
YBUF = 0x14000
GBUF = 0x22000
PBUF = 0x40000
STAMP = 0x200000
WS_SIZE = 0x400000
QL = 0x0000
MISC = 0x0400
SML = 0x0500
STATS = 0x0600
AV = 0x0800
AVS = 1056
RED = 0x2A00
SO = 0x3000
STG = 0x5000
STGW = 28 * 1024
LDS_SIZE = STG + 4 * STGW

CSC = f2u(0.0625 * math.log2(math.e))
GOLD = 0x9E3779B9
TIMEOUT = 200000

S_WAVE, S_GRP, S_SPL, S_B, S_HKV, S_HW, S_TAG = 3, 4, 5, 6, 7, 8, 9
P_X, P_K, P_V, P_WQ, P_WO, P_BX, P_WG, P_WU, P_WD, P_OUT, P_DBG, P_WS = [16 + 2 * i for i in range(12)]
R_K, R_V, R_WS, R_W, R_X, R_W2 = 40, 44, 48, 52, 56, 60
S_C = 10
S_TO = 11
ST0 = 72
S_TM = 96

class Gen:
    def __init__(self, diag=False, npro=32, kvflags="nt", wflags="", qflags="", noroles=False, athr=13, gsleep=4, winfl=1, dist=8, nosoft=False, noq=False, trig=2, aspec=2, thr=5, vflags=None):
        self.e = Emitter()
        self.diag = diag
        self.npro = npro
        self.kvflags = kvflags
        self.wflags = wflags
        self.qflags = qflags
        self.noroles = noroles
        self.athr = athr
        self.gsleep = gsleep
        self.winfl = winfl
        self.dist = dist
        self.nosoft = nosoft
        self.noq = noq
        self.trig = trig
        self.aspec = aspec
        self.thr = thr
        self.vflags = kvflags if vflags is None else vflags
        self.uid = 0
    def lab(self, s):
        self.uid += 1
        return f"L_{s}_{self.uid}"
    def srd(self, r, p, size):
        e = self.e
        e(f"s_mov_b32 s{r}, s{p}")
        e(f"s_mov_b32 s{r+1}, s{p+1}")
        e(f"s_mov_b32 s{r+2}, {size}")
        e(f"s_mov_b32 s{r+3}, 0x20000")
    def stamp(self, i):
        if self.diag and i in (6, 7):
            self.e(f"s_mov_b32 s{ST0+2*(i+3)}, s{S_TO}")
        if self.diag:
            self.e(f"s_memrealtime s[{ST0+2*i}:{ST0+2*i+1}]")
            self.e("s_waitcnt lgkmcnt(0)")
    def stamp_init(self):
        if self.diag:
            for i in range(12):
                self.e(f"s_mov_b64 s[{ST0+2*i}:{ST0+2*i+1}], 0")
    def stamp_flush(self):
        if not self.diag: return
        e = self.e
        e("s_mov_b64 exec, -1")
        e(f"s_lshl_b32 s64, s2, 3")
        e(f"s_add_u32 s64, s64, s{S_WAVE}")
        e(f"s_lshl_b32 s64, s64, 6")
        e(f"s_add_u32 s64, s64, {STAMP}")
        e(f"s_getreg_b32 s65, hwreg(HW_REG_XCC_ID)")
        e(f"s_getreg_b32 s66, hwreg(HW_REG_HW_ID)")
        for i in range(12):
            e(f"v_mov_b32 v{2+i}, s{ST0+2*i}")
        e("v_mov_b32 v14, s65")
        e("v_mov_b32 v15, s66")
        e("v_mov_b32 v16, 0")
        e("v_mov_b32 v17, 0")
        e("s_mov_b64 exec, 1")
        for i in range(4):
            e(f"buffer_store_dwordx4 v[{2+4*i}:{5+4*i}], off, s[{R_WS}:{R_WS+3}], s64 offset:{16*i}")
        e("s_waitcnt vmcnt(0)")
    def endpgm(self):
        self.stamp_flush()
        self.e("s_endpgm")

    def rnd(self, v):
        self.e(f"v_cvt_pk_bf16_f32 v{v}, v{v}, v{v}")
        self.e(f"v_lshlrev_b32 v{v}, 16, v{v}")
    def rnd_many(self, vs):
        for v in vs: self.e(f"v_cvt_pk_bf16_f32 v{v}, v{v}, v{v}")
        for v in vs: self.e(f"v_lshlrev_b32 v{v}, 16, v{v}")
    def set_tag(self, src):
        self.e(f"s_add_u32 s{S_TAG}, s{src}, {GOLD:#x}")
        self.e(f"s_and_b32 s{S_TM}, s{S_TAG}, 0x3f")
    def tagw(self, dst, src, vmask):
        self.e(f"v_and_or_b32 v{dst}, v{src}, v{vmask}, s{S_TM}")
    def check_words(self, words, tmp):
        e = self.e
        e(f"v_xor_b32 v{tmp}, s{S_TM}, v{words[0]}")
        for w in words[1:]:
            e(f"v_bitop3_b32 v{tmp}, v{w}, s{S_TM}, v{tmp} bitop3:0xbe")
        e(f"v_and_b32 v{tmp}, 0x3f, v{tmp}")
        e(f"v_cmp_ne_u32 vcc, 0, v{tmp}")
    def row_reduce(self, vs, op="add"):
        e = self.e
        for ctl in ("quad_perm:[1,0,3,2]", "quad_perm:[2,3,0,1]", "row_half_mirror", "row_mirror"):
            for v in vs:
                e(f"v_{op}_f32_dpp v{v}, v{v}, v{v} {ctl} row_mask:0xf bank_mask:0xf")
    def wave_sum_to_sgpr(self, vs, ss):
        e = self.e
        self.row_reduce(vs)
        for v in vs: e(f"v_add_f32_dpp v{v}, v{v}, v{v} row_bcast:15 row_mask:0xa bank_mask:0xf")
        for v in vs: e(f"v_add_f32_dpp v{v}, v{v}, v{v} row_bcast:31 row_mask:0xc bank_mask:0xf")
        for v, s in zip(vs, ss): e(f"v_readlane_b32 s{s}, v{v}, 63")
    def cross_rows(self, v, t, op):
        e = self.e
        e(f"v_mov_b32 v{t}, v{v}")
        e(f"v_permlane16_swap_b32 v{v}, v{t}")
        e(f"v_{op}_f32 v{v}, v{v}, v{t}")
        e(f"v_mov_b32 v{t}, v{v}")
        e(f"v_permlane32_swap_b32 v{v}, v{t}")
        e(f"v_{op}_f32 v{v}, v{v}, v{t}")

    def s_path(self):
        e = self.e
        KO0, KO1, VO = 2, 3, 4
        MK = 5
        MRUN, LRUN, NRUN = 9, 10, 11
        T = 12; PK = 16; MX, MX2, AL, ALD, NN = 18, 19, 20, 21, 22
        P = 24
        D0, D1, ACC0, ACC1, AF, QF, SLOT = 28, 32, 36, 40, 44, 60, 80
        S_BASE, S_O1, S_O2, S_CNT = 64, 65, 66, 67
        NT = 32
        e("v_and_b32 v12, 15, v1")
        e("v_lshrrev_b32 v13, 4, v1")
        e("v_and_b32 v14, 7, v12")
        e("v_lshrrev_b32 v15, 3, v12")
        e(f"v_lshlrev_b32 v{KO0}, 9, v14")
        e("v_lshl_add_u32 v16, v15, 2, v13")
        e(f"v_lshl_add_u32 v{KO0}, v16, 4, v{KO0}")
        e(f"v_add_u32 v{KO1}, 0x1000, v{KO0}")
        e(f"v_lshlrev_b32 v{VO}, 11, v13")
        e(f"v_lshl_add_u32 v{VO}, v12, 4, v{VO}")
        e("s_mov_b32 s68, 0")
        e(f"s_lshl_b32 s{S_BASE}, s2, 20")
        e(f"s_lshl_b32 s65, s{S_HW}, 13")
        e(f"s_add_u32 s{S_BASE}, s{S_BASE}, s65")
        e("s_waitcnt lgkmcnt(0)")
        self.srd(R_K, P_K, 1 << 28)
        self.srd(R_V, P_V, 1 << 28)
        state = dict(issued=-1)
        def slot_regs(s): return f"v[{SLOT+4*s}:{SLOT+4*s+3}]"
        def issue(n, slot, soff):
            i = n % 16
            if i < 8:
                G, j = i >> 2, i & 3
                e(f"buffer_load_dwordx4 {slot_regs(slot)}, v{KO0+G}, s[{R_K}:{R_K+3}], s{soff} offen offset:{j*128} {self.kvflags}")
            else:
                i -= 8
                e(f"buffer_load_dwordx4 {slot_regs(slot)}, v{VO}, s[{R_V}:{R_V+3}], s{soff} offen offset:{(i>>1)*512+(i&1)*256} {self.vflags}")
        npro = self.npro
        assert 16 <= npro <= 44
        for n in range(npro):
            if n % 16 == 0:
                e(f"s_add_u32 s{S_O1}, s{S_BASE}, {(n//16)*32768}")
            if n >= self.thr: e(f"s_waitcnt vmcnt({self.thr-1})")
            issue(n, n, S_O1)
            if n == 7:
                self.stamp(4)
                self.srd(R_WS, P_WS, WS_SIZE)
                e(f"s_mov_b32 s{S_C}, {CSC:#x}")
                e("v_lshrrev_b32 v16, 1, v14")
                e("v_and_b32 v17, 1, v14")
                e("v_mov_b32 v18, 0xffff")
                e("v_lshlrev_b32 v17, 4, v17")
                e("v_lshlrev_b32 v18, v17, v18")
                for i in range(4):
                    e(f"v_cmp_eq_u32 vcc, {i}, v16")
                    e(f"v_cndmask_b32 v{MK+i}, 0, v18, vcc")
                e(f"v_mov_b32 v{MRUN}, 0xff800000")
                e(f"v_mov_b32 v{NRUN}, 0x7f800000")
                e(f"v_mov_b32 v{LRUN}, 0")
                for i in range(8): e(f"v_mov_b32 v{ACC0+i}, 0")
                e("v_bfe_u32 v16, v12, 2, 1")
                e("v_lshl_add_u32 v16, v16, 2, v13")
                e("v_lshlrev_b32 v23, 9, v15")
                e("v_lshl_add_u32 v23, v16, 4, v23")
        self.stamp(5)
        if not self.noq: e("s_barrier")
        self.stamp(1)
        for j in range(4):
            e(f"ds_read_b128 v[{QF+4*j}:{QF+4*j+3}], v23 offset:{QL+j*128}")
        e("s_waitcnt lgkmcnt(0)")

        def softmax(point):
            for r in range(4): e(f"v_permlane32_swap_b32 v{D0+r}, v{D1+r}")
            for r in range(4): e(f"v_add_f32_dpp v{T+r}, v{D1+r}, v{D0+r} row_half_mirror row_mask:0xf bank_mask:0x5")
            for r in range(4): e(f"v_add_f32_dpp v{T+r}, v{D0+r}, v{D1+r} row_half_mirror row_mask:0xf bank_mask:0xa")
            e(f"v_cvt_pk_bf16_f32 v{PK}, v{T}, v{T+1}")
            e(f"v_cvt_pk_bf16_f32 v{PK+1}, v{T+2}, v{T+3}")
            e(f"v_lshlrev_b32 v{T}, 16, v{PK}")
            e(f"v_and_b32 v{T+1}, 0xffff0000, v{PK}")
            e(f"v_lshlrev_b32 v{T+2}, 16, v{PK+1}")
            e(f"v_and_b32 v{T+3}, 0xffff0000, v{PK+1}")
            point()
            e(f"v_max3_f32 v{MX}, v{T}, v{T+1}, v{T+2}")
            e(f"v_max3_f32 v{MX}, v{MX}, v{T+3}, v{MRUN}")
            self.cross_rows(MX, MX2, "max")
            e(f"v_mov_b32 v{MRUN}, v{MX}")
            e(f"v_mul_f32 v{NN}, s{S_C}, v{MX}")
            e(f"v_sub_f32 v{AL}, 0, v{NN}")
            for r in range(4): e(f"v_fma_f32 v{P+r}, v{T+r}, s{S_C}, v{AL}")
            e(f"v_sub_f32 v{NN}, v{AL}, v{NRUN}")
            e(f"v_mov_b32 v{NRUN}, v{AL}")
            e(f"v_exp_f32 v{AL}, v{NN}")
            for r in range(4): e(f"v_exp_f32 v{P+r}, v{P+r}")
            point()
            e(f"v_mov_b32 v{ALD}, v{AL}")
            e(f"v_mul_f32 v{LRUN}, v{LRUN}, v{AL}")
            e(f"v_mov_b32_dpp v{ALD}, v{AL} row_shr:8 row_mask:0x3 bank_mask:0xc")
            e(f"v_mov_b32_dpp v{ALD}, v{AL} row_shl:8 row_mask:0xc bank_mask:0x3")
            for r in range(4): e(f"v_cvt_pk_bf16_f32 v{T+r}, v{P+r}, v{P+r}")
            e(f"v_add_f32 v{P}, v{P}, v{P+1}")
            e(f"v_add_f32 v{P+2}, v{P+2}, v{P+3}")
            for i in range(4): e(f"v_and_b32 v{AF+i}, v{T}, v{MK+i}")
            for i in range(8): e(f"v_mul_f32 v{ACC0+i}, v{ACC0+i}, v{ALD}")
            e(f"v_add_f32 v{P}, v{P}, v{P+2}")
            for r in range(1, 4):
                for i in range(4): e(f"v_and_b32 v{AF+4*r+i}, v{T+r}, v{MK+i}")
            e(f"v_add_f32 v{LRUN}, v{LRUN}, v{P}")

        d = self.dist
        NL = NT * 16
        def slot_of(n): return n if n < npro else n % 16
        def consume(n):
            i = n % 16
            if i < 8:
                G, j = i >> 2, i & 3
                D = D0 if G == 0 else D1
                c = "0" if j == 0 else f"v[{D}:{D+3}]"
                e(f"v_mfma_f32_16x16x32_bf16 v[{D}:{D+3}], {slot_regs(slot_of(n))}, v[{QF+4*j}:{QF+4*j+3}], {c}")
            else:
                i -= 8
                j, hf = i >> 1, i & 1
                A = ACC0 if hf == 0 else ACC1
                e(f"v_mfma_f32_16x16x32_bf16 v[{A}:{A+3}], v[{AF+4*j}:{AF+4*j+3}], {slot_regs(slot_of(n))}, v[{A}:{A+3}]")
        st = dict(k=npro)
        def tile(t, steady):
            st["j"] = 0
            st["last"] = 16 * t - 1
            def point():
                j = st["j"]; st["j"] += 1
                k = st["k"]
                want = 16 * t + d + j
                prev = k - 16 if k - 16 >= npro else k % 16
                if prev > st["last"]:
                    assert not steady
                    return
                if k > want and j % 2 == 0: return
                if steady:
                    assert k == want
                    so = S_O1 if k // 16 == t else S_O2
                else:
                    if st.get("so") != k // 16:
                        e(f"s_add_u32 s{S_O2}, s{S_BASE}, {(k//16)*32768}")
                        st["so"] = k // 16
                    so = S_O2
                e(f"s_waitcnt vmcnt({self.thr-1})")
                issue(k, slot_of(k), so)
                st["k"] = k + 1
            for i in range(16):
                n = 16 * t + i
                if i == 8: softmax(point)
                w = st["k"] - 1 - n
                assert w >= 0
                if w < self.thr or not steady: e(f"s_waitcnt vmcnt({min(63, w)})")
                consume(n)
                st["last"] = n
                if i % 8 != 7: point()
        t = 0
        while not (st["k"] - 16 * t == d and 16 * t >= npro):
            tile(t, False)
            t += 1
        tfirst = t
        self.stamp(8)
        e(f"s_add_u32 s{S_O1}, s{S_BASE}, {tfirst*32768}")
        e(f"s_mov_b32 s{S_CNT}, {NT-tfirst}")
        e("v_mov_b32 v79, 0")
        L = self.lab("sloop")
        e.label(L)
        e(f"s_add_u32 s{S_O2}, s{S_O1}, 32768")
        e(f"v_mov_b32 v23, s{S_CNT}")
        e(f"s_cmp_eq_u32 s{S_CNT}, 1")
        e(f"s_cselect_b32 s{S_O2}, 0x80000000, s{S_O2}")
        e(f"ds_write_b32 v79, v23 offset:{MISC+12}")
        tile(tfirst, True)
        e(f"s_mov_b32 s{S_O1}, s{S_O2}")
        e(f"s_sub_u32 s{S_CNT}, s{S_CNT}, 1")
        e(f"s_cmp_lg_u32 s{S_CNT}, 0")
        e(f"s_cbranch_scc1 {L}")
        self.stamp(2)
        self.cross_rows(LRUN, MX2, "add")
        e("v_and_b32 v12, 15, v1")
        e("v_lshrrev_b32 v13, 4, v1")
        e("v_lshrrev_b32 v14, 1, v13")
        e("v_and_b32 v15, 1, v13")
        e("v_lshlrev_b32 v16, 10, v14")
        e("v_lshl_add_u32 v16, v12, 5, v16")
        e("v_lshl_add_u32 v16, v15, 4, v16")
        e(f"s_lshl_b32 s64, s{S_HW}, 11")
        e("v_add_u32 v16, s64, v16")
        e(f"ds_write_b128 v16, v[{ACC0}:{ACC0+3}] offset:{SO}")
        e(f"ds_write_b128 v16, v[{ACC1}:{ACC1+3}] offset:{SO+512}")
        e(f"s_lshl_b32 s64, s{S_HW}, 4")
        e("v_add_u32 v17, s64, v1")
        e(f"v_mov_b32 v18, v{NRUN}")
        e(f"v_mov_b32 v19, v{LRUN}")
        e("s_mov_b64 exec, 0x101")
        e(f"ds_write_b64 v17, v[18:19] offset:{SML}")
        e("s_mov_b64 exec, 1")
        e("v_mov_b32 v20, 0")
        e("v_mov_b32 v21, 1")
        e("s_waitcnt lgkmcnt(0)")
        e(f"ds_add_rtn_u32 v22, v20, v21 offset:{MISC+4}")
        e(f"ds_read_b32 v23, v20 offset:{MISC}")
        e("s_waitcnt lgkmcnt(0)")
        e("v_readfirstlane_b32 s64, v22")
        e(f"v_readfirstlane_b32 s{S_TAG}, v23")
        e("s_mov_b64 exec, -1")
        e("s_cmp_eq_u32 s64, 3")
        Ld = self.lab("slast")
        e(f"s_cbranch_scc1 {Ld}")
        self.endpgm()
        e.label(Ld)
        e("s_waitcnt vmcnt(0)")
        e.label("L_sfinal")
        e("v_mov_b32 v20, 0")
        e("v_lshlrev_b32 v22, 4, v1")
        for w in range(4):
            e(f"ds_read_b128 v[{24+4*w}:{27+4*w}], v20 offset:{SML+16*w}")
        OB = 80
        for h in range(2):
            for w in range(4):
                r = OB + (h * 4 + w) * 4
                e(f"ds_read_b128 v[{r}:{r+3}], v22 offset:{SO + w*2048 + h*1024}")
        e(f"s_and_b32 s{S_TM}, s{S_TAG}, 0x3f")
        e("v_mov_b32 v21, 0xffffffc0")
        e("s_waitcnt lgkmcnt(8)")
        for h in range(2):
            n = [24 + 4 * w + 2 * h for w in range(4)]
            e(f"v_min3_f32 v{40+h}, v{n[0]}, v{n[1]}, v{n[2]}")
            e(f"v_min_f32 v{40+h}, v{40+h}, v{n[3]}")
        for h in range(2):
            for w in range(4):
                e(f"v_sub_f32 v{44+4*h+w}, v{40+h}, v{24+4*w+2*h}")
        for i in range(8): e(f"v_exp_f32 v{44+i}, v{44+i}")
        for h in range(2):
            e(f"v_mul_f32 v{42+h}, v{44+4*h}, v{25+2*h}")
        for w in range(1, 4):
            for h in range(2):
                e(f"v_fmac_f32 v{42+h}, v{44+4*h+w}, v{25+4*w+2*h}")
        for h in range(2): e(f"v_rcp_f32 v{52+h}, v{42+h}")
        for h in range(2): e(f"v_log_f32 v{54+h}, v{42+h}")
        for h in range(2):
            for w in range(4): e(f"v_mul_f32 v{44+4*h+w}, v{44+4*h+w}, v{52+h}")
        for h in range(2): e(f"v_sub_f32 v{54+h}, v{54+h}, v{40+h}")
        e(f"s_lshl_b32 s64, s2, 11")
        e(f"s_add_u32 s64, s64, {PBUF}")
        for h in range(2):
            e(f"s_waitcnt lgkmcnt({4-4*h})")
            o = 56 + 4 * h
            for i in range(4): e(f"v_mul_f32 v{o+i}, v{44+4*h}, v{OB+h*16+i}")
            for w in range(1, 4):
                for i in range(4): e(f"v_fmac_f32 v{o+i}, v{44+4*h+w}, v{OB+h*16+w*4+i}")
            for i in range(4): self.tagw(o + i, o + i, 21)
        e("v_cmp_eq_u32 vcc, 1, v1")
        e("v_cndmask_b32 v72, v54, v55, vcc")
        e(f"v_mov_b32 v73, s{S_TAG}")
        e("v_lshlrev_b32 v23, 11, v1")
        e("s_lshl_b32 s65, s2, 3")
        e(f"s_add_u32 s65, s65, {HBUF}")
        e("s_cmp_eq_u32 s68, 1")
        e("s_cbranch_scc1 L_sfinal_back")
        for h in range(2):
            o = 56 + 4 * h
            e(f"buffer_store_dwordx4 v[{o}:{o+3}], v22, s[{R_WS}:{R_WS+3}], s64 offen offset:{h*1024} sc1")
        e("s_mov_b64 exec, 3")
        e(f"buffer_store_dwordx2 v[72:73], v23, s[{R_WS}:{R_WS+3}], s65 offen sc1")
        self.stamp(3)
        self.endpgm()

    def h_consts(self):
        e = self.e
        e("v_and_b32 v4, 15, v1")
        e("v_lshrrev_b32 v5, 4, v1")
        e("v_lshrrev_b32 v6, 2, v4")
        e("v_lshl_add_u32 v6, v5, 3, v6")
        e("v_and_b32 v7, 3, v4")
        e("v_lshlrev_b32 v7, 3, v7")
        e("v_and_b32 v8, 1, v1")
        e(f"v_mul_u32_u24 v8, {AVS}, v8")
        e("v_lshl_add_u32 v3, v5, 4, v8")
    def tr_addr(self, lgpitch, sbase):
        e = self.e
        e(f"v_lshl_add_u32 v2, v6, {lgpitch}, v7")
        e(f"v_add_u32 v2, s{sbase}, v2")
    def dma_voff(self, rowbytes, lgpitch, vout):
        e = self.e
        sh = lgpitch - 4
        e(f"v_lshrrev_b32 v{vout}, {sh}, v1")
        e(f"v_mul_u32_u24 v{vout}, {rowbytes}, v{vout}")
        e(f"v_and_b32 v{vout+1}, {(1<<sh)-1}, v1")
        e(f"v_lshl_add_u32 v{vout}, v{vout+1}, 4, v{vout}")
    def dma_loop(self, srd, voff, n, s_src, src_step, s_dst, inflight=None):
        e = self.e
        L = self.lab("dma")
        inflight = self.winfl
        e(f"s_mov_b32 s66, {n}")
        e.label(L)
        e(f"s_mov_b32 m0, s{s_dst}")
        e(f"s_add_u32 s{s_dst}, s{s_dst}, 1024")
        e(f"buffer_load_dwordx4 v{voff}, s[{srd}:{srd+3}], s{s_src} offen {self.wflags} lds")
        e(f"s_add_u32 s{s_src}, s{s_src}, {src_step}")
        if inflight < 32: e(f"s_waitcnt vmcnt({inflight-1})")
        e("s_sub_u32 s66, s66, 1")
        e("s_cmp_lg_u32 s66, 0")
        e(f"s_cbranch_scc1 {L}")
    def h_sync(self):
        e = self.e
        L = self.lab("hs"); Lx = self.lab("hsx")
        e("s_waitcnt vmcnt(0)")
        e("v_mov_b32 v8, 0")
        e("v_mov_b32 v9, 1")
        e("s_mov_b64 exec, 1")
        e(f"ds_add_u32 v8, v9 offset:{MISC+8}")
        e("s_mov_b64 exec, -1")
        e.label(L)
        e(f"ds_read_b32 v9, v8 offset:{MISC+8}")
        e("s_waitcnt lgkmcnt(0)")
        e("v_readfirstlane_b32 s64, v9")
        e("s_cmp_ge_u32 s64, 4")
        e(f"s_cbranch_scc1 {Lx}")
        e("s_sleep 2")
        e(f"s_sub_u32 s{S_TO}, s{S_TO}, 1")
        e(f"s_cmp_lg_u32 s{S_TO}, 0")
        e(f"s_cbranch_scc1 {L}")
        e(f"s_branch L_hfail")
        e.label(Lx)
    def tr_frags(self, nsteps, off, fbase, lgpitch):
        e = self.e
        for st in range(nsteps):
            f = fbase + 4 * st
            o = off + st * (32 << lgpitch)
            assert o + (4 << lgpitch) < 65536
            e(f"ds_read_b64_tr_b16 v[{f}:{f+1}], v2 offset:{o}")
            e(f"ds_read_b64_tr_b16 v[{f+2}:{f+3}], v2 offset:{o + (4 << lgpitch)}")
            if st % 4 == 3: e("s_waitcnt lgkmcnt(0)")
        e("s_waitcnt lgkmcnt(0)")
    def gemv(self, nsteps, abase, a_lds_off, chains, vaddr=3):
        e = self.e
        AHEAD = 12
        def rd(st): e(f"ds_read_b128 v[{abase+4*st}:{abase+4*st+3}], v{vaddr} offset:{a_lds_off+st*64}")
        issued = min(nsteps, AHEAD)
        for st in range(issued): rd(st)
        for st in range(nsteps):
            e(f"s_waitcnt lgkmcnt({issued - 1 - st})")
            for D, fb in chains:
                c = "0" if st == 0 else f"v[{D}:{D+3}]"
                e(f"v_mfma_f32_16x16x32_bf16 v[{D}:{D+3}], v[{abase+4*st}:{abase+4*st+3}], v[{fb+4*st}:{fb+4*st+3}], {c}")
            if issued < nsteps:
                rd(issued); issued += 1
    def lds_wait(self, off, cmp, val, sleep=4, sreg=64):
        e = self.e
        L = self.lab("lw"); Lx = self.lab("lwx")
        e("v_mov_b32 v8, 0")
        e.label(L)
        e(f"ds_read_b32 v9, v8 offset:{off}")
        e("s_waitcnt lgkmcnt(0)")
        e(f"v_readfirstlane_b32 s{sreg}, v9")
        e(f"s_cmp_{cmp}_u32 s{sreg}, {val}")
        e(f"s_cbranch_scc1 {Lx}")
        e(f"s_sleep {sleep}")
        e(f"s_sub_u32 s{S_TO}, s{S_TO}, 1")
        e(f"s_cmp_lg_u32 s{S_TO}, 0")
        e(f"s_cbranch_scc1 {L}")
        e(f"s_branch L_hfail")
        e.label(Lx)
    def lds_set(self, off, src):
        e = self.e
        e("v_mov_b32 v8, 0")
        e(f"v_mov_b32 v9, {src}")
        e(f"ds_write_b32 v8, v9 offset:{off}")
    def bar(self):
        e = self.e
        L = self.lab("nb")
        e("s_cmp_eq_u32 s68, 1")
        e(f"s_cbranch_scc1 {L}")
        e("s_barrier")
        e.label(L)
    def gate_all(self):
        e = self.e
        L = self.lab("gate"); Lx = self.lab("gatex"); Lo = self.lab("gateo"); Le = self.lab("gatee")
        e(f"s_cmp_lg_u32 s{S_HW}, 0")
        e(f"s_cbranch_scc1 {Lo}")
        e("v_lshlrev_b32 v8, 5, v1")
        e(f"s_mov_b32 s64, {HBUF}")
        e.label(L)
        e(f"buffer_load_dwordx4 v[40:43], v8, s[{R_WS}:{R_WS+3}], s64 offen sc1")
        e(f"buffer_load_dwordx4 v[44:47], v8, s[{R_WS}:{R_WS+3}], s64 offen offset:16 sc1")
        e("s_waitcnt vmcnt(0)")
        e(f"v_xor_b32 v41, s{S_TAG}, v41")
        e(f"v_xor_b32 v43, s{S_TAG}, v43")
        e(f"v_xor_b32 v45, s{S_TAG}, v45")
        e(f"v_xor_b32 v47, s{S_TAG}, v47")
        e("v_or3_b32 v41, v41, v43, v45")
        e("v_or_b32 v41, v41, v47")
        e("v_cmp_ne_u32 vcc, 0, v41")
        e(f"s_cbranch_vccz {Lx}")
        e("s_mov_b64 exec, vcc")
        e(f"s_sleep {self.gsleep}")
        e(f"s_sub_u32 s{S_TO}, s{S_TO}, 1")
        e(f"s_cmp_lg_u32 s{S_TO}, 0")
        e(f"s_cbranch_scc1 {L}")
        e(f"s_branch L_hfail")
        e.label(Lx)
        e("s_mov_b64 exec, -1")
        self.lds_set(MISC + 20, 1)
        e(f"s_branch {Le}")
        e.label(Lo)
        self.lds_wait(MISC + 20, "eq", 1, 2)
        e.label(Le)
    def sweep(self, units, mant=True, smask=69, tmp=9):
        e = self.e
        n = len(units)
        L = self.lab("sweep"); Lx = self.lab("sweepx")
        e(f"s_mov_b32 s{smask}, {(1<<n)-1:#x}")
        e.label(L)
        for i, (loads, tags) in enumerate(units):
            sk = self.lab("sk")
            e(f"s_bitcmp1_b32 s{smask}, {i}")
            e(f"s_cbranch_scc0 {sk}")
            for l in loads: e(l)
            e.label(sk)
        e("s_waitcnt vmcnt(0)")
        for i, (loads, tags) in enumerate(units):
            sk = self.lab("ck")
            e(f"s_bitcmp1_b32 s{smask}, {i}")
            e(f"s_cbranch_scc0 {sk}")
            if mant:
                self.check_words(tags, tmp)
            else:
                e(f"v_xor_b32 v{tmp}, s{S_TAG}, v{tags[0]}")
                for tg in tags[1:]: e(f"v_bitop3_b32 v{tmp}, v{tg}, s{S_TAG}, v{tmp} bitop3:0xbe")
                e(f"v_cmp_ne_u32 vcc, 0, v{tmp}")
            e(f"s_cbranch_vccnz {sk}")
            e(f"s_bitset0_b32 s{smask}, {i}")
            e.label(sk)
        e(f"s_cmp_eq_u32 s{smask}, 0")
        e(f"s_cbranch_scc1 {Lx}")
        e(f"s_sub_u32 s{S_TO}, s{S_TO}, 1")
        e(f"s_cmp_lg_u32 s{S_TO}, 0")
        e(f"s_cbranch_scc1 {L}")
        e(f"s_branch L_hfail")
        e.label(Lx)

    def ln_finish(self, mean, var, out_mb, out_rs):
        e = self.e
        for m, o in zip(mean, out_mb):
            if m != o: e(f"v_mov_b32 v{o}, v{m}")
        self.rnd_many(list(out_mb) + list(var))
        for v in var: e(f"v_add_f32 v{v}, {f2u(1e-5):#x}, v{v}")
        self.rnd_many(var)
        for v in var: e(f"v_sqrt_f32 v{v}, v{v}")
        self.rnd_many(var)
        for v, o in zip(var, out_rs): e(f"v_rcp_f32 v{o}, v{v}")

    def q_path(self):
        e = self.e
        e("v_lshlrev_b32 v8, 4, v1")
        e("v_cmp_gt_u32 s[70:71], 56, v1")
        e("v_mov_b32 v9, 0x10000")
        e("v_cndmask_b32 v8, v9, v8, s[70:71]")
        e(f"buffer_load_dwordx4 v[12:15], v8, s[{R_X}:{R_X+3}], 0 offen")
        e(f"buffer_load_dwordx4 v[16:19], v8, s[{R_X}:{R_X+3}], 0 offen offset:896")
        e(f"buffer_load_dword v10, off, s[{R_WS}:{R_WS+3}], 0 offset:{EPOCH} sc1")
        e(f"s_and_b32 s12, s{S_SPL}, 3")
        e(f"s_lshr_b32 s13, s{S_SPL}, 2")
        e(f"s_lshl_b32 s64, s{S_B}, 2")
        e("s_add_u32 s13, s13, s64")
        e(f"s_mul_i32 s64, s12, {112*8192}")
        e(f"s_lshl_b32 s65, s{S_HKV}, 10")
        e("s_add_u32 s64, s64, s65")
        e("s_lshl_b32 s65, s13, 7")
        e("s_add_u32 s64, s64, s65")
        self.srd(R_W, P_WQ, 448 * 8192)
        self.dma_voff(8192, 7, 20)
        for st in range(14):
            e(f"s_mov_b32 m0, {STG + st*1024}")
            if st: e(f"s_add_u32 s64, s64, {8*8192}")
            e(f"buffer_load_dwordx4 v20, s[{R_W}:{R_W+3}], s64 offen {self.qflags} lds")
        self.stamp(9)
        self.h_consts()
        e("v_mov_b32 v20, 0")
        e("v_mov_b32 v21, 0")
        e("v_mov_b32 v21, 0x7fff")
        e(f"ds_write_b64 v20, v[20:21] offset:{MISC+8}")
        e("v_mov_b32 v21, 0")
        e(f"ds_write_b64 v20, v[20:21] offset:{MISC+16}")
        e(f"ds_write_b32 v20, v20 offset:{MISC+4}")
        e("s_waitcnt vmcnt(15)")
        self.stamp(10)
        for b in range(2):
            for i in range(4):
                e(f"v_lshlrev_b32 v{24+8*b+2*i}, 16, v{12+4*b+i}")
                e(f"v_and_b32 v{25+8*b+2*i}, 0xffff0000, v{12+4*b+i}")
        for b in range(2):
            x = 24 + 8 * b
            e(f"v_add_f32 v{40+b}, v{x}, v{x+1}")
            for i in range(2, 8): e(f"v_add_f32 v{40+b}, v{40+b}, v{x+i}")
        self.wave_sum_to_sgpr([40, 41], [64, 65])
        inv = f2u(1.0 / 448)
        for b in range(2):
            e(f"v_mov_b32 v{42+b}, {inv:#x}")
            e(f"v_mul_f32 v{42+b}, s{64+b}, v{42+b}")
        for b in range(2):
            x = 24 + 8 * b
            e(f"v_sub_f32 v44, v{x}, v{42+b}")
            e(f"v_mul_f32 v{40+b}, v44, v44")
            for i in range(1, 8):
                e(f"v_sub_f32 v44, v{x+i}, v{42+b}")
                e(f"v_fmac_f32 v{40+b}, v44, v44")
            e(f"v_cndmask_b32 v{40+b}, 0, v{40+b}, s[70:71]")
        self.wave_sum_to_sgpr([40, 41], [64, 65])
        for b in range(2):
            e(f"v_mov_b32 v{44+b}, {inv:#x}")
            e(f"v_mul_f32 v{44+b}, s{64+b}, v{44+b}")
        self.ln_finish([42, 43], [44, 45], [42, 43], [46, 47])
        for b in range(2):
            x = 24 + 8 * b
            for i in range(8): e(f"v_sub_f32 v{x+i}, v{x+i}, v{42+b}")
            for i in range(4): e(f"v_cvt_pk_bf16_f32 v{12+4*b+i}, v{x+2*i}, v{x+2*i+1}")
            for i in range(4):
                e(f"v_lshlrev_b32 v{x+2*i}, 16, v{12+4*b+i}")
                e(f"v_and_b32 v{x+2*i+1}, 0xffff0000, v{12+4*b+i}")
            for i in range(8): e(f"v_mul_f32 v{x+i}, v{x+i}, v{46+b}")
            for i in range(4): e(f"v_cvt_pk_bf16_f32 v{12+4*b+i}, v{x+2*i}, v{x+2*i+1}")
        e("v_lshlrev_b32 v8, 4, v1")
        e("s_mov_b64 exec, s[70:71]")
        e(f"ds_write_b128 v8, v[12:15] offset:{AV}")
        e(f"ds_write_b128 v8, v[16:19] offset:{AV+AVS}")
        e("s_mov_b64 exec, -1")
        e("s_waitcnt vmcnt(14)")
        e("v_readfirstlane_b32 s64, v10")
        self.set_tag(64)
        e(f"v_mov_b32 v21, s{S_TAG}")
        e(f"ds_write_b32 v20, v21 offset:{MISC}")
        e("s_waitcnt vmcnt(0) lgkmcnt(0)")
        self.stamp(1)
        e(f"s_mov_b32 s64, {STG}")
        self.tr_addr(7, 64)
        e("s_mul_i32 s64, s12, 224")
        e("v_add_u32 v9, s64, v3")
        for st in range(4): e(f"ds_read_b128 v[{128+4*st}:{131+4*st}], v9 offset:{AV+st*64}")
        for cg in range(4): self.tr_frags(4, cg * 32, 64 + 16 * cg, 7)
        e("v_cmp_gt_u32 vcc, 32, v1")
        for i in range(4): e(f"v_cndmask_b32 v{140+i}, 0, v{140+i}, vcc")
        for cg in range(4):
            for i in range(4): e(f"v_cndmask_b32 v{76+16*cg+i}, 0, v{76+16*cg+i}, vcc")
        for st in range(4):
            for cg in range(4):
                D = 144 + 4 * cg
                c = "0" if st == 0 else f"v[{D}:{D+3}]"
                e(f"v_mfma_f32_16x16x32_bf16 v[{D}:{D+3}], v[{128+4*st}:{131+4*st}], v[{64+16*cg+4*st}:{67+16*cg+4*st}], {c}")
        e("v_cmp_lt_u32 s[64:65], 15, v1")
        e("v_cmp_lt_u32 s[66:67], 31, v1")
        e("v_cmp_lt_u32 vcc, 47, v1")
        e(f"v_mov_b32 v53, s{S_TAG}")
        e(f"v_mov_b32 v55, s{S_TAG}")
        e("v_lshlrev_b32 v8, 3, v1")
        for b in range(2):
            e(f"v_cndmask_b32 v{52+2*b}, v{144+b}, v{148+b}, s[64:65]")
        for b in range(2):
            e(f"v_cndmask_b32 v{52+2*b}, v{52+2*b}, v{152+b}, s[66:67]")
        for b in range(2):
            e(f"v_cndmask_b32 v{52+2*b}, v{52+2*b}, v{156+b}, vcc")
        e(f"s_lshl_b32 s64, s{S_HKV}, 14")
        e("s_lshl_b32 s65, s12, 12")
        e("s_add_u32 s64, s64, s65")
        e("s_lshl_b32 s65, s13, 9")
        e("s_add_u32 s64, s64, s65")
        e(f"s_add_u32 s64, s64, {QBUF}")
        e(f"s_add_u32 s65, s64, {8*16384}")
        e(f"buffer_store_dwordx2 v[52:53], v8, s[{R_WS}:{R_WS+3}], s64 offen sc1")
        e(f"buffer_store_dwordx2 v[54:55], v8, s[{R_WS}:{R_WS+3}], s65 offen sc1")
        self.lds_set(MISC + 24, f"s{S_TAG}")
        self.stamp(2)

    def q_gather(self):
        e = self.e
        e("v_lshlrev_b32 v8, 4, v1")
        e(f"s_lshl_b32 s13, s{S_GRP}, 14")
        e(f"s_lshl_b32 s64, s{S_HW}, 10")
        e("s_add_u32 s13, s13, s64")
        e(f"s_add_u32 s13, s13, {QBUF}")
        units = [([f"s_add_u32 s65, s13, {k*4096}",
                   f"buffer_load_dwordx4 v[{24+4*k}:{27+4*k}], v8, s[{R_WS}:{R_WS+3}], s65 offen sc1"],
                  [25 + 4 * k, 27 + 4 * k]) for k in range(4)]
        self.sweep(units, mant=False)
        e("v_add_f32 v24, v24, v28")
        e("v_add_f32 v26, v26, v30")
        e("v_add_f32 v32, v32, v36")
        e("v_add_f32 v34, v34, v38")
        e("v_add_f32 v24, v24, v32")
        e("v_add_f32 v26, v26, v34")
        e("v_cvt_pk_bf16_f32 v24, v24, v26")
        e("v_lshlrev_b32 v8, 2, v1")
        e(f"s_lshl_b32 s64, s{S_HW}, 8")
        e("v_add_u32 v8, s64, v8")
        e(f"ds_write_b32 v8, v24 offset:{QL}")
        e("s_waitcnt lgkmcnt(0)")

    def stage_a(self):
        e = self.e
        FB, PB = 64, 128
        self.srd(R_W, P_WO, 4096 * 896)
        e(f"s_mul_i32 s64, s{S_HKV}, {512*896}")
        e(f"s_lshl_b32 s65, s{S_SPL}, 7")
        e("s_add_u32 s64, s64, s65")
        e(f"s_mul_i32 s65, s{S_HW}, {128*896}")
        e("s_add_u32 s64, s64, s65")
        e(f"s_lshl_b32 s65, s{S_HW}, 14")
        e(f"s_add_u32 s65, s65, {STG}")
        self.dma_voff(896, 7, 20)
        self.dma_loop(R_W, 20, 16, 64, 8 * 896, 65)
        self.h_sync()
        e(f"s_lshl_b32 s64, s{S_HW}, 5")
        e(f"s_add_u32 s64, s64, {STG}")
        self.tr_addr(7, 64)
        self.tr_frags(16, 0, FB, 7)
        self.stamp(4)
        e(f"s_lshr_b32 s12, s{S_HW}, 1")
        e(f"s_and_b32 s13, s{S_HW}, 1")
        e("s_lshl_b32 s14, s12, 3")
        e(f"s_add_u32 s14, s14, s{S_HKV}")
        e("s_lshl_b32 s15, s14, 15")
        e("s_lshl_b32 s64, s13, 10")
        e("s_add_u32 s15, s15, s64")
        e(f"s_add_u32 s15, s15, {PBUF}")
        e("s_lshl_b32 s64, s13, 11")
        e("s_lshl_b32 s14, s14, 7")
        e("s_add_u32 s14, s14, s64")
        e(f"s_add_u32 s14, s14, {HBUF}")
        e("v_lshlrev_b32 v5, 4, v1")
        e("v_lshlrev_b32 v6, 3, v4")
        e(f"s_mul_i32 s64, s12, {AVS}")
        e("s_lshl_b32 s65, s13, 9")
        e("s_add_u32 s64, s64, s65")
        e("v_lshlrev_b32 v7, 3, v1")
        e("v_add_u32 v7, s64, v7")
        e("v_lshlrev_b32 v18, 3, v1")
        e("v_mov_b32 v19, 0xffffffc0")
        for p in range(8): e(f"s_add_u32 s{52+p}, s15, {p*4096}")
        e("s_mov_b32 s68, 1")
        e("s_branch L_a_go")
        e.label("L_a_poll")
        e("s_mov_b32 s68, 0")
        self.stamp(5)
        self.stamp(6)
        L = self.lab("asw"); Lz = self.lab("anl")
        e("s_mov_b32 s69, 0xffff")
        e("s_mov_b32 s70, 0")
        e.label(L)
        e(f"buffer_load_dwordx2 v[10:11], v6, s[{R_WS}:{R_WS+3}], s14 offen sc1")
        def grouped(body):
            for g in range(4):
                gk = self.lab("gk")
                e(f"s_and_b32 s64, s70, {0xf << (4*g):#x}")
                e(f"s_cbranch_scc0 {gk}")
                for p in range(4 * g, 4 * g + 4):
                    sk = self.lab("sk")
                    e(f"s_bitcmp1_b32 s70, {p}")
                    e(f"s_cbranch_scc0 {sk}")
                    body(p, sk)
                    e.label(sk)
                e.label(gk)
        def ld(p, sk):
            r = PB + 4 * p
            e(f"buffer_load_dwordx4 v[{r}:{r+3}], v5, s[{R_WS}:{R_WS+3}], s{52 + (p >> 1)} offen offset:{(p & 1)*2048} sc1")
        def ck(p, sk):
            r = PB + 4 * p
            self.check_words([r, r + 1, r + 2, r + 3], 12)
            e(f"s_cbranch_vccnz {sk}")
            e(f"s_bitset0_b32 s69, {p}")
        grouped(ld)
        e("s_waitcnt vmcnt(0)")
        e(f"v_cmp_eq_u32 s[66:67], s{S_TAG}, v11")
        grouped(ck)
        e("s_and_b32 s71, s66, 0xffff")
        e("s_xor_b32 s64, s71, 0xffff")
        e("s_or_b32 s64, s64, s69")
        e("s_cmp_eq_u32 s64, 0")
        e("s_cbranch_scc1 L_a_got")
        e("s_and_b32 s70, s69, s71")
        e("s_bcnt1_i32_b32 s64, s69")
        e(f"s_cmp_le_u32 s64, {self.aspec}")
        e("s_cselect_b32 s70, s69, s70")
        e("s_cmp_lg_u32 s70, 0")
        e(f"s_cbranch_scc1 {Lz}")
        e(f"s_sleep {self.gsleep}")
        e.label(Lz)
        e(f"s_sub_u32 s{S_TO}, s{S_TO}, 1")
        e(f"s_cmp_lg_u32 s{S_TO}, 0")
        e(f"s_cbranch_scc1 {L}")
        e("s_branch L_hfail")
        e.label("L_a_got")
        self.stamp(7)
        e.label("L_a_go")
        e("v_mov_b32 v12, v10")
        self.row_reduce([12], "max")
        e("v_sub_f32 v12, v10, v12")
        e("v_exp_f32 v12, v12")
        e("v_mov_b32 v13, v12")
        sregs = list(range(16, 32))
        for p in range(16): e(f"v_readlane_b32 s{sregs[p]}, v12, {p}")
        self.row_reduce([13], "add")
        e("v_rcp_f32 v13, v13")
        for p in range(16):
            r = PB + 4 * p
            for i in range(4):
                if p == 0: e(f"v_mul_f32 v{14+i}, s{sregs[p]}, v{r+i}")
                else: e(f"v_fmac_f32 v{14+i}, s{sregs[p]}, v{r+i}")
        for i in range(4): e(f"v_mul_f32 v{14+i}, v{14+i}, v13")
        e("v_cvt_pk_bf16_f32 v14, v14, v15")
        e("v_cvt_pk_bf16_f32 v15, v16, v17")
        e(f"ds_write_b64 v7, v[14:15] offset:{AV}")
        e("s_waitcnt lgkmcnt(0)")
        self.bar()
        self.gemv(16, PB + 64, AV, [(20, FB)])
        e(f"s_mul_i32 s64, s{S_HKV}, {448*8}")
        e(f"s_lshl_b32 s65, s{S_SPL}, 9")
        e("s_add_u32 s64, s64, s65")
        e(f"s_lshl_b32 s65, s{S_HW}, 7")
        e("s_add_u32 s64, s64, s65")
        e(f"s_add_u32 s64, s64, {YBUF}")
        self.tagw(24, 20, 19)
        self.tagw(25, 21, 19)
        e("s_cmp_eq_u32 s68, 1")
        e("s_cbranch_scc1 L_a_poll")
        e("s_mov_b64 exec, 0xffff")
        e(f"buffer_store_dwordx2 v[24:25], v18, s[{R_WS}:{R_WS+3}], s64 offen sc1")
        self.stamp(8)
        self.endpgm()

    def stage_b(self):
        e = self.e
        FG, FU, GB = 64, 120, 176
        self.srd(R_W, P_WG, 448 * 3584)
        self.srd(R_W2, P_WU, 448 * 3584)
        e("s_lshl_b32 s13, s12, 2")
        e(f"s_add_u32 s13, s13, s{S_HW}")
        self.dma_voff(3584, 7, 20)
        for m_, srd_ in enumerate((R_W, R_W2)):
            e("s_lshl_b32 s64, s12, 7")
            e(f"s_mul_i32 s65, s{S_HW}, {112*3584}")
            e("s_add_u32 s64, s64, s65")
            e(f"s_mul_i32 s65, s{S_HW}, {112*128}")
            e(f"s_add_u32 s65, s65, {STG + m_*448*128}")
            self.dma_loop(srd_, 20, 14, 64, 8 * 3584, 65)
        self.h_sync()
        e(f"s_lshl_b32 s64, s{S_HW}, 5")
        e(f"s_add_u32 s64, s64, {STG}")
        self.tr_addr(7, 64)
        self.tr_frags(14, 0, FG, 7)
        e(f"v_add_u32 v2, {448*128}, v2")
        self.tr_frags(14, 0, FU, 7)
        e(f"s_mul_i32 s64, s{S_HW}, 56")
        e("v_min_u32 v5, 55, v1")
        e("v_add_u32 v5, s64, v5")
        e("v_cmp_gt_u32 s[70:71], 56, v1")
        e("v_lshlrev_b32 v14, 2, v5")
        e(f"buffer_load_dword v16, v14, s[{R_X}:{R_X+3}], 0 offen")
        e(f"buffer_load_dword v17, v14, s[{R_X}:{R_X+3}], 0 offen offset:896")
        e("v_lshlrev_b32 v5, 4, v5")
        e("s_waitcnt vmcnt(0)")
        e("v_and_b32 v18, 0xffff0000, v16")
        e("v_and_b32 v19, 0xffff0000, v17")
        e("v_lshlrev_b32 v16, 16, v16")
        e("v_lshlrev_b32 v17, 16, v17")
        for k in range(8): e(f"s_mov_b32 s{40+k}, {YBUF + k*3584}")
        self.stamp(4)
        e("s_mov_b32 s68, 1")
        e("s_branch L_b_go")
        e.label("L_b_poll")
        e("s_mov_b32 s68, 0")
        self.stamp(5)
        self.gate_all()
        self.stamp(6)
        units = []
        for k in range(8):
            g = GB + 4 * k
            units.append(([f"buffer_load_dwordx4 v[{g}:{g+3}], v5, s[{R_WS}:{R_WS+3}], s{40+k} offen sc1"], [g, g + 1, g + 2, g + 3]))
        self.sweep(units)
        self.stamp(7)
        e.label("L_b_go")
        for k in range(1, 8):
            for i in range(4):
                e(f"v_add_f32 v{20+i}, v{GB+i if k == 1 else 20+i}, v{GB+4*k+i}")
        self.rnd_many([20, 21, 22, 23])
        for i in range(4): e(f"v_add_f32 v{20+i}, v{20+i}, v{16+i}")
        self.rnd_many([20, 21, 22, 23])
        for b in range(2): e(f"v_add_f32 v{24+b}, v{22+b}, v{20+b}")
        for b in range(2): e(f"v_cndmask_b32 v{24+b}, 0, v{24+b}, s[70:71]")
        self.wave_sum_to_sgpr([24, 25], [64, 65])
        inv112 = f2u(1.0 / 112)
        for b in range(2):
            e(f"v_mov_b32 v{28+2*b}, {inv112:#x}")
            e(f"v_mul_f32 v{28+2*b}, s{64+b}, v{28+2*b}")
        for b in range(2):
            e(f"v_sub_f32 v{24+b}, v{22+b}, v{28+2*b}")
            e(f"v_sub_f32 v{26+b}, v{20+b}, v{28+2*b}")
        for b in range(2): e(f"v_mul_f32 v{24+b}, v{24+b}, v{24+b}")
        for b in range(2): e(f"v_fmac_f32 v{24+b}, v{26+b}, v{26+b}")
        for b in range(2): e(f"v_cndmask_b32 v{24+b}, 0, v{24+b}, s[70:71]")
        self.wave_sum_to_sgpr([24, 25], [64, 65])
        e("v_mov_b32 v29, s64")
        e("v_mov_b32 v31, s65")
        e(f"s_lshl_b32 s64, s{S_HW}, 4")
        e("v_mov_b32 v26, s64")
        e("v_mov_b32 v27, 0")
        e("s_mov_b64 exec, 1")
        e(f"ds_write_b128 v26, v[28:31] offset:{STATS}")
        e("s_mov_b64 exec, -1")
        e("s_waitcnt lgkmcnt(0)")
        self.bar()
        for w in range(4): e(f"ds_read_b128 v[{32+4*w}:{35+4*w}], v27 offset:{STATS+16*w}")
        e("s_waitcnt lgkmcnt(0)")
        for b in range(2):
            m = [32 + 4 * w + 2 * b for w in range(4)]
            e(f"v_add_f32 v{48+b}, v{m[0]}, v{m[1]}")
            e(f"v_add_f32 v{50+b}, v{m[2]}, v{m[3]}")
            e(f"v_add_f32 v{48+b}, v{48+b}, v{50+b}")
            e(f"v_mul_f32 v{48+b}, 0.25, v{48+b}") if False else e(f"v_mul_f32 v{48+b}, {f2u(0.25):#x}, v{48+b}")
            for w in range(4): e(f"v_sub_f32 v{m[w]}, v{m[w]}, v{48+b}")
            e(f"v_mul_f32 v{50+b}, v{m[0]}, v{m[0]}")
            for w in range(1, 4): e(f"v_fmac_f32 v{50+b}, v{m[w]}, v{m[w]}")
            e(f"v_mul_f32 v{50+b}, {f2u(112.0):#x}, v{50+b}")
            for w in range(4): e(f"v_add_f32 v{50+b}, v{50+b}, v{m[w]+1}")
            e(f"v_mul_f32 v{50+b}, {f2u(1.0/448):#x}, v{50+b}")
        self.ln_finish([48, 49], [50, 51], [48, 49], [52, 53])
        for i in range(4): e(f"v_sub_f32 v{20+i}, v{20+i}, v{48+(i&1)}")
        self.rnd_many([20, 21, 22, 23])
        for i in range(4): e(f"v_mul_f32 v{20+i}, v{20+i}, v{52+(i&1)}")
        for b in range(2): e(f"v_cvt_pk_bf16_f32 v{20+b}, v{20+b}, v{22+b}")
        e(f"ds_write_b32 v14, v20 offset:{AV}")
        e(f"ds_write_b32 v14, v21 offset:{AV+AVS}")
        e("s_waitcnt lgkmcnt(0)")
        self.bar()
        self.gemv(14, GB, AV, [(24, FG), (28, FU)])
        self.rnd_many([24, 25, 28, 29])
        k0 = math.sqrt(2.0 / math.pi)
        c1 = f2u(-2.0 * k0 * math.log2(math.e)); c3 = f2u(0.044715)
        e(f"s_mov_b32 s64, {c3:#x}")
        for b in range(2): e(f"v_mul_f32 v{32+b}, v{24+b}, v{24+b}")
        for b in range(2): e(f"v_mul_f32 v{32+b}, v{32+b}, v{24+b}")
        for b in range(2): e(f"v_fma_f32 v{32+b}, v{32+b}, s64, v{24+b}")
        for b in range(2): e(f"v_mul_f32 v{32+b}, {c1:#x}, v{32+b}")
        for b in range(2): e(f"v_exp_f32 v{32+b}, v{32+b}")
        for b in range(2): e(f"v_add_f32 v{32+b}, 1.0, v{32+b}")
        for b in range(2): e(f"v_rcp_f32 v{32+b}, v{32+b}")
        for b in range(2): e(f"v_mul_f32 v{32+b}, v{32+b}, v{24+b}")
        self.rnd_many([32, 33])
        for b in range(2): e(f"v_mul_f32 v{32+b}, v{32+b}, v{28+b}")
        e("v_cvt_pk_bf16_f32 v34, v32, v33")
        e(f"v_mov_b32 v35, s{S_TAG}")
        e("v_lshlrev_b32 v8, 3, v1")
        e("s_lshl_b32 s64, s13, 7")
        e(f"s_add_u32 s64, s64, {GBUF}")
        e("s_cmp_eq_u32 s68, 1")
        e("s_cbranch_scc1 L_b_poll")
        e("s_mov_b64 exec, 0xffff")
        e(f"buffer_store_dwordx2 v[34:35], v8, s[{R_WS}:{R_WS+3}], s64 offen sc1")
        self.stamp(8)
        self.endpgm()

    def stage_c(self):
        e = self.e
        F0, F1, GB = 64, 120, 176
        self.srd(R_W, P_WD, 1792 * 896)
        self.srd(R_W2, P_OUT, 2 * 448 * 2)
        e(f"s_mul_i32 s64, s{S_HW}, {448*896}")
        e("s_lshl_b32 s65, s12, 6")
        e("s_add_u32 s64, s64, s65")
        e(f"s_mul_i32 s65, s{S_HW}, {STGW}")
        e(f"s_add_u32 s65, s65, {STG}")
        self.tr_addr(6, 65)
        self.dma_voff(896, 6, 20)
        self.dma_loop(R_W, 20, 28, 64, 16 * 896, 65)
        e("s_waitcnt vmcnt(0)")
        self.tr_frags(14, 0, F0, 6)
        self.tr_frags(14, 32, F1, 6)
        e("v_and_b32 v5, 31, v1")
        e("v_lshrrev_b32 v6, 5, v1")
        e("s_lshl_b32 s64, s12, 5")
        e("v_add_u32 v7, s64, v5")
        e("v_mul_u32_u24 v14, 448, v6")
        e("v_add_lshl_u32 v14, v14, v7, 1")
        e(f"buffer_load_ushort v16, v14, s[{R_X}:{R_X+3}], 0 offen")
        e("v_lshlrev_b32 v7, 3, v7")
        e("v_lshl_add_u32 v7, v6, 2, v7")
        e("s_waitcnt vmcnt(0)")
        e("v_lshlrev_b32 v16, 16, v16")
        e("v_lshlrev_b32 v10, 4, v1")
        e("v_lshlrev_b32 v11, 4, v5")
        e(f"s_mul_i32 s13, s{S_HW}, 3584")
        e(f"s_add_u32 s13, s13, {GBUF}")
        e(f"s_mul_i32 s14, s{S_HW}, {2*AVS}")
        e("v_lshlrev_b32 v12, 2, v1")
        e("v_add_u32 v12, s14, v12")
        e("v_lshlrev_b32 v13, 2, v5")
        e("v_add_u32 v13, s14, v13")
        e("v_add_u32 v3, s14, v3")
        self.stamp(4)
        e("v_mov_b32 v17, 0")
        e("s_mov_b32 s68, 1")
        e("s_branch L_c_go")
        e.label("L_c_poll")
        e("s_mov_b32 s68, 0")
        self.stamp(5)
        self.gate_all()
        self.stamp(6)
        Ln = self.lab("cnres")
        e(f"s_cmp_lg_u32 s{S_HW}, 0")
        e(f"s_cbranch_scc1 {Ln}")
        for k in range(8): e(f"s_mov_b32 s{40+k}, {YBUF + k*3584}")
        units = [([f"buffer_load_dword v{GB+k}, v7, s[{R_WS}:{R_WS+3}], s{40+k} offen sc1"], [GB + k]) for k in range(8)]
        self.sweep(units)
        for k in range(1, 8): e(f"v_add_f32 v17, v{GB if k == 1 else 17}, v{GB+k}")
        self.rnd(17)
        e("v_add_f32 v17, v17, v16")
        self.rnd(17)
        e.label(Ln)
        units = [([f"buffer_load_dwordx4 v[{24+4*k}:{27+4*k}], v{10 if k < 3 else 11}, s[{R_WS}:{R_WS+3}], s13 offen offset:{k*1024} sc1"],
                  [25 + 4 * k, 27 + 4 * k]) for k in range(4)]
        self.sweep(units, mant=False)
        self.stamp(7)
        e.label("L_c_go")
        e("s_mov_b32 s64, 0x05040100")
        e("s_mov_b32 s65, 0x07060302")
        for k in range(4):
            e(f"v_perm_b32 v{25+4*k}, v{26+4*k}, v{24+4*k}, s64")
            e(f"v_perm_b32 v{27+4*k}, v{26+4*k}, v{24+4*k}, s65")
            a = 12 if k < 3 else 13
            e(f"ds_write_b32 v{a}, v{25+4*k} offset:{AV+k*256}")
            e(f"ds_write_b32 v{a}, v{27+4*k} offset:{AV+AVS+k*256}")
        e("s_waitcnt lgkmcnt(0)")
        self.gemv(14, GB, AV, [(40, F0), (44, F1)])
        e(f"s_lshl_b32 s64, s{S_HW}, 8")
        e("v_lshlrev_b32 v8, 3, v1")
        e("v_add_u32 v8, s64, v8")
        e("s_mov_b64 exec, 0xffff")
        e(f"ds_write_b64 v8, v[40:41] offset:{RED}")
        e(f"ds_write_b64 v8, v[44:45] offset:{RED+128}")
        e("s_mov_b64 exec, -1")
        e("s_waitcnt lgkmcnt(0)")
        self.bar()
        Le = self.lab("cend")
        e(f"s_sub_u32 s64, s{S_HW}, s68")
        e(f"s_cmp_eq_u32 s68, 1")
        e(f"s_cselect_b32 s64, 0, s{S_HW}")
        e(f"s_cmp_lg_u32 s64, 0")
        e(f"s_cbranch_scc1 {Le}")
        e("v_lshlrev_b32 v8, 3, v5")
        e("v_lshl_add_u32 v8, v6, 2, v8")
        for w in range(4): e(f"ds_read_b32 v{20+w}, v8 offset:{RED+256*w}")
        e("s_waitcnt lgkmcnt(0)")
        e("v_add_f32 v20, v20, v21")
        e("v_add_f32 v22, v22, v23")
        e("v_add_f32 v20, v20, v22")
        self.rnd(20)
        e("v_add_f32 v20, v20, v17")
        e("v_cvt_pk_bf16_f32 v20, v20, v20")
        e("s_cmp_eq_u32 s68, 1")
        e("s_cbranch_scc1 L_c_poll")
        e(f"buffer_store_short v20, v14, s[{R_W2}:{R_W2+3}], 0 offen")
        e("s_cmp_lg_u32 s12, 0")
        e(f"s_cbranch_scc1 {Le}")
        e(f"v_mov_b32 v21, s{S_TAG}")
        e("s_mov_b64 exec, 1")
        e(f"buffer_store_dword v21, off, s[{R_WS}:{R_WS+3}], 0 offset:{EPOCH} sc1")
        e.label(Le)
        self.stamp(8)
        self.endpgm()

    def build(self):
        e = self.e
        e("s_cmp_ge_u32 s2, 256")
        e("s_cbranch_scc1 L_exit")
        e("s_load_dwordx16 s[16:31], s[0:1], 0")
        e("s_load_dwordx8 s[32:39], s[0:1], 64")
        self.stamp_init()
        e("v_lshrrev_b32 v2, 6, v0")
        e("v_and_b32 v1, 63, v0")
        e(f"v_readfirstlane_b32 s{S_WAVE}, v2")
        self.stamp(0)
        e(f"s_and_b32 s{S_HW}, s{S_WAVE}, 3")
        e(f"s_cmp_lt_u32 s{S_WAVE}, 4")
        e("s_cbranch_scc1 L_hpath")
        self.s_path()
        e.label("L_hpath")
        e(f"s_lshr_b32 s{S_GRP}, s2, 4")
        e(f"s_and_b32 s{S_SPL}, s2, 15")
        e(f"s_lshr_b32 s{S_B}, s2, 7")
        e(f"s_and_b32 s{S_HKV}, s{S_GRP}, 7")
        e(f"s_mov_b32 s{S_TO}, {TIMEOUT}")
        e("s_waitcnt lgkmcnt(0)")
        self.srd(R_WS, P_WS, WS_SIZE)
        self.srd(R_X, P_X, 1792)
        if self.noq: e("s_branch L_hdone")
        e("s_setprio 2")
        e(f"s_cmp_lg_u32 s{S_HW}, 0")
        e("s_cbranch_scc1 L_hnq")
        self.q_path()
        e("s_branch L_hq")
        e.label("L_hnq")
        e(f"buffer_load_dword v10, off, s[{R_WS}:{R_WS+3}], 0 offset:{EPOCH} sc1")
        self.h_consts()
        e("s_waitcnt vmcnt(0)")
        e("v_readfirstlane_b32 s64, v10")
        self.set_tag(64)
        self.lds_wait(MISC + 24, "eq", f"s{S_TAG}", 2)
        e.label("L_hq")
        self.q_gather()
        e("s_setprio 0")
        e("s_barrier")
        self.stamp(3)
        e(f"s_cmp_lg_u32 s{S_HW}, 1")
        e("s_cbranch_scc1 L_sfinal_back")
        e("s_mov_b32 s68, 1")
        e("s_branch L_sfinal")
        e.label("L_sfinal_back")
        if self.noroles: e("s_branch L_hdone")
        e(f"s_cmp_lg_u32 s{S_HW}, 0")
        e("s_cbranch_scc1 L_rwait")
        self.lds_wait(MISC + 12, "le", self.trig, 8)
        self.srd(R_W, P_DBG, 256)
        e("v_mov_b32 v10, 1")
        e("s_mov_b64 exec, 1")
        e(f"buffer_atomic_add v10, off, s[{R_W}:{R_W+3}], 0 sc0 sc1")
        e("s_waitcnt vmcnt(0)")
        e("s_mov_b64 exec, -1")
        e("v_readfirstlane_b32 s12, v10")
        e("s_add_u32 s12, s12, 1")
        self.lds_set(MISC + 16, "s12")
        e("s_branch L_rgot")
        e.label("L_rwait")
        self.lds_wait(MISC + 16, "lg", 0, 8, 12)
        e.label("L_rgot")
        e("s_sub_u32 s12, s12, 1")
        if self.diag: e(f"s_mov_b32 s{ST0+22}, s12")
        e("s_cmp_ge_u32 s12, 98")
        e("s_cbranch_scc1 L_hdone")
        self.h_consts()
        e("s_cmp_lt_u32 s12, 14")
        e("s_cbranch_scc0 L_notc")
        self.stage_c()
        e.label("L_notc")
        e("s_sub_u32 s12, s12, 14")
        e("s_cmp_lt_u32 s12, 28")
        e("s_cbranch_scc0 L_notb")
        self.stage_b()
        e.label("L_notb")
        e("s_sub_u32 s12, s12, 28")
        e(f"s_mul_i32 s{S_HKV}, s12, 37")
        e(f"s_lshr_b32 s{S_HKV}, s{S_HKV}, 8")
        e(f"s_mul_i32 s64, s{S_HKV}, 7")
        e(f"s_sub_u32 s{S_SPL}, s12, s64")
        self.stage_a()
        e.label("L_hfail")
        e.label("L_hdone")
        self.endpgm()
        e.label("L_exit")
        e("s_endpgm")
        return e.text()

HEAD = """; fused pre-LN GQA decode attention + GEGLU FFN, one persistent launch (256 workgroups, one per CU).
; @launch grid=(256,1,1) block=(512,1,1) lds={lds}
.amdgcn_target "amdgcn-amd-amdhsa--gfx950"
.text
.globl {name}
.p2align 8
.type {name},@function
{name}:
"""
TAIL = """.section .rodata,"a"
.p2align 6
.amdhsa_kernel {name}
  .amdhsa_next_free_vgpr 256
  .amdhsa_next_free_sgpr 102
  .amdhsa_accum_offset 256
  .amdhsa_group_segment_fixed_size 0
  .amdhsa_kernarg_size 96
  .amdhsa_user_sgpr_count 2
  .amdhsa_user_sgpr_kernarg_segment_ptr 1
  .amdhsa_system_sgpr_workgroup_id_x 1
.end_amdhsa_kernel
"""

def make(path, **kw):
    g = Gen(**kw)
    body = g.build()
    open(path, "w").write(HEAD.format(lds=LDS_SIZE, name=NAME) + body + TAIL.format(name=NAME))
    return g

if __name__ == "__main__":
    import argparse
    ap = argparse.ArgumentParser()
    ap.add_argument("out")
    ap.add_argument("--diag", action="store_true")
    ap.add_argument("--npro", type=int, default=32)
    ap.add_argument("--kvflags", default="nt")
    ap.add_argument("--wflags", default="nt")
    ap.add_argument("--qflags", default="nt")
    ap.add_argument("--noroles", action="store_true")
    ap.add_argument("--athr", type=int, default=13)
    ap.add_argument("--gsleep", type=int, default=4)
    ap.add_argument("--winfl", type=int, default=4)
    ap.add_argument("--dist", type=int, default=9)
    ap.add_argument("--thr", type=int, default=6)
    ap.add_argument("--vflags", default=None)
    ap.add_argument("--nosoft", action="store_true")
    ap.add_argument("--noq", action="store_true")
    ap.add_argument("--trig", type=int, default=2)
    ap.add_argument("--aspec", type=int, default=2)
    a = ap.parse_args()
    g = make(a.out, diag=a.diag, npro=a.npro, kvflags=a.kvflags, wflags=a.wflags, qflags=a.qflags, noroles=a.noroles, athr=a.athr, gsleep=a.gsleep, winfl=a.winfl, dist=a.dist, nosoft=a.nosoft, noq=a.noq, trig=a.trig, aspec=a.aspec, thr=a.thr, vflags=a.vflags)
    print("pads inserted:", g.e.npad, "lines:", len(g.e.lines))
```

```python
import sys, struct, math
from emit import Emitter

NAME = "sequential_preLN__gqa_block_cached__geglu_ffn__decode_kernel"
def f2u(x): return struct.unpack("<I", struct.pack("<f", x))[0]

EPOCH = 0
QBUF = 0x140000
HBUF = 0x12000
YBUF = 0x14000
GBUF = 0x22000
PBUF = 0x40000
STAMP = 0x200000
WS_SIZE = 0x400000
QL = 0x0000
MISC = 0x0400
SML = 0x0500
STATS = 0x0600
AV = 0x0800
AVS = 1056
RED = 0x2A00
SO = 0x3000
STG = 0x5000
STGW = 28 * 1024
LDS_SIZE = STG + 4 * STGW

CSC = f2u(0.0625 * math.log2(math.e))
GOLD = 0x9E3779B9
TIMEOUT = 200000

S_WAVE, S_GRP, S_SPL, S_B, S_HKV, S_HW, S_TAG = 3, 4, 5, 6, 7, 8, 9
P_X, P_K, P_V, P_WQ, P_WO, P_BX, P_WG, P_WU, P_WD, P_OUT, P_DBG, P_WS = [16 + 2 * i for i in range(12)]
R_K, R_V, R_WS, R_W, R_X, R_W2 = 40, 44, 48, 52, 56, 60
S_C = 10
S_TO = 11
ST0 = 72
S_TM = 96

class Gen:
    def __init__(self, diag=False, npro=32, kvflags="nt", wflags="", qflags="", noroles=False, athr=13, gsleep=4, winfl=1, dist=8, nosoft=False, noq=False, trig=2, aspec=2, thr=5, vflags=None, rot=1):
        self.e = Emitter()
        self.diag = diag
        self.npro = npro
        self.kvflags = kvflags
        self.wflags = wflags
        self.qflags = qflags
        self.noroles = noroles
        self.athr = athr
        self.gsleep = gsleep
        self.winfl = winfl
        self.dist = dist
        self.nosoft = nosoft
        self.noq = noq
        self.trig = trig
        self.aspec = aspec
        self.thr = thr
        self.rot = rot
        self.vflags = kvflags if vflags is None else vflags
        self.uid = 0
    def lab(self, s):
        self.uid += 1
        return f"L_{s}_{self.uid}"
    def srd(self, r, p, size):
        e = self.e
        e(f"s_mov_b32 s{r}, s{p}")
        e(f"s_mov_b32 s{r+1}, s{p+1}")
        e(f"s_mov_b32 s{r+2}, {size}")
        e(f"s_mov_b32 s{r+3}, 0x20000")
    def stamp(self, i):
        if self.diag and i in (6, 7):
            self.e(f"s_mov_b32 s{ST0+2*(i+3)}, s{S_TO}")
        if self.diag:
            self.e(f"s_memrealtime s[{ST0+2*i}:{ST0+2*i+1}]")
            self.e("s_waitcnt lgkmcnt(0)")
    def stamp_init(self):
        if self.diag:
            for i in range(12):
                self.e(f"s_mov_b64 s[{ST0+2*i}:{ST0+2*i+1}], 0")
    def stamp_flush(self):
        if not self.diag: return
        e = self.e
        e("s_mov_b64 exec, -1")
        e(f"s_lshl_b32 s64, s2, 3")
        e(f"s_add_u32 s64, s64, s{S_WAVE}")
        e(f"s_lshl_b32 s64, s64, 6")
        e(f"s_add_u32 s64, s64, {STAMP}")
        e(f"s_getreg_b32 s65, hwreg(HW_REG_XCC_ID)")
        e(f"s_getreg_b32 s66, hwreg(HW_REG_HW_ID)")
        for i in range(12):
            e(f"v_mov_b32 v{2+i}, s{ST0+2*i}")
        e("v_mov_b32 v14, s65")
        e("v_mov_b32 v15, s66")
        e("v_mov_b32 v16, 0")
        e("v_mov_b32 v17, 0")
        e("s_mov_b64 exec, 1")
        for i in range(4):
            e(f"buffer_store_dwordx4 v[{2+4*i}:{5+4*i}], off, s[{R_WS}:{R_WS+3}], s64 offset:{16*i}")
        e("s_waitcnt vmcnt(0)")
    def endpgm(self):
        self.stamp_flush()
        self.e("s_endpgm")

    def rnd(self, v):
        self.e(f"v_cvt_pk_bf16_f32 v{v}, v{v}, v{v}")
        self.e(f"v_lshlrev_b32 v{v}, 16, v{v}")
    def rnd_many(self, vs):
        for v in vs: self.e(f"v_cvt_pk_bf16_f32 v{v}, v{v}, v{v}")
        for v in vs: self.e(f"v_lshlrev_b32 v{v}, 16, v{v}")
    def set_tag(self, src):
        self.e(f"s_add_u32 s{S_TAG}, s{src}, {GOLD:#x}")
        self.e(f"s_and_b32 s{S_TM}, s{S_TAG}, 0x3f")
    def tagw(self, dst, src, vmask):
        self.e(f"v_and_or_b32 v{dst}, v{src}, v{vmask}, s{S_TM}")
    def check_words(self, words, tmp):
        e = self.e
        e(f"v_xor_b32 v{tmp}, s{S_TM}, v{words[0]}")
        for w in words[1:]:
            e(f"v_bitop3_b32 v{tmp}, v{w}, s{S_TM}, v{tmp} bitop3:0xbe")
        e(f"v_and_b32 v{tmp}, 0x3f, v{tmp}")
        e(f"v_cmp_ne_u32 vcc, 0, v{tmp}")
    def row_reduce(self, vs, op="add"):
        e = self.e
        for ctl in ("quad_perm:[1,0,3,2]", "quad_perm:[2,3,0,1]", "row_half_mirror", "row_mirror"):
            for v in vs:
                e(f"v_{op}_f32_dpp v{v}, v{v}, v{v} {ctl} row_mask:0xf bank_mask:0xf")
    def wave_sum_to_sgpr(self, vs, ss):
        e = self.e
        self.row_reduce(vs)
        for v in vs: e(f"v_add_f32_dpp v{v}, v{v}, v{v} row_bcast:15 row_mask:0xa bank_mask:0xf")
        for v in vs: e(f"v_add_f32_dpp v{v}, v{v}, v{v} row_bcast:31 row_mask:0xc bank_mask:0xf")
        for v, s in zip(vs, ss): e(f"v_readlane_b32 s{s}, v{v}, 63")
    def cross_rows(self, v, t, op):
        e = self.e
        e(f"v_mov_b32 v{t}, v{v}")
        e(f"v_permlane16_swap_b32 v{v}, v{t}")
        e(f"v_{op}_f32 v{v}, v{v}, v{t}")
        e(f"v_mov_b32 v{t}, v{v}")
        e(f"v_permlane32_swap_b32 v{v}, v{t}")
        e(f"v_{op}_f32 v{v}, v{v}, v{t}")

    def s_path(self):
        e = self.e
        KO0, KO1, VO = 2, 3, 4
        MK = 5
        MRUN, LRUN, NRUN = 9, 10, 11
        T = 12; PK = 16; MX, MX2, AL, ALD, NN = 18, 19, 20, 21, 22
        P = 24
        D0, D1, ACC0, ACC1, AF, QF, SLOT = 28, 32, 36, 40, 44, 60, 80
        S_BASE, S_O1, S_O2, S_CNT, S_R = 64, 65, 66, 67, 69
        def tile_off(dst, t):
            e(f"s_add_u32 s{dst}, s{S_R}, {t*32768}")
            e(f"s_and_b32 s{dst}, s{dst}, 0xfffff")
            e(f"s_add_u32 s{dst}, s{dst}, s{S_BASE}")
        NT = 32
        e("v_and_b32 v12, 15, v1")
        e("v_lshrrev_b32 v13, 4, v1")
        e("v_and_b32 v14, 7, v12")
        e("v_lshrrev_b32 v15, 3, v12")
        e(f"v_lshlrev_b32 v{KO0}, 9, v14")
        e("v_lshl_add_u32 v16, v15, 2, v13")
        e(f"v_lshl_add_u32 v{KO0}, v16, 4, v{KO0}")
        e(f"v_add_u32 v{KO1}, 0x1000, v{KO0}")
        e(f"v_lshlrev_b32 v{VO}, 11, v13")
        e(f"v_lshl_add_u32 v{VO}, v12, 4, v{VO}")
        e("s_mov_b32 s68, 0")
        e(f"s_lshl_b32 s{S_BASE}, s2, 20")
        e(f"s_lshl_b32 s65, s{S_HW}, 13")
        e(f"s_add_u32 s{S_BASE}, s{S_BASE}, s65")
        e(f"s_lshr_b32 s{S_R}, s2, 3")
        e(f"s_lshl_b32 s{S_R}, s{S_R}, {15 if self.rot else 20}")
        e("s_waitcnt lgkmcnt(0)")
        self.srd(R_K, P_K, 1 << 28)
        self.srd(R_V, P_V, 1 << 28)
        state = dict(issued=-1)
        def slot_regs(s): return f"v[{SLOT+4*s}:{SLOT+4*s+3}]"
        def issue(n, slot, soff):
            i = n % 16
            if i < 8:
                G, j = i >> 2, i & 3
                e(f"buffer_load_dwordx4 {slot_regs(slot)}, v{KO0+G}, s[{R_K}:{R_K+3}], s{soff} offen offset:{j*128} {self.kvflags}")
            else:
                i -= 8
                e(f"buffer_load_dwordx4 {slot_regs(slot)}, v{VO}, s[{R_V}:{R_V+3}], s{soff} offen offset:{(i>>1)*512+(i&1)*256} {self.vflags}")
        npro = self.npro
        assert 16 <= npro <= 44
        for n in range(npro):
            if n % 16 == 0:
                tile_off(S_O1, n // 16)
            if n >= self.thr: e(f"s_waitcnt vmcnt({self.thr-1})")
            issue(n, n, S_O1)
            if n == 7:
                self.stamp(4)
                self.srd(R_WS, P_WS, WS_SIZE)
                e(f"s_mov_b32 s{S_C}, {CSC:#x}")
                e("v_lshrrev_b32 v16, 1, v14")
                e("v_and_b32 v17, 1, v14")
                e("v_mov_b32 v18, 0xffff")
                e("v_lshlrev_b32 v17, 4, v17")
                e("v_lshlrev_b32 v18, v17, v18")
                for i in range(4):
                    e(f"v_cmp_eq_u32 vcc, {i}, v16")
                    e(f"v_cndmask_b32 v{MK+i}, 0, v18, vcc")
                e(f"v_mov_b32 v{MRUN}, 0xff800000")
                e(f"v_mov_b32 v{NRUN}, 0x7f800000")
                e(f"v_mov_b32 v{LRUN}, 0")
                for i in range(8): e(f"v_mov_b32 v{ACC0+i}, 0")
                e("v_bfe_u32 v16, v12, 2, 1")
                e("v_lshl_add_u32 v16, v16, 2, v13")
                e("v_lshlrev_b32 v23, 9, v15")
                e("v_lshl_add_u32 v23, v16, 4, v23")
        self.stamp(5)
        if not self.noq: e("s_barrier")
        self.stamp(1)
        for j in range(4):
            e(f"ds_read_b128 v[{QF+4*j}:{QF+4*j+3}], v23 offset:{QL+j*128}")
        e("s_waitcnt lgkmcnt(0)")

        def softmax(point):
            for r in range(4): e(f"v_permlane32_swap_b32 v{D0+r}, v{D1+r}")
            for r in range(4): e(f"v_add_f32_dpp v{T+r}, v{D1+r}, v{D0+r} row_half_mirror row_mask:0xf bank_mask:0x5")
            for r in range(4): e(f"v_add_f32_dpp v{T+r}, v{D0+r}, v{D1+r} row_half_mirror row_mask:0xf bank_mask:0xa")
            e(f"v_cvt_pk_bf16_f32 v{PK}, v{T}, v{T+1}")
            e(f"v_cvt_pk_bf16_f32 v{PK+1}, v{T+2}, v{T+3}")
            e(f"v_lshlrev_b32 v{T}, 16, v{PK}")
            e(f"v_and_b32 v{T+1}, 0xffff0000, v{PK}")
            e(f"v_lshlrev_b32 v{T+2}, 16, v{PK+1}")
            e(f"v_and_b32 v{T+3}, 0xffff0000, v{PK+1}")
            point()
            e(f"v_max3_f32 v{MX}, v{T}, v{T+1}, v{T+2}")
            e(f"v_max3_f32 v{MX}, v{MX}, v{T+3}, v{MRUN}")
            self.cross_rows(MX, MX2, "max")
            e(f"v_mov_b32 v{MRUN}, v{MX}")
            e(f"v_mul_f32 v{NN}, s{S_C}, v{MX}")
            e(f"v_sub_f32 v{AL}, 0, v{NN}")
            for r in range(4): e(f"v_fma_f32 v{P+r}, v{T+r}, s{S_C}, v{AL}")
            e(f"v_sub_f32 v{NN}, v{AL}, v{NRUN}")
            e(f"v_mov_b32 v{NRUN}, v{AL}")
            e(f"v_exp_f32 v{AL}, v{NN}")
            for r in range(4): e(f"v_exp_f32 v{P+r}, v{P+r}")
            point()
            e(f"v_mov_b32 v{ALD}, v{AL}")
            e(f"v_mul_f32 v{LRUN}, v{LRUN}, v{AL}")
            e(f"v_mov_b32_dpp v{ALD}, v{AL} row_shr:8 row_mask:0x3 bank_mask:0xc")
            e(f"v_mov_b32_dpp v{ALD}, v{AL} row_shl:8 row_mask:0xc bank_mask:0x3")
            for r in range(4): e(f"v_cvt_pk_bf16_f32 v{T+r}, v{P+r}, v{P+r}")
            e(f"v_add_f32 v{P}, v{P}, v{P+1}")
            e(f"v_add_f32 v{P+2}, v{P+2}, v{P+3}")
            for i in range(4): e(f"v_and_b32 v{AF+i}, v{T}, v{MK+i}")
            for i in range(8): e(f"v_mul_f32 v{ACC0+i}, v{ACC0+i}, v{ALD}")
            e(f"v_add_f32 v{P}, v{P}, v{P+2}")
            for r in range(1, 4):
                for i in range(4): e(f"v_and_b32 v{AF+4*r+i}, v{T+r}, v{MK+i}")
            e(f"v_add_f32 v{LRUN}, v{LRUN}, v{P}")

        d = self.dist
        NL = NT * 16
        def slot_of(n): return n if n < npro else n % 16
        def consume(n):
            i = n % 16
            if i < 8:
                G, j = i >> 2, i & 3
                D = D0 if G == 0 else D1
                c = "0" if j == 0 else f"v[{D}:{D+3}]"
                e(f"v_mfma_f32_16x16x32_bf16 v[{D}:{D+3}], {slot_regs(slot_of(n))}, v[{QF+4*j}:{QF+4*j+3}], {c}")
            else:
                i -= 8
                j, hf = i >> 1, i & 1
                A = ACC0 if hf == 0 else ACC1
                e(f"v_mfma_f32_16x16x32_bf16 v[{A}:{A+3}], v[{AF+4*j}:{AF+4*j+3}], {slot_regs(slot_of(n))}, v[{A}:{A+3}]")
        st = dict(k=npro)
        def tile(t, steady):
            st["j"] = 0
            st["last"] = 16 * t - 1
            def point():
                j = st["j"]; st["j"] += 1
                k = st["k"]
                want = 16 * t + d + j
                prev = k - 16 if k - 16 >= npro else k % 16
                if prev > st["last"]:
                    assert not steady
                    return
                if k > want and j % 2 == 0: return
                if steady:
                    assert k == want
                    so = S_O1 if k // 16 == t else S_O2
                else:
                    if st.get("so") != k // 16:
                        tile_off(S_O2, k // 16)
                        st["so"] = k // 16
                    so = S_O2
                e(f"s_waitcnt vmcnt({self.thr-1})")
                issue(k, slot_of(k), so)
                st["k"] = k + 1
            for i in range(16):
                n = 16 * t + i
                if i == 8: softmax(point)
                w = st["k"] - 1 - n
                assert w >= 0
                if w < self.thr or not steady: e(f"s_waitcnt vmcnt({min(63, w)})")
                consume(n)
                st["last"] = n
                if i % 8 != 7: point()
        t = 0
        while not (st["k"] - 16 * t == d and 16 * t >= npro):
            tile(t, False)
            t += 1
        tfirst = t
        self.stamp(8)
        tile_off(S_O1, tfirst)
        e(f"s_add_u32 s{S_R}, s{S_R}, {tfirst*32768}")
        e(f"s_mov_b32 s{S_CNT}, {NT-tfirst}")
        e("v_mov_b32 v79, 0")
        L = self.lab("sloop")
        e.label(L)
        e(f"s_add_u32 s{S_R}, s{S_R}, 32768")
        e(f"s_and_b32 s{S_O2}, s{S_R}, 0xfffff")
        e(f"s_add_u32 s{S_O2}, s{S_O2}, s{S_BASE}")
        e(f"v_mov_b32 v23, s{S_CNT}")
        e(f"s_cmp_eq_u32 s{S_CNT}, 1")
        e(f"s_cselect_b32 s{S_O2}, 0x80000000, s{S_O2}")
        e(f"ds_write_b32 v79, v23 offset:{MISC+12}")
        tile(tfirst, True)
        e(f"s_mov_b32 s{S_O1}, s{S_O2}")
        e(f"s_sub_u32 s{S_CNT}, s{S_CNT}, 1")
        e(f"s_cmp_lg_u32 s{S_CNT}, 0")
        e(f"s_cbranch_scc1 {L}")
        self.stamp(2)
        self.cross_rows(LRUN, MX2, "add")
        e("v_and_b32 v12, 15, v1")
        e("v_lshrrev_b32 v13, 4, v1")
        e("v_lshrrev_b32 v14, 1, v13")
        e("v_and_b32 v15, 1, v13")
        e("v_lshlrev_b32 v16, 10, v14")
        e("v_lshl_add_u32 v16, v12, 5, v16")
        e("v_lshl_add_u32 v16, v15, 4, v16")
        e(f"s_lshl_b32 s64, s{S_HW}, 11")
        e("v_add_u32 v16, s64, v16")
        e(f"ds_write_b128 v16, v[{ACC0}:{ACC0+3}] offset:{SO}")
        e(f"ds_write_b128 v16, v[{ACC1}:{ACC1+3}] offset:{SO+512}")
        e(f"s_lshl_b32 s64, s{S_HW}, 4")
        e("v_add_u32 v17, s64, v1")
        e(f"v_mov_b32 v18, v{NRUN}")
        e(f"v_mov_b32 v19, v{LRUN}")
        e("s_mov_b64 exec, 0x101")
        e(f"ds_write_b64 v17, v[18:19] offset:{SML}")
        e("s_mov_b64 exec, 1")
        e("v_mov_b32 v20, 0")
        e("v_mov_b32 v21, 1")
        e("s_waitcnt lgkmcnt(0)")
        e(f"ds_add_rtn_u32 v22, v20, v21 offset:{MISC+4}")
        e(f"ds_read_b32 v23, v20 offset:{MISC}")
        e("s_waitcnt lgkmcnt(0)")
        e("v_readfirstlane_b32 s64, v22")
        e(f"v_readfirstlane_b32 s{S_TAG}, v23")
        e("s_mov_b64 exec, -1")
        e("s_cmp_eq_u32 s64, 3")
        Ld = self.lab("slast")
        e(f"s_cbranch_scc1 {Ld}")
        self.endpgm()
        e.label(Ld)
        e("s_waitcnt vmcnt(0)")
        e.label("L_sfinal")
        e("v_mov_b32 v20, 0")
        e("v_lshlrev_b32 v22, 4, v1")
        for w in range(4):
            e(f"ds_read_b128 v[{24+4*w}:{27+4*w}], v20 offset:{SML+16*w}")
        OB = 80
        for h in range(2):
            for w in range(4):
                r = OB + (h * 4 + w) * 4
                e(f"ds_read_b128 v[{r}:{r+3}], v22 offset:{SO + w*2048 + h*1024}")
        e(f"s_and_b32 s{S_TM}, s{S_TAG}, 0x3f")
        e("v_mov_b32 v21, 0xffffffc0")
        e("s_waitcnt lgkmcnt(8)")
        for h in range(2):
            n = [24 + 4 * w + 2 * h for w in range(4)]
            e(f"v_min3_f32 v{40+h}, v{n[0]}, v{n[1]}, v{n[2]}")
            e(f"v_min_f32 v{40+h}, v{40+h}, v{n[3]}")
        for h in range(2):
            for w in range(4):
                e(f"v_sub_f32 v{44+4*h+w}, v{40+h}, v{24+4*w+2*h}")
        for i in range(8): e(f"v_exp_f32 v{44+i}, v{44+i}")
        for h in range(2):
            e(f"v_mul_f32 v{42+h}, v{44+4*h}, v{25+2*h}")
        for w in range(1, 4):
            for h in range(2):
                e(f"v_fmac_f32 v{42+h}, v{44+4*h+w}, v{25+4*w+2*h}")
        for h in range(2): e(f"v_rcp_f32 v{52+h}, v{42+h}")
        for h in range(2): e(f"v_log_f32 v{54+h}, v{42+h}")
        for h in range(2):
            for w in range(4): e(f"v_mul_f32 v{44+4*h+w}, v{44+4*h+w}, v{52+h}")
        for h in range(2): e(f"v_sub_f32 v{54+h}, v{54+h}, v{40+h}")
        e(f"s_lshl_b32 s64, s2, 11")
        e(f"s_add_u32 s64, s64, {PBUF}")
        for h in range(2):
            e(f"s_waitcnt lgkmcnt({4-4*h})")
            o = 56 + 4 * h
            for i in range(4): e(f"v_mul_f32 v{o+i}, v{44+4*h}, v{OB+h*16+i}")
            for w in range(1, 4):
                for i in range(4): e(f"v_fmac_f32 v{o+i}, v{44+4*h+w}, v{OB+h*16+w*4+i}")
            for i in range(4): self.tagw(o + i, o + i, 21)
        e("v_cmp_eq_u32 vcc, 1, v1")
        e("v_cndmask_b32 v72, v54, v55, vcc")
        e(f"v_mov_b32 v73, s{S_TAG}")
        e("v_lshlrev_b32 v23, 11, v1")
        e("s_lshl_b32 s65, s2, 3")
        e(f"s_add_u32 s65, s65, {HBUF}")
        e("s_cmp_eq_u32 s68, 1")
        e("s_cbranch_scc1 L_sfinal_back")
        for h in range(2):
            o = 56 + 4 * h
            e(f"buffer_store_dwordx4 v[{o}:{o+3}], v22, s[{R_WS}:{R_WS+3}], s64 offen offset:{h*1024} sc1")
        e("s_mov_b64 exec, 3")
        e(f"buffer_store_dwordx2 v[72:73], v23, s[{R_WS}:{R_WS+3}], s65 offen sc1")
        self.stamp(3)
        self.endpgm()

    def h_consts(self):
        e = self.e
        e("v_and_b32 v4, 15, v1")
        e("v_lshrrev_b32 v5, 4, v1")
        e("v_lshrrev_b32 v6, 2, v4")
        e("v_lshl_add_u32 v6, v5, 3, v6")
        e("v_and_b32 v7, 3, v4")
        e("v_lshlrev_b32 v7, 3, v7")
        e("v_and_b32 v8, 1, v1")
        e(f"v_mul_u32_u24 v8, {AVS}, v8")
        e("v_lshl_add_u32 v3, v5, 4, v8")
    def tr_addr(self, lgpitch, sbase):
        e = self.e
        e(f"v_lshl_add_u32 v2, v6, {lgpitch}, v7")
        e(f"v_add_u32 v2, s{sbase}, v2")
    def dma_voff(self, rowbytes, lgpitch, vout):
        e = self.e
        sh = lgpitch - 4
        e(f"v_lshrrev_b32 v{vout}, {sh}, v1")
        e(f"v_mul_u32_u24 v{vout}, {rowbytes}, v{vout}")
        e(f"v_and_b32 v{vout+1}, {(1<<sh)-1}, v1")
        e(f"v_lshl_add_u32 v{vout}, v{vout+1}, 4, v{vout}")
    def dma_loop(self, srd, voff, n, s_src, src_step, s_dst, inflight=None):
        e = self.e
        L = self.lab("dma")
        inflight = self.winfl
        e(f"s_mov_b32 s66, {n}")
        e.label(L)
        e(f"s_mov_b32 m0, s{s_dst}")
        e(f"s_add_u32 s{s_dst}, s{s_dst}, 1024")
        e(f"buffer_load_dwordx4 v{voff}, s[{srd}:{srd+3}], s{s_src} offen {self.wflags} lds")
        e(f"s_add_u32 s{s_src}, s{s_src}, {src_step}")
        if inflight < 32: e(f"s_waitcnt vmcnt({inflight-1})")
        e("s_sub_u32 s66, s66, 1")
        e("s_cmp_lg_u32 s66, 0")
        e(f"s_cbranch_scc1 {L}")
    def h_sync(self):
        e = self.e
        L = self.lab("hs"); Lx = self.lab("hsx")
        e("s_waitcnt vmcnt(0)")
        e("v_mov_b32 v8, 0")
        e("v_mov_b32 v9, 1")
        e("s_mov_b64 exec, 1")
        e(f"ds_add_u32 v8, v9 offset:{MISC+8}")
        e("s_mov_b64 exec, -1")
        e.label(L)
        e(f"ds_read_b32 v9, v8 offset:{MISC+8}")
        e("s_waitcnt lgkmcnt(0)")
        e("v_readfirstlane_b32 s64, v9")
        e("s_cmp_ge_u32 s64, 4")
        e(f"s_cbranch_scc1 {Lx}")
        e("s_sleep 2")
        e(f"s_sub_u32 s{S_TO}, s{S_TO}, 1")
        e(f"s_cmp_lg_u32 s{S_TO}, 0")
        e(f"s_cbranch_scc1 {L}")
        e(f"s_branch L_hfail")
        e.label(Lx)
    def tr_frags(self, nsteps, off, fbase, lgpitch):
        e = self.e
        for st in range(nsteps):
            f = fbase + 4 * st
            o = off + st * (32 << lgpitch)
            assert o + (4 << lgpitch) < 65536
            e(f"ds_read_b64_tr_b16 v[{f}:{f+1}], v2 offset:{o}")
            e(f"ds_read_b64_tr_b16 v[{f+2}:{f+3}], v2 offset:{o + (4 << lgpitch)}")
            if st % 4 == 3: e("s_waitcnt lgkmcnt(0)")
        e("s_waitcnt lgkmcnt(0)")
    def gemv(self, nsteps, abase, a_lds_off, chains, vaddr=3):
        e = self.e
        AHEAD = 12
        def rd(st): e(f"ds_read_b128 v[{abase+4*st}:{abase+4*st+3}], v{vaddr} offset:{a_lds_off+st*64}")
        issued = min(nsteps, AHEAD)
        for st in range(issued): rd(st)
        for st in range(nsteps):
            e(f"s_waitcnt lgkmcnt({issued - 1 - st})")
            for D, fb in chains:
                c = "0" if st == 0 else f"v[{D}:{D+3}]"
                e(f"v_mfma_f32_16x16x32_bf16 v[{D}:{D+3}], v[{abase+4*st}:{abase+4*st+3}], v[{fb+4*st}:{fb+4*st+3}], {c}")
            if issued < nsteps:
                rd(issued); issued += 1
    def lds_wait(self, off, cmp, val, sleep=4, sreg=64):
        e = self.e
        L = self.lab("lw"); Lx = self.lab("lwx")
        e("v_mov_b32 v8, 0")
        e.label(L)
        e(f"ds_read_b32 v9, v8 offset:{off}")
        e("s_waitcnt lgkmcnt(0)")
        e(f"v_readfirstlane_b32 s{sreg}, v9")
        e(f"s_cmp_{cmp}_u32 s{sreg}, {val}")
        e(f"s_cbranch_scc1 {Lx}")
        e(f"s_sleep {sleep}")
        e(f"s_sub_u32 s{S_TO}, s{S_TO}, 1")
        e(f"s_cmp_lg_u32 s{S_TO}, 0")
        e(f"s_cbranch_scc1 {L}")
        e(f"s_branch L_hfail")
        e.label(Lx)
    def lds_set(self, off, src):
        e = self.e
        e("v_mov_b32 v8, 0")
        e(f"v_mov_b32 v9, {src}")
        e(f"ds_write_b32 v8, v9 offset:{off}")
    def bar(self):
        e = self.e
        L = self.lab("nb")
        e("s_cmp_eq_u32 s68, 1")
        e(f"s_cbranch_scc1 {L}")
        e("s_barrier")
        e.label(L)
    def gate_all(self):
        e = self.e
        L = self.lab("gate"); Lx = self.lab("gatex"); Lo = self.lab("gateo"); Le = self.lab("gatee")
        e(f"s_cmp_lg_u32 s{S_HW}, 0")
        e(f"s_cbranch_scc1 {Lo}")
        e("v_lshlrev_b32 v8, 5, v1")
        e(f"s_mov_b32 s64, {HBUF}")
        e.label(L)
        e(f"buffer_load_dwordx4 v[40:43], v8, s[{R_WS}:{R_WS+3}], s64 offen sc1")
        e(f"buffer_load_dwordx4 v[44:47], v8, s[{R_WS}:{R_WS+3}], s64 offen offset:16 sc1")
        e("s_waitcnt vmcnt(0)")
        e(f"v_xor_b32 v41, s{S_TAG}, v41")
        e(f"v_xor_b32 v43, s{S_TAG}, v43")
        e(f"v_xor_b32 v45, s{S_TAG}, v45")
        e(f"v_xor_b32 v47, s{S_TAG}, v47")
        e("v_or3_b32 v41, v41, v43, v45")
        e("v_or_b32 v41, v41, v47")
        e("v_cmp_ne_u32 vcc, 0, v41")
        e(f"s_cbranch_vccz {Lx}")
        e("s_mov_b64 exec, vcc")
        e(f"s_sleep {self.gsleep}")
        e(f"s_sub_u32 s{S_TO}, s{S_TO}, 1")
        e(f"s_cmp_lg_u32 s{S_TO}, 0")
        e(f"s_cbranch_scc1 {L}")
        e(f"s_branch L_hfail")
        e.label(Lx)
        e("s_mov_b64 exec, -1")
        self.lds_set(MISC + 20, 1)
        e(f"s_branch {Le}")
        e.label(Lo)
        self.lds_wait(MISC + 20, "eq", 1, 2)
        e.label(Le)
    def sweep(self, units, mant=True, smask=69, tmp=9):
        e = self.e
        n = len(units)
        L = self.lab("sweep"); Lx = self.lab("sweepx")
        e(f"s_mov_b32 s{smask}, {(1<<n)-1:#x}")
        e.label(L)
        for i, (loads, tags) in enumerate(units):
            sk = self.lab("sk")
            e(f"s_bitcmp1_b32 s{smask}, {i}")
            e(f"s_cbranch_scc0 {sk}")
            for l in loads: e(l)
            e.label(sk)
        e("s_waitcnt vmcnt(0)")
        for i, (loads, tags) in enumerate(units):
            sk = self.lab("ck")
            e(f"s_bitcmp1_b32 s{smask}, {i}")
            e(f"s_cbranch_scc0 {sk}")
            if mant:
                self.check_words(tags, tmp)
            else:
                e(f"v_xor_b32 v{tmp}, s{S_TAG}, v{tags[0]}")
                for tg in tags[1:]: e(f"v_bitop3_b32 v{tmp}, v{tg}, s{S_TAG}, v{tmp} bitop3:0xbe")
                e(f"v_cmp_ne_u32 vcc, 0, v{tmp}")
            e(f"s_cbranch_vccnz {sk}")
            e(f"s_bitset0_b32 s{smask}, {i}")
            e.label(sk)
        e(f"s_cmp_eq_u32 s{smask}, 0")
        e(f"s_cbranch_scc1 {Lx}")
        e(f"s_sub_u32 s{S_TO}, s{S_TO}, 1")
        e(f"s_cmp_lg_u32 s{S_TO}, 0")
        e(f"s_cbranch_scc1 {L}")
        e(f"s_branch L_hfail")
        e.label(Lx)

    def ln_finish(self, mean, var, out_mb, out_rs):
        e = self.e
        for m, o in zip(mean, out_mb):
            if m != o: e(f"v_mov_b32 v{o}, v{m}")
        self.rnd_many(list(out_mb) + list(var))
        for v in var: e(f"v_add_f32 v{v}, {f2u(1e-5):#x}, v{v}")
        self.rnd_many(var)
        for v in var: e(f"v_sqrt_f32 v{v}, v{v}")
        self.rnd_many(var)
        for v, o in zip(var, out_rs): e(f"v_rcp_f32 v{o}, v{v}")

    def q_path(self):
        e = self.e
        e("v_lshlrev_b32 v8, 4, v1")
        e("v_cmp_gt_u32 s[70:71], 56, v1")
        e("v_mov_b32 v9, 0x10000")
        e("v_cndmask_b32 v8, v9, v8, s[70:71]")
        e(f"buffer_load_dwordx4 v[12:15], v8, s[{R_X}:{R_X+3}], 0 offen")
        e(f"buffer_load_dwordx4 v[16:19], v8, s[{R_X}:{R_X+3}], 0 offen offset:896")
        e(f"buffer_load_dword v10, off, s[{R_WS}:{R_WS+3}], 0 offset:{EPOCH} sc1")
        e(f"s_and_b32 s12, s{S_SPL}, 3")
        e(f"s_lshr_b32 s13, s{S_SPL}, 2")
        e(f"s_lshl_b32 s64, s{S_B}, 2")
        e("s_add_u32 s13, s13, s64")
        e(f"s_mul_i32 s64, s12, {112*8192}")
        e(f"s_lshl_b32 s65, s{S_HKV}, 10")
        e("s_add_u32 s64, s64, s65")
        e("s_lshl_b32 s65, s13, 7")
        e("s_add_u32 s64, s64, s65")
        self.srd(R_W, P_WQ, 448 * 8192)
        self.dma_voff(8192, 7, 20)
        for st in range(14):
            e(f"s_mov_b32 m0, {STG + st*1024}")
            if st: e(f"s_add_u32 s64, s64, {8*8192}")
            e(f"buffer_load_dwordx4 v20, s[{R_W}:{R_W+3}], s64 offen {self.qflags} lds")
        self.stamp(9)
        self.h_consts()
        e("v_mov_b32 v20, 0")
        e("v_mov_b32 v21, 0")
        e("v_mov_b32 v21, 0x7fff")
        e(f"ds_write_b64 v20, v[20:21] offset:{MISC+8}")
        e("v_mov_b32 v21, 0")
        e(f"ds_write_b64 v20, v[20:21] offset:{MISC+16}")
        e(f"ds_write_b32 v20, v20 offset:{MISC+4}")
        e("s_waitcnt vmcnt(15)")
        self.stamp(10)
        for b in range(2):
            for i in range(4):
                e(f"v_lshlrev_b32 v{24+8*b+2*i}, 16, v{12+4*b+i}")
                e(f"v_and_b32 v{25+8*b+2*i}, 0xffff0000, v{12+4*b+i}")
        for b in range(2):
            x = 24 + 8 * b
            e(f"v_add_f32 v{40+b}, v{x}, v{x+1}")
            for i in range(2, 8): e(f"v_add_f32 v{40+b}, v{40+b}, v{x+i}")
        self.wave_sum_to_sgpr([40, 41], [64, 65])
        inv = f2u(1.0 / 448)
        for b in range(2):
            e(f"v_mov_b32 v{42+b}, {inv:#x}")
            e(f"v_mul_f32 v{42+b}, s{64+b}, v{42+b}")
        for b in range(2):
            x = 24 + 8 * b
            e(f"v_sub_f32 v44, v{x}, v{42+b}")
            e(f"v_mul_f32 v{40+b}, v44, v44")
            for i in range(1, 8):
                e(f"v_sub_f32 v44, v{x+i}, v{42+b}")
                e(f"v_fmac_f32 v{40+b}, v44, v44")
            e(f"v_cndmask_b32 v{40+b}, 0, v{40+b}, s[70:71]")
        self.wave_sum_to_sgpr([40, 41], [64, 65])
        for b in range(2):
            e(f"v_mov_b32 v{44+b}, {inv:#x}")
            e(f"v_mul_f32 v{44+b}, s{64+b}, v{44+b}")
        self.ln_finish([42, 43], [44, 45], [42, 43], [46, 47])
        for b in range(2):
            x = 24 + 8 * b
            for i in range(8): e(f"v_sub_f32 v{x+i}, v{x+i}, v{42+b}")
            for i in range(4): e(f"v_cvt_pk_bf16_f32 v{12+4*b+i}, v{x+2*i}, v{x+2*i+1}")
            for i in range(4):
                e(f"v_lshlrev_b32 v{x+2*i}, 16, v{12+4*b+i}")
                e(f"v_and_b32 v{x+2*i+1}, 0xffff0000, v{12+4*b+i}")
            for i in range(8): e(f"v_mul_f32 v{x+i}, v{x+i}, v{46+b}")
            for i in range(4): e(f"v_cvt_pk_bf16_f32 v{12+4*b+i}, v{x+2*i}, v{x+2*i+1}")
        e("v_lshlrev_b32 v8, 4, v1")
        e("s_mov_b64 exec, s[70:71]")
        e(f"ds_write_b128 v8, v[12:15] offset:{AV}")
        e(f"ds_write_b128 v8, v[16:19] offset:{AV+AVS}")
        e("s_mov_b64 exec, -1")
        e("s_waitcnt vmcnt(14)")
        e("v_readfirstlane_b32 s64, v10")
        self.set_tag(64)
        e(f"v_mov_b32 v21, s{S_TAG}")
        e(f"ds_write_b32 v20, v21 offset:{MISC}")
        e("s_waitcnt vmcnt(0) lgkmcnt(0)")
        self.stamp(1)
        e(f"s_mov_b32 s64, {STG}")
        self.tr_addr(7, 64)
        e("s_mul_i32 s64, s12, 224")
        e("v_add_u32 v9, s64, v3")
        for st in range(4): e(f"ds_read_b128 v[{128+4*st}:{131+4*st}], v9 offset:{AV+st*64}")
        for cg in range(4): self.tr_frags(4, cg * 32, 64 + 16 * cg, 7)
        e("v_cmp_gt_u32 vcc, 32, v1")
        for i in range(4): e(f"v_cndmask_b32 v{140+i}, 0, v{140+i}, vcc")
        for cg in range(4):
            for i in range(4): e(f"v_cndmask_b32 v{76+16*cg+i}, 0, v{76+16*cg+i}, vcc")
        for st in range(4):
            for cg in range(4):
                D = 144 + 4 * cg
                c = "0" if st == 0 else f"v[{D}:{D+3}]"
                e(f"v_mfma_f32_16x16x32_bf16 v[{D}:{D+3}], v[{128+4*st}:{131+4*st}], v[{64+16*cg+4*st}:{67+16*cg+4*st}], {c}")
        e("v_cmp_lt_u32 s[64:65], 15, v1")
        e("v_cmp_lt_u32 s[66:67], 31, v1")
        e("v_cmp_lt_u32 vcc, 47, v1")
        e(f"v_mov_b32 v53, s{S_TAG}")
        e(f"v_mov_b32 v55, s{S_TAG}")
        e("v_lshlrev_b32 v8, 3, v1")
        for b in range(2):
            e(f"v_cndmask_b32 v{52+2*b}, v{144+b}, v{148+b}, s[64:65]")
        for b in range(2):
            e(f"v_cndmask_b32 v{52+2*b}, v{52+2*b}, v{152+b}, s[66:67]")
        for b in range(2):
            e(f"v_cndmask_b32 v{52+2*b}, v{52+2*b}, v{156+b}, vcc")
        e(f"s_lshl_b32 s64, s{S_HKV}, 14")
        e("s_lshl_b32 s65, s12, 12")
        e("s_add_u32 s64, s64, s65")
        e("s_lshl_b32 s65, s13, 9")
        e("s_add_u32 s64, s64, s65")
        e(f"s_add_u32 s64, s64, {QBUF}")
        e(f"s_add_u32 s65, s64, {8*16384}")
        e(f"buffer_store_dwordx2 v[52:53], v8, s[{R_WS}:{R_WS+3}], s64 offen sc1")
        e(f"buffer_store_dwordx2 v[54:55], v8, s[{R_WS}:{R_WS+3}], s65 offen sc1")
        self.lds_set(MISC + 24, f"s{S_TAG}")
        self.stamp(2)

    def q_gather(self):
        e = self.e
        e("v_lshlrev_b32 v8, 4, v1")
        e(f"s_lshl_b32 s13, s{S_GRP}, 14")
        e(f"s_lshl_b32 s64, s{S_HW}, 10")
        e("s_add_u32 s13, s13, s64")
        e(f"s_add_u32 s13, s13, {QBUF}")
        units = [([f"s_add_u32 s65, s13, {k*4096}",
                   f"buffer_load_dwordx4 v[{24+4*k}:{27+4*k}], v8, s[{R_WS}:{R_WS+3}], s65 offen sc1"],
                  [25 + 4 * k, 27 + 4 * k]) for k in range(4)]
        self.sweep(units, mant=False)
        e("v_add_f32 v24, v24, v28")
        e("v_add_f32 v26, v26, v30")
        e("v_add_f32 v32, v32, v36")
        e("v_add_f32 v34, v34, v38")
        e("v_add_f32 v24, v24, v32")
        e("v_add_f32 v26, v26, v34")
        e("v_cvt_pk_bf16_f32 v24, v24, v26")
        e("v_lshlrev_b32 v8, 2, v1")
        e(f"s_lshl_b32 s64, s{S_HW}, 8")
        e("v_add_u32 v8, s64, v8")
        e(f"ds_write_b32 v8, v24 offset:{QL}")
        e("s_waitcnt lgkmcnt(0)")

    def stage_a(self):
        e = self.e
        FB, PB = 64, 128
        self.srd(R_W, P_WO, 4096 * 896)
        e(f"s_mul_i32 s64, s{S_HKV}, {512*896}")
        e(f"s_lshl_b32 s65, s{S_SPL}, 7")
        e("s_add_u32 s64, s64, s65")
        e(f"s_mul_i32 s65, s{S_HW}, {128*896}")
        e("s_add_u32 s64, s64, s65")
        e(f"s_lshl_b32 s65, s{S_HW}, 14")
        e(f"s_add_u32 s65, s65, {STG}")
        self.dma_voff(896, 7, 20)
        self.dma_loop(R_W, 20, 16, 64, 8 * 896, 65)
        self.h_sync()
        e(f"s_lshl_b32 s64, s{S_HW}, 5")
        e(f"s_add_u32 s64, s64, {STG}")
        self.tr_addr(7, 64)
        self.tr_frags(16, 0, FB, 7)
        self.stamp(4)
        e(f"s_lshr_b32 s12, s{S_HW}, 1")
        e(f"s_and_b32 s13, s{S_HW}, 1")
        e("s_lshl_b32 s14, s12, 3")
        e(f"s_add_u32 s14, s14, s{S_HKV}")
        e("s_lshl_b32 s15, s14, 15")
        e("s_lshl_b32 s64, s13, 10")
        e("s_add_u32 s15, s15, s64")
        e(f"s_add_u32 s15, s15, {PBUF}")
        e("s_lshl_b32 s64, s13, 11")
        e("s_lshl_b32 s14, s14, 7")
        e("s_add_u32 s14, s14, s64")
        e(f"s_add_u32 s14, s14, {HBUF}")
        e("v_lshlrev_b32 v5, 4, v1")
        e("v_lshlrev_b32 v6, 3, v4")
        e(f"s_mul_i32 s64, s12, {AVS}")
        e("s_lshl_b32 s65, s13, 9")
        e("s_add_u32 s64, s64, s65")
        e("v_lshlrev_b32 v7, 3, v1")
        e("v_add_u32 v7, s64, v7")
        e("v_lshlrev_b32 v18, 3, v1")
        e("v_mov_b32 v19, 0xffffffc0")
        for p in range(8): e(f"s_add_u32 s{52+p}, s15, {p*4096}")
        e("s_mov_b32 s68, 1")
        e("s_branch L_a_go")
        e.label("L_a_poll")
        e("s_mov_b32 s68, 0")
        self.stamp(5)
        self.stamp(6)
        L = self.lab("asw"); Lz = self.lab("anl")
        e("s_mov_b32 s69, 0xffff")
        e("s_mov_b32 s70, 0")
        e.label(L)
        e(f"buffer_load_dwordx2 v[10:11], v6, s[{R_WS}:{R_WS+3}], s14 offen sc1")
        def grouped(body):
            for g in range(4):
                gk = self.lab("gk")
                e(f"s_and_b32 s64, s70, {0xf << (4*g):#x}")
                e(f"s_cbranch_scc0 {gk}")
                for p in range(4 * g, 4 * g + 4):
                    sk = self.lab("sk")
                    e(f"s_bitcmp1_b32 s70, {p}")
                    e(f"s_cbranch_scc0 {sk}")
                    body(p, sk)
                    e.label(sk)
                e.label(gk)
        def ld(p, sk):
            r = PB + 4 * p
            e(f"buffer_load_dwordx4 v[{r}:{r+3}], v5, s[{R_WS}:{R_WS+3}], s{52 + (p >> 1)} offen offset:{(p & 1)*2048} sc1")
        def ck(p, sk):
            r = PB + 4 * p
            self.check_words([r, r + 1, r + 2, r + 3], 12)
            e(f"s_cbranch_vccnz {sk}")
            e(f"s_bitset0_b32 s69, {p}")
        grouped(ld)
        e("s_waitcnt vmcnt(0)")
        e(f"v_cmp_eq_u32 s[66:67], s{S_TAG}, v11")
        grouped(ck)
        e("s_and_b32 s71, s66, 0xffff")
        e("s_xor_b32 s64, s71, 0xffff")
        e("s_or_b32 s64, s64, s69")
        e("s_cmp_eq_u32 s64, 0")
        e("s_cbranch_scc1 L_a_got")
        e("s_and_b32 s70, s69, s71")
        e("s_bcnt1_i32_b32 s64, s69")
        e(f"s_cmp_le_u32 s64, {self.aspec}")
        e("s_cselect_b32 s70, s69, s70")
        e("s_cmp_lg_u32 s70, 0")
        e(f"s_cbranch_scc1 {Lz}")
        e(f"s_sleep {self.gsleep}")
        e.label(Lz)
        e(f"s_sub_u32 s{S_TO}, s{S_TO}, 1")
        e(f"s_cmp_lg_u32 s{S_TO}, 0")
        e(f"s_cbranch_scc1 {L}")
        e("s_branch L_hfail")
        e.label("L_a_got")
        self.stamp(7)
        e.label("L_a_go")
        e("v_mov_b32 v12, v10")
        self.row_reduce([12], "max")
        e("v_sub_f32 v12, v10, v12")
        e("v_exp_f32 v12, v12")
        e("v_mov_b32 v13, v12")
        sregs = list(range(16, 32))
        for p in range(16): e(f"v_readlane_b32 s{sregs[p]}, v12, {p}")
        self.row_reduce([13], "add")
        e("v_rcp_f32 v13, v13")
        for p in range(16):
            r = PB + 4 * p
            for i in range(4):
                if p == 0: e(f"v_mul_f32 v{14+i}, s{sregs[p]}, v{r+i}")
                else: e(f"v_fmac_f32 v{14+i}, s{sregs[p]}, v{r+i}")
        for i in range(4): e(f"v_mul_f32 v{14+i}, v{14+i}, v13")
        e("v_cvt_pk_bf16_f32 v14, v14, v15")
        e("v_cvt_pk_bf16_f32 v15, v16, v17")
        e(f"ds_write_b64 v7, v[14:15] offset:{AV}")
        e("s_waitcnt lgkmcnt(0)")
        self.bar()
        self.gemv(16, PB + 64, AV, [(20, FB)])
        e(f"s_mul_i32 s64, s{S_HKV}, {448*8}")
        e(f"s_lshl_b32 s65, s{S_SPL}, 9")
        e("s_add_u32 s64, s64, s65")
        e(f"s_lshl_b32 s65, s{S_HW}, 7")
        e("s_add_u32 s64, s64, s65")
        e(f"s_add_u32 s64, s64, {YBUF}")
        self.tagw(24, 20, 19)
        self.tagw(25, 21, 19)
        e("s_cmp_eq_u32 s68, 1")
        e("s_cbranch_scc1 L_a_poll")
        e("s_mov_b64 exec, 0xffff")
        e(f"buffer_store_dwordx2 v[24:25], v18, s[{R_WS}:{R_WS+3}], s64 offen sc1")
        self.stamp(8)
        self.endpgm()

    def stage_b(self):
        e = self.e
        FG, FU, GB = 64, 120, 176
        self.srd(R_W, P_WG, 448 * 3584)
        self.srd(R_W2, P_WU, 448 * 3584)
        e("s_lshl_b32 s13, s12, 2")
        e(f"s_add_u32 s13, s13, s{S_HW}")
        self.dma_voff(3584, 7, 20)
        for m_, srd_ in enumerate((R_W, R_W2)):
            e("s_lshl_b32 s64, s12, 7")
            e(f"s_mul_i32 s65, s{S_HW}, {112*3584}")
            e("s_add_u32 s64, s64, s65")
            e(f"s_mul_i32 s65, s{S_HW}, {112*128}")
            e(f"s_add_u32 s65, s65, {STG + m_*448*128}")
            self.dma_loop(srd_, 20, 14, 64, 8 * 3584, 65)
        self.h_sync()
        e(f"s_lshl_b32 s64, s{S_HW}, 5")
        e(f"s_add_u32 s64, s64, {STG}")
        self.tr_addr(7, 64)
        self.tr_frags(14, 0, FG, 7)
        e(f"v_add_u32 v2, {448*128}, v2")
        self.tr_frags(14, 0, FU, 7)
        e(f"s_mul_i32 s64, s{S_HW}, 56")
        e("v_min_u32 v5, 55, v1")
        e("v_add_u32 v5, s64, v5")
        e("v_cmp_gt_u32 s[70:71], 56, v1")
        e("v_lshlrev_b32 v14, 2, v5")
        e(f"buffer_load_dword v16, v14, s[{R_X}:{R_X+3}], 0 offen")
        e(f"buffer_load_dword v17, v14, s[{R_X}:{R_X+3}], 0 offen offset:896")
        e("v_lshlrev_b32 v5, 4, v5")
        e("s_waitcnt vmcnt(0)")
        e("v_and_b32 v18, 0xffff0000, v16")
        e("v_and_b32 v19, 0xffff0000, v17")
        e("v_lshlrev_b32 v16, 16, v16")
        e("v_lshlrev_b32 v17, 16, v17")
        for k in range(8): e(f"s_mov_b32 s{40+k}, {YBUF + k*3584}")
        self.stamp(4)
        e("s_mov_b32 s68, 1")
        e("s_branch L_b_go")
        e.label("L_b_poll")
        e("s_mov_b32 s68, 0")
        self.stamp(5)
        self.gate_all()
        self.stamp(6)
        units = []
        for k in range(8):
            g = GB + 4 * k
            units.append(([f"buffer_load_dwordx4 v[{g}:{g+3}], v5, s[{R_WS}:{R_WS+3}], s{40+k} offen sc1"], [g, g + 1, g + 2, g + 3]))
        self.sweep(units)
        self.stamp(7)
        e.label("L_b_go")
        for k in range(1, 8):
            for i in range(4):
                e(f"v_add_f32 v{20+i}, v{GB+i if k == 1 else 20+i}, v{GB+4*k+i}")
        self.rnd_many([20, 21, 22, 23])
        for i in range(4): e(f"v_add_f32 v{20+i}, v{20+i}, v{16+i}")
        self.rnd_many([20, 21, 22, 23])
        for b in range(2): e(f"v_add_f32 v{24+b}, v{22+b}, v{20+b}")
        for b in range(2): e(f"v_cndmask_b32 v{24+b}, 0, v{24+b}, s[70:71]")
        self.wave_sum_to_sgpr([24, 25], [64, 65])
        inv112 = f2u(1.0 / 112)
        for b in range(2):
            e(f"v_mov_b32 v{28+2*b}, {inv112:#x}")
            e(f"v_mul_f32 v{28+2*b}, s{64+b}, v{28+2*b}")
        for b in range(2):
            e(f"v_sub_f32 v{24+b}, v{22+b}, v{28+2*b}")
            e(f"v_sub_f32 v{26+b}, v{20+b}, v{28+2*b}")
        for b in range(2): e(f"v_mul_f32 v{24+b}, v{24+b}, v{24+b}")
        for b in range(2): e(f"v_fmac_f32 v{24+b}, v{26+b}, v{26+b}")
        for b in range(2): e(f"v_cndmask_b32 v{24+b}, 0, v{24+b}, s[70:71]")
        self.wave_sum_to_sgpr([24, 25], [64, 65])
        e("v_mov_b32 v29, s64")
        e("v_mov_b32 v31, s65")
        e(f"s_lshl_b32 s64, s{S_HW}, 4")
        e("v_mov_b32 v26, s64")
        e("v_mov_b32 v27, 0")
        e("s_mov_b64 exec, 1")
        e(f"ds_write_b128 v26, v[28:31] offset:{STATS}")
        e("s_mov_b64 exec, -1")
        e("s_waitcnt lgkmcnt(0)")
        self.bar()
        for w in range(4): e(f"ds_read_b128 v[{32+4*w}:{35+4*w}], v27 offset:{STATS+16*w}")
        e("s_waitcnt lgkmcnt(0)")
        for b in range(2):
            m = [32 + 4 * w + 2 * b for w in range(4)]
            e(f"v_add_f32 v{48+b}, v{m[0]}, v{m[1]}")
            e(f"v_add_f32 v{50+b}, v{m[2]}, v{m[3]}")
            e(f"v_add_f32 v{48+b}, v{48+b}, v{50+b}")
            e(f"v_mul_f32 v{48+b}, 0.25, v{48+b}") if False else e(f"v_mul_f32 v{48+b}, {f2u(0.25):#x}, v{48+b}")
            for w in range(4): e(f"v_sub_f32 v{m[w]}, v{m[w]}, v{48+b}")
            e(f"v_mul_f32 v{50+b}, v{m[0]}, v{m[0]}")
            for w in range(1, 4): e(f"v_fmac_f32 v{50+b}, v{m[w]}, v{m[w]}")
            e(f"v_mul_f32 v{50+b}, {f2u(112.0):#x}, v{50+b}")
            for w in range(4): e(f"v_add_f32 v{50+b}, v{50+b}, v{m[w]+1}")
            e(f"v_mul_f32 v{50+b}, {f2u(1.0/448):#x}, v{50+b}")
        self.ln_finish([48, 49], [50, 51], [48, 49], [52, 53])
        for i in range(4): e(f"v_sub_f32 v{20+i}, v{20+i}, v{48+(i&1)}")
        self.rnd_many([20, 21, 22, 23])
        for i in range(4): e(f"v_mul_f32 v{20+i}, v{20+i}, v{52+(i&1)}")
        for b in range(2): e(f"v_cvt_pk_bf16_f32 v{20+b}, v{20+b}, v{22+b}")
        e(f"ds_write_b32 v14, v20 offset:{AV}")
        e(f"ds_write_b32 v14, v21 offset:{AV+AVS}")
        e("s_waitcnt lgkmcnt(0)")
        self.bar()
        self.gemv(14, GB, AV, [(24, FG), (28, FU)])
        self.rnd_many([24, 25, 28, 29])
        k0 = math.sqrt(2.0 / math.pi)
        c1 = f2u(-2.0 * k0 * math.log2(math.e)); c3 = f2u(0.044715)
        e(f"s_mov_b32 s64, {c3:#x}")
        for b in range(2): e(f"v_mul_f32 v{32+b}, v{24+b}, v{24+b}")
        for b in range(2): e(f"v_mul_f32 v{32+b}, v{32+b}, v{24+b}")
        for b in range(2): e(f"v_fma_f32 v{32+b}, v{32+b}, s64, v{24+b}")
        for b in range(2): e(f"v_mul_f32 v{32+b}, {c1:#x}, v{32+b}")
        for b in range(2): e(f"v_exp_f32 v{32+b}, v{32+b}")
        for b in range(2): e(f"v_add_f32 v{32+b}, 1.0, v{32+b}")
        for b in range(2): e(f"v_rcp_f32 v{32+b}, v{32+b}")
        for b in range(2): e(f"v_mul_f32 v{32+b}, v{32+b}, v{24+b}")
        self.rnd_many([32, 33])
        for b in range(2): e(f"v_mul_f32 v{32+b}, v{32+b}, v{28+b}")
        e("v_cvt_pk_bf16_f32 v34, v32, v33")
        e(f"v_mov_b32 v35, s{S_TAG}")
        e("v_lshlrev_b32 v8, 3, v1")
        e("s_lshl_b32 s64, s13, 7")
        e(f"s_add_u32 s64, s64, {GBUF}")
        e("s_cmp_eq_u32 s68, 1")
        e("s_cbranch_scc1 L_b_poll")
        e("s_mov_b64 exec, 0xffff")
        e(f"buffer_store_dwordx2 v[34:35], v8, s[{R_WS}:{R_WS+3}], s64 offen sc1")
        self.stamp(8)
        self.endpgm()

    def stage_c(self):
        e = self.e
        F0, F1, GB = 64, 120, 176
        self.srd(R_W, P_WD, 1792 * 896)
        self.srd(R_W2, P_OUT, 2 * 448 * 2)
        e(f"s_mul_i32 s64, s{S_HW}, {448*896}")
        e("s_lshl_b32 s65, s12, 6")
        e("s_add_u32 s64, s64, s65")
        e(f"s_mul_i32 s65, s{S_HW}, {STGW}")
        e(f"s_add_u32 s65, s65, {STG}")
        self.tr_addr(6, 65)
        self.dma_voff(896, 6, 20)
        self.dma_loop(R_W, 20, 28, 64, 16 * 896, 65)
        e("s_waitcnt vmcnt(0)")
        self.tr_frags(14, 0, F0, 6)
        self.tr_frags(14, 32, F1, 6)
        e("v_and_b32 v5, 31, v1")
        e("v_lshrrev_b32 v6, 5, v1")
        e("s_lshl_b32 s64, s12, 5")
        e("v_add_u32 v7, s64, v5")
        e("v_mul_u32_u24 v14, 448, v6")
        e("v_add_lshl_u32 v14, v14, v7, 1")
        e(f"buffer_load_ushort v16, v14, s[{R_X}:{R_X+3}], 0 offen")
        e("v_lshlrev_b32 v7, 3, v7")
        e("v_lshl_add_u32 v7, v6, 2, v7")
        e("s_waitcnt vmcnt(0)")
        e("v_lshlrev_b32 v16, 16, v16")
        e("v_lshlrev_b32 v10, 4, v1")
        e("v_lshlrev_b32 v11, 4, v5")
        e(f"s_mul_i32 s13, s{S_HW}, 3584")
        e(f"s_add_u32 s13, s13, {GBUF}")
        e(f"s_mul_i32 s14, s{S_HW}, {2*AVS}")
        e("v_lshlrev_b32 v12, 2, v1")
        e("v_add_u32 v12, s14, v12")
        e("v_lshlrev_b32 v13, 2, v5")
        e("v_add_u32 v13, s14, v13")
        e("v_add_u32 v3, s14, v3")
        self.stamp(4)
        e("v_mov_b32 v17, 0")
        e("s_mov_b32 s68, 1")
        e("s_branch L_c_go")
        e.label("L_c_poll")
        e("s_mov_b32 s68, 0")
        self.stamp(5)
        self.gate_all()
        self.stamp(6)
        Ln = self.lab("cnres")
        e(f"s_cmp_lg_u32 s{S_HW}, 0")
        e(f"s_cbranch_scc1 {Ln}")
        for k in range(8): e(f"s_mov_b32 s{40+k}, {YBUF + k*3584}")
        units = [([f"buffer_load_dword v{GB+k}, v7, s[{R_WS}:{R_WS+3}], s{40+k} offen sc1"], [GB + k]) for k in range(8)]
        self.sweep(units)
        for k in range(1, 8): e(f"v_add_f32 v17, v{GB if k == 1 else 17}, v{GB+k}")
        self.rnd(17)
        e("v_add_f32 v17, v17, v16")
        self.rnd(17)
        e.label(Ln)
        units = [([f"buffer_load_dwordx4 v[{24+4*k}:{27+4*k}], v{10 if k < 3 else 11}, s[{R_WS}:{R_WS+3}], s13 offen offset:{k*1024} sc1"],
                  [25 + 4 * k, 27 + 4 * k]) for k in range(4)]
        self.sweep(units, mant=False)
        self.stamp(7)
        e.label("L_c_go")
        e("s_mov_b32 s64, 0x05040100")
        e("s_mov_b32 s65, 0x07060302")
        for k in range(4):
            e(f"v_perm_b32 v{25+4*k}, v{26+4*k}, v{24+4*k}, s64")
            e(f"v_perm_b32 v{27+4*k}, v{26+4*k}, v{24+4*k}, s65")
            a = 12 if k < 3 else 13
            e(f"ds_write_b32 v{a}, v{25+4*k} offset:{AV+k*256}")
            e(f"ds_write_b32 v{a}, v{27+4*k} offset:{AV+AVS+k*256}")
        e("s_waitcnt lgkmcnt(0)")
        self.gemv(14, GB, AV, [(40, F0), (44, F1)])
        e(f"s_lshl_b32 s64, s{S_HW}, 8")
        e("v_lshlrev_b32 v8, 3, v1")
        e("v_add_u32 v8, s64, v8")
        e("s_mov_b64 exec, 0xffff")
        e(f"ds_write_b64 v8, v[40:41] offset:{RED}")
        e(f"ds_write_b64 v8, v[44:45] offset:{RED+128}")
        e("s_mov_b64 exec, -1")
        e("s_waitcnt lgkmcnt(0)")
        self.bar()
        Le = self.lab("cend")
        e(f"s_sub_u32 s64, s{S_HW}, s68")
        e(f"s_cmp_eq_u32 s68, 1")
        e(f"s_cselect_b32 s64, 0, s{S_HW}")
        e(f"s_cmp_lg_u32 s64, 0")
        e(f"s_cbranch_scc1 {Le}")
        e("v_lshlrev_b32 v8, 3, v5")
        e("v_lshl_add_u32 v8, v6, 2, v8")
        for w in range(4): e(f"ds_read_b32 v{20+w}, v8 offset:{RED+256*w}")
        e("s_waitcnt lgkmcnt(0)")
        e("v_add_f32 v20, v20, v21")
        e("v_add_f32 v22, v22, v23")
        e("v_add_f32 v20, v20, v22")
        self.rnd(20)
        e("v_add_f32 v20, v20, v17")
        e("v_cvt_pk_bf16_f32 v20, v20, v20")
        e("s_cmp_eq_u32 s68, 1")
        e("s_cbranch_scc1 L_c_poll")
        e(f"buffer_store_short v20, v14, s[{R_W2}:{R_W2+3}], 0 offen")
        e("s_cmp_lg_u32 s12, 0")
        e(f"s_cbranch_scc1 {Le}")
        e(f"v_mov_b32 v21, s{S_TAG}")
        e("s_mov_b64 exec, 1")
        e(f"buffer_store_dword v21, off, s[{R_WS}:{R_WS+3}], 0 offset:{EPOCH} sc1")
        e.label(Le)
        self.stamp(8)
        self.endpgm()

    def build(self):
        e = self.e
        e("s_cmp_ge_u32 s2, 256")
        e("s_cbranch_scc1 L_exit")
        e("s_load_dwordx16 s[16:31], s[0:1], 0")
        e("s_load_dwordx8 s[32:39], s[0:1], 64")
        self.stamp_init()
        e("v_lshrrev_b32 v2, 6, v0")
        e("v_and_b32 v1, 63, v0")
        e(f"v_readfirstlane_b32 s{S_WAVE}, v2")
        self.stamp(0)
        e(f"s_and_b32 s{S_HW}, s{S_WAVE}, 3")
        e(f"s_cmp_lt_u32 s{S_WAVE}, 4")
        e("s_cbranch_scc1 L_hpath")
        self.s_path()
        e.label("L_hpath")
        e(f"s_lshr_b32 s{S_GRP}, s2, 4")
        e(f"s_and_b32 s{S_SPL}, s2, 15")
        e(f"s_lshr_b32 s{S_B}, s2, 7")
        e(f"s_and_b32 s{S_HKV}, s{S_GRP}, 7")
        e(f"s_mov_b32 s{S_TO}, {TIMEOUT}")
        e("s_waitcnt lgkmcnt(0)")
        self.srd(R_WS, P_WS, WS_SIZE)
        self.srd(R_X, P_X, 1792)
        if self.noq: e("s_branch L_hdone")
        e("s_setprio 2")
        e(f"s_cmp_lg_u32 s{S_HW}, 0")
        e("s_cbranch_scc1 L_hnq")
        self.q_path()
        e("s_branch L_hq")
        e.label("L_hnq")
        e(f"buffer_load_dword v10, off, s[{R_WS}:{R_WS+3}], 0 offset:{EPOCH} sc1")
        self.h_consts()
        e("s_waitcnt vmcnt(0)")
        e("v_readfirstlane_b32 s64, v10")
        self.set_tag(64)
        self.lds_wait(MISC + 24, "eq", f"s{S_TAG}", 2)
        e.label("L_hq")
        self.q_gather()
        e("s_setprio 0")
        e("s_barrier")
        self.stamp(3)
        e(f"s_cmp_lg_u32 s{S_HW}, 1")
        e("s_cbranch_scc1 L_sfinal_back")
        e("s_mov_b32 s68, 1")
        e("s_branch L_sfinal")
        e.label("L_sfinal_back")
        if self.noroles: e("s_branch L_hdone")
        e(f"s_cmp_lg_u32 s{S_HW}, 0")
        e("s_cbranch_scc1 L_rwait")
        self.lds_wait(MISC + 12, "le", self.trig, 8)
        self.srd(R_W, P_DBG, 256)
        e("v_mov_b32 v10, 1")
        e("s_mov_b64 exec, 1")
        e(f"buffer_atomic_add v10, off, s[{R_W}:{R_W+3}], 0 sc0 sc1")
        e("s_waitcnt vmcnt(0)")
        e("s_mov_b64 exec, -1")
        e("v_readfirstlane_b32 s12, v10")
        e("s_add_u32 s12, s12, 1")
        self.lds_set(MISC + 16, "s12")
        e("s_branch L_rgot")
        e.label("L_rwait")
        self.lds_wait(MISC + 16, "lg", 0, 8, 12)
        e.label("L_rgot")
        e("s_sub_u32 s12, s12, 1")
        if self.diag: e(f"s_mov_b32 s{ST0+22}, s12")
        e("s_cmp_ge_u32 s12, 98")
        e("s_cbranch_scc1 L_hdone")
        self.h_consts()
        e("s_cmp_lt_u32 s12, 14")
        e("s_cbranch_scc0 L_notc")
        self.stage_c()
        e.label("L_notc")
        e("s_sub_u32 s12, s12, 14")
        e("s_cmp_lt_u32 s12, 28")
        e("s_cbranch_scc0 L_notb")
        self.stage_b()
        e.label("L_notb")
        e("s_sub_u32 s12, s12, 28")
        e(f"s_mul_i32 s{S_HKV}, s12, 37")
        e(f"s_lshr_b32 s{S_HKV}, s{S_HKV}, 8")
        e(f"s_mul_i32 s64, s{S_HKV}, 7")
        e(f"s_sub_u32 s{S_SPL}, s12, s64")
        self.stage_a()
        e.label("L_hfail")
        e.label("L_hdone")
        self.endpgm()
        e.label("L_exit")
        e("s_endpgm")
        return e.text()

HEAD = """; fused pre-LN GQA decode attention + GEGLU FFN, one persistent launch (256 workgroups, one per CU).
; @launch grid=(256,1,1) block=(512,1,1) lds={lds}
.amdgcn_target "amdgcn-amd-amdhsa--gfx950"
.text
.globl {name}
.p2align 8
.type {name},@function
{name}:
"""
TAIL = """.section .rodata,"a"
.p2align 6
.amdhsa_kernel {name}
  .amdhsa_next_free_vgpr 256
  .amdhsa_next_free_sgpr 102
  .amdhsa_accum_offset 256
  .amdhsa_group_segment_fixed_size 0
  .amdhsa_kernarg_size 96
  .amdhsa_user_sgpr_count 2
  .amdhsa_user_sgpr_kernarg_segment_ptr 1
  .amdhsa_system_sgpr_workgroup_id_x 1
.end_amdhsa_kernel
"""

def make(path, **kw):
    g = Gen(**kw)
    body = g.build()
    open(path, "w").write(HEAD.format(lds=LDS_SIZE, name=NAME) + body + TAIL.format(name=NAME))
    return g

if __name__ == "__main__":
    import argparse
    ap = argparse.ArgumentParser()
    ap.add_argument("out")
    ap.add_argument("--diag", action="store_true")
    ap.add_argument("--npro", type=int, default=32)
    ap.add_argument("--kvflags", default="nt")
    ap.add_argument("--wflags", default="nt")
    ap.add_argument("--qflags", default="nt")
    ap.add_argument("--noroles", action="store_true")
    ap.add_argument("--athr", type=int, default=13)
    ap.add_argument("--gsleep", type=int, default=4)
    ap.add_argument("--winfl", type=int, default=4)
    ap.add_argument("--dist", type=int, default=9)
    ap.add_argument("--thr", type=int, default=6)
    ap.add_argument("--vflags", default=None)
    ap.add_argument("--rot", type=int, default=1)
    ap.add_argument("--nosoft", action="store_true")
    ap.add_argument("--noq", action="store_true")
    ap.add_argument("--trig", type=int, default=2)
    ap.add_argument("--aspec", type=int, default=2)
    a = ap.parse_args()
    g = make(a.out, diag=a.diag, npro=a.npro, kvflags=a.kvflags, wflags=a.wflags, qflags=a.qflags, noroles=a.noroles, athr=a.athr, gsleep=a.gsleep, winfl=a.winfl, dist=a.dist, nosoft=a.nosoft, noq=a.noq, trig=a.trig, aspec=a.aspec, thr=a.thr, vflags=a.vflags, rot=a.rot)
    print("pads inserted:", g.e.npad, "lines:", len(g.e.lines))
```

```python
import sys, struct, math
from emit import Emitter

NAME = "sequential_preLN__gqa_block_cached__geglu_ffn__decode_kernel"
def f2u(x): return struct.unpack("<I", struct.pack("<f", x))[0]

EPOCH = 0
QBUF = 0x140000
HBUF = 0x12000
YBUF = 0x14000
GBUF = 0x22000
PBUF = 0x40000
STAMP = 0x200000
WS_SIZE = 0x400000
QL = 0x0000
MISC = 0x0400
SML = 0x0500
STATS = 0x0600
AV = 0x0800
AVS = 1056
RED = 0x2A00
SO = 0x3000
STG = 0x5000
STGW = 28 * 1024
LDS_SIZE = STG + 4 * STGW

CSC = f2u(0.0625 * math.log2(math.e))
GOLD = 0x9E3779B9
TIMEOUT = 200000

S_WAVE, S_GRP, S_SPL, S_B, S_HKV, S_HW, S_TAG = 3, 4, 5, 6, 7, 8, 9
P_X, P_K, P_V, P_WQ, P_WO, P_BX, P_WG, P_WU, P_WD, P_OUT, P_DBG, P_WS = [16 + 2 * i for i in range(12)]
R_K, R_V, R_WS, R_W, R_X, R_W2 = 40, 44, 48, 52, 56, 60
S_C = 10
S_TO = 11
ST0 = 72
S_TM = 96

class Gen:
    def __init__(self, diag=False, npro=32, kvflags="nt", wflags="", qflags="", noroles=False, athr=13, gsleep=4, winfl=1, dist=8, nosoft=False, noq=False, trig=2, aspec=2, thr=5, vflags=None, rot=1, nt=32):
        self.e = Emitter()
        self.diag = diag
        self.npro = npro
        self.kvflags = kvflags
        self.wflags = wflags
        self.qflags = qflags
        self.noroles = noroles
        self.athr = athr
        self.gsleep = gsleep
        self.winfl = winfl
        self.dist = dist
        self.nosoft = nosoft
        self.noq = noq
        self.trig = trig
        self.aspec = aspec
        self.thr = thr
        self.rot = rot
        self.nt = nt
        self.vflags = kvflags if vflags is None else vflags
        self.uid = 0
    def lab(self, s):
        self.uid += 1
        return f"L_{s}_{self.uid}"
    def srd(self, r, p, size):
        e = self.e
        e(f"s_mov_b32 s{r}, s{p}")
        e(f"s_mov_b32 s{r+1}, s{p+1}")
        e(f"s_mov_b32 s{r+2}, {size}")
        e(f"s_mov_b32 s{r+3}, 0x20000")
    def stamp(self, i):
        if self.diag and i in (6, 7):
            self.e(f"s_mov_b32 s{ST0+2*(i+3)}, s{S_TO}")
        if self.diag:
            self.e(f"s_memrealtime s[{ST0+2*i}:{ST0+2*i+1}]")
            self.e("s_waitcnt lgkmcnt(0)")
    def stamp_init(self):
        if self.diag:
            for i in range(12):
                self.e(f"s_mov_b64 s[{ST0+2*i}:{ST0+2*i+1}], 0")
    def stamp_flush(self):
        if not self.diag: return
        e = self.e
        e("s_mov_b64 exec, -1")
        e(f"s_lshl_b32 s64, s2, 3")
        e(f"s_add_u32 s64, s64, s{S_WAVE}")
        e(f"s_lshl_b32 s64, s64, 6")
        e(f"s_add_u32 s64, s64, {STAMP}")
        e(f"s_getreg_b32 s65, hwreg(HW_REG_XCC_ID)")
        e(f"s_getreg_b32 s66, hwreg(HW_REG_HW_ID)")
        for i in range(12):
            e(f"v_mov_b32 v{2+i}, s{ST0+2*i}")
        e("v_mov_b32 v14, s65")
        e("v_mov_b32 v15, s66")
        e("v_mov_b32 v16, 0")
        e("v_mov_b32 v17, 0")
        e("s_mov_b64 exec, 1")
        for i in range(4):
            e(f"buffer_store_dwordx4 v[{2+4*i}:{5+4*i}], off, s[{R_WS}:{R_WS+3}], s64 offset:{16*i}")
        e("s_waitcnt vmcnt(0)")
    def endpgm(self):
        self.stamp_flush()
        self.e("s_endpgm")

    def rnd(self, v):
        self.e(f"v_cvt_pk_bf16_f32 v{v}, v{v}, v{v}")
        self.e(f"v_lshlrev_b32 v{v}, 16, v{v}")
    def rnd_many(self, vs):
        for v in vs: self.e(f"v_cvt_pk_bf16_f32 v{v}, v{v}, v{v}")
        for v in vs: self.e(f"v_lshlrev_b32 v{v}, 16, v{v}")
    def set_tag(self, src):
        self.e(f"s_add_u32 s{S_TAG}, s{src}, {GOLD:#x}")
        self.e(f"s_and_b32 s{S_TM}, s{S_TAG}, 0x3f")
    def tagw(self, dst, src, vmask):
        self.e(f"v_and_or_b32 v{dst}, v{src}, v{vmask}, s{S_TM}")
    def check_words(self, words, tmp):
        e = self.e
        e(f"v_xor_b32 v{tmp}, s{S_TM}, v{words[0]}")
        for w in words[1:]:
            e(f"v_bitop3_b32 v{tmp}, v{w}, s{S_TM}, v{tmp} bitop3:0xbe")
        e(f"v_and_b32 v{tmp}, 0x3f, v{tmp}")
        e(f"v_cmp_ne_u32 vcc, 0, v{tmp}")
    def row_reduce(self, vs, op="add"):
        e = self.e
        for ctl in ("quad_perm:[1,0,3,2]", "quad_perm:[2,3,0,1]", "row_half_mirror", "row_mirror"):
            for v in vs:
                e(f"v_{op}_f32_dpp v{v}, v{v}, v{v} {ctl} row_mask:0xf bank_mask:0xf")
    def wave_sum_to_sgpr(self, vs, ss):
        e = self.e
        self.row_reduce(vs)
        for v in vs: e(f"v_add_f32_dpp v{v}, v{v}, v{v} row_bcast:15 row_mask:0xa bank_mask:0xf")
        for v in vs: e(f"v_add_f32_dpp v{v}, v{v}, v{v} row_bcast:31 row_mask:0xc bank_mask:0xf")
        for v, s in zip(vs, ss): e(f"v_readlane_b32 s{s}, v{v}, 63")
    def cross_rows(self, v, t, op):
        e = self.e
        e(f"v_mov_b32 v{t}, v{v}")
        e(f"v_permlane16_swap_b32 v{v}, v{t}")
        e(f"v_{op}_f32 v{v}, v{v}, v{t}")
        e(f"v_mov_b32 v{t}, v{v}")
        e(f"v_permlane32_swap_b32 v{v}, v{t}")
        e(f"v_{op}_f32 v{v}, v{v}, v{t}")

    def s_path(self):
        e = self.e
        KO0, KO1, VO = 2, 3, 4
        MK = 5
        MRUN, LRUN, NRUN = 9, 10, 11
        T = 12; PK = 16; MX, MX2, AL, ALD, NN = 18, 19, 20, 21, 22
        P = 24
        D0, D1, ACC0, ACC1, AF, QF, SLOT = 28, 32, 36, 40, 44, 60, 80
        S_BASE, S_O1, S_O2, S_CNT, S_R = 64, 65, 66, 67, 69
        def tile_off(dst, t):
            e(f"s_add_u32 s{dst}, s{S_R}, {t*32768}")
            e(f"s_and_b32 s{dst}, s{dst}, 0xfffff")
            e(f"s_add_u32 s{dst}, s{dst}, s{S_BASE}")
        NT = self.nt
        e("v_and_b32 v12, 15, v1")
        e("v_lshrrev_b32 v13, 4, v1")
        e("v_and_b32 v14, 7, v12")
        e("v_lshrrev_b32 v15, 3, v12")
        e(f"v_lshlrev_b32 v{KO0}, 9, v14")
        e("v_lshl_add_u32 v16, v15, 2, v13")
        e(f"v_lshl_add_u32 v{KO0}, v16, 4, v{KO0}")
        e(f"v_add_u32 v{KO1}, 0x1000, v{KO0}")
        e(f"v_lshlrev_b32 v{VO}, 11, v13")
        e(f"v_lshl_add_u32 v{VO}, v12, 4, v{VO}")
        e("s_mov_b32 s68, 0")
        e(f"s_lshl_b32 s{S_BASE}, s2, 20")
        e(f"s_lshl_b32 s65, s{S_HW}, 13")
        e(f"s_add_u32 s{S_BASE}, s{S_BASE}, s65")
        e(f"s_lshr_b32 s{S_R}, s2, 3")
        e(f"s_lshl_b32 s{S_R}, s{S_R}, {15 if self.rot else 20}")
        e("s_waitcnt lgkmcnt(0)")
        self.srd(R_K, P_K, 1 << 28)
        self.srd(R_V, P_V, 1 << 28)
        state = dict(issued=-1)
        def slot_regs(s): return f"v[{SLOT+4*s}:{SLOT+4*s+3}]"
        def issue(n, slot, soff):
            i = n % 16
            if i < 8:
                G, j = i >> 2, i & 3
                e(f"buffer_load_dwordx4 {slot_regs(slot)}, v{KO0+G}, s[{R_K}:{R_K+3}], s{soff} offen offset:{j*128} {self.kvflags}")
            else:
                i -= 8
                e(f"buffer_load_dwordx4 {slot_regs(slot)}, v{VO}, s[{R_V}:{R_V+3}], s{soff} offen offset:{(i>>1)*512+(i&1)*256} {self.vflags}")
        npro = self.npro
        assert 16 <= npro <= 44
        for n in range(npro):
            if n % 16 == 0:
                tile_off(S_O1, n // 16)
            if n >= self.thr: e(f"s_waitcnt vmcnt({self.thr-1})")
            issue(n, n, S_O1)
            if n == 7:
                self.stamp(4)
                self.srd(R_WS, P_WS, WS_SIZE)
                e(f"s_mov_b32 s{S_C}, {CSC:#x}")
                e("v_lshrrev_b32 v16, 1, v14")
                e("v_and_b32 v17, 1, v14")
                e("v_mov_b32 v18, 0xffff")
                e("v_lshlrev_b32 v17, 4, v17")
                e("v_lshlrev_b32 v18, v17, v18")
                for i in range(4):
                    e(f"v_cmp_eq_u32 vcc, {i}, v16")
                    e(f"v_cndmask_b32 v{MK+i}, 0, v18, vcc")
                e(f"v_mov_b32 v{MRUN}, 0xff800000")
                e(f"v_mov_b32 v{NRUN}, 0x7f800000")
                e(f"v_mov_b32 v{LRUN}, 0")
                for i in range(8): e(f"v_mov_b32 v{ACC0+i}, 0")
                e("v_bfe_u32 v16, v12, 2, 1")
                e("v_lshl_add_u32 v16, v16, 2, v13")
                e("v_lshlrev_b32 v23, 9, v15")
                e("v_lshl_add_u32 v23, v16, 4, v23")
        self.stamp(5)
        if not self.noq: e("s_barrier")
        self.stamp(1)
        for j in range(4):
            e(f"ds_read_b128 v[{QF+4*j}:{QF+4*j+3}], v23 offset:{QL+j*128}")
        e("s_waitcnt lgkmcnt(0)")

        def softmax(point):
            for r in range(4): e(f"v_permlane32_swap_b32 v{D0+r}, v{D1+r}")
            for r in range(4): e(f"v_add_f32_dpp v{T+r}, v{D1+r}, v{D0+r} row_half_mirror row_mask:0xf bank_mask:0x5")
            for r in range(4): e(f"v_add_f32_dpp v{T+r}, v{D0+r}, v{D1+r} row_half_mirror row_mask:0xf bank_mask:0xa")
            e(f"v_cvt_pk_bf16_f32 v{PK}, v{T}, v{T+1}")
            e(f"v_cvt_pk_bf16_f32 v{PK+1}, v{T+2}, v{T+3}")
            e(f"v_lshlrev_b32 v{T}, 16, v{PK}")
            e(f"v_and_b32 v{T+1}, 0xffff0000, v{PK}")
            e(f"v_lshlrev_b32 v{T+2}, 16, v{PK+1}")
            e(f"v_and_b32 v{T+3}, 0xffff0000, v{PK+1}")
            point()
            e(f"v_max3_f32 v{MX}, v{T}, v{T+1}, v{T+2}")
            e(f"v_max3_f32 v{MX}, v{MX}, v{T+3}, v{MRUN}")
            self.cross_rows(MX, MX2, "max")
            e(f"v_mov_b32 v{MRUN}, v{MX}")
            e(f"v_mul_f32 v{NN}, s{S_C}, v{MX}")
            e(f"v_sub_f32 v{AL}, 0, v{NN}")
            for r in range(4): e(f"v_fma_f32 v{P+r}, v{T+r}, s{S_C}, v{AL}")
            e(f"v_sub_f32 v{NN}, v{AL}, v{NRUN}")
            e(f"v_mov_b32 v{NRUN}, v{AL}")
            e(f"v_exp_f32 v{AL}, v{NN}")
            for r in range(4): e(f"v_exp_f32 v{P+r}, v{P+r}")
            point()
            e(f"v_mov_b32 v{ALD}, v{AL}")
            e(f"v_mul_f32 v{LRUN}, v{LRUN}, v{AL}")
            e(f"v_mov_b32_dpp v{ALD}, v{AL} row_shr:8 row_mask:0x3 bank_mask:0xc")
            e(f"v_mov_b32_dpp v{ALD}, v{AL} row_shl:8 row_mask:0xc bank_mask:0x3")
            for r in range(4): e(f"v_cvt_pk_bf16_f32 v{T+r}, v{P+r}, v{P+r}")
            e(f"v_add_f32 v{P}, v{P}, v{P+1}")
            e(f"v_add_f32 v{P+2}, v{P+2}, v{P+3}")
            for i in range(4): e(f"v_and_b32 v{AF+i}, v{T}, v{MK+i}")
            for i in range(8): e(f"v_mul_f32 v{ACC0+i}, v{ACC0+i}, v{ALD}")
            e(f"v_add_f32 v{P}, v{P}, v{P+2}")
            for r in range(1, 4):
                for i in range(4): e(f"v_and_b32 v{AF+4*r+i}, v{T+r}, v{MK+i}")
            e(f"v_add_f32 v{LRUN}, v{LRUN}, v{P}")

        d = self.dist
        NL = NT * 16
        def slot_of(n): return n if n < npro else n % 16
        def consume(n):
            i = n % 16
            if i < 8:
                G, j = i >> 2, i & 3
                D = D0 if G == 0 else D1
                c = "0" if j == 0 else f"v[{D}:{D+3}]"
                e(f"v_mfma_f32_16x16x32_bf16 v[{D}:{D+3}], {slot_regs(slot_of(n))}, v[{QF+4*j}:{QF+4*j+3}], {c}")
            else:
                i -= 8
                j, hf = i >> 1, i & 1
                A = ACC0 if hf == 0 else ACC1
                e(f"v_mfma_f32_16x16x32_bf16 v[{A}:{A+3}], v[{AF+4*j}:{AF+4*j+3}], {slot_regs(slot_of(n))}, v[{A}:{A+3}]")
        st = dict(k=npro)
        def tile(t, steady):
            st["j"] = 0
            st["last"] = 16 * t - 1
            def point():
                j = st["j"]; st["j"] += 1
                k = st["k"]
                want = 16 * t + d + j
                prev = k - 16 if k - 16 >= npro else k % 16
                if prev > st["last"]:
                    assert not steady
                    return
                if k > want and j % 2 == 0: return
                if steady:
                    assert k == want
                    so = S_O1 if k // 16 == t else S_O2
                else:
                    if st.get("so") != k // 16:
                        tile_off(S_O2, k // 16)
                        st["so"] = k // 16
                    so = S_O2
                e(f"s_waitcnt vmcnt({self.thr-1})")
                issue(k, slot_of(k), so)
                st["k"] = k + 1
            for i in range(16):
                n = 16 * t + i
                if i == 8: softmax(point)
                w = st["k"] - 1 - n
                assert w >= 0
                if w < self.thr or not steady: e(f"s_waitcnt vmcnt({min(63, w)})")
                consume(n)
                st["last"] = n
                if i % 8 != 7: point()
        t = 0
        while not (st["k"] - 16 * t == d and 16 * t >= npro):
            tile(t, False)
            t += 1
        tfirst = t
        self.stamp(8)
        tile_off(S_O1, tfirst)
        e(f"s_add_u32 s{S_R}, s{S_R}, {tfirst*32768}")
        e(f"s_mov_b32 s{S_CNT}, {NT-tfirst}")
        e("v_mov_b32 v79, 0")
        L = self.lab("sloop")
        e.label(L)
        e(f"s_add_u32 s{S_R}, s{S_R}, 32768")
        e(f"s_and_b32 s{S_O2}, s{S_R}, 0xfffff")
        e(f"s_add_u32 s{S_O2}, s{S_O2}, s{S_BASE}")
        e(f"v_mov_b32 v23, s{S_CNT}")
        e(f"s_cmp_eq_u32 s{S_CNT}, 1")
        e(f"s_cselect_b32 s{S_O2}, 0x80000000, s{S_O2}")
        e(f"ds_write_b32 v79, v23 offset:{MISC+12}")
        tile(tfirst, True)
        e(f"s_mov_b32 s{S_O1}, s{S_O2}")
        e(f"s_sub_u32 s{S_CNT}, s{S_CNT}, 1")
        e(f"s_cmp_lg_u32 s{S_CNT}, 0")
        e(f"s_cbranch_scc1 {L}")
        self.stamp(2)
        self.cross_rows(LRUN, MX2, "add")
        e("v_and_b32 v12, 15, v1")
        e("v_lshrrev_b32 v13, 4, v1")
        e("v_lshrrev_b32 v14, 1, v13")
        e("v_and_b32 v15, 1, v13")
        e("v_lshlrev_b32 v16, 10, v14")
        e("v_lshl_add_u32 v16, v12, 5, v16")
        e("v_lshl_add_u32 v16, v15, 4, v16")
        e(f"s_lshl_b32 s64, s{S_HW}, 11")
        e("v_add_u32 v16, s64, v16")
        e(f"ds_write_b128 v16, v[{ACC0}:{ACC0+3}] offset:{SO}")
        e(f"ds_write_b128 v16, v[{ACC1}:{ACC1+3}] offset:{SO+512}")
        e(f"s_lshl_b32 s64, s{S_HW}, 4")
        e("v_add_u32 v17, s64, v1")
        e(f"v_mov_b32 v18, v{NRUN}")
        e(f"v_mov_b32 v19, v{LRUN}")
        e("s_mov_b64 exec, 0x101")
        e(f"ds_write_b64 v17, v[18:19] offset:{SML}")
        e("s_mov_b64 exec, 1")
        e("v_mov_b32 v20, 0")
        e("v_mov_b32 v21, 1")
        e("s_waitcnt lgkmcnt(0)")
        e(f"ds_add_rtn_u32 v22, v20, v21 offset:{MISC+4}")
        e(f"ds_read_b32 v23, v20 offset:{MISC}")
        e("s_waitcnt lgkmcnt(0)")
        e("v_readfirstlane_b32 s64, v22")
        e(f"v_readfirstlane_b32 s{S_TAG}, v23")
        e("s_mov_b64 exec, -1")
        e("s_cmp_eq_u32 s64, 3")
        Ld = self.lab("slast")
        e(f"s_cbranch_scc1 {Ld}")
        self.endpgm()
        e.label(Ld)
        e("s_waitcnt vmcnt(0)")
        e.label("L_sfinal")
        e("v_mov_b32 v20, 0")
        e("v_lshlrev_b32 v22, 4, v1")
        for w in range(4):
            e(f"ds_read_b128 v[{24+4*w}:{27+4*w}], v20 offset:{SML+16*w}")
        OB = 80
        for h in range(2):
            for w in range(4):
                r = OB + (h * 4 + w) * 4
                e(f"ds_read_b128 v[{r}:{r+3}], v22 offset:{SO + w*2048 + h*1024}")
        e(f"s_and_b32 s{S_TM}, s{S_TAG}, 0x3f")
        e("v_mov_b32 v21, 0xffffffc0")
        e("s_waitcnt lgkmcnt(8)")
        for h in range(2):
            n = [24 + 4 * w + 2 * h for w in range(4)]
            e(f"v_min3_f32 v{40+h}, v{n[0]}, v{n[1]}, v{n[2]}")
            e(f"v_min_f32 v{40+h}, v{40+h}, v{n[3]}")
        for h in range(2):
            for w in range(4):
                e(f"v_sub_f32 v{44+4*h+w}, v{40+h}, v{24+4*w+2*h}")
        for i in range(8): e(f"v_exp_f32 v{44+i}, v{44+i}")
        for h in range(2):
            e(f"v_mul_f32 v{42+h}, v{44+4*h}, v{25+2*h}")
        for w in range(1, 4):
            for h in range(2):
                e(f"v_fmac_f32 v{42+h}, v{44+4*h+w}, v{25+4*w+2*h}")
        for h in range(2): e(f"v_rcp_f32 v{52+h}, v{42+h}")
        for h in range(2): e(f"v_log_f32 v{54+h}, v{42+h}")
        for h in range(2):
            for w in range(4): e(f"v_mul_f32 v{44+4*h+w}, v{44+4*h+w}, v{52+h}")
        for h in range(2): e(f"v_sub_f32 v{54+h}, v{54+h}, v{40+h}")
        e(f"s_lshl_b32 s64, s2, 11")
        e(f"s_add_u32 s64, s64, {PBUF}")
        for h in range(2):
            e(f"s_waitcnt lgkmcnt({4-4*h})")
            o = 56 + 4 * h
            for i in range(4): e(f"v_mul_f32 v{o+i}, v{44+4*h}, v{OB+h*16+i}")
            for w in range(1, 4):
                for i in range(4): e(f"v_fmac_f32 v{o+i}, v{44+4*h+w}, v{OB+h*16+w*4+i}")
            for i in range(4): self.tagw(o + i, o + i, 21)
        e("v_cmp_eq_u32 vcc, 1, v1")
        e("v_cndmask_b32 v72, v54, v55, vcc")
        e(f"v_mov_b32 v73, s{S_TAG}")
        e("v_lshlrev_b32 v23, 11, v1")
        e("s_lshl_b32 s65, s2, 3")
        e(f"s_add_u32 s65, s65, {HBUF}")
        e("s_cmp_eq_u32 s68, 1")
        e("s_cbranch_scc1 L_sfinal_back")
        for h in range(2):
            o = 56 + 4 * h
            e(f"buffer_store_dwordx4 v[{o}:{o+3}], v22, s[{R_WS}:{R_WS+3}], s64 offen offset:{h*1024} sc1")
        e("s_mov_b64 exec, 3")
        e(f"buffer_store_dwordx2 v[72:73], v23, s[{R_WS}:{R_WS+3}], s65 offen sc1")
        self.stamp(3)
        self.endpgm()

    def h_consts(self):
        e = self.e
        e("v_and_b32 v4, 15, v1")
        e("v_lshrrev_b32 v5, 4, v1")
        e("v_lshrrev_b32 v6, 2, v4")
        e("v_lshl_add_u32 v6, v5, 3, v6")
        e("v_and_b32 v7, 3, v4")
        e("v_lshlrev_b32 v7, 3, v7")
        e("v_and_b32 v8, 1, v1")
        e(f"v_mul_u32_u24 v8, {AVS}, v8")
        e("v_lshl_add_u32 v3, v5, 4, v8")
    def tr_addr(self, lgpitch, sbase):
        e = self.e
        e(f"v_lshl_add_u32 v2, v6, {lgpitch}, v7")
        e(f"v_add_u32 v2, s{sbase}, v2")
    def dma_voff(self, rowbytes, lgpitch, vout):
        e = self.e
        sh = lgpitch - 4
        e(f"v_lshrrev_b32 v{vout}, {sh}, v1")
        e(f"v_mul_u32_u24 v{vout}, {rowbytes}, v{vout}")
        e(f"v_and_b32 v{vout+1}, {(1<<sh)-1}, v1")
        e(f"v_lshl_add_u32 v{vout}, v{vout+1}, 4, v{vout}")
    def dma_loop(self, srd, voff, n, s_src, src_step, s_dst, inflight=None):
        e = self.e
        L = self.lab("dma")
        inflight = self.winfl
        e(f"s_mov_b32 s66, {n}")
        e.label(L)
        e(f"s_mov_b32 m0, s{s_dst}")
        e(f"s_add_u32 s{s_dst}, s{s_dst}, 1024")
        e(f"buffer_load_dwordx4 v{voff}, s[{srd}:{srd+3}], s{s_src} offen {self.wflags} lds")
        e(f"s_add_u32 s{s_src}, s{s_src}, {src_step}")
        if inflight < 32: e(f"s_waitcnt vmcnt({inflight-1})")
        e("s_sub_u32 s66, s66, 1")
        e("s_cmp_lg_u32 s66, 0")
        e(f"s_cbranch_scc1 {L}")
    def h_sync(self):
        e = self.e
        L = self.lab("hs"); Lx = self.lab("hsx")
        e("s_waitcnt vmcnt(0)")
        e("v_mov_b32 v8, 0")
        e("v_mov_b32 v9, 1")
        e("s_mov_b64 exec, 1")
        e(f"ds_add_u32 v8, v9 offset:{MISC+8}")
        e("s_mov_b64 exec, -1")
        e.label(L)
        e(f"ds_read_b32 v9, v8 offset:{MISC+8}")
        e("s_waitcnt lgkmcnt(0)")
        e("v_readfirstlane_b32 s64, v9")
        e("s_cmp_ge_u32 s64, 4")
        e(f"s_cbranch_scc1 {Lx}")
        e("s_sleep 2")
        e(f"s_sub_u32 s{S_TO}, s{S_TO}, 1")
        e(f"s_cmp_lg_u32 s{S_TO}, 0")
        e(f"s_cbranch_scc1 {L}")
        e(f"s_branch L_hfail")
        e.label(Lx)
    def tr_frags(self, nsteps, off, fbase, lgpitch):
        e = self.e
        for st in range(nsteps):
            f = fbase + 4 * st
            o = off + st * (32 << lgpitch)
            assert o + (4 << lgpitch) < 65536
            e(f"ds_read_b64_tr_b16 v[{f}:{f+1}], v2 offset:{o}")
            e(f"ds_read_b64_tr_b16 v[{f+2}:{f+3}], v2 offset:{o + (4 << lgpitch)}")
            if st % 4 == 3: e("s_waitcnt lgkmcnt(0)")
        e("s_waitcnt lgkmcnt(0)")
    def gemv(self, nsteps, abase, a_lds_off, chains, vaddr=3):
        e = self.e
        AHEAD = 12
        def rd(st): e(f"ds_read_b128 v[{abase+4*st}:{abase+4*st+3}], v{vaddr} offset:{a_lds_off+st*64}")
        issued = min(nsteps, AHEAD)
        for st in range(issued): rd(st)
        for st in range(nsteps):
            e(f"s_waitcnt lgkmcnt({issued - 1 - st})")
            for D, fb in chains:
                c = "0" if st == 0 else f"v[{D}:{D+3}]"
                e(f"v_mfma_f32_16x16x32_bf16 v[{D}:{D+3}], v[{abase+4*st}:{abase+4*st+3}], v[{fb+4*st}:{fb+4*st+3}], {c}")
            if issued < nsteps:
                rd(issued); issued += 1
    def lds_wait(self, off, cmp, val, sleep=4, sreg=64):
        e = self.e
        L = self.lab("lw"); Lx = self.lab("lwx")
        e("v_mov_b32 v8, 0")
        e.label(L)
        e(f"ds_read_b32 v9, v8 offset:{off}")
        e("s_waitcnt lgkmcnt(0)")
        e(f"v_readfirstlane_b32 s{sreg}, v9")
        e(f"s_cmp_{cmp}_u32 s{sreg}, {val}")
        e(f"s_cbranch_scc1 {Lx}")
        e(f"s_sleep {sleep}")
        e(f"s_sub_u32 s{S_TO}, s{S_TO}, 1")
        e(f"s_cmp_lg_u32 s{S_TO}, 0")
        e(f"s_cbranch_scc1 {L}")
        e(f"s_branch L_hfail")
        e.label(Lx)
    def lds_set(self, off, src):
        e = self.e
        e("v_mov_b32 v8, 0")
        e(f"v_mov_b32 v9, {src}")
        e(f"ds_write_b32 v8, v9 offset:{off}")
    def bar(self):
        e = self.e
        L = self.lab("nb")
        e("s_cmp_eq_u32 s68, 1")
        e(f"s_cbranch_scc1 {L}")
        e("s_barrier")
        e.label(L)
    def gate_all(self):
        e = self.e
        L = self.lab("gate"); Lx = self.lab("gatex"); Lo = self.lab("gateo"); Le = self.lab("gatee")
        e(f"s_cmp_lg_u32 s{S_HW}, 0")
        e(f"s_cbranch_scc1 {Lo}")
        e("v_lshlrev_b32 v8, 5, v1")
        e(f"s_mov_b32 s64, {HBUF}")
        e.label(L)
        e(f"buffer_load_dwordx4 v[40:43], v8, s[{R_WS}:{R_WS+3}], s64 offen sc1")
        e(f"buffer_load_dwordx4 v[44:47], v8, s[{R_WS}:{R_WS+3}], s64 offen offset:16 sc1")
        e("s_waitcnt vmcnt(0)")
        e(f"v_xor_b32 v41, s{S_TAG}, v41")
        e(f"v_xor_b32 v43, s{S_TAG}, v43")
        e(f"v_xor_b32 v45, s{S_TAG}, v45")
        e(f"v_xor_b32 v47, s{S_TAG}, v47")
        e("v_or3_b32 v41, v41, v43, v45")
        e("v_or_b32 v41, v41, v47")
        e("v_cmp_ne_u32 vcc, 0, v41")
        e(f"s_cbranch_vccz {Lx}")
        e("s_mov_b64 exec, vcc")
        e(f"s_sleep {self.gsleep}")
        e(f"s_sub_u32 s{S_TO}, s{S_TO}, 1")
        e(f"s_cmp_lg_u32 s{S_TO}, 0")
        e(f"s_cbranch_scc1 {L}")
        e(f"s_branch L_hfail")
        e.label(Lx)
        e("s_mov_b64 exec, -1")
        self.lds_set(MISC + 20, 1)
        e(f"s_branch {Le}")
        e.label(Lo)
        self.lds_wait(MISC + 20, "eq", 1, 2)
        e.label(Le)
    def sweep(self, units, mant=True, smask=69, tmp=9):
        e = self.e
        n = len(units)
        L = self.lab("sweep"); Lx = self.lab("sweepx")
        e(f"s_mov_b32 s{smask}, {(1<<n)-1:#x}")
        e.label(L)
        for i, (loads, tags) in enumerate(units):
            sk = self.lab("sk")
            e(f"s_bitcmp1_b32 s{smask}, {i}")
            e(f"s_cbranch_scc0 {sk}")
            for l in loads: e(l)
            e.label(sk)
        e("s_waitcnt vmcnt(0)")
        for i, (loads, tags) in enumerate(units):
            sk = self.lab("ck")
            e(f"s_bitcmp1_b32 s{smask}, {i}")
            e(f"s_cbranch_scc0 {sk}")
            if mant:
                self.check_words(tags, tmp)
            else:
                e(f"v_xor_b32 v{tmp}, s{S_TAG}, v{tags[0]}")
                for tg in tags[1:]: e(f"v_bitop3_b32 v{tmp}, v{tg}, s{S_TAG}, v{tmp} bitop3:0xbe")
                e(f"v_cmp_ne_u32 vcc, 0, v{tmp}")
            e(f"s_cbranch_vccnz {sk}")
            e(f"s_bitset0_b32 s{smask}, {i}")
            e.label(sk)
        e(f"s_cmp_eq_u32 s{smask}, 0")
        e(f"s_cbranch_scc1 {Lx}")
        e(f"s_sub_u32 s{S_TO}, s{S_TO}, 1")
        e(f"s_cmp_lg_u32 s{S_TO}, 0")
        e(f"s_cbranch_scc1 {L}")
        e(f"s_branch L_hfail")
        e.label(Lx)

    def ln_finish(self, mean, var, out_mb, out_rs):
        e = self.e
        for m, o in zip(mean, out_mb):
            if m != o: e(f"v_mov_b32 v{o}, v{m}")
        self.rnd_many(list(out_mb) + list(var))
        for v in var: e(f"v_add_f32 v{v}, {f2u(1e-5):#x}, v{v}")
        self.rnd_many(var)
        for v in var: e(f"v_sqrt_f32 v{v}, v{v}")
        self.rnd_many(var)
        for v, o in zip(var, out_rs): e(f"v_rcp_f32 v{o}, v{v}")

    def q_path(self):
        e = self.e
        e("v_lshlrev_b32 v8, 4, v1")
        e("v_cmp_gt_u32 s[70:71], 56, v1")
        e("v_mov_b32 v9, 0x10000")
        e("v_cndmask_b32 v8, v9, v8, s[70:71]")
        e(f"buffer_load_dwordx4 v[12:15], v8, s[{R_X}:{R_X+3}], 0 offen")
        e(f"buffer_load_dwordx4 v[16:19], v8, s[{R_X}:{R_X+3}], 0 offen offset:896")
        e(f"buffer_load_dword v10, off, s[{R_WS}:{R_WS+3}], 0 offset:{EPOCH} sc1")
        e(f"s_and_b32 s12, s{S_SPL}, 3")
        e(f"s_lshr_b32 s13, s{S_SPL}, 2")
        e(f"s_lshl_b32 s64, s{S_B}, 2")
        e("s_add_u32 s13, s13, s64")
        e(f"s_mul_i32 s64, s12, {112*8192}")
        e(f"s_lshl_b32 s65, s{S_HKV}, 10")
        e("s_add_u32 s64, s64, s65")
        e("s_lshl_b32 s65, s13, 7")
        e("s_add_u32 s64, s64, s65")
        self.srd(R_W, P_WQ, 448 * 8192)
        self.dma_voff(8192, 7, 20)
        for st in range(14):
            e(f"s_mov_b32 m0, {STG + st*1024}")
            if st: e(f"s_add_u32 s64, s64, {8*8192}")
            e(f"buffer_load_dwordx4 v20, s[{R_W}:{R_W+3}], s64 offen {self.qflags} lds")
        self.stamp(9)
        self.h_consts()
        e("v_mov_b32 v20, 0")
        e("v_mov_b32 v21, 0")
        e("v_mov_b32 v21, 0x7fff")
        e(f"ds_write_b64 v20, v[20:21] offset:{MISC+8}")
        e("v_mov_b32 v21, 0")
        e(f"ds_write_b64 v20, v[20:21] offset:{MISC+16}")
        e(f"ds_write_b32 v20, v20 offset:{MISC+4}")
        e("s_waitcnt vmcnt(15)")
        self.stamp(10)
        for b in range(2):
            for i in range(4):
                e(f"v_lshlrev_b32 v{24+8*b+2*i}, 16, v{12+4*b+i}")
                e(f"v_and_b32 v{25+8*b+2*i}, 0xffff0000, v{12+4*b+i}")
        for b in range(2):
            x = 24 + 8 * b
            e(f"v_add_f32 v{40+b}, v{x}, v{x+1}")
            for i in range(2, 8): e(f"v_add_f32 v{40+b}, v{40+b}, v{x+i}")
        self.wave_sum_to_sgpr([40, 41], [64, 65])
        inv = f2u(1.0 / 448)
        for b in range(2):
            e(f"v_mov_b32 v{42+b}, {inv:#x}")
            e(f"v_mul_f32 v{42+b}, s{64+b}, v{42+b}")
        for b in range(2):
            x = 24 + 8 * b
            e(f"v_sub_f32 v44, v{x}, v{42+b}")
            e(f"v_mul_f32 v{40+b}, v44, v44")
            for i in range(1, 8):
                e(f"v_sub_f32 v44, v{x+i}, v{42+b}")
                e(f"v_fmac_f32 v{40+b}, v44, v44")
            e(f"v_cndmask_b32 v{40+b}, 0, v{40+b}, s[70:71]")
        self.wave_sum_to_sgpr([40, 41], [64, 65])
        for b in range(2):
            e(f"v_mov_b32 v{44+b}, {inv:#x}")
            e(f"v_mul_f32 v{44+b}, s{64+b}, v{44+b}")
        self.ln_finish([42, 43], [44, 45], [42, 43], [46, 47])
        for b in range(2):
            x = 24 + 8 * b
            for i in range(8): e(f"v_sub_f32 v{x+i}, v{x+i}, v{42+b}")
            for i in range(4): e(f"v_cvt_pk_bf16_f32 v{12+4*b+i}, v{x+2*i}, v{x+2*i+1}")
            for i in range(4):
                e(f"v_lshlrev_b32 v{x+2*i}, 16, v{12+4*b+i}")
                e(f"v_and_b32 v{x+2*i+1}, 0xffff0000, v{12+4*b+i}")
            for i in range(8): e(f"v_mul_f32 v{x+i}, v{x+i}, v{46+b}")
            for i in range(4): e(f"v_cvt_pk_bf16_f32 v{12+4*b+i}, v{x+2*i}, v{x+2*i+1}")
        e("v_lshlrev_b32 v8, 4, v1")
        e("s_mov_b64 exec, s[70:71]")
        e(f"ds_write_b128 v8, v[12:15] offset:{AV}")
        e(f"ds_write_b128 v8, v[16:19] offset:{AV+AVS}")
        e("s_mov_b64 exec, -1")
        e("s_waitcnt vmcnt(14)")
        e("v_readfirstlane_b32 s64, v10")
        self.set_tag(64)
        e(f"v_mov_b32 v21, s{S_TAG}")
        e(f"ds_write_b32 v20, v21 offset:{MISC}")
        e("s_waitcnt vmcnt(0) lgkmcnt(0)")
        self.stamp(1)
        e(f"s_mov_b32 s64, {STG}")
        self.tr_addr(7, 64)
        e("s_mul_i32 s64, s12, 224")
        e("v_add_u32 v9, s64, v3")
        for st in range(4): e(f"ds_read_b128 v[{128+4*st}:{131+4*st}], v9 offset:{AV+st*64}")
        for cg in range(4): self.tr_frags(4, cg * 32, 64 + 16 * cg, 7)
        e("v_cmp_gt_u32 vcc, 32, v1")
        for i in range(4): e(f"v_cndmask_b32 v{140+i}, 0, v{140+i}, vcc")
        for cg in range(4):
            for i in range(4): e(f"v_cndmask_b32 v{76+16*cg+i}, 0, v{76+16*cg+i}, vcc")
        for st in range(4):
            for cg in range(4):
                D = 144 + 4 * cg
                c = "0" if st == 0 else f"v[{D}:{D+3}]"
                e(f"v_mfma_f32_16x16x32_bf16 v[{D}:{D+3}], v[{128+4*st}:{131+4*st}], v[{64+16*cg+4*st}:{67+16*cg+4*st}], {c}")
        e("v_cmp_lt_u32 s[64:65], 15, v1")
        e("v_cmp_lt_u32 s[66:67], 31, v1")
        e("v_cmp_lt_u32 vcc, 47, v1")
        e(f"v_mov_b32 v53, s{S_TAG}")
        e(f"v_mov_b32 v55, s{S_TAG}")
        e("v_lshlrev_b32 v8, 3, v1")
        for b in range(2):
            e(f"v_cndmask_b32 v{52+2*b}, v{144+b}, v{148+b}, s[64:65]")
        for b in range(2):
            e(f"v_cndmask_b32 v{52+2*b}, v{52+2*b}, v{152+b}, s[66:67]")
        for b in range(2):
            e(f"v_cndmask_b32 v{52+2*b}, v{52+2*b}, v{156+b}, vcc")
        e(f"s_lshl_b32 s64, s{S_HKV}, 14")
        e("s_lshl_b32 s65, s12, 12")
        e("s_add_u32 s64, s64, s65")
        e("s_lshl_b32 s65, s13, 9")
        e("s_add_u32 s64, s64, s65")
        e(f"s_add_u32 s64, s64, {QBUF}")
        e(f"s_add_u32 s65, s64, {8*16384}")
        e(f"buffer_store_dwordx2 v[52:53], v8, s[{R_WS}:{R_WS+3}], s64 offen sc1")
        e(f"buffer_store_dwordx2 v[54:55], v8, s[{R_WS}:{R_WS+3}], s65 offen sc1")
        self.lds_set(MISC + 24, f"s{S_TAG}")
        self.stamp(2)

    def q_gather(self):
        e = self.e
        e("v_lshlrev_b32 v8, 4, v1")
        e(f"s_lshl_b32 s13, s{S_GRP}, 14")
        e(f"s_lshl_b32 s64, s{S_HW}, 10")
        e("s_add_u32 s13, s13, s64")
        e(f"s_add_u32 s13, s13, {QBUF}")
        units = [([f"s_add_u32 s65, s13, {k*4096}",
                   f"buffer_load_dwordx4 v[{24+4*k}:{27+4*k}], v8, s[{R_WS}:{R_WS+3}], s65 offen sc1"],
                  [25 + 4 * k, 27 + 4 * k]) for k in range(4)]
        self.sweep(units, mant=False)
        e("v_add_f32 v24, v24, v28")
        e("v_add_f32 v26, v26, v30")
        e("v_add_f32 v32, v32, v36")
        e("v_add_f32 v34, v34, v38")
        e("v_add_f32 v24, v24, v32")
        e("v_add_f32 v26, v26, v34")
        e("v_cvt_pk_bf16_f32 v24, v24, v26")
        e("v_lshlrev_b32 v8, 2, v1")
        e(f"s_lshl_b32 s64, s{S_HW}, 8")
        e("v_add_u32 v8, s64, v8")
        e(f"ds_write_b32 v8, v24 offset:{QL}")
        e("s_waitcnt lgkmcnt(0)")

    def stage_a(self):
        e = self.e
        FB, PB = 64, 128
        self.srd(R_W, P_WO, 4096 * 896)
        e(f"s_mul_i32 s64, s{S_HKV}, {512*896}")
        e(f"s_lshl_b32 s65, s{S_SPL}, 7")
        e("s_add_u32 s64, s64, s65")
        e(f"s_mul_i32 s65, s{S_HW}, {128*896}")
        e("s_add_u32 s64, s64, s65")
        e(f"s_lshl_b32 s65, s{S_HW}, 14")
        e(f"s_add_u32 s65, s65, {STG}")
        self.dma_voff(896, 7, 20)
        self.dma_loop(R_W, 20, 16, 64, 8 * 896, 65)
        self.h_sync()
        e(f"s_lshl_b32 s64, s{S_HW}, 5")
        e(f"s_add_u32 s64, s64, {STG}")
        self.tr_addr(7, 64)
        self.tr_frags(16, 0, FB, 7)
        self.stamp(4)
        e(f"s_lshr_b32 s12, s{S_HW}, 1")
        e(f"s_and_b32 s13, s{S_HW}, 1")
        e("s_lshl_b32 s14, s12, 3")
        e(f"s_add_u32 s14, s14, s{S_HKV}")
        e("s_lshl_b32 s15, s14, 15")
        e("s_lshl_b32 s64, s13, 10")
        e("s_add_u32 s15, s15, s64")
        e(f"s_add_u32 s15, s15, {PBUF}")
        e("s_lshl_b32 s64, s13, 11")
        e("s_lshl_b32 s14, s14, 7")
        e("s_add_u32 s14, s14, s64")
        e(f"s_add_u32 s14, s14, {HBUF}")
        e("v_lshlrev_b32 v5, 4, v1")
        e("v_lshlrev_b32 v6, 3, v4")
        e(f"s_mul_i32 s64, s12, {AVS}")
        e("s_lshl_b32 s65, s13, 9")
        e("s_add_u32 s64, s64, s65")
        e("v_lshlrev_b32 v7, 3, v1")
        e("v_add_u32 v7, s64, v7")
        e("v_lshlrev_b32 v18, 3, v1")
        e("v_mov_b32 v19, 0xffffffc0")
        for p in range(8): e(f"s_add_u32 s{52+p}, s15, {p*4096}")
        e("s_mov_b32 s68, 1")
        e("s_branch L_a_go")
        e.label("L_a_poll")
        e("s_mov_b32 s68, 0")
        self.stamp(5)
        self.stamp(6)
        L = self.lab("asw"); Lz = self.lab("anl")
        e("s_mov_b32 s69, 0xffff")
        e("s_mov_b32 s70, 0")
        e.label(L)
        e(f"buffer_load_dwordx2 v[10:11], v6, s[{R_WS}:{R_WS+3}], s14 offen sc1")
        def grouped(body):
            for g in range(4):
                gk = self.lab("gk")
                e(f"s_and_b32 s64, s70, {0xf << (4*g):#x}")
                e(f"s_cbranch_scc0 {gk}")
                for p in range(4 * g, 4 * g + 4):
                    sk = self.lab("sk")
                    e(f"s_bitcmp1_b32 s70, {p}")
                    e(f"s_cbranch_scc0 {sk}")
                    body(p, sk)
                    e.label(sk)
                e.label(gk)
        def ld(p, sk):
            r = PB + 4 * p
            e(f"buffer_load_dwordx4 v[{r}:{r+3}], v5, s[{R_WS}:{R_WS+3}], s{52 + (p >> 1)} offen offset:{(p & 1)*2048} sc1")
        def ck(p, sk):
            r = PB + 4 * p
            self.check_words([r, r + 1, r + 2, r + 3], 12)
            e(f"s_cbranch_vccnz {sk}")
            e(f"s_bitset0_b32 s69, {p}")
        grouped(ld)
        e("s_waitcnt vmcnt(0)")
        e(f"v_cmp_eq_u32 s[66:67], s{S_TAG}, v11")
        grouped(ck)
        e("s_and_b32 s71, s66, 0xffff")
        e("s_xor_b32 s64, s71, 0xffff")
        e("s_or_b32 s64, s64, s69")
        e("s_cmp_eq_u32 s64, 0")
        e("s_cbranch_scc1 L_a_got")
        e("s_and_b32 s70, s69, s71")
        e("s_bcnt1_i32_b32 s64, s69")
        e(f"s_cmp_le_u32 s64, {self.aspec}")
        e("s_cselect_b32 s70, s69, s70")
        e("s_cmp_lg_u32 s70, 0")
        e(f"s_cbranch_scc1 {Lz}")
        e(f"s_sleep {self.gsleep}")
        e.label(Lz)
        e(f"s_sub_u32 s{S_TO}, s{S_TO}, 1")
        e(f"s_cmp_lg_u32 s{S_TO}, 0")
        e(f"s_cbranch_scc1 {L}")
        e("s_branch L_hfail")
        e.label("L_a_got")
        self.stamp(7)
        e.label("L_a_go")
        e("v_mov_b32 v12, v10")
        self.row_reduce([12], "max")
        e("v_sub_f32 v12, v10, v12")
        e("v_exp_f32 v12, v12")
        e("v_mov_b32 v13, v12")
        sregs = list(range(16, 32))
        for p in range(16): e(f"v_readlane_b32 s{sregs[p]}, v12, {p}")
        self.row_reduce([13], "add")
        e("v_rcp_f32 v13, v13")
        for p in range(16):
            r = PB + 4 * p
            for i in range(4):
                if p == 0: e(f"v_mul_f32 v{14+i}, s{sregs[p]}, v{r+i}")
                else: e(f"v_fmac_f32 v{14+i}, s{sregs[p]}, v{r+i}")
        for i in range(4): e(f"v_mul_f32 v{14+i}, v{14+i}, v13")
        e("v_cvt_pk_bf16_f32 v14, v14, v15")
        e("v_cvt_pk_bf16_f32 v15, v16, v17")
        e(f"ds_write_b64 v7, v[14:15] offset:{AV}")
        e("s_waitcnt lgkmcnt(0)")
        self.bar()
        self.gemv(16, PB + 64, AV, [(20, FB)])
        e(f"s_mul_i32 s64, s{S_HKV}, {448*8}")
        e(f"s_lshl_b32 s65, s{S_SPL}, 9")
        e("s_add_u32 s64, s64, s65")
        e(f"s_lshl_b32 s65, s{S_HW}, 7")
        e("s_add_u32 s64, s64, s65")
        e(f"s_add_u32 s64, s64, {YBUF}")
        self.tagw(24, 20, 19)
        self.tagw(25, 21, 19)
        e("s_cmp_eq_u32 s68, 1")
        e("s_cbranch_scc1 L_a_poll")
        e("s_mov_b64 exec, 0xffff")
        e(f"buffer_store_dwordx2 v[24:25], v18, s[{R_WS}:{R_WS+3}], s64 offen sc1")
        self.stamp(8)
        self.endpgm()

    def stage_b(self):
        e = self.e
        FG, FU, GB = 64, 120, 176
        self.srd(R_W, P_WG, 448 * 3584)
        self.srd(R_W2, P_WU, 448 * 3584)
        e("s_lshl_b32 s13, s12, 2")
        e(f"s_add_u32 s13, s13, s{S_HW}")
        self.dma_voff(3584, 7, 20)
        for m_, srd_ in enumerate((R_W, R_W2)):
            e("s_lshl_b32 s64, s12, 7")
            e(f"s_mul_i32 s65, s{S_HW}, {112*3584}")
            e("s_add_u32 s64, s64, s65")
            e(f"s_mul_i32 s65, s{S_HW}, {112*128}")
            e(f"s_add_u32 s65, s65, {STG + m_*448*128}")
            self.dma_loop(srd_, 20, 14, 64, 8 * 3584, 65)
        self.h_sync()
        e(f"s_lshl_b32 s64, s{S_HW}, 5")
        e(f"s_add_u32 s64, s64, {STG}")
        self.tr_addr(7, 64)
        self.tr_frags(14, 0, FG, 7)
        e(f"v_add_u32 v2, {448*128}, v2")
        self.tr_frags(14, 0, FU, 7)
        e(f"s_mul_i32 s64, s{S_HW}, 56")
        e("v_min_u32 v5, 55, v1")
        e("v_add_u32 v5, s64, v5")
        e("v_cmp_gt_u32 s[70:71], 56, v1")
        e("v_lshlrev_b32 v14, 2, v5")
        e(f"buffer_load_dword v16, v14, s[{R_X}:{R_X+3}], 0 offen")
        e(f"buffer_load_dword v17, v14, s[{R_X}:{R_X+3}], 0 offen offset:896")
        e("v_lshlrev_b32 v5, 4, v5")
        e("s_waitcnt vmcnt(0)")
        e("v_and_b32 v18, 0xffff0000, v16")
        e("v_and_b32 v19, 0xffff0000, v17")
        e("v_lshlrev_b32 v16, 16, v16")
        e("v_lshlrev_b32 v17, 16, v17")
        for k in range(8): e(f"s_mov_b32 s{40+k}, {YBUF + k*3584}")
        self.stamp(4)
        e("s_mov_b32 s68, 1")
        e("s_branch L_b_go")
        e.label("L_b_poll")
        e("s_mov_b32 s68, 0")
        self.stamp(5)
        self.gate_all()
        self.stamp(6)
        units = []
        for k in range(8):
            g = GB + 4 * k
            units.append(([f"buffer_load_dwordx4 v[{g}:{g+3}], v5, s[{R_WS}:{R_WS+3}], s{40+k} offen sc1"], [g, g + 1, g + 2, g + 3]))
        self.sweep(units)
        self.stamp(7)
        e.label("L_b_go")
        for k in range(1, 8):
            for i in range(4):
                e(f"v_add_f32 v{20+i}, v{GB+i if k == 1 else 20+i}, v{GB+4*k+i}")
        self.rnd_many([20, 21, 22, 23])
        for i in range(4): e(f"v_add_f32 v{20+i}, v{20+i}, v{16+i}")
        self.rnd_many([20, 21, 22, 23])
        for b in range(2): e(f"v_add_f32 v{24+b}, v{22+b}, v{20+b}")
        for b in range(2): e(f"v_cndmask_b32 v{24+b}, 0, v{24+b}, s[70:71]")
        self.wave_sum_to_sgpr([24, 25], [64, 65])
        inv112 = f2u(1.0 / 112)
        for b in range(2):
            e(f"v_mov_b32 v{28+2*b}, {inv112:#x}")
            e(f"v_mul_f32 v{28+2*b}, s{64+b}, v{28+2*b}")
        for b in range(2):
            e(f"v_sub_f32 v{24+b}, v{22+b}, v{28+2*b}")
            e(f"v_sub_f32 v{26+b}, v{20+b}, v{28+2*b}")
        for b in range(2): e(f"v_mul_f32 v{24+b}, v{24+b}, v{24+b}")
        for b in range(2): e(f"v_fmac_f32 v{24+b}, v{26+b}, v{26+b}")
        for b in range(2): e(f"v_cndmask_b32 v{24+b}, 0, v{24+b}, s[70:71]")
        self.wave_sum_to_sgpr([24, 25], [64, 65])
        e("v_mov_b32 v29, s64")
        e("v_mov_b32 v31, s65")
        e(f"s_lshl_b32 s64, s{S_HW}, 4")
        e("v_mov_b32 v26, s64")
        e("v_mov_b32 v27, 0")
        e("s_mov_b64 exec, 1")
        e(f"ds_write_b128 v26, v[28:31] offset:{STATS}")
        e("s_mov_b64 exec, -1")
        e("s_waitcnt lgkmcnt(0)")
        self.bar()
        for w in range(4): e(f"ds_read_b128 v[{32+4*w}:{35+4*w}], v27 offset:{STATS+16*w}")
        e("s_waitcnt lgkmcnt(0)")
        for b in range(2):
            m = [32 + 4 * w + 2 * b for w in range(4)]
            e(f"v_add_f32 v{48+b}, v{m[0]}, v{m[1]}")
            e(f"v_add_f32 v{50+b}, v{m[2]}, v{m[3]}")
            e(f"v_add_f32 v{48+b}, v{48+b}, v{50+b}")
            e(f"v_mul_f32 v{48+b}, 0.25, v{48+b}") if False else e(f"v_mul_f32 v{48+b}, {f2u(0.25):#x}, v{48+b}")
            for w in range(4): e(f"v_sub_f32 v{m[w]}, v{m[w]}, v{48+b}")
            e(f"v_mul_f32 v{50+b}, v{m[0]}, v{m[0]}")
            for w in range(1, 4): e(f"v_fmac_f32 v{50+b}, v{m[w]}, v{m[w]}")
            e(f"v_mul_f32 v{50+b}, {f2u(112.0):#x}, v{50+b}")
            for w in range(4): e(f"v_add_f32 v{50+b}, v{50+b}, v{m[w]+1}")
            e(f"v_mul_f32 v{50+b}, {f2u(1.0/448):#x}, v{50+b}")
        self.ln_finish([48, 49], [50, 51], [48, 49], [52, 53])
        for i in range(4): e(f"v_sub_f32 v{20+i}, v{20+i}, v{48+(i&1)}")
        self.rnd_many([20, 21, 22, 23])
        for i in range(4): e(f"v_mul_f32 v{20+i}, v{20+i}, v{52+(i&1)}")
        for b in range(2): e(f"v_cvt_pk_bf16_f32 v{20+b}, v{20+b}, v{22+b}")
        e(f"ds_write_b32 v14, v20 offset:{AV}")
        e(f"ds_write_b32 v14, v21 offset:{AV+AVS}")
        e("s_waitcnt lgkmcnt(0)")
        self.bar()
        self.gemv(14, GB, AV, [(24, FG), (28, FU)])
        self.rnd_many([24, 25, 28, 29])
        k0 = math.sqrt(2.0 / math.pi)
        c1 = f2u(-2.0 * k0 * math.log2(math.e)); c3 = f2u(0.044715)
        e(f"s_mov_b32 s64, {c3:#x}")
        for b in range(2): e(f"v_mul_f32 v{32+b}, v{24+b}, v{24+b}")
        for b in range(2): e(f"v_mul_f32 v{32+b}, v{32+b}, v{24+b}")
        for b in range(2): e(f"v_fma_f32 v{32+b}, v{32+b}, s64, v{24+b}")
        for b in range(2): e(f"v_mul_f32 v{32+b}, {c1:#x}, v{32+b}")
        for b in range(2): e(f"v_exp_f32 v{32+b}, v{32+b}")
        for b in range(2): e(f"v_add_f32 v{32+b}, 1.0, v{32+b}")
        for b in range(2): e(f"v_rcp_f32 v{32+b}, v{32+b}")
        for b in range(2): e(f"v_mul_f32 v{32+b}, v{32+b}, v{24+b}")
        self.rnd_many([32, 33])
        for b in range(2): e(f"v_mul_f32 v{32+b}, v{32+b}, v{28+b}")
        e("v_cvt_pk_bf16_f32 v34, v32, v33")
        e(f"v_mov_b32 v35, s{S_TAG}")
        e("v_lshlrev_b32 v8, 3, v1")
        e("s_lshl_b32 s64, s13, 7")
        e(f"s_add_u32 s64, s64, {GBUF}")
        e("s_cmp_eq_u32 s68, 1")
        e("s_cbranch_scc1 L_b_poll")
        e("s_mov_b64 exec, 0xffff")
        e(f"buffer_store_dwordx2 v[34:35], v8, s[{R_WS}:{R_WS+3}], s64 offen sc1")
        self.stamp(8)
        self.endpgm()

    def stage_c(self):
        e = self.e
        F0, F1, GB = 64, 120, 176
        self.srd(R_W, P_WD, 1792 * 896)
        self.srd(R_W2, P_OUT, 2 * 448 * 2)
        e(f"s_mul_i32 s64, s{S_HW}, {448*896}")
        e("s_lshl_b32 s65, s12, 6")
        e("s_add_u32 s64, s64, s65")
        e(f"s_mul_i32 s65, s{S_HW}, {STGW}")
        e(f"s_add_u32 s65, s65, {STG}")
        self.tr_addr(6, 65)
        self.dma_voff(896, 6, 20)
        self.dma_loop(R_W, 20, 28, 64, 16 * 896, 65)
        e("s_waitcnt vmcnt(0)")
        self.tr_frags(14, 0, F0, 6)
        self.tr_frags(14, 32, F1, 6)
        e("v_and_b32 v5, 31, v1")
        e("v_lshrrev_b32 v6, 5, v1")
        e("s_lshl_b32 s64, s12, 5")
        e("v_add_u32 v7, s64, v5")
        e("v_mul_u32_u24 v14, 448, v6")
        e("v_add_lshl_u32 v14, v14, v7, 1")
        e(f"buffer_load_ushort v16, v14, s[{R_X}:{R_X+3}], 0 offen")
        e("v_lshlrev_b32 v7, 3, v7")
        e("v_lshl_add_u32 v7, v6, 2, v7")
        e("s_waitcnt vmcnt(0)")
        e("v_lshlrev_b32 v16, 16, v16")
        e("v_lshlrev_b32 v10, 4, v1")
        e("v_lshlrev_b32 v11, 4, v5")
        e(f"s_mul_i32 s13, s{S_HW}, 3584")
        e(f"s_add_u32 s13, s13, {GBUF}")
        e(f"s_mul_i32 s14, s{S_HW}, {2*AVS}")
        e("v_lshlrev_b32 v12, 2, v1")
        e("v_add_u32 v12, s14, v12")
        e("v_lshlrev_b32 v13, 2, v5")
        e("v_add_u32 v13, s14, v13")
        e("v_add_u32 v3, s14, v3")
        self.stamp(4)
        e("v_mov_b32 v17, 0")
        e("s_mov_b32 s68, 1")
        e("s_branch L_c_go")
        e.label("L_c_poll")
        e("s_mov_b32 s68, 0")
        self.stamp(5)
        self.gate_all()
        self.stamp(6)
        Ln = self.lab("cnres")
        e(f"s_cmp_lg_u32 s{S_HW}, 0")
        e(f"s_cbranch_scc1 {Ln}")
        for k in range(8): e(f"s_mov_b32 s{40+k}, {YBUF + k*3584}")
        units = [([f"buffer_load_dword v{GB+k}, v7, s[{R_WS}:{R_WS+3}], s{40+k} offen sc1"], [GB + k]) for k in range(8)]
        self.sweep(units)
        for k in range(1, 8): e(f"v_add_f32 v17, v{GB if k == 1 else 17}, v{GB+k}")
        self.rnd(17)
        e("v_add_f32 v17, v17, v16")
        self.rnd(17)
        e.label(Ln)
        units = [([f"buffer_load_dwordx4 v[{24+4*k}:{27+4*k}], v{10 if k < 3 else 11}, s[{R_WS}:{R_WS+3}], s13 offen offset:{k*1024} sc1"],
                  [25 + 4 * k, 27 + 4 * k]) for k in range(4)]
        self.sweep(units, mant=False)
        self.stamp(7)
        e.label("L_c_go")
        e("s_mov_b32 s64, 0x05040100")
        e("s_mov_b32 s65, 0x07060302")
        for k in range(4):
            e(f"v_perm_b32 v{25+4*k}, v{26+4*k}, v{24+4*k}, s64")
            e(f"v_perm_b32 v{27+4*k}, v{26+4*k}, v{24+4*k}, s65")
            a = 12 if k < 3 else 13
            e(f"ds_write_b32 v{a}, v{25+4*k} offset:{AV+k*256}")
            e(f"ds_write_b32 v{a}, v{27+4*k} offset:{AV+AVS+k*256}")
        e("s_waitcnt lgkmcnt(0)")
        self.gemv(14, GB, AV, [(40, F0), (44, F1)])
        e(f"s_lshl_b32 s64, s{S_HW}, 8")
        e("v_lshlrev_b32 v8, 3, v1")
        e("v_add_u32 v8, s64, v8")
        e("s_mov_b64 exec, 0xffff")
        e(f"ds_write_b64 v8, v[40:41] offset:{RED}")
        e(f"ds_write_b64 v8, v[44:45] offset:{RED+128}")
        e("s_mov_b64 exec, -1")
        e("s_waitcnt lgkmcnt(0)")
        self.bar()
        Le = self.lab("cend")
        e(f"s_sub_u32 s64, s{S_HW}, s68")
        e(f"s_cmp_eq_u32 s68, 1")
        e(f"s_cselect_b32 s64, 0, s{S_HW}")
        e(f"s_cmp_lg_u32 s64, 0")
        e(f"s_cbranch_scc1 {Le}")
        e("v_lshlrev_b32 v8, 3, v5")
        e("v_lshl_add_u32 v8, v6, 2, v8")
        for w in range(4): e(f"ds_read_b32 v{20+w}, v8 offset:{RED+256*w}")
        e("s_waitcnt lgkmcnt(0)")
        e("v_add_f32 v20, v20, v21")
        e("v_add_f32 v22, v22, v23")
        e("v_add_f32 v20, v20, v22")
        self.rnd(20)
        e("v_add_f32 v20, v20, v17")
        e("v_cvt_pk_bf16_f32 v20, v20, v20")
        e("s_cmp_eq_u32 s68, 1")
        e("s_cbranch_scc1 L_c_poll")
        e(f"buffer_store_short v20, v14, s[{R_W2}:{R_W2+3}], 0 offen")
        e("s_cmp_lg_u32 s12, 0")
        e(f"s_cbranch_scc1 {Le}")
        e(f"v_mov_b32 v21, s{S_TAG}")
        e("s_mov_b64 exec, 1")
        e(f"buffer_store_dword v21, off, s[{R_WS}:{R_WS+3}], 0 offset:{EPOCH} sc1")
        e.label(Le)
        self.stamp(8)
        self.endpgm()

    def build(self):
        e = self.e
        e("s_cmp_ge_u32 s2, 256")
        e("s_cbranch_scc1 L_exit")
        e("s_load_dwordx16 s[16:31], s[0:1], 0")
        e("s_load_dwordx8 s[32:39], s[0:1], 64")
        self.stamp_init()
        e("v_lshrrev_b32 v2, 6, v0")
        e("v_and_b32 v1, 63, v0")
        e(f"v_readfirstlane_b32 s{S_WAVE}, v2")
        self.stamp(0)
        e(f"s_and_b32 s{S_HW}, s{S_WAVE}, 3")
        e(f"s_cmp_lt_u32 s{S_WAVE}, 4")
        e("s_cbranch_scc1 L_hpath")
        self.s_path()
        e.label("L_hpath")
        e(f"s_lshr_b32 s{S_GRP}, s2, 4")
        e(f"s_and_b32 s{S_SPL}, s2, 15")
        e(f"s_lshr_b32 s{S_B}, s2, 7")
        e(f"s_and_b32 s{S_HKV}, s{S_GRP}, 7")
        e(f"s_mov_b32 s{S_TO}, {TIMEOUT}")
        e("s_waitcnt lgkmcnt(0)")
        self.srd(R_WS, P_WS, WS_SIZE)
        self.srd(R_X, P_X, 1792)
        if self.noq: e("s_branch L_hdone")
        e("s_setprio 2")
        e(f"s_cmp_lg_u32 s{S_HW}, 0")
        e("s_cbranch_scc1 L_hnq")
        self.q_path()
        e("s_branch L_hq")
        e.label("L_hnq")
        e(f"buffer_load_dword v10, off, s[{R_WS}:{R_WS+3}], 0 offset:{EPOCH} sc1")
        self.h_consts()
        e("s_waitcnt vmcnt(0)")
        e("v_readfirstlane_b32 s64, v10")
        self.set_tag(64)
        self.lds_wait(MISC + 24, "eq", f"s{S_TAG}", 2)
        e.label("L_hq")
        self.q_gather()
        e("s_setprio 0")
        e("s_barrier")
        self.stamp(3)
        e(f"s_cmp_lg_u32 s{S_HW}, 1")
        e("s_cbranch_scc1 L_sfinal_back")
        e("s_mov_b32 s68, 1")
        e("s_branch L_sfinal")
        e.label("L_sfinal_back")
        if self.noroles: e("s_branch L_hdone")
        e(f"s_cmp_lg_u32 s{S_HW}, 0")
        e("s_cbranch_scc1 L_rwait")
        self.lds_wait(MISC + 12, "le", self.trig, 8)
        self.srd(R_W, P_DBG, 256)
        e("v_mov_b32 v10, 1")
        e("s_mov_b64 exec, 1")
        e(f"buffer_atomic_add v10, off, s[{R_W}:{R_W+3}], 0 sc0 sc1")
        e("s_waitcnt vmcnt(0)")
        e("s_mov_b64 exec, -1")
        e("v_readfirstlane_b32 s12, v10")
        e("s_add_u32 s12, s12, 1")
        self.lds_set(MISC + 16, "s12")
        e("s_branch L_rgot")
        e.label("L_rwait")
        self.lds_wait(MISC + 16, "lg", 0, 8, 12)
        e.label("L_rgot")
        e("s_sub_u32 s12, s12, 1")
        if self.diag: e(f"s_mov_b32 s{ST0+22}, s12")
        e("s_cmp_ge_u32 s12, 98")
        e("s_cbranch_scc1 L_hdone")
        self.h_consts()
        e("s_cmp_lt_u32 s12, 14")
        e("s_cbranch_scc0 L_notc")
        self.stage_c()
        e.label("L_notc")
        e("s_sub_u32 s12, s12, 14")
        e("s_cmp_lt_u32 s12, 28")
        e("s_cbranch_scc0 L_notb")
        self.stage_b()
        e.label("L_notb")
        e("s_sub_u32 s12, s12, 28")
        e(f"s_mul_i32 s{S_HKV}, s12, 37")
        e(f"s_lshr_b32 s{S_HKV}, s{S_HKV}, 8")
        e(f"s_mul_i32 s64, s{S_HKV}, 7")
        e(f"s_sub_u32 s{S_SPL}, s12, s64")
        self.stage_a()
        e.label("L_hfail")
        e.label("L_hdone")
        self.endpgm()
        e.label("L_exit")
        e("s_endpgm")
        return e.text()

HEAD = """; fused pre-LN GQA decode attention + GEGLU FFN, one persistent launch (256 workgroups, one per CU).
; @launch grid=(256,1,1) block=(512,1,1) lds={lds}
.amdgcn_target "amdgcn-amd-amdhsa--gfx950"
.text
.globl {name}
.p2align 8
.type {name},@function
{name}:
"""
TAIL = """.section .rodata,"a"
.p2align 6
.amdhsa_kernel {name}
  .amdhsa_next_free_vgpr 256
  .amdhsa_next_free_sgpr 102
  .amdhsa_accum_offset 256
  .amdhsa_group_segment_fixed_size 0
  .amdhsa_kernarg_size 96
  .amdhsa_user_sgpr_count 2
  .amdhsa_user_sgpr_kernarg_segment_ptr 1
  .amdhsa_system_sgpr_workgroup_id_x 1
.end_amdhsa_kernel
"""

def make(path, **kw):
    g = Gen(**kw)
    body = g.build()
    open(path, "w").write(HEAD.format(lds=LDS_SIZE, name=NAME) + body + TAIL.format(name=NAME))
    return g

if __name__ == "__main__":
    import argparse
    ap = argparse.ArgumentParser()
    ap.add_argument("out")
    ap.add_argument("--diag", action="store_true")
    ap.add_argument("--npro", type=int, default=32)
    ap.add_argument("--kvflags", default="nt")
    ap.add_argument("--wflags", default="nt")
    ap.add_argument("--qflags", default="nt")
    ap.add_argument("--noroles", action="store_true")
    ap.add_argument("--athr", type=int, default=13)
    ap.add_argument("--gsleep", type=int, default=4)
    ap.add_argument("--winfl", type=int, default=4)
    ap.add_argument("--dist", type=int, default=9)
    ap.add_argument("--thr", type=int, default=6)
    ap.add_argument("--vflags", default=None)
    ap.add_argument("--rot", type=int, default=1)
    ap.add_argument("--nt", type=int, default=32)
    ap.add_argument("--nosoft", action="store_true")
    ap.add_argument("--noq", action="store_true")
    ap.add_argument("--trig", type=int, default=2)
    ap.add_argument("--aspec", type=int, default=2)
    a = ap.parse_args()
    g = make(a.out, diag=a.diag, npro=a.npro, kvflags=a.kvflags, wflags=a.wflags, qflags=a.qflags, noroles=a.noroles, athr=a.athr, gsleep=a.gsleep, winfl=a.winfl, dist=a.dist, nosoft=a.nosoft, noq=a.noq, trig=a.trig, aspec=a.aspec, thr=a.thr, vflags=a.vflags, rot=a.rot, nt=a.nt)
    print("pads inserted:", g.e.npad, "lines:", len(g.e.lines))
```

```python
import sys, struct, math
from emit import Emitter

NAME = "sequential_preLN__gqa_block_cached__geglu_ffn__decode_kernel"
def f2u(x): return struct.unpack("<I", struct.pack("<f", x))[0]

EPOCH = 0
QBUF = 0x140000
HBUF = 0x12000
YBUF = 0x14000
GBUF = 0x22000
PBUF = 0x40000
STAMP = 0x200000
WS_SIZE = 0x400000
QL = 0x0100
MISC = 0x0080
SML = 0x0000
STATS = 0x0600
AV = 0x0800
AVS = 1056
RED = 0x2A00
SO = 0x3000
STG = 0x5000
STGW = 28 * 1024
LDS_SIZE = STG + 4 * STGW

CSC = f2u(0.0625 * math.log2(math.e))
GOLD = 0x9E3779B9
TIMEOUT = 2000000

S_WAVE, S_GRP, S_SPL, S_B, S_HKV, S_HW, S_TAG = 3, 4, 5, 6, 7, 8, 9
P_X, P_K, P_V, P_WQ, P_WO, P_BX, P_WG, P_WU, P_WD, P_OUT, P_DBG, P_WS = [16 + 2 * i for i in range(12)]
R_K, R_V, R_WS, R_W, R_X, R_W2 = 40, 44, 48, 52, 56, 60
S_C = 10
S_TO = 11
ST0 = 72
S_TM = 96

class Gen:
    def __init__(self, diag=False, npro=32, kvflags="nt", wflags="", qflags="", noroles=False, athr=13, gsleep=4, winfl=1, dist=8, nosoft=False, noq=False, trig=2, aspec=2, thr=5, vflags=None, rot=1, nt=32, thrp=6, npl=32, gthr=6, psleep=0, hf="sc1", nset=2, pgap=2, thr2=9, nl2=0, lateb=1, latec=1, winfl2=12, qsleep=8, qsleep0=16, latea=0, rorder=0):
        self.e = Emitter()
        self.diag = diag
        self.npro = npro
        self.kvflags = kvflags
        self.wflags = wflags
        self.qflags = qflags
        self.noroles = noroles
        self.athr = athr
        self.gsleep = gsleep
        self.winfl = winfl
        self.dist = dist
        self.nosoft = nosoft
        self.noq = noq
        self.trig = trig
        self.aspec = aspec
        self.thr = thr
        self.rot = rot
        self.nt = nt
        self.thrp = thrp
        self.npl = npl
        self.gthr = gthr
        self.psleep = psleep
        self.hf = hf
        self.nset = nset
        self.pgap = pgap
        self.thr2 = thr2
        self.nl2 = nl2
        self.lateb = lateb
        self.latec = latec
        self.winfl2 = winfl2
        self.qsleep = qsleep
        self.qsleep0 = qsleep0
        self.latea = latea
        self.rorder = rorder
        self.vflags = kvflags if vflags is None else vflags
        self.uid = 0
        self.in_h = False
    def lab(self, s):
        self.uid += 1
        return f"L_{s}_{self.uid}"
    def srd(self, r, p, size):
        e = self.e
        e(f"s_mov_b32 s{r}, s{p}")
        e(f"s_mov_b32 s{r+1}, s{p+1}")
        e(f"s_mov_b32 s{r+2}, {size}")
        e(f"s_mov_b32 s{r+3}, 0x20000")
    def stamp(self, i):
        if self.diag and i in (6, 7) and self.in_h:
            self.e(f"s_mov_b32 s{ST0+2*(i+3)}, s{S_TO}")
        if self.diag:
            self.e(f"s_memrealtime s[{ST0+2*i}:{ST0+2*i+1}]")
            self.e("s_waitcnt lgkmcnt(0)")
    def stamp_init(self):
        if self.diag:
            for i in range(12):
                self.e(f"s_mov_b64 s[{ST0+2*i}:{ST0+2*i+1}], 0")
    def stamp_flush(self):
        if not self.diag: return
        e = self.e
        e("s_mov_b64 exec, -1")
        e(f"s_lshl_b32 s64, s2, 3")
        e(f"s_add_u32 s64, s64, s{S_WAVE}")
        e(f"s_lshl_b32 s64, s64, 6")
        e(f"s_add_u32 s64, s64, {STAMP}")
        e(f"s_getreg_b32 s65, hwreg(HW_REG_XCC_ID)")
        e(f"s_getreg_b32 s66, hwreg(HW_REG_HW_ID)")
        for i in range(12):
            e(f"v_mov_b32 v{2+i}, s{ST0+2*i}")
        e("v_mov_b32 v14, s65")
        e("v_mov_b32 v15, s66")
        e("v_mov_b32 v16, 0")
        e("v_mov_b32 v17, 0")
        e("s_mov_b64 exec, 1")
        for i in range(4):
            e(f"buffer_store_dwordx4 v[{2+4*i}:{5+4*i}], off, s[{R_WS}:{R_WS+3}], s64 offset:{16*i}")
        e("s_waitcnt vmcnt(0)")
    def endpgm(self):
        self.stamp_flush()
        self.e("s_endpgm")

    def rnd(self, v):
        self.e(f"v_cvt_pk_bf16_f32 v{v}, v{v}, v{v}")
        self.e(f"v_lshlrev_b32 v{v}, 16, v{v}")
    def rnd_many(self, vs):
        for v in vs: self.e(f"v_cvt_pk_bf16_f32 v{v}, v{v}, v{v}")
        for v in vs: self.e(f"v_lshlrev_b32 v{v}, 16, v{v}")
    def set_tag(self, src):
        self.e(f"s_add_u32 s{S_TAG}, s{src}, {GOLD:#x}")
        self.e(f"s_and_b32 s{S_TM}, s{S_TAG}, 0x3f")
    def tagw(self, dst, src, vmask):
        self.e(f"v_and_or_b32 v{dst}, v{src}, v{vmask}, s{S_TM}")
    def check_words(self, words, tmp, mant=True):
        e = self.e
        T = S_TM if mant else S_TAG
        acc = []
        n = len(words)
        for i in range(0, n - 1, 2):
            e(f"v_bitop3_b32 v{tmp+len(acc)}, v{words[i]}, v{words[i+1]}, s{T} bitop3:0x7e")
            acc.append(tmp + len(acc))
        if n % 2:
            e(f"v_xor_b32 v{tmp+len(acc)}, s{T}, v{words[-1]}")
            acc.append(tmp + len(acc))
        while len(acc) > 1:
            nxt = []
            while len(acc) >= 3:
                a, b, c = acc[:3]; acc = acc[3:]
                e(f"v_or3_b32 v{a}, v{a}, v{b}, v{c}"); nxt.append(a)
            if len(acc) == 2 and not nxt:
                e(f"v_or_b32 v{acc[0]}, v{acc[0]}, v{acc[1]}"); acc = [acc[0]]
            acc = nxt + acc
        if mant: e(f"v_and_b32 v{acc[0]}, 0x3f, v{acc[0]}")
        e(f"v_cmp_ne_u32 vcc, 0, v{acc[0]}")
    def sweep_all(self, loads, words, tmp, mant=True):
        e = self.e
        L = self.lab("sa"); Lx = self.lab("sax")
        e.label(L)
        if self.psleep: e(f"s_sleep {self.psleep}")
        for l in loads: e(l)
        e(f"s_sub_u32 s{S_TO}, s{S_TO}, 1")
        e("s_cbranch_scc1 L_hfail")
        e("s_waitcnt vmcnt(0)")
        self.check_words(words, tmp, mant)
        e(f"s_cbranch_vccnz {L}")
    def sweep_pipe(self, sets, tmp, mant, after, golabel):
        e = self.e
        n = len(sets); m = len(sets[0][0])
        L = self.lab("sp"); Lj = self.lab("spj")
        got = [self.lab("spg") for _ in sets]
        for i, (loads, words) in enumerate(sets):
            for l in loads: e(l)
            if i + 1 < n: e(f"s_sleep {self.pgap}")
        e.label(L)
        for i, (loads, words) in enumerate(sets):
            e(f"s_waitcnt vmcnt({m*(n-1)})")
            self.check_words(words, tmp, mant)
            e(f"s_cbranch_vccz {got[i]}")
            for l in loads: e(l)
        e(f"s_sub_u32 s{S_TO}, s{S_TO}, 1")
        e(f"s_cbranch_scc0 {L}")
        e("s_branch L_hfail")
        for i in reversed(range(n)):
            e.label(got[i])
            self.stamp(7)
            if i == 0: e.label(golabel)
            after(i)
            if i: e(f"s_branch {Lj}")
        e.label(Lj)
    def row_reduce(self, vs, op="add"):
        e = self.e
        for ctl in ("quad_perm:[1,0,3,2]", "quad_perm:[2,3,0,1]", "row_half_mirror", "row_mirror"):
            for v in vs:
                e(f"v_{op}_f32_dpp v{v}, v{v}, v{v} {ctl} row_mask:0xf bank_mask:0xf")
    def wave_sum_to_sgpr(self, vs, ss):
        e = self.e
        self.row_reduce(vs)
        for v in vs: e(f"v_add_f32_dpp v{v}, v{v}, v{v} row_bcast:15 row_mask:0xa bank_mask:0xf")
        for v in vs: e(f"v_add_f32_dpp v{v}, v{v}, v{v} row_bcast:31 row_mask:0xc bank_mask:0xf")
        for v, s in zip(vs, ss): e(f"v_readlane_b32 s{s}, v{v}, 63")
    def cross_rows(self, v, t, op):
        e = self.e
        e(f"v_mov_b32 v{t}, v{v}")
        e(f"v_permlane16_swap_b32 v{v}, v{t}")
        e(f"v_{op}_f32 v{v}, v{v}, v{t}")
        e(f"v_mov_b32 v{t}, v{v}")
        e(f"v_permlane32_swap_b32 v{v}, v{t}")
        e(f"v_{op}_f32 v{v}, v{v}, v{t}")

    def s_path(self):
        e = self.e
        KO0, KO1, VO = 2, 3, 4
        MK = 5
        MRUN, LRUN, NRUN = 9, 10, 11
        T = 12; PK = 16; MX, MX2, AL, ALD, NN = 18, 19, 20, 21, 22
        P = 24
        D0, D1, ACC0, ACC1, AF, QF, SLOT = 28, 32, 36, 40, 44, 60, 80
        S_BASE, S_O1, S_O2, S_CNT, S_R = 64, 65, 66, 67, 69
        def tile_off(dst, t):
            e(f"s_add_u32 s{dst}, s{S_R}, {t*32768}")
            e(f"s_and_b32 s{dst}, s{dst}, 0xfffff")
            e(f"s_add_u32 s{dst}, s{dst}, s{S_BASE}")
        NT = self.nt
        e("v_and_b32 v12, 15, v1")
        e("v_lshrrev_b32 v13, 4, v1")
        e("v_and_b32 v14, 7, v12")
        e("v_lshrrev_b32 v15, 3, v12")
        e(f"v_lshlrev_b32 v{KO0}, 9, v14")
        e("v_lshl_add_u32 v16, v15, 2, v13")
        e(f"v_lshl_add_u32 v{KO0}, v16, 4, v{KO0}")
        e(f"v_add_u32 v{KO1}, 0x1000, v{KO0}")
        e(f"v_lshlrev_b32 v{VO}, 11, v13")
        e(f"v_lshl_add_u32 v{VO}, v12, 4, v{VO}")
        e("s_mov_b32 s68, 0")
        e(f"s_lshl_b32 s{S_BASE}, s2, 20")
        e(f"s_lshl_b32 s65, s{S_HW}, 13")
        e(f"s_add_u32 s{S_BASE}, s{S_BASE}, s65")
        e(f"s_lshr_b32 s{S_R}, s2, 3")
        e(f"s_lshl_b32 s{S_R}, s{S_R}, {15 if self.rot else 20}")
        e("s_waitcnt lgkmcnt(0)")
        self.srd(R_K, P_K, 1 << 28)
        self.srd(R_V, P_V, 1 << 28)
        state = dict(issued=-1)
        def slot_regs(s): return f"v[{SLOT+4*s}:{SLOT+4*s+3}]"
        def issue(n, slot, soff):
            i = n % 16
            if i < 8:
                G, j = i >> 2, i & 3
                e(f"buffer_load_dwordx4 {slot_regs(slot)}, v{KO0+G}, s[{R_K}:{R_K+3}], s{soff} offen offset:{j*128} {self.kvflags}")
            else:
                i -= 8
                e(f"buffer_load_dwordx4 {slot_regs(slot)}, v{VO}, s[{R_V}:{R_V+3}], s{soff} offen offset:{(i>>1)*512+(i&1)*256} {self.vflags}")
        npro = self.npro
        assert 16 <= npro <= 44
        for n in range(npro):
            if n % 16 == 0:
                tile_off(S_O1, n // 16)
            tp = self.thrp if n < self.npl else self.thr
            if n >= tp: e(f"s_waitcnt vmcnt({tp-1})")
            issue(n, n, S_O1)
            if n in (5, 13, 19, 25): self.stamp({5: 6, 13: 7, 19: 9, 25: 10}[n])
            if n == 7:
                self.stamp(4)
                self.srd(R_WS, P_WS, WS_SIZE)
                e(f"s_mov_b32 s{S_C}, {CSC:#x}")
                e("v_lshrrev_b32 v16, 1, v14")
                e("v_and_b32 v17, 1, v14")
                e("v_mov_b32 v18, 0xffff")
                e("v_lshlrev_b32 v17, 4, v17")
                e("v_lshlrev_b32 v18, v17, v18")
                for i in range(4):
                    e(f"v_cmp_eq_u32 vcc, {i}, v16")
                    e(f"v_cndmask_b32 v{MK+i}, 0, v18, vcc")
                e(f"v_mov_b32 v{MRUN}, 0xff800000")
                e(f"v_mov_b32 v{NRUN}, 0x7f800000")
                e(f"v_mov_b32 v{LRUN}, 0")
                for i in range(8): e(f"v_mov_b32 v{ACC0+i}, 0")
                e("v_bfe_u32 v16, v12, 2, 1")
                e("v_lshl_add_u32 v16, v16, 2, v13")
                e("v_lshlrev_b32 v23, 9, v15")
                e("v_lshl_add_u32 v23, v16, 4, v23")
                e("v_lshrrev_b32 v16, 1, v13")
                e("v_and_b32 v17, 1, v13")
                e("v_lshlrev_b32 v76, 10, v16")
                e("v_lshl_add_u32 v76, v12, 5, v76")
                e("v_lshl_add_u32 v76, v17, 4, v76")
                e(f"s_lshl_b32 s70, s{S_HW}, 11")
                e("v_add_u32 v76, s70, v76")
                e(f"s_lshl_b32 s70, s{S_HW}, 4")
                e("v_add_u32 v77, s70, v1")
                e("v_mov_b32 v78, 1")
                e("v_mov_b32 v79, 0")
        self.stamp(5)
        if not self.noq: e("s_barrier")
        self.stamp(1)
        for j in range(4):
            e(f"ds_read_b128 v[{QF+4*j}:{QF+4*j+3}], v23 offset:{QL+j*128}")
        e(f"ds_read_b32 v23, v79 offset:{MISC}")
        e("s_waitcnt lgkmcnt(0)")
        e(f"v_readfirstlane_b32 s{S_TAG}, v23")

        def softmax(point):
            for r in range(4): e(f"v_permlane32_swap_b32 v{D0+r}, v{D1+r}")
            for r in range(4): e(f"v_add_f32_dpp v{T+r}, v{D1+r}, v{D0+r} row_half_mirror row_mask:0xf bank_mask:0x5")
            for r in range(4): e(f"v_add_f32_dpp v{T+r}, v{D0+r}, v{D1+r} row_half_mirror row_mask:0xf bank_mask:0xa")
            e(f"v_cvt_pk_bf16_f32 v{PK}, v{T}, v{T+1}")
            e(f"v_cvt_pk_bf16_f32 v{PK+1}, v{T+2}, v{T+3}")
            e(f"v_lshlrev_b32 v{T}, 16, v{PK}")
            e(f"v_and_b32 v{T+1}, 0xffff0000, v{PK}")
            e(f"v_lshlrev_b32 v{T+2}, 16, v{PK+1}")
            e(f"v_and_b32 v{T+3}, 0xffff0000, v{PK+1}")
            point()
            e(f"v_max3_f32 v{MX}, v{T}, v{T+1}, v{T+2}")
            e(f"v_max3_f32 v{MX}, v{MX}, v{T+3}, v{MRUN}")
            self.cross_rows(MX, MX2, "max")
            e(f"v_mov_b32 v{MRUN}, v{MX}")
            e(f"v_mul_f32 v{NN}, s{S_C}, v{MX}")
            e(f"v_sub_f32 v{AL}, 0, v{NN}")
            for r in range(4): e(f"v_fma_f32 v{P+r}, v{T+r}, s{S_C}, v{AL}")
            e(f"v_sub_f32 v{NN}, v{AL}, v{NRUN}")
            e(f"v_mov_b32 v{NRUN}, v{AL}")
            e(f"v_exp_f32 v{AL}, v{NN}")
            for r in range(4): e(f"v_exp_f32 v{P+r}, v{P+r}")
            point()
            e(f"v_mov_b32 v{ALD}, v{AL}")
            e(f"v_mul_f32 v{LRUN}, v{LRUN}, v{AL}")
            e(f"v_mov_b32_dpp v{ALD}, v{AL} row_shr:8 row_mask:0x3 bank_mask:0xc")
            e(f"v_mov_b32_dpp v{ALD}, v{AL} row_shl:8 row_mask:0xc bank_mask:0x3")
            for r in range(4): e(f"v_cvt_pk_bf16_f32 v{T+r}, v{P+r}, v{P+r}")
            e(f"v_add_f32 v{P}, v{P}, v{P+1}")
            e(f"v_add_f32 v{P+2}, v{P+2}, v{P+3}")
            for i in range(4): e(f"v_and_b32 v{AF+i}, v{T}, v{MK+i}")
            for i in range(8): e(f"v_mul_f32 v{ACC0+i}, v{ACC0+i}, v{ALD}")
            e(f"v_add_f32 v{P}, v{P}, v{P+2}")
            for r in range(1, 4):
                for i in range(4): e(f"v_and_b32 v{AF+4*r+i}, v{T+r}, v{MK+i}")
            e(f"v_add_f32 v{LRUN}, v{LRUN}, v{P}")

        d = self.dist
        NL = NT * 16
        def slot_of(n): return n if n < npro else n % 16
        def consume(n):
            i = n % 16
            if i < 8:
                G, j = i >> 2, i & 3
                D = D0 if G == 0 else D1
                c = "0" if j == 0 else f"v[{D}:{D+3}]"
                e(f"v_mfma_f32_16x16x32_bf16 v[{D}:{D+3}], {slot_regs(slot_of(n))}, v[{QF+4*j}:{QF+4*j+3}], {c}")
            else:
                i -= 8
                j, hf = i >> 1, i & 1
                A = ACC0 if hf == 0 else ACC1
                e(f"v_mfma_f32_16x16x32_bf16 v[{A}:{A+3}], v[{AF+4*j}:{AF+4*j+3}], {slot_regs(slot_of(n))}, v[{A}:{A+3}]")
        st = dict(k=npro)
        def tile(t, steady, thr=None):
            thr = self.thr if thr is None else thr
            st["j"] = 0
            st["last"] = 16 * t - 1
            def point():
                j = st["j"]; st["j"] += 1
                k = st["k"]
                want = 16 * t + d + j
                prev = k - 16 if k - 16 >= npro else k % 16
                if prev > st["last"]:
                    assert not steady
                    return
                if k > want and j % 2 == 0: return
                if steady:
                    assert k == want
                    so = S_O1 if k // 16 == t else S_O2
                else:
                    if st.get("so") != k // 16:
                        tile_off(S_O2, k // 16)
                        st["so"] = k // 16
                    so = S_O2
                e(f"s_waitcnt vmcnt({thr-1})")
                issue(k, slot_of(k), so)
                st["k"] = k + 1
            for i in range(16):
                n = 16 * t + i
                if i == 8: softmax(point)
                w = st["k"] - 1 - n
                assert w >= 0
                if w < thr or not steady: e(f"s_waitcnt vmcnt({min(63, w)})")
                consume(n)
                st["last"] = n
                if i % 8 != 7: point()
        t = 0
        while not (st["k"] - 16 * t == d and 16 * t >= npro):
            tile(t, False)
            t += 1
        tfirst = t
        self.stamp(8)
        tile_off(S_O1, tfirst)
        e(f"s_add_u32 s{S_R}, s{S_R}, {tfirst*32768}")
        e(f"s_mov_b32 s{S_CNT}, {NT-tfirst}")
        for thr, stop in ([(self.thr, self.nl2), (self.thr2, 0)] if self.nl2 else [(self.thr, 0)]):
            L = self.lab("sloop")
            e.label(L)
            e(f"s_add_u32 s{S_R}, s{S_R}, 32768")
            e(f"s_and_b32 s{S_O2}, s{S_R}, 0xfffff")
            e(f"s_add_u32 s{S_O2}, s{S_O2}, s{S_BASE}")
            e(f"v_mov_b32 v23, s{S_CNT}")
            e(f"s_cmp_eq_u32 s{S_CNT}, 1")
            e(f"s_cselect_b32 s{S_O2}, 0x80000000, s{S_O2}")
            e(f"ds_write_b32 v79, v23 offset:{MISC+12}")
            st["k"] = 16 * tfirst + d
            tile(tfirst, True, thr)
            e(f"s_mov_b32 s{S_O1}, s{S_O2}")
            e(f"s_sub_u32 s{S_CNT}, s{S_CNT}, 1")
            e(f"s_cmp_lg_u32 s{S_CNT}, {stop}")
            e(f"s_cbranch_scc1 {L}")
        self.stamp(2)
        self.cross_rows(LRUN, MX2, "add")
        e(f"ds_write_b128 v76, v[{ACC0}:{ACC0+3}] offset:{SO}")
        e(f"ds_write_b128 v76, v[{ACC1}:{ACC1+3}] offset:{SO+512}")
        e("s_mov_b64 exec, 0x101")
        e(f"ds_write2_b32 v77, v{NRUN}, v{LRUN} offset0:{SML//4} offset1:{SML//4+1}") if SML // 4 + 1 < 256 else None
        e("s_mov_b64 exec, 1")
        e(f"ds_add_rtn_u32 v22, v79, v78 offset:{MISC+4}")
        e("s_mov_b64 exec, -1")
        e("s_waitcnt lgkmcnt(0)")
        e("v_readfirstlane_b32 s64, v22")
        e("s_cmp_eq_u32 s64, 3")
        Ld = self.lab("slast")
        e(f"s_cbranch_scc1 {Ld}")
        self.endpgm()
        e.label(Ld)
        e("s_waitcnt vmcnt(0)")
        e.label("L_sfinal")
        e("v_mov_b32 v20, 0")
        e("v_lshlrev_b32 v22, 4, v1")
        for w in range(4):
            e(f"ds_read_b128 v[{24+4*w}:{27+4*w}], v20 offset:{SML+16*w}")
        OB = 80
        for h in range(2):
            for w in range(4):
                r = OB + (h * 4 + w) * 4
                e(f"ds_read_b128 v[{r}:{r+3}], v22 offset:{SO + w*2048 + h*1024}")
        e(f"s_and_b32 s{S_TM}, s{S_TAG}, 0x3f")
        e("v_mov_b32 v21, 0xffffffc0")
        e("s_waitcnt lgkmcnt(8)")
        for h in range(2):
            n = [24 + 4 * w + 2 * h for w in range(4)]
            e(f"v_min3_f32 v{40+h}, v{n[0]}, v{n[1]}, v{n[2]}")
            e(f"v_min_f32 v{40+h}, v{40+h}, v{n[3]}")
        for h in range(2):
            for w in range(4):
                e(f"v_sub_f32 v{44+4*h+w}, v{40+h}, v{24+4*w+2*h}")
        for i in range(8): e(f"v_exp_f32 v{44+i}, v{44+i}")
        for h in range(2):
            e(f"v_mul_f32 v{42+h}, v{44+4*h}, v{25+2*h}")
        for w in range(1, 4):
            for h in range(2):
                e(f"v_fmac_f32 v{42+h}, v{44+4*h+w}, v{25+4*w+2*h}")
        for h in range(2): e(f"v_rcp_f32 v{52+h}, v{42+h}")
        for h in range(2): e(f"v_log_f32 v{54+h}, v{42+h}")
        for h in range(2):
            for w in range(4): e(f"v_mul_f32 v{44+4*h+w}, v{44+4*h+w}, v{52+h}")
        for h in range(2): e(f"v_sub_f32 v{54+h}, v{54+h}, v{40+h}")
        e(f"s_lshl_b32 s64, s2, 11")
        e(f"s_add_u32 s64, s64, {PBUF}")
        for h in range(2):
            e(f"s_waitcnt lgkmcnt({4-4*h})")
            o = 56 + 4 * h
            for i in range(4): e(f"v_mul_f32 v{o+i}, v{44+4*h}, v{OB+h*16+i}")
            for w in range(1, 4):
                for i in range(4): e(f"v_fmac_f32 v{o+i}, v{44+4*h+w}, v{OB+h*16+w*4+i}")
            for i in range(4): self.tagw(o + i, o + i, 21)
        e("v_cmp_eq_u32 vcc, 1, v1")
        e("v_cndmask_b32 v72, v54, v55, vcc")
        e(f"v_mov_b32 v73, s{S_TAG}")
        e("v_lshlrev_b32 v23, 11, v1")
        e("s_lshl_b32 s65, s2, 3")
        e(f"s_add_u32 s65, s65, {HBUF}")
        e("s_cmp_eq_u32 s68, 1")
        e("s_cbranch_scc1 L_sfinal_back")
        for h in range(2):
            o = 56 + 4 * h
            e(f"buffer_store_dwordx4 v[{o}:{o+3}], v22, s[{R_WS}:{R_WS+3}], s64 offen offset:{h*1024} sc1")
        e("s_mov_b64 exec, 3")
        e(f"buffer_store_dwordx2 v[72:73], v23, s[{R_WS}:{R_WS+3}], s65 offen sc1")
        e(f"ds_add_u32 v79, v78 offset:{MISC+4}")
        self.stamp(3)
        self.endpgm()

    def h_consts(self):
        e = self.e
        e("v_and_b32 v4, 15, v1")
        e("v_lshrrev_b32 v5, 4, v1")
        e("v_lshrrev_b32 v6, 2, v4")
        e("v_lshl_add_u32 v6, v5, 3, v6")
        e("v_and_b32 v7, 3, v4")
        e("v_lshlrev_b32 v7, 3, v7")
        e("v_and_b32 v8, 1, v1")
        e(f"v_mul_u32_u24 v8, {AVS}, v8")
        e("v_lshl_add_u32 v3, v5, 4, v8")
    def tr_addr(self, lgpitch, sbase):
        e = self.e
        e(f"v_lshl_add_u32 v2, v6, {lgpitch}, v7")
        e(f"v_add_u32 v2, s{sbase}, v2")
    def dma_voff(self, rowbytes, lgpitch, vout):
        e = self.e
        sh = lgpitch - 4
        e(f"v_lshrrev_b32 v{vout}, {sh}, v1")
        e(f"v_mul_u32_u24 v{vout}, {rowbytes}, v{vout}")
        e(f"v_and_b32 v{vout+1}, {(1<<sh)-1}, v1")
        e(f"v_lshl_add_u32 v{vout}, v{vout+1}, 4, v{vout}")
    def dma_loop(self, srd, voff, n, s_src, src_step, s_dst, inflight=None):
        e = self.e
        L = self.lab("dma")
        inflight = self.winfl_cur
        e(f"s_mov_b32 s66, {n}")
        e.label(L)
        e(f"s_mov_b32 m0, s{s_dst}")
        e(f"s_add_u32 s{s_dst}, s{s_dst}, 1024")
        e(f"buffer_load_dwordx4 v{voff}, s[{srd}:{srd+3}], s{s_src} offen {self.wflags} lds")
        e(f"s_add_u32 s{s_src}, s{s_src}, {src_step}")
        if inflight < 32: e(f"s_waitcnt vmcnt({inflight-1})")
        e("s_sub_u32 s66, s66, 1")
        e("s_cmp_lg_u32 s66, 0")
        e(f"s_cbranch_scc1 {L}")
    def h_sync(self):
        e = self.e
        L = self.lab("hs"); Lx = self.lab("hsx")
        e("s_waitcnt vmcnt(0)")
        e("v_mov_b32 v8, 0")
        e("v_mov_b32 v9, 1")
        e("s_mov_b64 exec, 1")
        e(f"ds_add_u32 v8, v9 offset:{MISC+8}")
        e("s_mov_b64 exec, -1")
        e.label(L)
        e(f"ds_read_b32 v9, v8 offset:{MISC+8}")
        e("s_waitcnt lgkmcnt(0)")
        e("v_readfirstlane_b32 s64, v9")
        e("s_cmp_ge_u32 s64, 4")
        e(f"s_cbranch_scc1 {Lx}")
        e("s_sleep 2")
        e(f"s_sub_u32 s{S_TO}, s{S_TO}, 1")
        e(f"s_cmp_lg_u32 s{S_TO}, 0")
        e(f"s_cbranch_scc1 {L}")
        e(f"s_branch L_hfail")
        e.label(Lx)
    def tr_frags(self, nsteps, off, fbase, lgpitch):
        e = self.e
        for st in range(nsteps):
            f = fbase + 4 * st
            o = off + st * (32 << lgpitch)
            assert o + (4 << lgpitch) < 65536
            e(f"ds_read_b64_tr_b16 v[{f}:{f+1}], v2 offset:{o}")
            e(f"ds_read_b64_tr_b16 v[{f+2}:{f+3}], v2 offset:{o + (4 << lgpitch)}")
            if st % 4 == 3: e("s_waitcnt lgkmcnt(0)")
        e("s_waitcnt lgkmcnt(0)")
    def gemv(self, nsteps, abase, a_lds_off, chains, vaddr=3, ahead=12):
        e = self.e
        AHEAD = ahead
        def rd(st): e(f"ds_read_b128 v[{abase+4*st}:{abase+4*st+3}], v{vaddr} offset:{a_lds_off+st*64}")
        issued = min(nsteps, AHEAD)
        for st in range(issued): rd(st)
        for st in range(nsteps):
            e(f"s_waitcnt lgkmcnt({issued - 1 - st})")
            for D, fb in chains:
                c = "0" if st == 0 else f"v[{D}:{D+3}]"
                e(f"v_mfma_f32_16x16x32_bf16 v[{D}:{D+3}], v[{abase+4*st}:{abase+4*st+3}], v[{fb+4*st}:{fb+4*st+3}], {c}")
            if issued < nsteps:
                rd(issued); issued += 1
    def lds_wait(self, off, cmp, val, sleep=4, sreg=64):
        e = self.e
        L = self.lab("lw"); Lx = self.lab("lwx")
        e("v_mov_b32 v8, 0")
        e.label(L)
        e(f"ds_read_b32 v9, v8 offset:{off}")
        e("s_waitcnt lgkmcnt(0)")
        e(f"v_readfirstlane_b32 s{sreg}, v9")
        e(f"s_cmp_{cmp}_u32 s{sreg}, {val}")
        e(f"s_cbranch_scc1 {Lx}")
        e(f"s_sleep {sleep}")
        e(f"s_sub_u32 s{S_TO}, s{S_TO}, 1")
        e(f"s_cmp_lg_u32 s{S_TO}, 0")
        e(f"s_cbranch_scc1 {L}")
        e(f"s_branch L_hfail")
        e.label(Lx)
    def lds_set(self, off, src):
        e = self.e
        e("v_mov_b32 v8, 0")
        e(f"v_mov_b32 v9, {src}")
        e(f"ds_write_b32 v8, v9 offset:{off}")
    def bar(self):
        e = self.e
        L = self.lab("nb")
        e("s_cmp_eq_u32 s68, 1")
        e(f"s_cbranch_scc1 {L}")
        e("s_barrier")
        e.label(L)
    def gate_all(self):
        e = self.e
        L = self.lab("gate"); Lx = self.lab("gatex"); Lo = self.lab("gateo"); Le = self.lab("gatee")
        e(f"s_cmp_lg_u32 s{S_HW}, 0")
        e(f"s_cbranch_scc1 {Lo}")
        e("v_lshlrev_b32 v8, 5, v1")
        e(f"s_mov_b32 s64, {HBUF}")
        e.label(L)
        e(f"buffer_load_dwordx4 v[40:43], v8, s[{R_WS}:{R_WS+3}], s64 offen sc1")
        e(f"buffer_load_dwordx4 v[44:47], v8, s[{R_WS}:{R_WS+3}], s64 offen offset:16 sc1")
        e("s_waitcnt vmcnt(0)")
        e(f"v_xor_b32 v41, s{S_TAG}, v41")
        e(f"v_xor_b32 v43, s{S_TAG}, v43")
        e(f"v_xor_b32 v45, s{S_TAG}, v45")
        e(f"v_xor_b32 v47, s{S_TAG}, v47")
        e("v_or3_b32 v41, v41, v43, v45")
        e("v_or_b32 v41, v41, v47")
        e("v_cmp_ne_u32 vcc, 0, v41")
        e("s_bcnt1_i32_b64 s65, vcc")
        e(f"s_cmp_le_u32 s65, {self.gthr}")
        e(f"s_cbranch_scc1 {Lx}")
        e("s_mov_b64 exec, vcc")
        e(f"s_sleep {self.gsleep}")
        e(f"s_sub_u32 s{S_TO}, s{S_TO}, 1")
        e(f"s_cmp_lg_u32 s{S_TO}, 0")
        e(f"s_cbranch_scc1 {L}")
        e(f"s_branch L_hfail")
        e.label(Lx)
        e("s_mov_b64 exec, -1")
        self.lds_set(MISC + 20, 1)
        e(f"s_branch {Le}")
        e.label(Lo)
        self.lds_wait(MISC + 20, "eq", 1, 2)
        e.label(Le)
    def ln_finish(self, mean, var, out_mb, out_rs):
        e = self.e
        for m, o in zip(mean, out_mb):
            if m != o: e(f"v_mov_b32 v{o}, v{m}")
        self.rnd_many(list(out_mb) + list(var))
        for v in var: e(f"v_add_f32 v{v}, {f2u(1e-5):#x}, v{v}")
        self.rnd_many(var)
        for v in var: e(f"v_sqrt_f32 v{v}, v{v}")
        self.rnd_many(var)
        for v, o in zip(var, out_rs): e(f"v_rcp_f32 v{o}, v{v}")

    def q_path(self):
        e = self.e
        e("v_lshlrev_b32 v8, 4, v1")
        e("v_cmp_gt_u32 s[70:71], 56, v1")
        e("v_mov_b32 v9, 0x10000")
        e("v_cndmask_b32 v8, v9, v8, s[70:71]")
        e(f"buffer_load_dwordx4 v[12:15], v8, s[{R_X}:{R_X+3}], 0 offen")
        e(f"buffer_load_dwordx4 v[16:19], v8, s[{R_X}:{R_X+3}], 0 offen offset:896")
        e(f"buffer_load_dword v10, off, s[{R_WS}:{R_WS+3}], 0 offset:{EPOCH} sc1")
        e(f"s_and_b32 s12, s{S_SPL}, 3")
        e(f"s_lshr_b32 s13, s{S_SPL}, 2")
        e(f"s_lshl_b32 s64, s{S_B}, 2")
        e("s_add_u32 s13, s13, s64")
        e(f"s_mul_i32 s64, s12, {112*8192}")
        e(f"s_lshl_b32 s65, s{S_HKV}, 10")
        e("s_add_u32 s64, s64, s65")
        e("s_lshl_b32 s65, s13, 7")
        e("s_add_u32 s64, s64, s65")
        self.srd(R_W, P_WQ, 448 * 8192)
        self.dma_voff(8192, 7, 20)
        for st in range(14):
            e(f"s_mov_b32 m0, {STG + st*1024}")
            if st: e(f"s_add_u32 s64, s64, {8*8192}")
            e(f"buffer_load_dwordx4 v20, s[{R_W}:{R_W+3}], s64 offen {self.qflags} lds")
        self.stamp(9)
        self.h_consts()
        e("v_mov_b32 v20, 0")
        e("v_mov_b32 v21, 0")
        e("v_mov_b32 v21, 0x7fff")
        e(f"ds_write_b64 v20, v[20:21] offset:{MISC+8}")
        e("v_mov_b32 v21, 0")
        e(f"ds_write_b64 v20, v[20:21] offset:{MISC+16}")
        e(f"ds_write_b32 v20, v20 offset:{MISC+4}")
        e("s_waitcnt vmcnt(15)")
        self.stamp(10)
        for b in range(2):
            for i in range(4):
                e(f"v_lshlrev_b32 v{24+8*b+2*i}, 16, v{12+4*b+i}")
                e(f"v_and_b32 v{25+8*b+2*i}, 0xffff0000, v{12+4*b+i}")
        for b in range(2):
            x = 24 + 8 * b
            e(f"v_add_f32 v{40+b}, v{x}, v{x+1}")
            for i in range(2, 8): e(f"v_add_f32 v{40+b}, v{40+b}, v{x+i}")
        self.wave_sum_to_sgpr([40, 41], [64, 65])
        inv = f2u(1.0 / 448)
        for b in range(2):
            e(f"v_mov_b32 v{42+b}, {inv:#x}")
            e(f"v_mul_f32 v{42+b}, s{64+b}, v{42+b}")
        for b in range(2):
            x = 24 + 8 * b
            e(f"v_sub_f32 v44, v{x}, v{42+b}")
            e(f"v_mul_f32 v{40+b}, v44, v44")
            for i in range(1, 8):
                e(f"v_sub_f32 v44, v{x+i}, v{42+b}")
                e(f"v_fmac_f32 v{40+b}, v44, v44")
            e(f"v_cndmask_b32 v{40+b}, 0, v{40+b}, s[70:71]")
        self.wave_sum_to_sgpr([40, 41], [64, 65])
        for b in range(2):
            e(f"v_mov_b32 v{44+b}, {inv:#x}")
            e(f"v_mul_f32 v{44+b}, s{64+b}, v{44+b}")
        self.ln_finish([42, 43], [44, 45], [42, 43], [46, 47])
        for b in range(2):
            x = 24 + 8 * b
            for i in range(8): e(f"v_sub_f32 v{x+i}, v{x+i}, v{42+b}")
            for i in range(4): e(f"v_cvt_pk_bf16_f32 v{12+4*b+i}, v{x+2*i}, v{x+2*i+1}")
            for i in range(4):
                e(f"v_lshlrev_b32 v{x+2*i}, 16, v{12+4*b+i}")
                e(f"v_and_b32 v{x+2*i+1}, 0xffff0000, v{12+4*b+i}")
            for i in range(8): e(f"v_mul_f32 v{x+i}, v{x+i}, v{46+b}")
            for i in range(4): e(f"v_cvt_pk_bf16_f32 v{12+4*b+i}, v{x+2*i}, v{x+2*i+1}")
        e("v_lshlrev_b32 v8, 4, v1")
        e("s_mov_b64 exec, s[70:71]")
        e(f"ds_write_b128 v8, v[12:15] offset:{AV}")
        e(f"ds_write_b128 v8, v[16:19] offset:{AV+AVS}")
        e("s_mov_b64 exec, -1")
        e("s_waitcnt vmcnt(14)")
        e("v_readfirstlane_b32 s64, v10")
        self.set_tag(64)
        e(f"v_mov_b32 v21, s{S_TAG}")
        e(f"ds_write_b32 v20, v21 offset:{MISC}")
        e("s_waitcnt vmcnt(0) lgkmcnt(0)")
        self.stamp(1)
        e(f"s_mov_b32 s64, {STG}")
        self.tr_addr(7, 64)
        e("s_mul_i32 s64, s12, 224")
        e("v_add_u32 v9, s64, v3")
        for st in range(4): e(f"ds_read_b128 v[{128+4*st}:{131+4*st}], v9 offset:{AV+st*64}")
        for cg in range(4): self.tr_frags(4, cg * 32, 64 + 16 * cg, 7)
        e("v_cmp_gt_u32 vcc, 32, v1")
        for i in range(4): e(f"v_cndmask_b32 v{140+i}, 0, v{140+i}, vcc")
        for cg in range(4):
            for i in range(4): e(f"v_cndmask_b32 v{76+16*cg+i}, 0, v{76+16*cg+i}, vcc")
        for st in range(4):
            for cg in range(4):
                D = 144 + 4 * cg
                c = "0" if st == 0 else f"v[{D}:{D+3}]"
                e(f"v_mfma_f32_16x16x32_bf16 v[{D}:{D+3}], v[{128+4*st}:{131+4*st}], v[{64+16*cg+4*st}:{67+16*cg+4*st}], {c}")
        e("v_cmp_lt_u32 s[64:65], 15, v1")
        e("v_cmp_lt_u32 s[66:67], 31, v1")
        e("v_cmp_lt_u32 vcc, 47, v1")
        e(f"v_mov_b32 v53, s{S_TAG}")
        e(f"v_mov_b32 v55, s{S_TAG}")
        e("v_lshlrev_b32 v8, 3, v1")
        for b in range(2):
            e(f"v_cndmask_b32 v{52+2*b}, v{144+b}, v{148+b}, s[64:65]")
        for b in range(2):
            e(f"v_cndmask_b32 v{52+2*b}, v{52+2*b}, v{152+b}, s[66:67]")
        for b in range(2):
            e(f"v_cndmask_b32 v{52+2*b}, v{52+2*b}, v{156+b}, vcc")
        e(f"s_lshl_b32 s64, s{S_HKV}, 14")
        e("s_lshl_b32 s65, s12, 12")
        e("s_add_u32 s64, s64, s65")
        e("s_lshl_b32 s65, s13, 9")
        e("s_add_u32 s64, s64, s65")
        e(f"s_add_u32 s64, s64, {QBUF}")
        e(f"s_add_u32 s65, s64, {8*16384}")
        e(f"buffer_store_dwordx2 v[52:53], v8, s[{R_WS}:{R_WS+3}], s64 offen sc1")
        e(f"buffer_store_dwordx2 v[54:55], v8, s[{R_WS}:{R_WS+3}], s65 offen sc1")
        self.lds_set(MISC + 24, f"s{S_TAG}")
        self.stamp(2)

    def q_gather(self):
        e = self.e
        e("v_lshlrev_b32 v8, 4, v1")
        e(f"s_lshl_b32 s13, s{S_GRP}, 14")
        e(f"s_lshl_b32 s64, s{S_HW}, 10")
        e("s_add_u32 s13, s13, s64")
        e(f"s_add_u32 s13, s13, {QBUF}")
        for k in range(1, 4): e(f"s_add_u32 s{64+k}, s13, {k*4096}")
        qld = [f"buffer_load_dwordx4 v[{24+4*k}:{27+4*k}], v8, s[{R_WS}:{R_WS+3}], s{64+k if k else 13} offen sc1" for k in range(4)]
        e(f"s_sleep {self.qsleep0}")
        for l in qld: e(l)
        for k in range(4):
            L = self.lab("qp"); Lx = self.lab("qpx")
            e.label(L)
            e("s_waitcnt vmcnt(0)")
            self.check_words([25 + 4 * k, 27 + 4 * k], 40, mant=False)
            e(f"s_cbranch_vccz {Lx}")
            e(f"s_sleep {self.qsleep}")
            e(qld[k])
            e(f"s_sub_u32 s{S_TO}, s{S_TO}, 1")
            e(f"s_cbranch_scc0 {L}")
            e("s_branch L_hfail")
            e.label(Lx)
        e("v_add_f32 v24, v24, v28")
        e("v_add_f32 v26, v26, v30")
        e("v_add_f32 v32, v32, v36")
        e("v_add_f32 v34, v34, v38")
        e("v_add_f32 v24, v24, v32")
        e("v_add_f32 v26, v26, v34")
        e("v_cvt_pk_bf16_f32 v24, v24, v26")
        e("v_lshlrev_b32 v8, 2, v1")
        e(f"s_lshl_b32 s64, s{S_HW}, 8")
        e("v_add_u32 v8, s64, v8")
        e(f"ds_write_b32 v8, v24 offset:{QL}")
        e("s_waitcnt lgkmcnt(0)")

    def stage_a(self):
        e = self.e
        FB, PB = 64, 128
        if self.latea == 1: self.lds_wait(MISC + 4, "ge", 5, 2)
        if self.latea >= 2: self.lds_wait(MISC + 12, "le", self.latea - 1, 4)
        self.winfl_cur = self.winfl2 if self.latea else self.winfl
        self.srd(R_W, P_WO, 4096 * 896)
        e(f"s_mul_i32 s64, s{S_HKV}, {512*896}")
        e(f"s_lshl_b32 s65, s{S_SPL}, 7")
        e("s_add_u32 s64, s64, s65")
        e(f"s_mul_i32 s65, s{S_HW}, {128*896}")
        e("s_add_u32 s64, s64, s65")
        e(f"s_lshl_b32 s65, s{S_HW}, 14")
        e(f"s_add_u32 s65, s65, {STG}")
        self.dma_voff(896, 7, 20)
        self.dma_loop(R_W, 20, 16, 64, 8 * 896, 65)
        self.h_sync()
        e(f"s_lshl_b32 s64, s{S_HW}, 5")
        e(f"s_add_u32 s64, s64, {STG}")
        self.tr_addr(7, 64)
        self.tr_frags(16, 0, FB, 7)
        self.stamp(4)
        e(f"s_lshr_b32 s12, s{S_HW}, 1")
        e(f"s_and_b32 s13, s{S_HW}, 1")
        e("s_lshl_b32 s14, s12, 3")
        e(f"s_add_u32 s14, s14, s{S_HKV}")
        e("s_lshl_b32 s15, s14, 15")
        e("s_lshl_b32 s64, s13, 10")
        e("s_add_u32 s15, s15, s64")
        e(f"s_add_u32 s15, s15, {PBUF}")
        e("s_lshl_b32 s64, s13, 11")
        e("s_lshl_b32 s14, s14, 7")
        e("s_add_u32 s14, s14, s64")
        e(f"s_add_u32 s14, s14, {HBUF}")
        e("v_lshlrev_b32 v5, 4, v1")
        e("v_lshlrev_b32 v6, 3, v4")
        e(f"s_mul_i32 s64, s12, {AVS}")
        e("s_lshl_b32 s65, s13, 9")
        e("s_add_u32 s64, s64, s65")
        e("v_lshlrev_b32 v7, 3, v1")
        e("v_add_u32 v7, s64, v7")
        e("v_lshlrev_b32 v18, 3, v1")
        e("v_mov_b32 v19, 0xffffffc0")
        for p in range(8): e(f"s_add_u32 s{52+p}, s15, {p*4096}")
        e("s_mov_b32 s68, 1")
        e("s_branch L_a_go")
        e.label("L_a_poll")
        e("s_mov_b32 s68, 0")
        self.stamp(5)
        self.stamp(6)
        L = self.lab("asw"); Lz = self.lab("anl")
        e("s_mov_b32 s69, 0xffff")
        e("s_mov_b32 s70, 0")
        e.label(L)
        e(f"buffer_load_dwordx2 v[10:11], v6, s[{R_WS}:{R_WS+3}], s14 offen sc1")
        def grouped(body):
            for g in range(4):
                gk = self.lab("gk")
                e(f"s_and_b32 s64, s70, {0xf << (4*g):#x}")
                e(f"s_cbranch_scc0 {gk}")
                for p in range(4 * g, 4 * g + 4):
                    sk = self.lab("sk")
                    e(f"s_bitcmp1_b32 s70, {p}")
                    e(f"s_cbranch_scc0 {sk}")
                    body(p, sk)
                    e.label(sk)
                e.label(gk)
        def ld(p, sk):
            r = PB + 4 * p
            e(f"buffer_load_dwordx4 v[{r}:{r+3}], v5, s[{R_WS}:{R_WS+3}], s{52 + (p >> 1)} offen offset:{(p & 1)*2048} sc1")
        def ck(p, sk):
            r = PB + 4 * p
            self.check_words([r, r + 2], 12)
            e(f"s_cbranch_vccnz {sk}")
            e(f"s_bitset0_b32 s69, {p}")
        grouped(ld)
        e("s_waitcnt vmcnt(0)")
        e(f"v_cmp_eq_u32 s[66:67], s{S_TAG}, v11")
        grouped(ck)
        e("s_and_b32 s71, s66, 0xffff")
        e("s_xor_b32 s64, s71, 0xffff")
        e("s_or_b32 s64, s64, s69")
        e("s_cmp_eq_u32 s64, 0")
        e("s_cbranch_scc1 L_a_got")
        e("s_and_b32 s70, s69, s71")
        e("s_bcnt1_i32_b32 s64, s69")
        e(f"s_cmp_le_u32 s64, {self.aspec}")
        e("s_cselect_b32 s70, s69, s70")
        e("s_cmp_lg_u32 s70, 0")
        e(f"s_cbranch_scc1 {Lz}")
        e(f"s_sleep {self.gsleep}")
        e.label(Lz)
        e(f"s_sub_u32 s{S_TO}, s{S_TO}, 1")
        e(f"s_cmp_lg_u32 s{S_TO}, 0")
        e(f"s_cbranch_scc1 {L}")
        e("s_branch L_hfail")
        e.label("L_a_got")
        self.stamp(7)
        e.label("L_a_go")
        e("v_mov_b32 v12, v10")
        self.row_reduce([12], "max")
        e("v_sub_f32 v12, v10, v12")
        e("v_exp_f32 v12, v12")
        e("v_mov_b32 v13, v12")
        sregs = list(range(16, 48, 2))
        for p in range(16): e(f"v_readlane_b32 s{sregs[p]}, v12, {p}")
        self.row_reduce([13], "add")
        e("v_rcp_f32 v13, v13")
        for p in range(16):
            r = PB + 4 * p
            sp = f"s[{sregs[p]}:{sregs[p]+1}]"
            for i in range(0, 4, 2):
                if p == 0: e(f"v_pk_mul_f32 v[{14+i}:{15+i}], v[{r+i}:{r+i+1}], {sp} op_sel_hi:[1,0]")
                else: e(f"v_pk_fma_f32 v[{14+i}:{15+i}], v[{r+i}:{r+i+1}], {sp}, v[{14+i}:{15+i}] op_sel_hi:[1,0,1]")
        for i in range(4): e(f"v_mul_f32 v{14+i}, v{14+i}, v13")
        e("v_cvt_pk_bf16_f32 v14, v14, v15")
        e("v_cvt_pk_bf16_f32 v15, v16, v17")
        e(f"ds_write_b64 v7, v[14:15] offset:{AV}")
        e("s_waitcnt lgkmcnt(0)")
        self.bar()
        self.gemv(16, PB + 64, AV, [(20, FB)])
        e(f"s_mul_i32 s64, s{S_HKV}, {448*8}")
        e(f"s_lshl_b32 s65, s{S_SPL}, 9")
        e("s_add_u32 s64, s64, s65")
        e(f"s_lshl_b32 s65, s{S_HW}, 7")
        e("s_add_u32 s64, s64, s65")
        e(f"s_add_u32 s64, s64, {YBUF}")
        self.tagw(24, 20, 19)
        self.tagw(25, 21, 19)
        e("s_cmp_eq_u32 s68, 1")
        e("s_cbranch_scc1 L_a_poll")
        e("s_mov_b64 exec, 0xffff")
        e(f"buffer_store_dwordx2 v[24:25], v18, s[{R_WS}:{R_WS+3}], s64 offen sc1")
        self.stamp(8)
        self.endpgm()

    def stage_b(self):
        e = self.e
        FG, FU, GB = 64, 120, 176
        UPO = 448 * 128
        if self.lateb == 1: self.lds_wait(MISC + 4, "ge", 5, 2)
        if self.lateb >= 2: self.lds_wait(MISC + 12, "le", self.lateb - 1, 4)
        self.winfl_cur = self.winfl2 if self.lateb else self.winfl
        self.srd(R_W, P_WG, 448 * 3584)
        self.srd(R_W2, P_WU, 448 * 3584)
        self.dma_voff(3584, 7, 20)
        for m_, srd_ in enumerate((R_W, R_W2)):
            e("s_lshl_b32 s64, s12, 7")
            e(f"s_mul_i32 s65, s{S_HW}, {112*3584}")
            e("s_add_u32 s64, s64, s65")
            e(f"s_mul_i32 s65, s{S_HW}, {112*128}")
            e(f"s_add_u32 s65, s65, {STG + m_*UPO}")
            self.dma_loop(srd_, 20, 14, 64, 8 * 3584, 65)
        e(f"s_mul_i32 s64, s{S_HW}, 56")
        e("v_min_u32 v5, 55, v1")
        e("v_add_u32 v5, s64, v5")
        e("v_cmp_gt_u32 s[70:71], 56, v1")
        e("v_lshlrev_b32 v14, 2, v5")
        e(f"buffer_load_dword v16, v14, s[{R_X}:{R_X+3}], 0 offen")
        e(f"buffer_load_dword v17, v14, s[{R_X}:{R_X+3}], 0 offen offset:896")
        e("v_lshlrev_b32 v5, 4, v5")
        self.h_sync()
        e(f"s_lshl_b32 s64, s{S_HW}, 5")
        e(f"s_add_u32 s64, s64, {STG}")
        self.tr_addr(7, 64)
        self.tr_frags(14, 0, FG, 7)
        e(f"v_add_u32 v2, {UPO}, v2")
        self.tr_frags(14, 0, FU, 7)
        e("v_and_b32 v18, 0xffff0000, v16")
        e("v_and_b32 v19, 0xffff0000, v17")
        e("v_lshlrev_b32 v16, 16, v16")
        e("v_lshlrev_b32 v17, 16, v17")
        for k in range(8): e(f"s_mov_b32 s{40+k}, {YBUF + k*3584}")
        e(f"s_lshl_b32 s64, s{S_HW}, 4")
        e("v_mov_b32 v10, s64")
        e("v_and_b32 v11, 7, v1")
        e("v_lshlrev_b32 v11, 4, v11")
        e("v_lshlrev_b32 v12, 3, v1")
        e("v_and_b32 v8, 16, v1")
        e("v_cmp_ne_u32 s[56:57], 0, v8")
        e("s_lshl_b32 s13, s12, 9")
        e(f"s_lshl_b32 s64, s{S_HW}, 7")
        e("s_add_u32 s13, s13, s64")
        e(f"s_add_u32 s13, s13, {GBUF}")
        e(f"s_mov_b32 s14, {f2u(0.044715):#x}")
        e(f"s_mov_b32 s15, {f2u(112.0):#x}")
        e(f"v_mov_b32 v35, s{S_TAG}")
        self.stamp(4)
        e("s_mov_b32 s68, 1")
        e("s_branch L_b_go")
        e.label("L_b_poll")
        e("s_mov_b32 s68, 0")
        self.stamp(5)
        self.gate_all()
        self.stamp(6)
        self.sweep_all([f"buffer_load_dwordx4 v[{GB+4*k}:{GB+4*k+3}], v5, s[{R_WS}:{R_WS+3}], s{40+k} offen sc1" for k in range(8)],
                       [GB + 2 * i for i in range(16)], 240)
        self.stamp(7)
        e.label("L_b_go")
        for k in range(1, 8):
            for j in (0, 2):
                a = GB + j if k == 1 else 20 + j
                e(f"v_pk_add_f32 v[{20+j}:{21+j}], v[{a}:{a+1}], v[{GB+4*k+j}:{GB+4*k+j+1}]")
        def rnd4():
            e("v_cvt_pk_bf16_f32 v24, v20, v21")
            e("v_cvt_pk_bf16_f32 v25, v22, v23")
            e("v_lshlrev_b32 v20, 16, v24")
            e("v_and_b32 v21, 0xffff0000, v24")
            e("v_lshlrev_b32 v22, 16, v25")
            e("v_and_b32 v23, 0xffff0000, v25")
        rnd4()
        e("v_pk_add_f32 v[20:21], v[20:21], v[16:17]")
        e("v_pk_add_f32 v[22:23], v[22:23], v[18:19]")
        rnd4()
        for b in range(2): e(f"v_readfirstlane_b32 s{66+b}, v{20+b}")
        e("v_pk_add_f32 v[36:37], v[20:21], s[66:67] neg_lo:[0,1] neg_hi:[0,1]")
        e("v_pk_add_f32 v[38:39], v[22:23], s[66:67] neg_lo:[0,1] neg_hi:[0,1]")
        for b in range(2): e(f"v_mov_b32 v{24+4*b}, s{66+b}")
        for b in range(2): e(f"v_add_f32 v{25+4*b}, v{36+b}, v{38+b}")
        for b in range(2): e(f"v_mul_f32 v{26+4*b}, v{36+b}, v{36+b}")
        for b in range(2): e(f"v_fmac_f32 v{26+4*b}, v{38+b}, v{38+b}")
        red = [25, 29, 26, 30]
        for v in red: e(f"v_cndmask_b32 v{v}, 0, v{v}, s[70:71]")
        self.row_reduce(red)
        for v in red: e(f"v_add_f32_dpp v{v}, v{v}, v{v} row_bcast:15 row_mask:0xa bank_mask:0xf")
        for v in red: e(f"v_add_f32_dpp v{v}, v{v}, v{v} row_bcast:31 row_mask:0xc bank_mask:0xf")
        e("s_mov_b64 exec, 0x8000000000000000") if False else None
        e("s_mov_b32 exec_lo, 0")
        e("s_mov_b32 exec_hi, 0x80000000")
        e(f"ds_write_b96 v10, v[24:26] offset:{STATS}")
        e(f"ds_write_b96 v10, v[28:30] offset:{STATS+64}")
        e("s_mov_b64 exec, -1")
        e("s_waitcnt lgkmcnt(0)")
        self.bar()
        e(f"ds_read_b96 v[24:26], v11 offset:{STATS}")
        e("s_waitcnt lgkmcnt(0)")
        e(f"v_mul_f32 v27, {f2u(1.0/112):#x}, v25")
        e("v_add_f32 v24, v24, v27")
        e("v_fma_f32 v26, -v27, v25, v26")
        e("v_add_f32_dpp v28, v24, v24 quad_perm:[1,0,3,2] row_mask:0xf bank_mask:0xf")
        e("v_add_f32_dpp v28, v28, v28 quad_perm:[2,3,0,1] row_mask:0xf bank_mask:0xf")
        e(f"v_mul_f32 v28, {f2u(0.25):#x}, v28")
        e("v_sub_f32 v24, v24, v28")
        e("v_mul_f32 v24, v24, v24")
        e("v_fmac_f32 v26, s15, v24")
        e("v_add_f32_dpp v26, v26, v26 quad_perm:[1,0,3,2] row_mask:0xf bank_mask:0xf")
        e("v_add_f32_dpp v26, v26, v26 quad_perm:[2,3,0,1] row_mask:0xf bank_mask:0xf")
        e(f"v_mul_f32 v26, {f2u(1.0/448):#x}, v26")
        e("v_cvt_pk_bf16_f32 v27, v28, v26")
        e("v_and_b32 v26, 0xffff0000, v27")
        e("v_lshlrev_b32 v28, 16, v27")
        e(f"v_add_f32 v26, {f2u(1e-5):#x}, v26")
        e("v_readlane_b32 s52, v28, 0")
        e("v_readlane_b32 s53, v28, 4")
        self.rnd(26)
        e("v_pk_add_f32 v[20:21], v[20:21], s[52:53] neg_lo:[0,1] neg_hi:[0,1]")
        e("v_sqrt_f32 v26, v26")
        e("v_pk_add_f32 v[22:23], v[22:23], s[52:53] neg_lo:[0,1] neg_hi:[0,1]")
        self.rnd(26)
        e("v_cvt_pk_bf16_f32 v24, v20, v21")
        e("v_rcp_f32 v26, v26")
        e("v_cvt_pk_bf16_f32 v25, v22, v23")
        e("v_lshlrev_b32 v20, 16, v24")
        e("v_readlane_b32 s54, v26, 0")
        e("v_readlane_b32 s55, v26, 4")
        e("v_and_b32 v21, 0xffff0000, v24")
        e("v_lshlrev_b32 v22, 16, v25")
        e("v_and_b32 v23, 0xffff0000, v25")
        e("v_pk_mul_f32 v[20:21], v[20:21], s[54:55]")
        e("v_pk_mul_f32 v[22:23], v[22:23], s[54:55]")
        for b in range(2): e(f"v_cvt_pk_bf16_f32 v{20+b}, v{20+b}, v{22+b}")
        e(f"ds_write_b32 v14, v20 offset:{AV}")
        e(f"ds_write_b32 v14, v21 offset:{AV+AVS}")
        e("s_waitcnt lgkmcnt(0)")
        self.bar()
        self.gemv(14, GB, AV, [(24, FG), (28, FU)])
        e("v_cndmask_b32 v24, v24, v25, s[56:57]")
        e("v_cndmask_b32 v29, v28, v29, s[56:57]")
        e("v_cvt_pk_bf16_f32 v29, v24, v29")
        e("v_lshlrev_b32 v28, 16, v29")
        e("v_and_b32 v29, 0xffff0000, v29")
        k0 = math.sqrt(2.0 / math.pi)
        c1 = f2u(-2.0 * k0 * math.log2(math.e))
        e("v_mul_f32 v32, v28, v28")
        e("v_mul_f32 v32, v32, v28")
        e("v_fma_f32 v32, v32, s14, v28")
        e(f"v_mul_f32 v32, {c1:#x}, v32")
        e("v_exp_f32 v32, v32")
        e("v_add_f32 v32, 1.0, v32")
        e("v_rcp_f32 v32, v32")
        e("v_mul_f32 v32, v32, v28")
        self.rnd(32)
        e("v_mul_f32 v32, v32, v29")
        e("v_mov_b32 v33, v32")
        e("v_permlane16_swap_b32 v32, v33")
        e("v_cvt_pk_bf16_f32 v34, v32, v33")
        e("s_cmp_eq_u32 s68, 1")
        e("s_cbranch_scc1 L_b_poll")
        e("s_mov_b64 exec, 0xffff")
        e(f"buffer_store_dwordx2 v[34:35], v12, s[{R_WS}:{R_WS+3}], s13 offen sc1")
        self.stamp(8)
        self.endpgm()

    def stage_c(self):
        e = self.e
        F0, F1, GB = 64, 120, 176
        if self.latec == 1: self.lds_wait(MISC + 4, "ge", 5, 2)
        if self.latec >= 2: self.lds_wait(MISC + 12, "le", self.latec - 1, 4)
        self.winfl_cur = self.winfl2 if self.latec else self.winfl
        self.srd(R_W, P_WD, 1792 * 896)
        self.srd(R_W2, P_OUT, 2 * 448 * 2)
        e(f"s_mul_i32 s64, s{S_HW}, {448*896}")
        e("s_lshl_b32 s65, s12, 6")
        e("s_add_u32 s64, s64, s65")
        e(f"s_mul_i32 s65, s{S_HW}, {STGW}")
        e(f"s_add_u32 s65, s65, {STG}")
        self.tr_addr(6, 65)
        self.dma_voff(896, 6, 20)
        self.dma_loop(R_W, 20, 28, 64, 16 * 896, 65)
        e("s_waitcnt vmcnt(0)")
        self.tr_frags(14, 0, F0, 6)
        self.tr_frags(14, 32, F1, 6)
        e("v_and_b32 v5, 31, v1")
        e("v_lshrrev_b32 v6, 5, v1")
        e("s_lshl_b32 s64, s12, 5")
        e("v_add_u32 v7, s64, v5")
        e("v_mul_u32_u24 v14, 448, v6")
        e("v_add_lshl_u32 v14, v14, v7, 1")
        e(f"buffer_load_ushort v16, v14, s[{R_X}:{R_X+3}], 0 offen")
        e("v_lshlrev_b32 v7, 3, v7")
        e("v_lshl_add_u32 v7, v6, 2, v7")
        e("s_waitcnt vmcnt(0)")
        e("v_lshlrev_b32 v16, 16, v16")
        e("v_lshlrev_b32 v10, 4, v1")
        e("v_lshlrev_b32 v11, 4, v5")
        e(f"s_mul_i32 s13, s{S_HW}, 3584")
        e(f"s_add_u32 s13, s13, {GBUF}")
        e(f"s_mul_i32 s14, s{S_HW}, {2*AVS}")
        e("v_lshlrev_b32 v12, 2, v1")
        e("v_add_u32 v12, s14, v12")
        e("v_lshlrev_b32 v13, 2, v5")
        e("v_add_u32 v13, s14, v13")
        e("v_add_u32 v3, s14, v3")
        self.stamp(4)
        e("v_mov_b32 v17, 0")
        e("s_mov_b32 s64, 0x05040100")
        e("s_mov_b32 s65, 0x07060302")
        e("s_mov_b32 s68, 1")
        e("s_branch L_c_go")
        e.label("L_c_poll")
        e("s_mov_b32 s68, 0")
        self.stamp(5)
        self.gate_all()
        self.stamp(6)
        Ln = self.lab("cnres")
        e(f"s_cmp_lg_u32 s{S_HW}, 0")
        e(f"s_cbranch_scc1 {Ln}")
        for k in range(8): e(f"s_mov_b32 s{40+k}, {YBUF + k*3584}")
        self.sweep_all([f"buffer_load_dword v{GB+k}, v7, s[{R_WS}:{R_WS+3}], s{40+k} offen sc1" for k in range(8)],
                       [GB + k for k in range(8)], 24)
        for k in range(1, 8): e(f"v_add_f32 v17, v{GB if k == 1 else 17}, v{GB+k}")
        self.rnd(17)
        e("v_add_f32 v17, v17, v16")
        self.rnd(17)
        e.label(Ln)
        e("s_mov_b32 s64, 0x05040100")
        e("s_mov_b32 s65, 0x07060302")
        sc = [24, 48, 232][:self.nset]
        def cput(i):
            g = sc[i]
            for k in range(4):
                e(f"v_perm_b32 v{g+1+4*k}, v{g+2+4*k}, v{g+4*k}, s64")
                e(f"v_perm_b32 v{g+3+4*k}, v{g+2+4*k}, v{g+4*k}, s65")
                a = 12 if k < 3 else 13
                e(f"ds_write_b32 v{a}, v{g+1+4*k} offset:{AV+k*256}")
                e(f"ds_write_b32 v{a}, v{g+3+4*k} offset:{AV+AVS+k*256}")
        self.sweep_pipe([([f"buffer_load_dwordx4 v[{g+4*k}:{g+3+4*k}], v{10 if k < 3 else 11}, s[{R_WS}:{R_WS+3}], s13 offen offset:{k*1024} sc1" for k in range(4)],
                          [g + 1 + 2 * i for i in range(8)]) for g in sc], 248, False, cput, "L_c_go")
        self.gemv(14, GB, AV, [(40, F0), (44, F1)], ahead=7)
        e(f"s_lshl_b32 s64, s{S_HW}, 8")
        e("v_lshlrev_b32 v8, 3, v1")
        e("v_add_u32 v8, s64, v8")
        e("s_mov_b64 exec, 0xffff")
        e(f"ds_write_b64 v8, v[40:41] offset:{RED}")
        e(f"ds_write_b64 v8, v[44:45] offset:{RED+128}")
        e("s_mov_b64 exec, -1")
        e("s_waitcnt lgkmcnt(0)")
        self.bar()
        Le = self.lab("cend")
        e(f"s_sub_u32 s64, s{S_HW}, s68")
        e(f"s_cmp_eq_u32 s68, 1")
        e(f"s_cselect_b32 s64, 0, s{S_HW}")
        e(f"s_cmp_lg_u32 s64, 0")
        e(f"s_cbranch_scc1 {Le}")
        e("v_lshlrev_b32 v8, 3, v5")
        e("v_lshl_add_u32 v8, v6, 2, v8")
        for w in range(4): e(f"ds_read_b32 v{20+w}, v8 offset:{RED+256*w}")
        e("s_waitcnt lgkmcnt(0)")
        e("v_add_f32 v20, v20, v21")
        e("v_add_f32 v22, v22, v23")
        e("v_add_f32 v20, v20, v22")
        self.rnd(20)
        e("v_add_f32 v20, v20, v17")
        e("v_cvt_pk_bf16_f32 v20, v20, v20")
        e("s_cmp_eq_u32 s68, 1")
        e("s_cbranch_scc1 L_c_poll")
        e(f"buffer_store_short v20, v14, s[{R_W2}:{R_W2+3}], 0 offen")
        e("s_cmp_lg_u32 s12, 0")
        e(f"s_cbranch_scc1 {Le}")
        e(f"v_mov_b32 v21, s{S_TAG}")
        e("s_mov_b64 exec, 1")
        e(f"buffer_store_dword v21, off, s[{R_WS}:{R_WS+3}], 0 offset:{EPOCH} sc1")
        e.label(Le)
        self.stamp(8)
        self.endpgm()

    def build(self):
        e = self.e
        e("s_cmp_ge_u32 s2, 256")
        e("s_cbranch_scc1 L_exit")
        e("s_load_dwordx16 s[16:31], s[0:1], 0")
        e("s_load_dwordx8 s[32:39], s[0:1], 64")
        self.stamp_init()
        e("v_lshrrev_b32 v2, 6, v0")
        e("v_and_b32 v1, 63, v0")
        e(f"v_readfirstlane_b32 s{S_WAVE}, v2")
        self.stamp(0)
        e(f"s_and_b32 s{S_HW}, s{S_WAVE}, 3")
        e(f"s_cmp_lt_u32 s{S_WAVE}, 4")
        e("s_cbranch_scc1 L_hpath")
        self.s_path()
        e.label("L_hpath")
        self.in_h = True
        e(f"s_lshr_b32 s{S_GRP}, s2, 4")
        e(f"s_and_b32 s{S_SPL}, s2, 15")
        e(f"s_lshr_b32 s{S_B}, s2, 7")
        e(f"s_and_b32 s{S_HKV}, s{S_GRP}, 7")
        e(f"s_mov_b32 s{S_TO}, {TIMEOUT}")
        e("s_waitcnt lgkmcnt(0)")
        self.srd(R_WS, P_WS, WS_SIZE)
        self.srd(R_X, P_X, 1792)
        if self.noq: e("s_branch L_hdone")
        e("s_setprio 2")
        e(f"s_cmp_lg_u32 s{S_HW}, 0")
        e("s_cbranch_scc1 L_hnq")
        self.q_path()
        e("s_branch L_hq")
        e.label("L_hnq")
        e(f"buffer_load_dword v10, off, s[{R_WS}:{R_WS+3}], 0 offset:{EPOCH} sc1")
        self.h_consts()
        e("s_waitcnt vmcnt(0)")
        e("v_readfirstlane_b32 s64, v10")
        self.set_tag(64)
        self.lds_wait(MISC + 24, "eq", f"s{S_TAG}", 2)
        e.label("L_hq")
        self.q_gather()
        e("s_setprio 0")
        e("s_barrier")
        self.stamp(3)
        e(f"s_cmp_lg_u32 s{S_HW}, 1")
        e("s_cbranch_scc1 L_sfinal_back")
        e("s_mov_b32 s68, 1")
        e("s_branch L_sfinal")
        e.label("L_sfinal_back")
        if self.noroles: e("s_branch L_hdone")
        e(f"s_cmp_lg_u32 s{S_HW}, 0")
        e("s_cbranch_scc1 L_rwait")
        self.lds_wait(MISC + 12, "le", self.trig, 8)
        self.srd(R_W, P_DBG, 256)
        e("v_mov_b32 v10, 1")
        e("s_mov_b64 exec, 1")
        e(f"buffer_atomic_add v10, off, s[{R_W}:{R_W+3}], 0 sc0 sc1")
        e("s_waitcnt vmcnt(0)")
        e("s_mov_b64 exec, -1")
        e("v_readfirstlane_b32 s12, v10")
        e("s_add_u32 s12, s12, 1")
        self.lds_set(MISC + 16, "s12")
        e("s_branch L_rgot")
        e.label("L_rwait")
        self.lds_wait(MISC + 16, "lg", 0, 8, 12)
        e.label("L_rgot")
        e("s_sub_u32 s12, s12, 1")
        e("s_cmp_ge_u32 s12, 98")
        if self.rorder:
            e("s_cbranch_scc1 L_rord")
            e("s_sub_u32 s12, 97, s12")
            e.label("L_rord")
            e("s_cmp_ge_u32 s12, 98")
        if self.diag:
            e(f"s_mov_b32 s{ST0+22}, s12")
        e("s_cbranch_scc1 L_hdone")
        self.h_consts()
        e("s_cmp_lt_u32 s12, 14")
        e("s_cbranch_scc0 L_notc")
        self.stage_c()
        e.label("L_notc")
        e("s_sub_u32 s12, s12, 14")
        e("s_cmp_lt_u32 s12, 28")
        e("s_cbranch_scc0 L_notb")
        self.stage_b()
        e.label("L_notb")
        e("s_sub_u32 s12, s12, 28")
        e(f"s_mul_i32 s{S_HKV}, s12, 37")
        e(f"s_lshr_b32 s{S_HKV}, s{S_HKV}, 8")
        e(f"s_mul_i32 s64, s{S_HKV}, 7")
        e(f"s_sub_u32 s{S_SPL}, s12, s64")
        self.stage_a()
        e.label("L_hfail")
        e.label("L_hdone")
        self.endpgm()
        e.label("L_exit")
        e("s_endpgm")
        return e.text()

HEAD = """; fused pre-LN GQA decode attention + GEGLU FFN, one persistent launch (256 workgroups, one per CU).
; @launch grid=(256,1,1) block=(512,1,1) lds={lds}
.amdgcn_target "amdgcn-amd-amdhsa--gfx950"
.text
.globl {name}
.p2align 8
.type {name},@function
{name}:
"""
TAIL = """.section .rodata,"a"
.p2align 6
.amdhsa_kernel {name}
  .amdhsa_next_free_vgpr 256
  .amdhsa_next_free_sgpr 102
  .amdhsa_accum_offset 256
  .amdhsa_group_segment_fixed_size 0
  .amdhsa_kernarg_size 96
  .amdhsa_user_sgpr_count 2
  .amdhsa_user_sgpr_kernarg_segment_ptr 1
  .amdhsa_system_sgpr_workgroup_id_x 1
.end_amdhsa_kernel
"""

def make(path, **kw):
    g = Gen(**kw)
    body = g.build()
    if g.hf != "sc1": body = body.replace(" sc1\n", f" {g.hf}\n").replace("sc0 sc0", "sc0")
    open(path, "w").write(HEAD.format(lds=LDS_SIZE, name=NAME) + body + TAIL.format(name=NAME))
    return g

if __name__ == "__main__":
    import argparse
    ap = argparse.ArgumentParser()
    ap.add_argument("out")
    ap.add_argument("--diag", action="store_true")
    ap.add_argument("--npro", type=int, default=40)
    ap.add_argument("--kvflags", default="nt")
    ap.add_argument("--wflags", default="nt")
    ap.add_argument("--qflags", default="nt")
    ap.add_argument("--noroles", action="store_true")
    ap.add_argument("--athr", type=int, default=13)
    ap.add_argument("--gsleep", type=int, default=4)
    ap.add_argument("--winfl", type=int, default=4)
    ap.add_argument("--dist", type=int, default=9)
    ap.add_argument("--thr", type=int, default=6)
    ap.add_argument("--vflags", default=None)
    ap.add_argument("--rot", type=int, default=1)
    ap.add_argument("--nt", type=int, default=32)
    ap.add_argument("--thrp", type=int, default=6)
    ap.add_argument("--npl", type=int, default=40)
    ap.add_argument("--gthr", type=int, default=6)
    ap.add_argument("--psleep", type=int, default=0)
    ap.add_argument("--hf", default="sc1")
    ap.add_argument("--nset", type=int, default=1)
    ap.add_argument("--pgap", type=int, default=2)
    ap.add_argument("--thr2", type=int, default=9)
    ap.add_argument("--nl2", type=int, default=0)
    ap.add_argument("--lateb", type=int, default=1)
    ap.add_argument("--latec", type=int, default=1)
    ap.add_argument("--winfl2", type=int, default=12)
    ap.add_argument("--qsleep", type=int, default=8)
    ap.add_argument("--qsleep0", type=int, default=32)
    ap.add_argument("--latea", type=int, default=0)
    ap.add_argument("--rorder", type=int, default=1)
    ap.add_argument("--nosoft", action="store_true")
    ap.add_argument("--noq", action="store_true")
    ap.add_argument("--trig", type=int, default=4)
    ap.add_argument("--aspec", type=int, default=8)
    a = ap.parse_args()
    g = make(a.out, diag=a.diag, npro=a.npro, kvflags=a.kvflags, wflags=a.wflags, qflags=a.qflags, noroles=a.noroles, athr=a.athr, gsleep=a.gsleep, winfl=a.winfl, dist=a.dist, nosoft=a.nosoft, noq=a.noq, trig=a.trig, aspec=a.aspec, thr=a.thr, vflags=a.vflags, rot=a.rot, nt=a.nt, thrp=a.thrp, npl=a.npl, gthr=a.gthr, psleep=a.psleep, hf=a.hf, nset=a.nset, pgap=a.pgap, thr2=a.thr2, nl2=a.nl2, lateb=a.lateb, latec=a.latec, winfl2=a.winfl2, qsleep=a.qsleep, qsleep0=a.qsleep0, latea=a.latea, rorder=a.rorder)
    print("pads inserted:", g.e.npad, "lines:", len(g.e.lines))
```

```python
import sys, struct, math
from emit import Emitter

NAME = "sequential_preLN__gqa_block_cached__geglu_ffn__decode_kernel"
def f2u(x): return struct.unpack("<I", struct.pack("<f", x))[0]

EPOCH = 0
QBUF = 0x140000
HBUF = 0x12000
YBUF = 0x14000
GBUF = 0x22000
PBUF = 0x40000
STAMP = 0x200000
WS_SIZE = 0x400000
QL = 0x0100
MISC = 0x0080
SML = 0x0000
STATS = 0x0600
AV = 0x0800
AVS = 1056
RED = 0x2A00
SO = 0x3000
STG = 0x5000
STGW = 28 * 1024
LDS_SIZE = STG + 4 * STGW

CSC = f2u(0.0625 * math.log2(math.e))
GOLD = 0x9E3779B9
TIMEOUT = 2000000

S_WAVE, S_GRP, S_SPL, S_B, S_HKV, S_HW, S_TAG = 3, 4, 5, 6, 7, 8, 9
P_X, P_K, P_V, P_WQ, P_WO, P_BX, P_WG, P_WU, P_WD, P_OUT, P_DBG, P_WS = [16 + 2 * i for i in range(12)]
R_K, R_V, R_WS, R_W, R_X, R_W2 = 40, 44, 48, 52, 56, 60
S_C = 10
S_TO = 11
ST0 = 72
S_TM = 96

class Gen:
    def __init__(self, diag=False, npro=32, kvflags="nt", wflags="", qflags="", noroles=False, athr=13, gsleep=4, winfl=1, dist=8, nosoft=False, noq=False, trig=2, aspec=2, thr=5, vflags=None, rot=1, nt=32, thrp=6, npl=32, gthr=6, psleep=0, hf="sc1", nset=2, pgap=2, thr2=9, nl2=0, lateb=1, latec=1, winfl2=12, qsleep=8, qsleep0=16, latea=0, rorder=0, tstride=0, otouch=1, seq=0):
        self.e = Emitter()
        self.diag = diag
        self.npro = npro
        self.kvflags = kvflags
        self.wflags = wflags
        self.qflags = qflags
        self.noroles = noroles
        self.athr = athr
        self.gsleep = gsleep
        self.winfl = winfl
        self.dist = dist
        self.nosoft = nosoft
        self.noq = noq
        self.trig = trig
        self.aspec = aspec
        self.thr = thr
        self.rot = rot
        self.nt = nt
        self.thrp = thrp
        self.npl = npl
        self.gthr = gthr
        self.psleep = psleep
        self.hf = hf
        self.nset = nset
        self.pgap = pgap
        self.thr2 = thr2
        self.nl2 = nl2
        self.lateb = lateb
        self.latec = latec
        self.winfl2 = winfl2
        self.qsleep = qsleep
        self.qsleep0 = qsleep0
        self.latea = latea
        self.rorder = rorder
        self.tstride = tstride
        self.otouch = otouch
        self.seq = seq
        self.vflags = kvflags if vflags is None else vflags
        self.uid = 0
        self.in_h = False
    def lab(self, s):
        self.uid += 1
        return f"L_{s}_{self.uid}"
    def srd(self, r, p, size):
        e = self.e
        e(f"s_mov_b32 s{r}, s{p}")
        e(f"s_mov_b32 s{r+1}, s{p+1}")
        e(f"s_mov_b32 s{r+2}, {size}")
        e(f"s_mov_b32 s{r+3}, 0x20000")
    def stamp(self, i):
        if self.diag and i in (6, 7) and self.in_h:
            self.e(f"s_mov_b32 s{ST0+2*(i+3)}, s{S_TO}")
        if self.diag:
            self.e(f"s_memrealtime s[{ST0+2*i}:{ST0+2*i+1}]")
            self.e("s_waitcnt lgkmcnt(0)")
    def stamp_init(self):
        if self.diag:
            for i in range(12):
                self.e(f"s_mov_b64 s[{ST0+2*i}:{ST0+2*i+1}], 0")
    def stamp_flush(self):
        if not self.diag: return
        e = self.e
        e("s_mov_b64 exec, -1")
        e(f"s_lshl_b32 s64, s2, 3")
        e(f"s_add_u32 s64, s64, s{S_WAVE}")
        e(f"s_lshl_b32 s64, s64, 6")
        e(f"s_add_u32 s64, s64, {STAMP}")
        e(f"s_getreg_b32 s65, hwreg(HW_REG_XCC_ID)")
        e(f"s_getreg_b32 s66, hwreg(HW_REG_HW_ID)")
        for i in range(12):
            e(f"v_mov_b32 v{2+i}, s{ST0+2*i}")
        e("v_mov_b32 v14, s65")
        e("v_mov_b32 v15, s66")
        e("v_mov_b32 v16, 0")
        e("v_mov_b32 v17, 0")
        e("s_mov_b64 exec, 1")
        for i in range(4):
            e(f"buffer_store_dwordx4 v[{2+4*i}:{5+4*i}], off, s[{R_WS}:{R_WS+3}], s64 offset:{16*i}")
        e("s_waitcnt vmcnt(0)")
    def endpgm(self):
        self.stamp_flush()
        self.e("s_endpgm")

    def rnd(self, v):
        self.e(f"v_cvt_pk_bf16_f32 v{v}, v{v}, v{v}")
        self.e(f"v_lshlrev_b32 v{v}, 16, v{v}")
    def rnd_many(self, vs):
        for v in vs: self.e(f"v_cvt_pk_bf16_f32 v{v}, v{v}, v{v}")
        for v in vs: self.e(f"v_lshlrev_b32 v{v}, 16, v{v}")
    def set_tag(self, src):
        self.e(f"s_add_u32 s{S_TAG}, s{src}, {GOLD:#x}")
        self.e(f"s_and_b32 s{S_TM}, s{S_TAG}, 0x3f")
    def tagw(self, dst, src, vmask):
        self.e(f"v_and_or_b32 v{dst}, v{src}, v{vmask}, s{S_TM}")
    def check_words(self, words, tmp, mant=True):
        e = self.e
        T = S_TM if mant else S_TAG
        acc = []
        n = len(words)
        for i in range(0, n - 1, 2):
            e(f"v_bitop3_b32 v{tmp+len(acc)}, v{words[i]}, v{words[i+1]}, s{T} bitop3:0x7e")
            acc.append(tmp + len(acc))
        if n % 2:
            e(f"v_xor_b32 v{tmp+len(acc)}, s{T}, v{words[-1]}")
            acc.append(tmp + len(acc))
        while len(acc) > 1:
            nxt = []
            while len(acc) >= 3:
                a, b, c = acc[:3]; acc = acc[3:]
                e(f"v_or3_b32 v{a}, v{a}, v{b}, v{c}"); nxt.append(a)
            if len(acc) == 2 and not nxt:
                e(f"v_or_b32 v{acc[0]}, v{acc[0]}, v{acc[1]}"); acc = [acc[0]]
            acc = nxt + acc
        if mant: e(f"v_and_b32 v{acc[0]}, 0x3f, v{acc[0]}")
        e(f"v_cmp_ne_u32 vcc, 0, v{acc[0]}")
    def sweep_all(self, loads, words, tmp, mant=True):
        e = self.e
        L = self.lab("sa"); Lx = self.lab("sax")
        e.label(L)
        if self.psleep: e(f"s_sleep {self.psleep}")
        for l in loads: e(l)
        e(f"s_sub_u32 s{S_TO}, s{S_TO}, 1")
        e("s_cbranch_scc1 L_hfail")
        e("s_waitcnt vmcnt(0)")
        self.check_words(words, tmp, mant)
        e(f"s_cbranch_vccnz {L}")
    def sweep_pipe(self, sets, tmp, mant, after, golabel):
        e = self.e
        n = len(sets); m = len(sets[0][0])
        L = self.lab("sp"); Lj = self.lab("spj")
        got = [self.lab("spg") for _ in sets]
        for i, (loads, words) in enumerate(sets):
            for l in loads: e(l)
            if i + 1 < n: e(f"s_sleep {self.pgap}")
        e.label(L)
        for i, (loads, words) in enumerate(sets):
            e(f"s_waitcnt vmcnt({m*(n-1)})")
            self.check_words(words, tmp, mant)
            e(f"s_cbranch_vccz {got[i]}")
            for l in loads: e(l)
        e(f"s_sub_u32 s{S_TO}, s{S_TO}, 1")
        e(f"s_cbranch_scc0 {L}")
        e("s_branch L_hfail")
        for i in reversed(range(n)):
            e.label(got[i])
            self.stamp(7)
            if i == 0: e.label(golabel)
            after(i)
            if i: e(f"s_branch {Lj}")
        e.label(Lj)
    def row_reduce(self, vs, op="add"):
        e = self.e
        for ctl in ("quad_perm:[1,0,3,2]", "quad_perm:[2,3,0,1]", "row_half_mirror", "row_mirror"):
            for v in vs:
                e(f"v_{op}_f32_dpp v{v}, v{v}, v{v} {ctl} row_mask:0xf bank_mask:0xf")
    def wave_sum_to_sgpr(self, vs, ss):
        e = self.e
        self.row_reduce(vs)
        for v in vs: e(f"v_add_f32_dpp v{v}, v{v}, v{v} row_bcast:15 row_mask:0xa bank_mask:0xf")
        for v in vs: e(f"v_add_f32_dpp v{v}, v{v}, v{v} row_bcast:31 row_mask:0xc bank_mask:0xf")
        for v, s in zip(vs, ss): e(f"v_readlane_b32 s{s}, v{v}, 63")
    def cross_rows(self, v, t, op):
        e = self.e
        e(f"v_mov_b32 v{t}, v{v}")
        e(f"v_permlane16_swap_b32 v{v}, v{t}")
        e(f"v_{op}_f32 v{v}, v{v}, v{t}")
        e(f"v_mov_b32 v{t}, v{v}")
        e(f"v_permlane32_swap_b32 v{v}, v{t}")
        e(f"v_{op}_f32 v{v}, v{v}, v{t}")

    def s_path(self):
        e = self.e
        KO0, KO1, VO = 2, 3, 4
        MK = 5
        MRUN, LRUN, NRUN = 9, 10, 11
        T = 12; PK = 16; MX, MX2, AL, ALD, NN = 18, 19, 20, 21, 22
        P = 24
        D0, D1, ACC0, ACC1, AF, QF, SLOT = 28, 32, 36, 40, 44, 60, 80
        S_BASE, S_O1, S_O2, S_CNT, S_R = 64, 65, 66, 67, 69
        def tile_off(dst, t):
            e(f"s_add_u32 s{dst}, s{S_R}, {t*32768}")
            e(f"s_and_b32 s{dst}, s{dst}, 0xfffff")
            e(f"s_add_u32 s{dst}, s{dst}, s{S_BASE}")
        NT = self.nt
        e("v_and_b32 v12, 15, v1")
        e("v_lshrrev_b32 v13, 4, v1")
        e("v_and_b32 v14, 7, v12")
        e("v_lshrrev_b32 v15, 3, v12")
        e(f"v_lshlrev_b32 v{KO0}, 9, v14")
        e("v_lshl_add_u32 v16, v15, 2, v13")
        e(f"v_lshl_add_u32 v{KO0}, v16, 4, v{KO0}")
        e(f"v_add_u32 v{KO1}, 0x1000, v{KO0}")
        e(f"v_lshlrev_b32 v{VO}, 11, v13")
        e(f"v_lshl_add_u32 v{VO}, v12, 4, v{VO}")
        e("s_mov_b32 s68, 0")
        e(f"s_lshl_b32 s{S_BASE}, s2, 20")
        e(f"s_lshl_b32 s65, s{S_HW}, 13")
        e(f"s_add_u32 s{S_BASE}, s{S_BASE}, s65")
        if self.rot == 2: e(f"s_and_b32 s{S_R}, s2, 31")
        else: e(f"s_lshr_b32 s{S_R}, s2, 3")
        e(f"s_lshl_b32 s{S_R}, s{S_R}, {15 if self.rot else 20}")
        e("s_waitcnt lgkmcnt(0)")
        self.srd(R_K, P_K, 1 << 28)
        self.srd(R_V, P_V, 1 << 28)
        state = dict(issued=-1)
        def slot_regs(s): return f"v[{SLOT+4*s}:{SLOT+4*s+3}]"
        def issue(n, slot, soff):
            i = n % 16
            if self.seq: i = n % 8 + (8 if n >= 8 * NT else 0)
            if i < 8:
                G, j = i >> 2, i & 3
                e(f"buffer_load_dwordx4 {slot_regs(slot)}, v{KO0+G}, s[{R_K}:{R_K+3}], s{soff} offen offset:{j*128} {self.kvflags}")
            else:
                i -= 8
                e(f"buffer_load_dwordx4 {slot_regs(slot)}, v{VO}, s[{R_V}:{R_V+3}], s{soff} offen offset:{(i>>1)*512+(i&1)*256} {self.vflags}")
        npro = self.npro
        assert 16 <= npro <= 44
        for n in range(npro):
            if n % (8 if self.seq else 16) == 0:
                tile_off(S_O1, n // (8 if self.seq else 16))
            tp = self.thrp if n < self.npl else self.thr
            if n >= tp: e(f"s_waitcnt vmcnt({tp-1})")
            issue(n, n, S_O1)
            if n in (5, 13, 19, 25): self.stamp({5: 6, 13: 7, 19: 9, 25: 10}[n])
            if n == 7:
                self.stamp(4)
                self.srd(R_WS, P_WS, WS_SIZE)
                e(f"s_mov_b32 s{S_C}, {CSC:#x}")
                e("v_lshrrev_b32 v16, 1, v14")
                e("v_and_b32 v17, 1, v14")
                e("v_mov_b32 v18, 0xffff")
                e("v_lshlrev_b32 v17, 4, v17")
                e("v_lshlrev_b32 v18, v17, v18")
                for i in range(4):
                    e(f"v_cmp_eq_u32 vcc, {i}, v16")
                    e(f"v_cndmask_b32 v{MK+i}, 0, v18, vcc")
                e(f"v_mov_b32 v{MRUN}, 0xff800000")
                e(f"v_mov_b32 v{NRUN}, 0x7f800000")
                e(f"v_mov_b32 v{LRUN}, 0")
                for i in range(8): e(f"v_mov_b32 v{ACC0+i}, 0")
                e("v_bfe_u32 v16, v12, 2, 1")
                e("v_lshl_add_u32 v16, v16, 2, v13")
                e("v_lshlrev_b32 v23, 9, v15")
                e("v_lshl_add_u32 v23, v16, 4, v23")
                e("v_lshrrev_b32 v16, 1, v13")
                e("v_and_b32 v17, 1, v13")
                e("v_lshlrev_b32 v76, 10, v16")
                e("v_lshl_add_u32 v76, v12, 5, v76")
                e("v_lshl_add_u32 v76, v17, 4, v76")
                e(f"s_lshl_b32 s70, s{S_HW}, 11")
                e("v_add_u32 v76, s70, v76")
                e(f"s_lshl_b32 s70, s{S_HW}, 4")
                e("v_add_u32 v77, s70, v1")
                e("v_mov_b32 v78, 1")
                e("v_mov_b32 v79, 0")
                if self.seq:
                    e("v_lshl_add_u32 v20, v15, 2, v13")
                    e("v_lshlrev_b32 v20, 3, v20")
                    e(f"s_lshl_b32 s70, s{S_HW}, 11")
                    e("v_add_u32 v20, s70, v20")
                    e("v_mov_b32 v21, v20")
        self.stamp(5)
        if not self.noq: e("s_barrier")
        self.stamp(1)
        for j in range(4):
            e(f"ds_read_b128 v[{QF+4*j}:{QF+4*j+3}], v23 offset:{QL+j*128}")
        e(f"ds_read_b32 v23, v79 offset:{MISC}")
        e("s_waitcnt lgkmcnt(0)")
        e(f"v_readfirstlane_b32 s{S_TAG}, v23")

        def softmax(point):
            for r in range(4): e(f"v_permlane32_swap_b32 v{D0+r}, v{D1+r}")
            for r in range(4): e(f"v_add_f32_dpp v{T+r}, v{D1+r}, v{D0+r} row_half_mirror row_mask:0xf bank_mask:0x5")
            for r in range(4): e(f"v_add_f32_dpp v{T+r}, v{D0+r}, v{D1+r} row_half_mirror row_mask:0xf bank_mask:0xa")
            e(f"v_cvt_pk_bf16_f32 v{PK}, v{T}, v{T+1}")
            e(f"v_cvt_pk_bf16_f32 v{PK+1}, v{T+2}, v{T+3}")
            e(f"v_lshlrev_b32 v{T}, 16, v{PK}")
            e(f"v_and_b32 v{T+1}, 0xffff0000, v{PK}")
            e(f"v_lshlrev_b32 v{T+2}, 16, v{PK+1}")
            e(f"v_and_b32 v{T+3}, 0xffff0000, v{PK+1}")
            point()
            e(f"v_max3_f32 v{MX}, v{T}, v{T+1}, v{T+2}")
            e(f"v_max3_f32 v{MX}, v{MX}, v{T+3}, v{MRUN}")
            self.cross_rows(MX, MX2, "max")
            e(f"v_mov_b32 v{MRUN}, v{MX}")
            e(f"v_mul_f32 v{NN}, s{S_C}, v{MX}")
            e(f"v_sub_f32 v{AL}, 0, v{NN}")
            for r in range(4): e(f"v_fma_f32 v{P+r}, v{T+r}, s{S_C}, v{AL}")
            e(f"v_sub_f32 v{NN}, v{AL}, v{NRUN}")
            e(f"v_mov_b32 v{NRUN}, v{AL}")
            e(f"v_exp_f32 v{AL}, v{NN}")
            for r in range(4): e(f"v_exp_f32 v{P+r}, v{P+r}")
            point()
            e(f"v_mov_b32 v{ALD}, v{AL}")
            e(f"v_mul_f32 v{LRUN}, v{LRUN}, v{AL}")
            e(f"v_mov_b32_dpp v{ALD}, v{AL} row_shr:8 row_mask:0x3 bank_mask:0xc")
            e(f"v_mov_b32_dpp v{ALD}, v{AL} row_shl:8 row_mask:0xc bank_mask:0x3")
            for r in range(4): e(f"v_cvt_pk_bf16_f32 v{T+r}, v{P+r}, v{P+r}")
            e(f"v_add_f32 v{P}, v{P}, v{P+1}")
            e(f"v_add_f32 v{P+2}, v{P+2}, v{P+3}")
            for i in range(4): e(f"v_and_b32 v{AF+i}, v{T}, v{MK+i}")
            for i in range(8): e(f"v_mul_f32 v{ACC0+i}, v{ACC0+i}, v{ALD}")
            e(f"v_add_f32 v{P}, v{P}, v{P+2}")
            for r in range(1, 4):
                for i in range(4): e(f"v_and_b32 v{AF+4*r+i}, v{T+r}, v{MK+i}")
            e(f"v_add_f32 v{LRUN}, v{LRUN}, v{P}")

        if self.seq:
            d = self.dist; thr = self.thr
            NK = 8 * NT
            S_O3 = 70
            def slot_of(n): return n if n < npro else n % 16
            st = dict(k=npro)
            def unit(u, steady, par):
                isk = u < NT
                st["j"] = 0
                st["last"] = 8 * u - 1
                def point():
                    j = st["j"]; st["j"] += 1
                    k = st["k"]
                    want = 8 * u + d + j
                    prev = k - 16 if k - 16 >= npro else k % 16
                    if prev > st["last"]:
                        assert not steady
                        return
                    if k > want and j % 2 == 0: return
                    if steady:
                        assert k == want
                        so = (S_O1, S_O2, S_O3)[k // 8 - (u - par) - 1]
                    else:
                        if st.get("so") != k // 8:
                            tile_off(S_O2, k // 8)
                            st["so"] = k // 8
                        so = S_O2
                    e(f"s_waitcnt vmcnt({thr-1})")
                    issue(k, slot_of(k), so)
                    st["k"] = k + 1
                if not isk:
                    SC = 16 + 2 * par
                    e("s_waitcnt lgkmcnt(0)")
                    e(f"ds_read_b64 v[{18-2*par}:{19-2*par}], v21 offset:{SO + 64*(par+1)}")
                    e(f"v_lshlrev_b32 v{T}, 16, v{SC}")
                    e(f"v_and_b32 v{T+1}, 0xffff0000, v{SC}")
                    e(f"v_lshlrev_b32 v{T+2}, 16, v{SC+1}")
                    e(f"v_and_b32 v{T+3}, 0xffff0000, v{SC+1}")
                    for r in range(4): e(f"v_fma_f32 v{P+r}, v{T+r}, s{S_C}, v{NRUN}")
                    for r in range(4): e(f"v_exp_f32 v{P+r}, v{P+r}")
                    for r in range(4): e(f"v_cvt_pk_bf16_f32 v{T+r}, v{P+r}, v{P+r}")
                    point()
                    for i in range(4): e(f"v_and_b32 v{AF+i}, v{T}, v{MK+i}")
                    e(f"v_add_f32 v{P}, v{P}, v{P+1}")
                    e(f"v_add_f32 v{P+2}, v{P+2}, v{P+3}")
                    for r in range(1, 4):
                        for i in range(4): e(f"v_and_b32 v{AF+4*r+i}, v{T+r}, v{MK+i}")
                    e(f"v_add_f32 v{P}, v{P}, v{P+2}")
                    e(f"v_add_f32 v{LRUN}, v{LRUN}, v{P}")
                for i in range(8):
                    n = 8 * u + i
                    w = st["k"] - 1 - n
                    assert w >= 0
                    if w < thr or not steady: e(f"s_waitcnt vmcnt({min(63, w)})")
                    if isk:
                        G, j = i >> 2, i & 3
                        D = D0 if G == 0 else D1
                        c = "0" if j == 0 else f"v[{D}:{D+3}]"
                        e(f"v_mfma_f32_16x16x32_bf16 v[{D}:{D+3}], {slot_regs(slot_of(n))}, v[{QF+4*j}:{QF+4*j+3}], {c}")
                    else:
                        j, hf = i >> 1, i & 1
                        A = ACC0 if hf == 0 else ACC1
                        e(f"v_mfma_f32_16x16x32_bf16 v[{A}:{A+3}], v[{AF+4*j}:{AF+4*j+3}], {slot_regs(slot_of(n))}, v[{A}:{A+3}]")
                    st["last"] = n
                    if i != 7 or isk: point()
                if isk:
                    for r in range(4): e(f"v_permlane32_swap_b32 v{D0+r}, v{D1+r}")
                    for r in range(4): e(f"v_add_f32_dpp v{T+r}, v{D1+r}, v{D0+r} row_half_mirror row_mask:0xf bank_mask:0x5")
                    for r in range(4): e(f"v_add_f32_dpp v{T+r}, v{D0+r}, v{D1+r} row_half_mirror row_mask:0xf bank_mask:0xa")
                    e(f"v_cvt_pk_bf16_f32 v{PK}, v{T}, v{T+1}")
                    e(f"v_cvt_pk_bf16_f32 v{PK+1}, v{T+2}, v{T+3}")
                    e(f"v_max3_f32 v{MRUN}, v{T}, v{T+1}, v{MRUN}")
                    e(f"ds_write_b64 v20, v[{PK}:{PK+1}] offset:{SO + (64*par if steady else 64*u)}")
                    e(f"v_max3_f32 v{MRUN}, v{T+2}, v{T+3}, v{MRUN}")
            def offsets(last_oob):
                for i, so in enumerate((S_O1, S_O2, S_O3)):
                    e(f"s_add_u32 s{so}, s{S_R}, {i*32768}")
                    e(f"s_and_b32 s{so}, s{so}, 0xfffff")
                    e(f"s_add_u32 s{so}, s{so}, s{S_BASE}")
                e(f"s_add_u32 s{S_R}, s{S_R}, 65536")
                if last_oob:
                    e(f"s_cmp_eq_u32 s{S_CNT}, 1")
                    e(f"s_cselect_b32 s{S_O2}, 0x80000000, s{S_O2}")
                    e(f"s_cselect_b32 s{S_O3}, 0x80000000, s{S_O3}")
            assert 8 < d <= 16
            u = 0
            while not (st["k"] - 8 * u == d and 8 * u >= npro and u % 2 == 0):
                unit(u, False, 0)
                u += 1
            ufirst = u
            self.stamp(8)
            e(f"s_add_u32 s{S_R}, s{S_R}, {(ufirst+1)*32768}")
            e(f"v_add_u32 v20, {64*ufirst}, v20")
            e(f"s_mov_b32 s{S_CNT}, {(NT-ufirst)//2 - 1}")
            L = self.lab("kloop")
            e.label(L)
            offsets(False)
            unit(ufirst, True, 0); unit(ufirst + 1, True, 1)
            e("v_add_u32 v20, 128, v20")
            e(f"s_sub_u32 s{S_CNT}, s{S_CNT}, 1")
            e(f"s_cmp_lg_u32 s{S_CNT}, 0")
            e(f"s_cbranch_scc1 {L}")
            offsets(False)
            st["k"] = 8 * (NT - 2) + d
            unit(NT - 2, True, 0); unit(NT - 1, True, 1)
            e(f"ds_read_b64 v[16:17], v21 offset:{SO}")
            self.cross_rows(MRUN, MX2, "max")
            self.rnd(MRUN)
            e(f"v_mul_f32 v{NRUN}, s{S_C}, v{MRUN}")
            e(f"v_sub_f32 v{NRUN}, 0, v{NRUN}")
            e(f"s_mov_b32 s{S_CNT}, {NT//2}")
            L = self.lab("vloop")
            e.label(L)
            offsets(True)
            e(f"v_mov_b32 v23, s{S_CNT}")
            e(f"ds_write_b32 v79, v23 offset:{MISC+12}")
            unit(NT, True, 0); unit(NT + 1, True, 1)
            e("v_add_u32 v21, 128, v21")
            e(f"s_sub_u32 s{S_CNT}, s{S_CNT}, 1")
            e(f"s_cmp_lg_u32 s{S_CNT}, 0")
            e(f"s_cbranch_scc1 {L}")
            e("s_waitcnt lgkmcnt(0)")
        else:
            d = self.dist
            NL = NT * 16
            def slot_of(n): return n if n < npro else n % 16
            def consume(n):
                i = n % 16
                if i < 8:
                    G, j = i >> 2, i & 3
                    D = D0 if G == 0 else D1
                    c = "0" if j == 0 else f"v[{D}:{D+3}]"
                    e(f"v_mfma_f32_16x16x32_bf16 v[{D}:{D+3}], {slot_regs(slot_of(n))}, v[{QF+4*j}:{QF+4*j+3}], {c}")
                else:
                    i -= 8
                    j, hf = i >> 1, i & 1
                    A = ACC0 if hf == 0 else ACC1
                    e(f"v_mfma_f32_16x16x32_bf16 v[{A}:{A+3}], v[{AF+4*j}:{AF+4*j+3}], {slot_regs(slot_of(n))}, v[{A}:{A+3}]")
            st = dict(k=npro)
            def tile(t, steady, thr=None):
                thr = self.thr if thr is None else thr
                st["j"] = 0
                st["last"] = 16 * t - 1
                def point():
                    j = st["j"]; st["j"] += 1
                    k = st["k"]
                    want = 16 * t + d + j
                    prev = k - 16 if k - 16 >= npro else k % 16
                    if prev > st["last"]:
                        assert not steady
                        return
                    if k > want and j % 2 == 0: return
                    if steady:
                        assert k == want
                        so = S_O1 if k // 16 == t else S_O2
                    else:
                        if st.get("so") != k // 16:
                            tile_off(S_O2, k // 16)
                            st["so"] = k // 16
                        so = S_O2
                    e(f"s_waitcnt vmcnt({thr-1})")
                    issue(k, slot_of(k), so)
                    st["k"] = k + 1
                for i in range(16):
                    n = 16 * t + i
                    if i == 8: softmax(point)
                    w = st["k"] - 1 - n
                    assert w >= 0
                    if w < thr or not steady: e(f"s_waitcnt vmcnt({min(63, w)})")
                    consume(n)
                    st["last"] = n
                    if i % 8 != 7: point()
            t = 0
            while not (st["k"] - 16 * t == d and 16 * t >= npro):
                tile(t, False)
                t += 1
            tfirst = t
            self.stamp(8)
            tile_off(S_O1, tfirst)
            e(f"s_add_u32 s{S_R}, s{S_R}, {tfirst*32768}")
            e(f"s_mov_b32 s{S_CNT}, {NT-tfirst}")
            for thr, stop in ([(self.thr, self.nl2), (self.thr2, 0)] if self.nl2 else [(self.thr, 0)]):
                L = self.lab("sloop")
                e.label(L)
                e(f"s_add_u32 s{S_R}, s{S_R}, 32768")
                e(f"s_and_b32 s{S_O2}, s{S_R}, 0xfffff")
                e(f"s_add_u32 s{S_O2}, s{S_O2}, s{S_BASE}")
                e(f"v_mov_b32 v23, s{S_CNT}")
                e(f"s_cmp_eq_u32 s{S_CNT}, 1")
                e(f"s_cselect_b32 s{S_O2}, 0x80000000, s{S_O2}")
                e(f"ds_write_b32 v79, v23 offset:{MISC+12}")
                st["k"] = 16 * tfirst + d
                tile(tfirst, True, thr)
                e(f"s_mov_b32 s{S_O1}, s{S_O2}")
                e(f"s_sub_u32 s{S_CNT}, s{S_CNT}, 1")
                e(f"s_cmp_lg_u32 s{S_CNT}, {stop}")
                e(f"s_cbranch_scc1 {L}")
        self.stamp(2)
        self.cross_rows(LRUN, MX2, "add")
        e(f"ds_write_b128 v76, v[{ACC0}:{ACC0+3}] offset:{SO}")
        e(f"ds_write_b128 v76, v[{ACC1}:{ACC1+3}] offset:{SO+512}")
        e("s_mov_b64 exec, 0x101")
        e(f"ds_write2_b32 v77, v{NRUN}, v{LRUN} offset0:{SML//4} offset1:{SML//4+1}") if SML // 4 + 1 < 256 else None
        e("s_mov_b64 exec, 1")
        e(f"ds_add_rtn_u32 v22, v79, v78 offset:{MISC+4}")
        e("s_mov_b64 exec, -1")
        e("s_waitcnt lgkmcnt(0)")
        e("v_readfirstlane_b32 s64, v22")
        e("s_cmp_eq_u32 s64, 3")
        Ld = self.lab("slast")
        e(f"s_cbranch_scc1 {Ld}")
        self.endpgm()
        e.label(Ld)
        e("s_waitcnt vmcnt(0)")
        e.label("L_sfinal")
        e("v_mov_b32 v20, 0")
        e("v_lshlrev_b32 v22, 4, v1")
        for w in range(4):
            e(f"ds_read_b128 v[{24+4*w}:{27+4*w}], v20 offset:{SML+16*w}")
        OB = 80
        for h in range(2):
            for w in range(4):
                r = OB + (h * 4 + w) * 4
                e(f"ds_read_b128 v[{r}:{r+3}], v22 offset:{SO + w*2048 + h*1024}")
        e(f"s_and_b32 s{S_TM}, s{S_TAG}, 0x3f")
        e("v_mov_b32 v21, 0xffffffc0")
        e("s_waitcnt lgkmcnt(8)")
        for h in range(2):
            n = [24 + 4 * w + 2 * h for w in range(4)]
            e(f"v_min3_f32 v{40+h}, v{n[0]}, v{n[1]}, v{n[2]}")
            e(f"v_min_f32 v{40+h}, v{40+h}, v{n[3]}")
        for h in range(2):
            for w in range(4):
                e(f"v_sub_f32 v{44+4*h+w}, v{40+h}, v{24+4*w+2*h}")
        for i in range(8): e(f"v_exp_f32 v{44+i}, v{44+i}")
        for h in range(2):
            e(f"v_mul_f32 v{42+h}, v{44+4*h}, v{25+2*h}")
        for w in range(1, 4):
            for h in range(2):
                e(f"v_fmac_f32 v{42+h}, v{44+4*h+w}, v{25+4*w+2*h}")
        for h in range(2): e(f"v_rcp_f32 v{52+h}, v{42+h}")
        for h in range(2): e(f"v_log_f32 v{54+h}, v{42+h}")
        for h in range(2):
            for w in range(4): e(f"v_mul_f32 v{44+4*h+w}, v{44+4*h+w}, v{52+h}")
        for h in range(2): e(f"v_sub_f32 v{54+h}, v{54+h}, v{40+h}")
        e(f"s_lshl_b32 s64, s2, 11")
        e(f"s_add_u32 s64, s64, {PBUF}")
        for h in range(2):
            e(f"s_waitcnt lgkmcnt({4-4*h})")
            o = 56 + 4 * h
            for i in range(4): e(f"v_mul_f32 v{o+i}, v{44+4*h}, v{OB+h*16+i}")
            for w in range(1, 4):
                for i in range(4): e(f"v_fmac_f32 v{o+i}, v{44+4*h+w}, v{OB+h*16+w*4+i}")
            for i in range(4): self.tagw(o + i, o + i, 21)
        e("v_cmp_eq_u32 vcc, 1, v1")
        e("v_cndmask_b32 v72, v54, v55, vcc")
        e(f"v_mov_b32 v73, s{S_TAG}")
        e("v_lshlrev_b32 v23, 11, v1")
        e("s_lshl_b32 s65, s2, 3")
        e(f"s_add_u32 s65, s65, {HBUF}")
        e("s_cmp_eq_u32 s68, 1")
        e("s_cbranch_scc1 L_sfinal_back")
        for h in range(2):
            o = 56 + 4 * h
            e(f"buffer_store_dwordx4 v[{o}:{o+3}], v22, s[{R_WS}:{R_WS+3}], s64 offen offset:{h*1024} sc1")
        e("s_mov_b64 exec, 3")
        e(f"buffer_store_dwordx2 v[72:73], v23, s[{R_WS}:{R_WS+3}], s65 offen sc1")
        e(f"ds_add_u32 v79, v78 offset:{MISC+4}")
        self.stamp(3)
        self.endpgm()

    def h_consts(self):
        e = self.e
        e("v_and_b32 v4, 15, v1")
        e("v_lshrrev_b32 v5, 4, v1")
        e("v_lshrrev_b32 v6, 2, v4")
        e("v_lshl_add_u32 v6, v5, 3, v6")
        e("v_and_b32 v7, 3, v4")
        e("v_lshlrev_b32 v7, 3, v7")
        e("v_and_b32 v8, 1, v1")
        e(f"v_mul_u32_u24 v8, {AVS}, v8")
        e("v_lshl_add_u32 v3, v5, 4, v8")
    def tr_addr(self, lgpitch, sbase):
        e = self.e
        e(f"v_lshl_add_u32 v2, v6, {lgpitch}, v7")
        e(f"v_add_u32 v2, s{sbase}, v2")
    def dma_voff(self, rowbytes, lgpitch, vout):
        e = self.e
        sh = lgpitch - 4
        e(f"v_lshrrev_b32 v{vout}, {sh}, v1")
        e(f"v_mul_u32_u24 v{vout}, {rowbytes}, v{vout}")
        e(f"v_and_b32 v{vout+1}, {(1<<sh)-1}, v1")
        e(f"v_lshl_add_u32 v{vout}, v{vout+1}, 4, v{vout}")
    def dma_loop(self, srd, voff, n, s_src, src_step, s_dst, inflight=None):
        e = self.e
        L = self.lab("dma")
        inflight = self.winfl_cur
        e(f"s_mov_b32 s66, {n}")
        e.label(L)
        e(f"s_mov_b32 m0, s{s_dst}")
        e(f"s_add_u32 s{s_dst}, s{s_dst}, 1024")
        e(f"buffer_load_dwordx4 v{voff}, s[{srd}:{srd+3}], s{s_src} offen {self.wflags} lds")
        e(f"s_add_u32 s{s_src}, s{s_src}, {src_step}")
        if inflight < 32: e(f"s_waitcnt vmcnt({inflight-1})")
        e("s_sub_u32 s66, s66, 1")
        e("s_cmp_lg_u32 s66, 0")
        e(f"s_cbranch_scc1 {L}")
    def h_sync(self):
        e = self.e
        L = self.lab("hs"); Lx = self.lab("hsx")
        e("s_waitcnt vmcnt(0)")
        e("v_mov_b32 v8, 0")
        e("v_mov_b32 v9, 1")
        e("s_mov_b64 exec, 1")
        e(f"ds_add_u32 v8, v9 offset:{MISC+8}")
        e("s_mov_b64 exec, -1")
        e.label(L)
        e(f"ds_read_b32 v9, v8 offset:{MISC+8}")
        e("s_waitcnt lgkmcnt(0)")
        e("v_readfirstlane_b32 s64, v9")
        e("s_cmp_ge_u32 s64, 4")
        e(f"s_cbranch_scc1 {Lx}")
        e("s_sleep 2")
        e(f"s_sub_u32 s{S_TO}, s{S_TO}, 1")
        e(f"s_cmp_lg_u32 s{S_TO}, 0")
        e(f"s_cbranch_scc1 {L}")
        e(f"s_branch L_hfail")
        e.label(Lx)
    def tr_frags(self, nsteps, off, fbase, lgpitch):
        e = self.e
        for st in range(nsteps):
            f = fbase + 4 * st
            o = off + st * (32 << lgpitch)
            assert o + (4 << lgpitch) < 65536
            e(f"ds_read_b64_tr_b16 v[{f}:{f+1}], v2 offset:{o}")
            e(f"ds_read_b64_tr_b16 v[{f+2}:{f+3}], v2 offset:{o + (4 << lgpitch)}")
            if st % 4 == 3: e("s_waitcnt lgkmcnt(0)")
        e("s_waitcnt lgkmcnt(0)")
    def gemv(self, nsteps, abase, a_lds_off, chains, vaddr=3, ahead=12):
        e = self.e
        AHEAD = ahead
        def rd(st): e(f"ds_read_b128 v[{abase+4*st}:{abase+4*st+3}], v{vaddr} offset:{a_lds_off+st*64}")
        issued = min(nsteps, AHEAD)
        for st in range(issued): rd(st)
        for st in range(nsteps):
            e(f"s_waitcnt lgkmcnt({issued - 1 - st})")
            for D, fb in chains:
                c = "0" if st == 0 else f"v[{D}:{D+3}]"
                e(f"v_mfma_f32_16x16x32_bf16 v[{D}:{D+3}], v[{abase+4*st}:{abase+4*st+3}], v[{fb+4*st}:{fb+4*st+3}], {c}")
            if issued < nsteps:
                rd(issued); issued += 1
    def lds_wait(self, off, cmp, val, sleep=4, sreg=64):
        e = self.e
        L = self.lab("lw"); Lx = self.lab("lwx")
        e("v_mov_b32 v8, 0")
        e.label(L)
        e(f"ds_read_b32 v9, v8 offset:{off}")
        e("s_waitcnt lgkmcnt(0)")
        e(f"v_readfirstlane_b32 s{sreg}, v9")
        e(f"s_cmp_{cmp}_u32 s{sreg}, {val}")
        e(f"s_cbranch_scc1 {Lx}")
        e(f"s_sleep {sleep}")
        e(f"s_sub_u32 s{S_TO}, s{S_TO}, 1")
        e(f"s_cmp_lg_u32 s{S_TO}, 0")
        e(f"s_cbranch_scc1 {L}")
        e(f"s_branch L_hfail")
        e.label(Lx)
    def lds_set(self, off, src):
        e = self.e
        e("v_mov_b32 v8, 0")
        e(f"v_mov_b32 v9, {src}")
        e(f"ds_write_b32 v8, v9 offset:{off}")
    def bar(self):
        e = self.e
        L = self.lab("nb")
        e("s_cmp_eq_u32 s68, 1")
        e(f"s_cbranch_scc1 {L}")
        e("s_barrier")
        e.label(L)
    def gate_all(self):
        e = self.e
        L = self.lab("gate"); Lx = self.lab("gatex"); Lo = self.lab("gateo"); Le = self.lab("gatee")
        e(f"s_cmp_lg_u32 s{S_HW}, 0")
        e(f"s_cbranch_scc1 {Lo}")
        e("v_lshlrev_b32 v8, 5, v1")
        e(f"s_mov_b32 s64, {HBUF}")
        e.label(L)
        e(f"buffer_load_dwordx4 v[40:43], v8, s[{R_WS}:{R_WS+3}], s64 offen sc1")
        e(f"buffer_load_dwordx4 v[44:47], v8, s[{R_WS}:{R_WS+3}], s64 offen offset:16 sc1")
        e("s_waitcnt vmcnt(0)")
        e(f"v_xor_b32 v41, s{S_TAG}, v41")
        e(f"v_xor_b32 v43, s{S_TAG}, v43")
        e(f"v_xor_b32 v45, s{S_TAG}, v45")
        e(f"v_xor_b32 v47, s{S_TAG}, v47")
        e("v_or3_b32 v41, v41, v43, v45")
        e("v_or_b32 v41, v41, v47")
        e("v_cmp_ne_u32 vcc, 0, v41")
        e("s_bcnt1_i32_b64 s65, vcc")
        e(f"s_cmp_le_u32 s65, {self.gthr}")
        e(f"s_cbranch_scc1 {Lx}")
        e("s_mov_b64 exec, vcc")
        e(f"s_sleep {self.gsleep}")
        e(f"s_sub_u32 s{S_TO}, s{S_TO}, 1")
        e(f"s_cmp_lg_u32 s{S_TO}, 0")
        e(f"s_cbranch_scc1 {L}")
        e(f"s_branch L_hfail")
        e.label(Lx)
        e("s_mov_b64 exec, -1")
        self.lds_set(MISC + 20, 1)
        e(f"s_branch {Le}")
        e.label(Lo)
        self.lds_wait(MISC + 20, "eq", 1, 2)
        e.label(Le)
    def ln_finish(self, mean, var, out_mb, out_rs):
        e = self.e
        for m, o in zip(mean, out_mb):
            if m != o: e(f"v_mov_b32 v{o}, v{m}")
        self.rnd_many(list(out_mb) + list(var))
        for v in var: e(f"v_add_f32 v{v}, {f2u(1e-5):#x}, v{v}")
        self.rnd_many(var)
        for v in var: e(f"v_sqrt_f32 v{v}, v{v}")
        self.rnd_many(var)
        for v, o in zip(var, out_rs): e(f"v_rcp_f32 v{o}, v{v}")

    def q_path(self):
        e = self.e
        e("v_lshlrev_b32 v8, 4, v1")
        e("v_cmp_gt_u32 s[70:71], 56, v1")
        e("v_mov_b32 v9, 0x10000")
        e("v_cndmask_b32 v8, v9, v8, s[70:71]")
        e(f"buffer_load_dwordx4 v[12:15], v8, s[{R_X}:{R_X+3}], 0 offen")
        e(f"buffer_load_dwordx4 v[16:19], v8, s[{R_X}:{R_X+3}], 0 offen offset:896")
        e(f"buffer_load_dword v10, off, s[{R_WS}:{R_WS+3}], 0 offset:{EPOCH} sc1")
        e(f"s_and_b32 s12, s{S_SPL}, 3")
        e(f"s_lshr_b32 s13, s{S_SPL}, 2")
        e(f"s_lshl_b32 s64, s{S_B}, 2")
        e("s_add_u32 s13, s13, s64")
        e(f"s_mul_i32 s64, s12, {112*8192}")
        e(f"s_lshl_b32 s65, s{S_HKV}, 10")
        e("s_add_u32 s64, s64, s65")
        e("s_lshl_b32 s65, s13, 7")
        e("s_add_u32 s64, s64, s65")
        self.srd(R_W, P_WQ, 448 * 8192)
        self.dma_voff(8192, 7, 20)
        for st in range(14):
            e(f"s_mov_b32 m0, {STG + st*1024}")
            if st: e(f"s_add_u32 s64, s64, {8*8192}")
            e(f"buffer_load_dwordx4 v20, s[{R_W}:{R_W+3}], s64 offen {self.qflags} lds")
        self.stamp(9)
        self.h_consts()
        e("v_mov_b32 v20, 0")
        e("v_mov_b32 v21, 0")
        e("v_mov_b32 v21, 0x7fff")
        e(f"ds_write_b64 v20, v[20:21] offset:{MISC+8}")
        e("v_mov_b32 v21, 0")
        e(f"ds_write_b64 v20, v[20:21] offset:{MISC+16}")
        e(f"ds_write_b32 v20, v20 offset:{MISC+4}")
        e("s_waitcnt vmcnt(15)")
        self.stamp(10)
        for b in range(2):
            for i in range(4):
                e(f"v_lshlrev_b32 v{24+8*b+2*i}, 16, v{12+4*b+i}")
                e(f"v_and_b32 v{25+8*b+2*i}, 0xffff0000, v{12+4*b+i}")
        for b in range(2):
            x = 24 + 8 * b
            e(f"v_add_f32 v{40+b}, v{x}, v{x+1}")
            for i in range(2, 8): e(f"v_add_f32 v{40+b}, v{40+b}, v{x+i}")
        self.wave_sum_to_sgpr([40, 41], [64, 65])
        inv = f2u(1.0 / 448)
        for b in range(2):
            e(f"v_mov_b32 v{42+b}, {inv:#x}")
            e(f"v_mul_f32 v{42+b}, s{64+b}, v{42+b}")
        for b in range(2):
            x = 24 + 8 * b
            e(f"v_sub_f32 v44, v{x}, v{42+b}")
            e(f"v_mul_f32 v{40+b}, v44, v44")
            for i in range(1, 8):
                e(f"v_sub_f32 v44, v{x+i}, v{42+b}")
                e(f"v_fmac_f32 v{40+b}, v44, v44")
            e(f"v_cndmask_b32 v{40+b}, 0, v{40+b}, s[70:71]")
        self.wave_sum_to_sgpr([40, 41], [64, 65])
        for b in range(2):
            e(f"v_mov_b32 v{44+b}, {inv:#x}")
            e(f"v_mul_f32 v{44+b}, s{64+b}, v{44+b}")
        self.ln_finish([42, 43], [44, 45], [42, 43], [46, 47])
        for b in range(2):
            x = 24 + 8 * b
            for i in range(8): e(f"v_sub_f32 v{x+i}, v{x+i}, v{42+b}")
            for i in range(4): e(f"v_cvt_pk_bf16_f32 v{12+4*b+i}, v{x+2*i}, v{x+2*i+1}")
            for i in range(4):
                e(f"v_lshlrev_b32 v{x+2*i}, 16, v{12+4*b+i}")
                e(f"v_and_b32 v{x+2*i+1}, 0xffff0000, v{12+4*b+i}")
            for i in range(8): e(f"v_mul_f32 v{x+i}, v{x+i}, v{46+b}")
            for i in range(4): e(f"v_cvt_pk_bf16_f32 v{12+4*b+i}, v{x+2*i}, v{x+2*i+1}")
        e("v_lshlrev_b32 v8, 4, v1")
        e("s_mov_b64 exec, s[70:71]")
        e(f"ds_write_b128 v8, v[12:15] offset:{AV}")
        e(f"ds_write_b128 v8, v[16:19] offset:{AV+AVS}")
        e("s_mov_b64 exec, -1")
        e("s_waitcnt vmcnt(14)")
        e("v_readfirstlane_b32 s64, v10")
        self.set_tag(64)
        e(f"v_mov_b32 v21, s{S_TAG}")
        e(f"ds_write_b32 v20, v21 offset:{MISC}")
        e("s_waitcnt vmcnt(0) lgkmcnt(0)")
        self.stamp(1)
        e(f"s_mov_b32 s64, {STG}")
        self.tr_addr(7, 64)
        e("s_mul_i32 s64, s12, 224")
        e("v_add_u32 v9, s64, v3")
        for st in range(4): e(f"ds_read_b128 v[{128+4*st}:{131+4*st}], v9 offset:{AV+st*64}")
        for cg in range(4): self.tr_frags(4, cg * 32, 64 + 16 * cg, 7)
        e("v_cmp_gt_u32 vcc, 32, v1")
        for i in range(4): e(f"v_cndmask_b32 v{140+i}, 0, v{140+i}, vcc")
        for cg in range(4):
            for i in range(4): e(f"v_cndmask_b32 v{76+16*cg+i}, 0, v{76+16*cg+i}, vcc")
        for st in range(4):
            for cg in range(4):
                D = 144 + 4 * cg
                c = "0" if st == 0 else f"v[{D}:{D+3}]"
                e(f"v_mfma_f32_16x16x32_bf16 v[{D}:{D+3}], v[{128+4*st}:{131+4*st}], v[{64+16*cg+4*st}:{67+16*cg+4*st}], {c}")
        e("v_cmp_lt_u32 s[64:65], 15, v1")
        e("v_cmp_lt_u32 s[66:67], 31, v1")
        e("v_cmp_lt_u32 vcc, 47, v1")
        e(f"v_mov_b32 v53, s{S_TAG}")
        e(f"v_mov_b32 v55, s{S_TAG}")
        e("v_lshlrev_b32 v8, 3, v1")
        for b in range(2):
            e(f"v_cndmask_b32 v{52+2*b}, v{144+b}, v{148+b}, s[64:65]")
        for b in range(2):
            e(f"v_cndmask_b32 v{52+2*b}, v{52+2*b}, v{152+b}, s[66:67]")
        for b in range(2):
            e(f"v_cndmask_b32 v{52+2*b}, v{52+2*b}, v{156+b}, vcc")
        e(f"s_lshl_b32 s64, s{S_HKV}, 14")
        e("s_lshl_b32 s65, s12, 12")
        e("s_add_u32 s64, s64, s65")
        e("s_lshl_b32 s65, s13, 9")
        e("s_add_u32 s64, s64, s65")
        e(f"s_add_u32 s64, s64, {QBUF}")
        e(f"s_add_u32 s65, s64, {8*16384}")
        e(f"buffer_store_dwordx2 v[52:53], v8, s[{R_WS}:{R_WS+3}], s64 offen sc1")
        e(f"buffer_store_dwordx2 v[54:55], v8, s[{R_WS}:{R_WS+3}], s65 offen sc1")
        self.lds_set(MISC + 24, f"s{S_TAG}")
        self.stamp(2)

    def q_gather(self):
        e = self.e
        e("v_lshlrev_b32 v8, 4, v1")
        e(f"s_lshl_b32 s13, s{S_GRP}, 14")
        e(f"s_lshl_b32 s64, s{S_HW}, 10")
        e("s_add_u32 s13, s13, s64")
        e(f"s_add_u32 s13, s13, {QBUF}")
        for k in range(1, 4): e(f"s_add_u32 s{64+k}, s13, {k*4096}")
        qld = [f"buffer_load_dwordx4 v[{24+4*k}:{27+4*k}], v8, s[{R_WS}:{R_WS+3}], s{64+k if k else 13} offen sc1" for k in range(4)]
        e(f"s_sleep {self.qsleep0}")
        for l in qld: e(l)
        for k in range(4):
            L = self.lab("qp"); Lx = self.lab("qpx")
            e.label(L)
            e("s_waitcnt vmcnt(0)")
            self.check_words([25 + 4 * k, 27 + 4 * k], 40, mant=False)
            e(f"s_cbranch_vccz {Lx}")
            e(f"s_sleep {self.qsleep}")
            e(qld[k])
            e(f"s_sub_u32 s{S_TO}, s{S_TO}, 1")
            e(f"s_cbranch_scc0 {L}")
            e("s_branch L_hfail")
            e.label(Lx)
        e("v_add_f32 v24, v24, v28")
        e("v_add_f32 v26, v26, v30")
        e("v_add_f32 v32, v32, v36")
        e("v_add_f32 v34, v34, v38")
        e("v_add_f32 v24, v24, v32")
        e("v_add_f32 v26, v26, v34")
        e("v_cvt_pk_bf16_f32 v24, v24, v26")
        e("v_lshlrev_b32 v8, 2, v1")
        e(f"s_lshl_b32 s64, s{S_HW}, 8")
        e("v_add_u32 v8, s64, v8")
        e(f"ds_write_b32 v8, v24 offset:{QL}")
        e("s_waitcnt lgkmcnt(0)")

    def stage_a(self):
        e = self.e
        FB, PB = 64, 128
        if self.latea == 1: self.lds_wait(MISC + 4, "ge", 5, 2)
        if self.latea >= 2: self.lds_wait(MISC + 12, "le", self.latea - 1, 4)
        self.winfl_cur = self.winfl2 if self.latea else self.winfl
        self.srd(R_W, P_WO, 4096 * 896)
        e(f"s_mul_i32 s64, s{S_HKV}, {512*896}")
        e(f"s_lshl_b32 s65, s{S_SPL}, 7")
        e("s_add_u32 s64, s64, s65")
        e(f"s_mul_i32 s65, s{S_HW}, {128*896}")
        e("s_add_u32 s64, s64, s65")
        e(f"s_lshl_b32 s65, s{S_HW}, 14")
        e(f"s_add_u32 s65, s65, {STG}")
        self.dma_voff(896, 7, 20)
        self.dma_loop(R_W, 20, 16, 64, 8 * 896, 65)
        self.h_sync()
        e(f"s_lshl_b32 s64, s{S_HW}, 5")
        e(f"s_add_u32 s64, s64, {STG}")
        self.tr_addr(7, 64)
        self.tr_frags(16, 0, FB, 7)
        self.stamp(4)
        e(f"s_lshr_b32 s12, s{S_HW}, 1")
        e(f"s_and_b32 s13, s{S_HW}, 1")
        e("s_lshl_b32 s14, s12, 3")
        e(f"s_add_u32 s14, s14, s{S_HKV}")
        e("s_lshl_b32 s15, s14, 15")
        e("s_lshl_b32 s64, s13, 10")
        e("s_add_u32 s15, s15, s64")
        e(f"s_add_u32 s15, s15, {PBUF}")
        e("s_lshl_b32 s64, s13, 11")
        e("s_lshl_b32 s14, s14, 7")
        e("s_add_u32 s14, s14, s64")
        e(f"s_add_u32 s14, s14, {HBUF}")
        e("v_lshlrev_b32 v5, 4, v1")
        e("v_lshlrev_b32 v6, 3, v4")
        e(f"s_mul_i32 s64, s12, {AVS}")
        e("s_lshl_b32 s65, s13, 9")
        e("s_add_u32 s64, s64, s65")
        e("v_lshlrev_b32 v7, 3, v1")
        e("v_add_u32 v7, s64, v7")
        e("v_lshlrev_b32 v18, 3, v1")
        e("v_mov_b32 v19, 0xffffffc0")
        for p in range(8): e(f"s_add_u32 s{52+p}, s15, {p*4096}")
        e("s_mov_b32 s68, 1")
        e("s_branch L_a_go")
        e.label("L_a_poll")
        e("s_mov_b32 s68, 0")
        self.stamp(5)
        self.stamp(6)
        L = self.lab("asw"); Lz = self.lab("anl")
        e("s_mov_b32 s69, 0xffff")
        e("s_mov_b32 s70, 0")
        e.label(L)
        e(f"buffer_load_dwordx2 v[10:11], v6, s[{R_WS}:{R_WS+3}], s14 offen sc1")
        def grouped(body):
            for g in range(4):
                gk = self.lab("gk")
                e(f"s_and_b32 s64, s70, {0xf << (4*g):#x}")
                e(f"s_cbranch_scc0 {gk}")
                for p in range(4 * g, 4 * g + 4):
                    sk = self.lab("sk")
                    e(f"s_bitcmp1_b32 s70, {p}")
                    e(f"s_cbranch_scc0 {sk}")
                    body(p, sk)
                    e.label(sk)
                e.label(gk)
        def ld(p, sk):
            r = PB + 4 * p
            e(f"buffer_load_dwordx4 v[{r}:{r+3}], v5, s[{R_WS}:{R_WS+3}], s{52 + (p >> 1)} offen offset:{(p & 1)*2048} sc1")
        def ck(p, sk):
            r = PB + 4 * p
            self.check_words([r, r + 2], 12)
            e(f"s_cbranch_vccnz {sk}")
            e(f"s_bitset0_b32 s69, {p}")
        grouped(ld)
        e("s_waitcnt vmcnt(0)")
        e(f"v_cmp_eq_u32 s[66:67], s{S_TAG}, v11")
        grouped(ck)
        e("s_and_b32 s71, s66, 0xffff")
        e("s_xor_b32 s64, s71, 0xffff")
        e("s_or_b32 s64, s64, s69")
        e("s_cmp_eq_u32 s64, 0")
        e("s_cbranch_scc1 L_a_got")
        e("s_and_b32 s70, s69, s71")
        e("s_bcnt1_i32_b32 s64, s69")
        e(f"s_cmp_le_u32 s64, {self.aspec}")
        e("s_cselect_b32 s70, s69, s70")
        e("s_cmp_lg_u32 s70, 0")
        e(f"s_cbranch_scc1 {Lz}")
        e(f"s_sleep {self.gsleep}")
        e.label(Lz)
        e(f"s_sub_u32 s{S_TO}, s{S_TO}, 1")
        e(f"s_cmp_lg_u32 s{S_TO}, 0")
        e(f"s_cbranch_scc1 {L}")
        e("s_branch L_hfail")
        e.label("L_a_got")
        self.stamp(7)
        e.label("L_a_go")
        e("v_mov_b32 v12, v10")
        self.row_reduce([12], "max")
        e("v_sub_f32 v12, v10, v12")
        e("v_exp_f32 v12, v12")
        e("v_mov_b32 v13, v12")
        sregs = list(range(16, 48, 2))
        for p in range(16): e(f"v_readlane_b32 s{sregs[p]}, v12, {p}")
        self.row_reduce([13], "add")
        e("v_rcp_f32 v13, v13")
        for p in range(16):
            r = PB + 4 * p
            sp = f"s[{sregs[p]}:{sregs[p]+1}]"
            for i in range(0, 4, 2):
                if p == 0: e(f"v_pk_mul_f32 v[{14+i}:{15+i}], v[{r+i}:{r+i+1}], {sp} op_sel_hi:[1,0]")
                else: e(f"v_pk_fma_f32 v[{14+i}:{15+i}], v[{r+i}:{r+i+1}], {sp}, v[{14+i}:{15+i}] op_sel_hi:[1,0,1]")
        for i in range(4): e(f"v_mul_f32 v{14+i}, v{14+i}, v13")
        e("v_cvt_pk_bf16_f32 v14, v14, v15")
        e("v_cvt_pk_bf16_f32 v15, v16, v17")
        e(f"ds_write_b64 v7, v[14:15] offset:{AV}")
        e("s_waitcnt lgkmcnt(0)")
        self.bar()
        self.gemv(16, PB + 64, AV, [(20, FB)])
        e(f"s_mul_i32 s64, s{S_HKV}, {448*8}")
        e(f"s_lshl_b32 s65, s{S_SPL}, 9")
        e("s_add_u32 s64, s64, s65")
        e(f"s_lshl_b32 s65, s{S_HW}, 7")
        e("s_add_u32 s64, s64, s65")
        e(f"s_add_u32 s64, s64, {YBUF}")
        self.tagw(24, 20, 19)
        self.tagw(25, 21, 19)
        e("s_cmp_eq_u32 s68, 1")
        e("s_cbranch_scc1 L_a_poll")
        e("s_mov_b64 exec, 0xffff")
        e(f"buffer_store_dwordx2 v[24:25], v18, s[{R_WS}:{R_WS+3}], s64 offen sc1")
        self.stamp(8)
        self.endpgm()

    def stage_b(self):
        e = self.e
        FG, FU, GB = 64, 120, 176
        UPO = 448 * 128
        if self.lateb == 1: self.lds_wait(MISC + 4, "ge", 5, 2)
        if self.lateb >= 2: self.lds_wait(MISC + 12, "le", self.lateb - 1, 4)
        self.winfl_cur = self.winfl2 if self.lateb else self.winfl
        self.srd(R_W, P_WG, 448 * 3584)
        self.srd(R_W2, P_WU, 448 * 3584)
        self.dma_voff(3584, 7, 20)
        for m_, srd_ in enumerate((R_W, R_W2)):
            e("s_lshl_b32 s64, s12, 7")
            e(f"s_mul_i32 s65, s{S_HW}, {112*3584}")
            e("s_add_u32 s64, s64, s65")
            e(f"s_mul_i32 s65, s{S_HW}, {112*128}")
            e(f"s_add_u32 s65, s65, {STG + m_*UPO}")
            self.dma_loop(srd_, 20, 14, 64, 8 * 3584, 65)
        e(f"s_mul_i32 s64, s{S_HW}, 56")
        e("v_min_u32 v5, 55, v1")
        e("v_add_u32 v5, s64, v5")
        e("v_cmp_gt_u32 s[70:71], 56, v1")
        e("v_lshlrev_b32 v14, 2, v5")
        e(f"buffer_load_dword v16, v14, s[{R_X}:{R_X+3}], 0 offen")
        e(f"buffer_load_dword v17, v14, s[{R_X}:{R_X+3}], 0 offen offset:896")
        e("v_lshlrev_b32 v5, 4, v5")
        self.h_sync()
        e(f"s_lshl_b32 s64, s{S_HW}, 5")
        e(f"s_add_u32 s64, s64, {STG}")
        self.tr_addr(7, 64)
        self.tr_frags(14, 0, FG, 7)
        e(f"v_add_u32 v2, {UPO}, v2")
        self.tr_frags(14, 0, FU, 7)
        e("v_and_b32 v18, 0xffff0000, v16")
        e("v_and_b32 v19, 0xffff0000, v17")
        e("v_lshlrev_b32 v16, 16, v16")
        e("v_lshlrev_b32 v17, 16, v17")
        for k in range(8): e(f"s_mov_b32 s{40+k}, {YBUF + k*3584}")
        e(f"s_lshl_b32 s64, s{S_HW}, 4")
        e("v_mov_b32 v10, s64")
        e("v_and_b32 v11, 7, v1")
        e("v_lshlrev_b32 v11, 4, v11")
        e("v_lshlrev_b32 v12, 3, v1")
        e("v_and_b32 v8, 16, v1")
        e("v_cmp_ne_u32 s[56:57], 0, v8")
        e("s_lshl_b32 s13, s12, 9")
        e(f"s_lshl_b32 s64, s{S_HW}, 7")
        e("s_add_u32 s13, s13, s64")
        e(f"s_add_u32 s13, s13, {GBUF}")
        e(f"s_mov_b32 s14, {f2u(0.044715):#x}")
        e(f"s_mov_b32 s15, {f2u(112.0):#x}")
        e(f"v_mov_b32 v35, s{S_TAG}")
        self.stamp(4)
        e("s_mov_b32 s68, 1")
        e("s_branch L_b_go")
        e.label("L_b_poll")
        e("s_mov_b32 s68, 0")
        self.stamp(5)
        self.gate_all()
        self.stamp(6)
        self.sweep_all([f"buffer_load_dwordx4 v[{GB+4*k}:{GB+4*k+3}], v5, s[{R_WS}:{R_WS+3}], s{40+k} offen sc1" for k in range(8)],
                       [GB + 2 * i for i in range(16)], 240)
        self.stamp(7)
        e.label("L_b_go")
        for k in range(1, 8):
            for j in (0, 2):
                a = GB + j if k == 1 else 20 + j
                e(f"v_pk_add_f32 v[{20+j}:{21+j}], v[{a}:{a+1}], v[{GB+4*k+j}:{GB+4*k+j+1}]")
        def rnd4():
            e("v_cvt_pk_bf16_f32 v24, v20, v21")
            e("v_cvt_pk_bf16_f32 v25, v22, v23")
            e("v_lshlrev_b32 v20, 16, v24")
            e("v_and_b32 v21, 0xffff0000, v24")
            e("v_lshlrev_b32 v22, 16, v25")
            e("v_and_b32 v23, 0xffff0000, v25")
        rnd4()
        e("v_pk_add_f32 v[20:21], v[20:21], v[16:17]")
        e("v_pk_add_f32 v[22:23], v[22:23], v[18:19]")
        rnd4()
        for b in range(2): e(f"v_readfirstlane_b32 s{66+b}, v{20+b}")
        e("v_pk_add_f32 v[36:37], v[20:21], s[66:67] neg_lo:[0,1] neg_hi:[0,1]")
        e("v_pk_add_f32 v[38:39], v[22:23], s[66:67] neg_lo:[0,1] neg_hi:[0,1]")
        for b in range(2): e(f"v_mov_b32 v{24+4*b}, s{66+b}")
        for b in range(2): e(f"v_add_f32 v{25+4*b}, v{36+b}, v{38+b}")
        for b in range(2): e(f"v_mul_f32 v{26+4*b}, v{36+b}, v{36+b}")
        for b in range(2): e(f"v_fmac_f32 v{26+4*b}, v{38+b}, v{38+b}")
        red = [25, 29, 26, 30]
        for v in red: e(f"v_cndmask_b32 v{v}, 0, v{v}, s[70:71]")
        self.row_reduce(red)
        for v in red: e(f"v_add_f32_dpp v{v}, v{v}, v{v} row_bcast:15 row_mask:0xa bank_mask:0xf")
        for v in red: e(f"v_add_f32_dpp v{v}, v{v}, v{v} row_bcast:31 row_mask:0xc bank_mask:0xf")
        e("s_mov_b64 exec, 0x8000000000000000") if False else None
        e("s_mov_b32 exec_lo, 0")
        e("s_mov_b32 exec_hi, 0x80000000")
        e(f"ds_write_b96 v10, v[24:26] offset:{STATS}")
        e(f"ds_write_b96 v10, v[28:30] offset:{STATS+64}")
        e("s_mov_b64 exec, -1")
        e("s_waitcnt lgkmcnt(0)")
        self.bar()
        e(f"ds_read_b96 v[24:26], v11 offset:{STATS}")
        e("s_waitcnt lgkmcnt(0)")
        e(f"v_mul_f32 v27, {f2u(1.0/112):#x}, v25")
        e("v_add_f32 v24, v24, v27")
        e("v_fma_f32 v26, -v27, v25, v26")
        e("v_add_f32_dpp v28, v24, v24 quad_perm:[1,0,3,2] row_mask:0xf bank_mask:0xf")
        e("v_add_f32_dpp v28, v28, v28 quad_perm:[2,3,0,1] row_mask:0xf bank_mask:0xf")
        e(f"v_mul_f32 v28, {f2u(0.25):#x}, v28")
        e("v_sub_f32 v24, v24, v28")
        e("v_mul_f32 v24, v24, v24")
        e("v_fmac_f32 v26, s15, v24")
        e("v_add_f32_dpp v26, v26, v26 quad_perm:[1,0,3,2] row_mask:0xf bank_mask:0xf")
        e("v_add_f32_dpp v26, v26, v26 quad_perm:[2,3,0,1] row_mask:0xf bank_mask:0xf")
        e(f"v_mul_f32 v26, {f2u(1.0/448):#x}, v26")
        e("v_cvt_pk_bf16_f32 v27, v28, v26")
        e("v_and_b32 v26, 0xffff0000, v27")
        e("v_lshlrev_b32 v28, 16, v27")
        e(f"v_add_f32 v26, {f2u(1e-5):#x}, v26")
        e("v_readlane_b32 s52, v28, 0")
        e("v_readlane_b32 s53, v28, 4")
        self.rnd(26)
        e("v_pk_add_f32 v[20:21], v[20:21], s[52:53] neg_lo:[0,1] neg_hi:[0,1]")
        e("v_sqrt_f32 v26, v26")
        e("v_pk_add_f32 v[22:23], v[22:23], s[52:53] neg_lo:[0,1] neg_hi:[0,1]")
        self.rnd(26)
        e("v_cvt_pk_bf16_f32 v24, v20, v21")
        e("v_rcp_f32 v26, v26")
        e("v_cvt_pk_bf16_f32 v25, v22, v23")
        e("v_lshlrev_b32 v20, 16, v24")
        e("v_readlane_b32 s54, v26, 0")
        e("v_readlane_b32 s55, v26, 4")
        e("v_and_b32 v21, 0xffff0000, v24")
        e("v_lshlrev_b32 v22, 16, v25")
        e("v_and_b32 v23, 0xffff0000, v25")
        e("v_pk_mul_f32 v[20:21], v[20:21], s[54:55]")
        e("v_pk_mul_f32 v[22:23], v[22:23], s[54:55]")
        for b in range(2): e(f"v_cvt_pk_bf16_f32 v{20+b}, v{20+b}, v{22+b}")
        e(f"ds_write_b32 v14, v20 offset:{AV}")
        e(f"ds_write_b32 v14, v21 offset:{AV+AVS}")
        e("s_waitcnt lgkmcnt(0)")
        self.bar()
        self.gemv(14, GB, AV, [(24, FG), (28, FU)])
        e("v_cndmask_b32 v24, v24, v25, s[56:57]")
        e("v_cndmask_b32 v29, v28, v29, s[56:57]")
        e("v_cvt_pk_bf16_f32 v29, v24, v29")
        e("v_lshlrev_b32 v28, 16, v29")
        e("v_and_b32 v29, 0xffff0000, v29")
        k0 = math.sqrt(2.0 / math.pi)
        c1 = f2u(-2.0 * k0 * math.log2(math.e))
        e("v_mul_f32 v32, v28, v28")
        e("v_mul_f32 v32, v32, v28")
        e("v_fma_f32 v32, v32, s14, v28")
        e(f"v_mul_f32 v32, {c1:#x}, v32")
        e("v_exp_f32 v32, v32")
        e("v_add_f32 v32, 1.0, v32")
        e("v_rcp_f32 v32, v32")
        e("v_mul_f32 v32, v32, v28")
        self.rnd(32)
        e("v_mul_f32 v32, v32, v29")
        e("v_mov_b32 v33, v32")
        e("v_permlane16_swap_b32 v32, v33")
        e("v_cvt_pk_bf16_f32 v34, v32, v33")
        e("s_cmp_eq_u32 s68, 1")
        e("s_cbranch_scc1 L_b_poll")
        e("s_mov_b64 exec, 0xffff")
        e(f"buffer_store_dwordx2 v[34:35], v12, s[{R_WS}:{R_WS+3}], s13 offen sc1")
        self.stamp(8)
        self.endpgm()

    def stage_c(self):
        e = self.e
        F0, F1, GB = 64, 120, 176
        if self.latec == 1: self.lds_wait(MISC + 4, "ge", 5, 2)
        if self.latec >= 2: self.lds_wait(MISC + 12, "le", self.latec - 1, 4)
        self.winfl_cur = self.winfl2 if self.latec else self.winfl
        self.srd(R_W, P_WD, 1792 * 896)
        self.srd(R_W2, P_OUT, 2 * 448 * 2)
        e(f"s_mul_i32 s64, s{S_HW}, {448*896}")
        e("s_lshl_b32 s65, s12, 6")
        e("s_add_u32 s64, s64, s65")
        e(f"s_mul_i32 s65, s{S_HW}, {STGW}")
        e(f"s_add_u32 s65, s65, {STG}")
        self.tr_addr(6, 65)
        self.dma_voff(896, 6, 20)
        self.dma_loop(R_W, 20, 28, 64, 16 * 896, 65)
        e("s_waitcnt vmcnt(0)")
        self.tr_frags(14, 0, F0, 6)
        self.tr_frags(14, 32, F1, 6)
        e("v_and_b32 v5, 31, v1")
        e("v_lshrrev_b32 v6, 5, v1")
        e("s_lshl_b32 s64, s12, 5")
        e("v_add_u32 v7, s64, v5")
        e("v_mul_u32_u24 v14, 448, v6")
        e("v_add_lshl_u32 v14, v14, v7, 1")
        e(f"buffer_load_ushort v16, v14, s[{R_X}:{R_X+3}], 0 offen")
        if self.otouch: e(f"buffer_load_ushort v18, v14, s[{R_W2}:{R_W2+3}], 0 offen")
        e("v_lshlrev_b32 v7, 3, v7")
        e("v_lshl_add_u32 v7, v6, 2, v7")
        e("s_waitcnt vmcnt(0)")
        e("v_lshlrev_b32 v16, 16, v16")
        e("v_lshlrev_b32 v10, 4, v1")
        e("v_lshlrev_b32 v11, 4, v5")
        e(f"s_mul_i32 s13, s{S_HW}, 3584")
        e(f"s_add_u32 s13, s13, {GBUF}")
        e(f"s_mul_i32 s14, s{S_HW}, {2*AVS}")
        e("v_lshlrev_b32 v12, 2, v1")
        e("v_add_u32 v12, s14, v12")
        e("v_lshlrev_b32 v13, 2, v5")
        e("v_add_u32 v13, s14, v13")
        e("v_add_u32 v3, s14, v3")
        self.stamp(4)
        e("v_mov_b32 v17, 0")
        e("s_mov_b32 s64, 0x05040100")
        e("s_mov_b32 s65, 0x07060302")
        e("s_mov_b32 s68, 1")
        e("s_branch L_c_go")
        e.label("L_c_poll")
        e("s_mov_b32 s68, 0")
        self.stamp(5)
        self.gate_all()
        self.stamp(6)
        Ln = self.lab("cnres")
        e(f"s_cmp_lg_u32 s{S_HW}, 0")
        e(f"s_cbranch_scc1 {Ln}")
        for k in range(8): e(f"s_mov_b32 s{40+k}, {YBUF + k*3584}")
        self.sweep_all([f"buffer_load_dword v{GB+k}, v7, s[{R_WS}:{R_WS+3}], s{40+k} offen sc1" for k in range(8)],
                       [GB + k for k in range(8)], 24)
        for k in range(1, 8): e(f"v_add_f32 v17, v{GB if k == 1 else 17}, v{GB+k}")
        self.rnd(17)
        e("v_add_f32 v17, v17, v16")
        self.rnd(17)
        e.label(Ln)
        e("s_mov_b32 s64, 0x05040100")
        e("s_mov_b32 s65, 0x07060302")
        sc = [24, 48, 232][:self.nset]
        def cput(i):
            g = sc[i]
            for k in range(4):
                e(f"v_perm_b32 v{g+1+4*k}, v{g+2+4*k}, v{g+4*k}, s64")
                e(f"v_perm_b32 v{g+3+4*k}, v{g+2+4*k}, v{g+4*k}, s65")
                a = 12 if k < 3 else 13
                e(f"ds_write_b32 v{a}, v{g+1+4*k} offset:{AV+k*256}")
                e(f"ds_write_b32 v{a}, v{g+3+4*k} offset:{AV+AVS+k*256}")
        self.sweep_pipe([([f"buffer_load_dwordx4 v[{g+4*k}:{g+3+4*k}], v{10 if k < 3 else 11}, s[{R_WS}:{R_WS+3}], s13 offen offset:{k*1024} sc1" for k in range(4)],
                          [g + 1 + 2 * i for i in range(8)]) for g in sc], 248, False, cput, "L_c_go")
        self.gemv(14, GB, AV, [(40, F0), (44, F1)], ahead=7)
        e(f"s_lshl_b32 s64, s{S_HW}, 8")
        e("v_lshlrev_b32 v8, 3, v1")
        e("v_add_u32 v8, s64, v8")
        e("s_mov_b64 exec, 0xffff")
        e(f"ds_write_b64 v8, v[40:41] offset:{RED}")
        e(f"ds_write_b64 v8, v[44:45] offset:{RED+128}")
        e("s_mov_b64 exec, -1")
        e("s_waitcnt lgkmcnt(0)")
        self.bar()
        Le = self.lab("cend")
        e(f"s_sub_u32 s64, s{S_HW}, s68")
        e(f"s_cmp_eq_u32 s68, 1")
        e(f"s_cselect_b32 s64, 0, s{S_HW}")
        e(f"s_cmp_lg_u32 s64, 0")
        e(f"s_cbranch_scc1 {Le}")
        e("v_lshlrev_b32 v8, 3, v5")
        e("v_lshl_add_u32 v8, v6, 2, v8")
        for w in range(4): e(f"ds_read_b32 v{20+w}, v8 offset:{RED+256*w}")
        e("s_waitcnt lgkmcnt(0)")
        e("v_add_f32 v20, v20, v21")
        e("v_add_f32 v22, v22, v23")
        e("v_add_f32 v20, v20, v22")
        self.rnd(20)
        e("v_add_f32 v20, v20, v17")
        e("v_cvt_pk_bf16_f32 v20, v20, v20")
        e("s_cmp_eq_u32 s68, 1")
        e("s_cbranch_scc1 L_c_poll")
        e(f"buffer_store_short v20, v14, s[{R_W2}:{R_W2+3}], 0 offen")
        e("s_cmp_lg_u32 s12, 0")
        e(f"s_cbranch_scc1 {Le}")
        e(f"v_mov_b32 v21, s{S_TAG}")
        e("s_mov_b64 exec, 1")
        e(f"buffer_store_dword v21, off, s[{R_WS}:{R_WS+3}], 0 offset:{EPOCH} sc1")
        e.label(Le)
        self.stamp(8)
        self.endpgm()

    def build(self):
        e = self.e
        e("s_cmp_ge_u32 s2, 256")
        e("s_cbranch_scc1 L_exit")
        e("s_load_dwordx16 s[16:31], s[0:1], 0")
        e("s_load_dwordx8 s[32:39], s[0:1], 64")
        self.stamp_init()
        e("v_lshrrev_b32 v2, 6, v0")
        e("v_and_b32 v1, 63, v0")
        e(f"v_readfirstlane_b32 s{S_WAVE}, v2")
        self.stamp(0)
        e(f"s_and_b32 s{S_HW}, s{S_WAVE}, 3")
        e(f"s_cmp_lt_u32 s{S_WAVE}, 4")
        e("s_cbranch_scc1 L_hpath")
        self.s_path()
        e.label("L_hpath")
        self.in_h = True
        e(f"s_lshr_b32 s{S_GRP}, s2, 4")
        e(f"s_and_b32 s{S_SPL}, s2, 15")
        e(f"s_lshr_b32 s{S_B}, s2, 7")
        e(f"s_and_b32 s{S_HKV}, s{S_GRP}, 7")
        e(f"s_mov_b32 s{S_TO}, {TIMEOUT}")
        e("s_waitcnt lgkmcnt(0)")
        self.srd(R_WS, P_WS, WS_SIZE)
        self.srd(R_X, P_X, 1792)
        if self.noq: e("s_branch L_hdone")
        e("s_setprio 2")
        e(f"s_cmp_lg_u32 s{S_HW}, 0")
        e("s_cbranch_scc1 L_hnq")
        self.q_path()
        e("s_branch L_hq")
        e.label("L_hnq")
        if self.tstride:
            Lt = self.lab("notouch")
            e(f"s_cmp_eq_u32 s{S_HW}, 3")
            e(f"s_cbranch_scc1 {Lt}")
            e(f"s_cmp_eq_u32 s{S_HW}, 1")
            e(f"s_cselect_b32 s{R_K}, s{P_K}, s{P_V}")
            e(f"s_cselect_b32 s{R_K+1}, s{P_K+1}, s{P_V+1}")
            e(f"s_mov_b32 s{R_K+2}, {1 << 28}")
            e(f"s_mov_b32 s{R_K+3}, 0x20000")
            e(f"v_lshlrev_b32 v11, {self.tstride}, v1")
            e("s_lshl_b32 s64, s2, 20")
            n = (1 << 20) >> self.tstride
            if n < 64: e(f"s_mov_b64 exec, {(1 << n) - 1:#x}")
            e(f"buffer_load_dword v12, v11, s[{R_K}:{R_K+3}], s64 offen nt")
            e("s_mov_b64 exec, -1")
            e.label(Lt)
        e(f"buffer_load_dword v10, off, s[{R_WS}:{R_WS+3}], 0 offset:{EPOCH} sc1")
        self.h_consts()
        e("s_waitcnt vmcnt(0)")
        e("v_readfirstlane_b32 s64, v10")
        self.set_tag(64)
        self.lds_wait(MISC + 24, "eq", f"s{S_TAG}", 2)
        e.label("L_hq")
        self.q_gather()
        e("s_setprio 0")
        e("s_barrier")
        self.stamp(3)
        e(f"s_cmp_lg_u32 s{S_HW}, 1")
        e("s_cbranch_scc1 L_sfinal_back")
        e("s_mov_b32 s68, 1")
        e("s_branch L_sfinal")
        e.label("L_sfinal_back")
        if self.noroles: e("s_branch L_hdone")
        e(f"s_cmp_lg_u32 s{S_HW}, 0")
        e("s_cbranch_scc1 L_rwait")
        self.lds_wait(MISC + 12, "le", self.trig, 8)
        self.srd(R_W, P_DBG, 256)
        e("v_mov_b32 v10, 1")
        e("s_mov_b64 exec, 1")
        e(f"buffer_atomic_add v10, off, s[{R_W}:{R_W+3}], 0 sc0 sc1")
        e("s_waitcnt vmcnt(0)")
        e("s_mov_b64 exec, -1")
        e("v_readfirstlane_b32 s12, v10")
        e("s_add_u32 s12, s12, 1")
        self.lds_set(MISC + 16, "s12")
        e("s_branch L_rgot")
        e.label("L_rwait")
        self.lds_wait(MISC + 16, "lg", 0, 8, 12)
        e.label("L_rgot")
        e("s_sub_u32 s12, s12, 1")
        e("s_cmp_ge_u32 s12, 98")
        if self.rorder:
            e("s_cbranch_scc1 L_rord")
            e("s_sub_u32 s12, 97, s12")
            e.label("L_rord")
            e("s_cmp_ge_u32 s12, 98")
        if self.diag:
            e(f"s_mov_b32 s{ST0+22}, s12")
        e("s_cbranch_scc1 L_hdone")
        self.h_consts()
        e("s_cmp_lt_u32 s12, 14")
        e("s_cbranch_scc0 L_notc")
        self.stage_c()
        e.label("L_notc")
        e("s_sub_u32 s12, s12, 14")
        e("s_cmp_lt_u32 s12, 28")
        e("s_cbranch_scc0 L_notb")
        self.stage_b()
        e.label("L_notb")
        e("s_sub_u32 s12, s12, 28")
        e(f"s_mul_i32 s{S_HKV}, s12, 37")
        e(f"s_lshr_b32 s{S_HKV}, s{S_HKV}, 8")
        e(f"s_mul_i32 s64, s{S_HKV}, 7")
        e(f"s_sub_u32 s{S_SPL}, s12, s64")
        self.stage_a()
        e.label("L_hfail")
        e.label("L_hdone")
        self.endpgm()
        e.label("L_exit")
        e("s_endpgm")
        return e.text()

HEAD = """; fused pre-LN GQA decode attention + GEGLU FFN, one persistent launch (256 workgroups, one per CU).
; @launch grid=(256,1,1) block=(512,1,1) lds={lds}
.amdgcn_target "amdgcn-amd-amdhsa--gfx950"
.text
.globl {name}
.p2align 8
.type {name},@function
{name}:
"""
TAIL = """.section .rodata,"a"
.p2align 6
.amdhsa_kernel {name}
  .amdhsa_next_free_vgpr 256
  .amdhsa_next_free_sgpr 102
  .amdhsa_accum_offset 256
  .amdhsa_group_segment_fixed_size 0
  .amdhsa_kernarg_size 96
  .amdhsa_user_sgpr_count 2
  .amdhsa_user_sgpr_kernarg_segment_ptr 1
  .amdhsa_system_sgpr_workgroup_id_x 1
.end_amdhsa_kernel
"""

def make(path, **kw):
    g = Gen(**kw)
    body = g.build()
    if g.hf != "sc1": body = body.replace(" sc1\n", f" {g.hf}\n").replace("sc0 sc0", "sc0")
    open(path, "w").write(HEAD.format(lds=LDS_SIZE, name=NAME) + body + TAIL.format(name=NAME))
    return g

if __name__ == "__main__":
    import argparse
    ap = argparse.ArgumentParser()
    ap.add_argument("out")
    ap.add_argument("--diag", action="store_true")
    ap.add_argument("--npro", type=int, default=40)
    ap.add_argument("--kvflags", default="nt")
    ap.add_argument("--wflags", default="nt")
    ap.add_argument("--qflags", default="nt")
    ap.add_argument("--noroles", action="store_true")
    ap.add_argument("--athr", type=int, default=13)
    ap.add_argument("--gsleep", type=int, default=4)
    ap.add_argument("--winfl", type=int, default=4)
    ap.add_argument("--dist", type=int, default=9)
    ap.add_argument("--thr", type=int, default=6)
    ap.add_argument("--vflags", default=None)
    ap.add_argument("--rot", type=int, default=1)
    ap.add_argument("--nt", type=int, default=32)
    ap.add_argument("--thrp", type=int, default=6)
    ap.add_argument("--npl", type=int, default=40)
    ap.add_argument("--gthr", type=int, default=6)
    ap.add_argument("--psleep", type=int, default=0)
    ap.add_argument("--hf", default="sc1")
    ap.add_argument("--nset", type=int, default=1)
    ap.add_argument("--pgap", type=int, default=2)
    ap.add_argument("--thr2", type=int, default=9)
    ap.add_argument("--nl2", type=int, default=0)
    ap.add_argument("--lateb", type=int, default=1)
    ap.add_argument("--latec", type=int, default=1)
    ap.add_argument("--winfl2", type=int, default=12)
    ap.add_argument("--qsleep", type=int, default=8)
    ap.add_argument("--qsleep0", type=int, default=32)
    ap.add_argument("--latea", type=int, default=0)
    ap.add_argument("--tstride", type=int, default=0)
    ap.add_argument("--otouch", type=int, default=1)
    ap.add_argument("--seq", type=int, default=0)
    ap.add_argument("--rorder", type=int, default=1)
    ap.add_argument("--nosoft", action="store_true")
    ap.add_argument("--noq", action="store_true")
    ap.add_argument("--trig", type=int, default=4)
    ap.add_argument("--aspec", type=int, default=8)
    a = ap.parse_args()
    g = make(a.out, diag=a.diag, npro=a.npro, kvflags=a.kvflags, wflags=a.wflags, qflags=a.qflags, noroles=a.noroles, athr=a.athr, gsleep=a.gsleep, winfl=a.winfl, dist=a.dist, nosoft=a.nosoft, noq=a.noq, trig=a.trig, aspec=a.aspec, thr=a.thr, vflags=a.vflags, rot=a.rot, nt=a.nt, thrp=a.thrp, npl=a.npl, gthr=a.gthr, psleep=a.psleep, hf=a.hf, nset=a.nset, pgap=a.pgap, thr2=a.thr2, nl2=a.nl2, lateb=a.lateb, latec=a.latec, winfl2=a.winfl2, qsleep=a.qsleep, qsleep0=a.qsleep0, latea=a.latea, rorder=a.rorder, tstride=a.tstride, otouch=a.otouch, seq=a.seq)
    print("pads inserted:", g.e.npad, "lines:", len(g.e.lines))
```

```python
import sys, struct, math
from emit import Emitter

NAME = "sequential_preLN__gqa_block_cached__geglu_ffn__decode_kernel"
def f2u(x): return struct.unpack("<I", struct.pack("<f", x))[0]

EPOCH = 0
QBUF = 0x140000
HBUF = 0x12000
YBUF = 0x14000
GBUF = 0x22000
PBUF = 0x40000
STAMP = 0x200000
WS_SIZE = 0x400000
QL = 0x0100
MISC = 0x0080
SML = 0x0000
STATS = 0x0600
AV = 0x0800
AVS = 1056
RED = 0x2A00
SO = 0x3000
STG = 0x5000
STGW = 28 * 1024
LDS_SIZE = STG + 4 * STGW

CSC = f2u(0.0625 * math.log2(math.e))
GOLD = 0x9E3779B9
TIMEOUT = 300000

S_WAVE, S_GRP, S_SPL, S_B, S_HKV, S_HW, S_TAG = 3, 4, 5, 6, 7, 8, 9
P_X, P_K, P_V, P_WQ, P_WO, P_BX, P_WG, P_WU, P_WD, P_OUT, P_DBG, P_WS = [16 + 2 * i for i in range(12)]
R_K, R_V, R_WS, R_W, R_X, R_W2 = 40, 44, 48, 52, 56, 60
S_C = 10
S_TO = 11
ST0 = 72
S_TM = 96

class Gen:
    def __init__(self, diag=False, npro=32, kvflags="nt", wflags="", qflags="", noroles=False, athr=13, gsleep=4, winfl=1, dist=8, nosoft=False, noq=False, trig=2, aspec=2, thr=5, vflags=None, rot=1, nt=32, thrp=6, npl=32, gthr=6, psleep=0, hf="sc1", nset=2, pgap=2, thr2=9, nl2=0, lateb=1, latec=1, winfl2=12, qsleep=8, qsleep0=16, latea=0, rorder=0, tstride=0, otouch=1, seq=0, wtouch=0, gpos=0):
        self.e = Emitter()
        self.diag = diag
        self.npro = npro
        self.kvflags = kvflags
        self.wflags = wflags
        self.qflags = qflags
        self.noroles = noroles
        self.athr = athr
        self.gsleep = gsleep
        self.winfl = winfl
        self.dist = dist
        self.nosoft = nosoft
        self.noq = noq
        self.trig = trig
        self.aspec = aspec
        self.thr = thr
        self.rot = rot
        self.nt = nt
        self.thrp = thrp
        self.npl = npl
        self.gthr = gthr
        self.psleep = psleep
        self.hf = hf
        self.nset = nset
        self.pgap = pgap
        self.thr2 = thr2
        self.nl2 = nl2
        self.lateb = lateb
        self.latec = latec
        self.winfl2 = winfl2
        self.qsleep = qsleep
        self.qsleep0 = qsleep0
        self.latea = latea
        self.rorder = rorder
        self.tstride = tstride
        self.otouch = otouch
        self.seq = seq
        self.wtouch = wtouch
        self.gpos = gpos
        self.vflags = kvflags if vflags is None else vflags
        self.uid = 0
        self.in_h = False
    def lab(self, s):
        self.uid += 1
        return f"L_{s}_{self.uid}"
    def srd(self, r, p, size):
        e = self.e
        e(f"s_mov_b32 s{r}, s{p}")
        e(f"s_mov_b32 s{r+1}, s{p+1}")
        e(f"s_mov_b32 s{r+2}, {size}")
        e(f"s_mov_b32 s{r+3}, 0x20000")
    def stamp(self, i):
        if self.diag and i in (6, 7) and self.in_h:
            self.e(f"s_mov_b32 s{ST0+2*(i+3)}, s{S_TO}")
        if self.diag:
            self.e(f"s_memrealtime s[{ST0+2*i}:{ST0+2*i+1}]")
            self.e("s_waitcnt lgkmcnt(0)")
    def stamp_init(self):
        if self.diag:
            for i in range(12):
                self.e(f"s_mov_b64 s[{ST0+2*i}:{ST0+2*i+1}], 0")
    def stamp_flush(self):
        if not self.diag: return
        e = self.e
        e("s_mov_b64 exec, -1")
        e(f"s_lshl_b32 s64, s2, 3")
        e(f"s_add_u32 s64, s64, s{S_WAVE}")
        e(f"s_lshl_b32 s64, s64, 6")
        e(f"s_add_u32 s64, s64, {STAMP}")
        e(f"s_getreg_b32 s65, hwreg(HW_REG_XCC_ID)")
        e(f"s_getreg_b32 s66, hwreg(HW_REG_HW_ID)")
        for i in range(12):
            e(f"v_mov_b32 v{2+i}, s{ST0+2*i}")
        e("v_mov_b32 v14, s65")
        e("v_mov_b32 v15, s66")
        e("v_mov_b32 v16, 0")
        e("v_mov_b32 v17, 0")
        e("s_mov_b64 exec, 1")
        for i in range(4):
            e(f"buffer_store_dwordx4 v[{2+4*i}:{5+4*i}], off, s[{R_WS}:{R_WS+3}], s64 offset:{16*i}")
        e("s_waitcnt vmcnt(0)")
    def endpgm(self):
        self.stamp_flush()
        self.e("s_endpgm")

    def rnd(self, v):
        self.e(f"v_cvt_pk_bf16_f32 v{v}, v{v}, v{v}")
        self.e(f"v_lshlrev_b32 v{v}, 16, v{v}")
    def rnd_many(self, vs):
        for v in vs: self.e(f"v_cvt_pk_bf16_f32 v{v}, v{v}, v{v}")
        for v in vs: self.e(f"v_lshlrev_b32 v{v}, 16, v{v}")
    def set_tag(self, src):
        self.e(f"s_add_u32 s{S_TAG}, s{src}, {GOLD:#x}")
        self.e(f"s_and_b32 s{S_TM}, s{S_TAG}, 0x3f")
    def tagw(self, dst, src, vmask):
        self.e(f"v_and_or_b32 v{dst}, v{src}, v{vmask}, s{S_TM}")
    def check_words(self, words, tmp, mant=True):
        e = self.e
        T = S_TM if mant else S_TAG
        acc = []
        n = len(words)
        for i in range(0, n - 1, 2):
            e(f"v_bitop3_b32 v{tmp+len(acc)}, v{words[i]}, v{words[i+1]}, s{T} bitop3:0x7e")
            acc.append(tmp + len(acc))
        if n % 2:
            e(f"v_xor_b32 v{tmp+len(acc)}, s{T}, v{words[-1]}")
            acc.append(tmp + len(acc))
        while len(acc) > 1:
            nxt = []
            while len(acc) >= 3:
                a, b, c = acc[:3]; acc = acc[3:]
                e(f"v_or3_b32 v{a}, v{a}, v{b}, v{c}"); nxt.append(a)
            if len(acc) == 2 and not nxt:
                e(f"v_or_b32 v{acc[0]}, v{acc[0]}, v{acc[1]}"); acc = [acc[0]]
            acc = nxt + acc
        if mant: e(f"v_and_b32 v{acc[0]}, 0x3f, v{acc[0]}")
        e(f"v_cmp_ne_u32 vcc, 0, v{acc[0]}")
    def sweep_all(self, loads, words, tmp, mant=True):
        e = self.e
        L = self.lab("sa"); Lx = self.lab("sax")
        e.label(L)
        if self.psleep: e(f"s_sleep {self.psleep}")
        for l in loads: e(l)
        e(f"s_sub_u32 s{S_TO}, s{S_TO}, 1")
        e("s_cbranch_scc1 L_hfail")
        e("s_waitcnt vmcnt(0)")
        self.check_words(words, tmp, mant)
        e(f"s_cbranch_vccnz {L}")
    def sweep_pipe(self, sets, tmp, mant, after, golabel):
        e = self.e
        n = len(sets); m = len(sets[0][0])
        L = self.lab("sp"); Lj = self.lab("spj")
        got = [self.lab("spg") for _ in sets]
        for i, (loads, words) in enumerate(sets):
            for l in loads: e(l)
            if i + 1 < n: e(f"s_sleep {self.pgap}")
        e.label(L)
        for i, (loads, words) in enumerate(sets):
            e(f"s_waitcnt vmcnt({m*(n-1)})")
            self.check_words(words, tmp, mant)
            e(f"s_cbranch_vccz {got[i]}")
            for l in loads: e(l)
        e(f"s_sub_u32 s{S_TO}, s{S_TO}, 1")
        e(f"s_cbranch_scc0 {L}")
        e("s_branch L_hfail")
        for i in reversed(range(n)):
            e.label(got[i])
            self.stamp(7)
            if i == 0: e.label(golabel)
            after(i)
            if i: e(f"s_branch {Lj}")
        e.label(Lj)
    def row_reduce(self, vs, op="add"):
        e = self.e
        for ctl in ("quad_perm:[1,0,3,2]", "quad_perm:[2,3,0,1]", "row_half_mirror", "row_mirror"):
            for v in vs:
                e(f"v_{op}_f32_dpp v{v}, v{v}, v{v} {ctl} row_mask:0xf bank_mask:0xf")
    def wave_sum_to_sgpr(self, vs, ss):
        e = self.e
        self.row_reduce(vs)
        for v in vs: e(f"v_add_f32_dpp v{v}, v{v}, v{v} row_bcast:15 row_mask:0xa bank_mask:0xf")
        for v in vs: e(f"v_add_f32_dpp v{v}, v{v}, v{v} row_bcast:31 row_mask:0xc bank_mask:0xf")
        for v, s in zip(vs, ss): e(f"v_readlane_b32 s{s}, v{v}, 63")
    def cross_rows(self, v, t, op):
        e = self.e
        e(f"v_mov_b32 v{t}, v{v}")
        e(f"v_permlane16_swap_b32 v{v}, v{t}")
        e(f"v_{op}_f32 v{v}, v{v}, v{t}")
        e(f"v_mov_b32 v{t}, v{v}")
        e(f"v_permlane32_swap_b32 v{v}, v{t}")
        e(f"v_{op}_f32 v{v}, v{v}, v{t}")

    def s_path(self):
        e = self.e
        KO0, KO1, VO = 2, 3, 4
        MK = 5
        MRUN, LRUN, NRUN = 9, 10, 11
        T = 12; PK = 16; MX, MX2, AL, ALD, NN = 18, 19, 20, 21, 22
        P = 24
        D0, D1, ACC0, ACC1, AF, QF, SLOT = 28, 32, 36, 40, 44, 60, 80
        S_BASE, S_O1, S_O2, S_CNT, S_R = 64, 65, 66, 67, 69
        def tile_off(dst, t):
            e(f"s_add_u32 s{dst}, s{S_R}, {t*32768}")
            e(f"s_and_b32 s{dst}, s{dst}, 0xfffff")
            e(f"s_add_u32 s{dst}, s{dst}, s{S_BASE}")
        NT = self.nt
        e("v_and_b32 v12, 15, v1")
        e("v_lshrrev_b32 v13, 4, v1")
        e("v_and_b32 v14, 7, v12")
        e("v_lshrrev_b32 v15, 3, v12")
        e(f"v_lshlrev_b32 v{KO0}, 9, v14")
        e("v_lshl_add_u32 v16, v15, 2, v13")
        e(f"v_lshl_add_u32 v{KO0}, v16, 4, v{KO0}")
        e(f"v_add_u32 v{KO1}, 0x1000, v{KO0}")
        e(f"v_lshlrev_b32 v{VO}, 11, v13")
        e(f"v_lshl_add_u32 v{VO}, v12, 4, v{VO}")
        e("s_mov_b32 s68, 0")
        e(f"s_lshl_b32 s{S_BASE}, s2, 20")
        e(f"s_lshl_b32 s65, s{S_HW}, 13")
        e(f"s_add_u32 s{S_BASE}, s{S_BASE}, s65")
        if self.rot == 2: e(f"s_and_b32 s{S_R}, s2, 31")
        else: e(f"s_lshr_b32 s{S_R}, s2, 3")
        e(f"s_lshl_b32 s{S_R}, s{S_R}, {15 if self.rot else 20}")
        e("s_waitcnt lgkmcnt(0)")
        self.srd(R_K, P_K, 1 << 28)
        self.srd(R_V, P_V, 1 << 28)
        state = dict(issued=-1)
        def slot_regs(s): return f"v[{SLOT+4*s}:{SLOT+4*s+3}]"
        def issue(n, slot, soff):
            i = n % 16
            if self.seq: i = n % 8 + (8 if n >= 8 * NT else 0)
            if i < 8:
                G, j = i >> 2, i & 3
                e(f"buffer_load_dwordx4 {slot_regs(slot)}, v{KO0+G}, s[{R_K}:{R_K+3}], s{soff} offen offset:{j*128} {self.kvflags}")
            else:
                i -= 8
                e(f"buffer_load_dwordx4 {slot_regs(slot)}, v{VO}, s[{R_V}:{R_V+3}], s{soff} offen offset:{(i>>1)*512+(i&1)*256} {self.vflags}")
        npro = self.npro
        assert 16 <= npro <= 44
        for n in range(npro):
            if n % (8 if self.seq else 16) == 0:
                tile_off(S_O1, n // (8 if self.seq else 16))
            tp = self.thrp if n < self.npl else self.thr
            if n >= tp: e(f"s_waitcnt vmcnt({tp-1})")
            issue(n, n, S_O1)
            if n in (5, 13, 19, 25): self.stamp({5: 6, 13: 7, 19: 9, 25: 10}[n])
            if n == 7:
                self.stamp(4)
                self.srd(R_WS, P_WS, WS_SIZE)
                e(f"s_mov_b32 s{S_C}, {CSC:#x}")
                e("v_lshrrev_b32 v16, 1, v14")
                e("v_and_b32 v17, 1, v14")
                e("v_mov_b32 v18, 0xffff")
                e("v_lshlrev_b32 v17, 4, v17")
                e("v_lshlrev_b32 v18, v17, v18")
                for i in range(4):
                    e(f"v_cmp_eq_u32 vcc, {i}, v16")
                    e(f"v_cndmask_b32 v{MK+i}, 0, v18, vcc")
                e(f"v_mov_b32 v{MRUN}, 0xff800000")
                e(f"v_mov_b32 v{NRUN}, 0x7f800000")
                e(f"v_mov_b32 v{LRUN}, 0")
                for i in range(8): e(f"v_mov_b32 v{ACC0+i}, 0")
                e("v_bfe_u32 v16, v12, 2, 1")
                e("v_lshl_add_u32 v16, v16, 2, v13")
                e("v_lshlrev_b32 v23, 9, v15")
                e("v_lshl_add_u32 v23, v16, 4, v23")
                e("v_lshrrev_b32 v16, 1, v13")
                e("v_and_b32 v17, 1, v13")
                e("v_lshlrev_b32 v76, 10, v16")
                e("v_lshl_add_u32 v76, v12, 5, v76")
                e("v_lshl_add_u32 v76, v17, 4, v76")
                e(f"s_lshl_b32 s70, s{S_HW}, 11")
                e("v_add_u32 v76, s70, v76")
                e(f"s_lshl_b32 s70, s{S_HW}, 4")
                e("v_add_u32 v77, s70, v1")
                e("v_mov_b32 v78, 1")
                e("v_mov_b32 v79, 0")
                if self.seq:
                    e("v_lshl_add_u32 v20, v15, 2, v13")
                    e("v_lshlrev_b32 v20, 3, v20")
                    e(f"s_lshl_b32 s70, s{S_HW}, 11")
                    e("v_add_u32 v20, s70, v20")
                    e("v_mov_b32 v21, v20")
        self.stamp(5)
        if not self.noq: e("s_barrier")
        self.stamp(1)
        for j in range(4):
            e(f"ds_read_b128 v[{QF+4*j}:{QF+4*j+3}], v23 offset:{QL+j*128}")
        e(f"ds_read_b32 v23, v79 offset:{MISC}")
        e("s_waitcnt lgkmcnt(0)")
        e(f"v_readfirstlane_b32 s{S_TAG}, v23")

        def softmax(point):
            for r in range(4): e(f"v_permlane32_swap_b32 v{D0+r}, v{D1+r}")
            for r in range(4): e(f"v_add_f32_dpp v{T+r}, v{D1+r}, v{D0+r} row_half_mirror row_mask:0xf bank_mask:0x5")
            for r in range(4): e(f"v_add_f32_dpp v{T+r}, v{D0+r}, v{D1+r} row_half_mirror row_mask:0xf bank_mask:0xa")
            e(f"v_cvt_pk_bf16_f32 v{PK}, v{T}, v{T+1}")
            e(f"v_cvt_pk_bf16_f32 v{PK+1}, v{T+2}, v{T+3}")
            e(f"v_lshlrev_b32 v{T}, 16, v{PK}")
            e(f"v_and_b32 v{T+1}, 0xffff0000, v{PK}")
            e(f"v_lshlrev_b32 v{T+2}, 16, v{PK+1}")
            e(f"v_and_b32 v{T+3}, 0xffff0000, v{PK+1}")
            point()
            e(f"v_max3_f32 v{MX}, v{T}, v{T+1}, v{T+2}")
            e(f"v_max3_f32 v{MX}, v{MX}, v{T+3}, v{MRUN}")
            self.cross_rows(MX, MX2, "max")
            e(f"v_mov_b32 v{MRUN}, v{MX}")
            e(f"v_mul_f32 v{NN}, s{S_C}, v{MX}")
            e(f"v_sub_f32 v{AL}, 0, v{NN}")
            for r in range(4): e(f"v_fma_f32 v{P+r}, v{T+r}, s{S_C}, v{AL}")
            e(f"v_sub_f32 v{NN}, v{AL}, v{NRUN}")
            e(f"v_mov_b32 v{NRUN}, v{AL}")
            e(f"v_exp_f32 v{AL}, v{NN}")
            for r in range(4): e(f"v_exp_f32 v{P+r}, v{P+r}")
            point()
            e(f"v_mov_b32 v{ALD}, v{AL}")
            e(f"v_mul_f32 v{LRUN}, v{LRUN}, v{AL}")
            e(f"v_mov_b32_dpp v{ALD}, v{AL} row_shr:8 row_mask:0x3 bank_mask:0xc")
            e(f"v_mov_b32_dpp v{ALD}, v{AL} row_shl:8 row_mask:0xc bank_mask:0x3")
            for r in range(4): e(f"v_cvt_pk_bf16_f32 v{T+r}, v{P+r}, v{P+r}")
            e(f"v_add_f32 v{P}, v{P}, v{P+1}")
            e(f"v_add_f32 v{P+2}, v{P+2}, v{P+3}")
            for i in range(4): e(f"v_and_b32 v{AF+i}, v{T}, v{MK+i}")
            for i in range(8): e(f"v_mul_f32 v{ACC0+i}, v{ACC0+i}, v{ALD}")
            e(f"v_add_f32 v{P}, v{P}, v{P+2}")
            for r in range(1, 4):
                for i in range(4): e(f"v_and_b32 v{AF+4*r+i}, v{T+r}, v{MK+i}")
            e(f"v_add_f32 v{LRUN}, v{LRUN}, v{P}")

        if self.seq:
            d = self.dist; thr = self.thr
            NK = 8 * NT
            S_O3 = 70
            def slot_of(n): return n if n < npro else n % 16
            st = dict(k=npro)
            def unit(u, steady, par):
                isk = u < NT
                st["j"] = 0
                st["last"] = 8 * u - 1
                def point():
                    j = st["j"]; st["j"] += 1
                    k = st["k"]
                    want = 8 * u + d + j
                    prev = k - 16 if k - 16 >= npro else k % 16
                    if prev > st["last"]:
                        assert not steady
                        return
                    if k > want and j % 2 == 0: return
                    if steady:
                        assert k == want
                        so = (S_O1, S_O2, S_O3)[k // 8 - (u - par) - 1]
                    else:
                        if st.get("so") != k // 8:
                            tile_off(S_O2, k // 8)
                            st["so"] = k // 8
                        so = S_O2
                    e(f"s_waitcnt vmcnt({thr-1})")
                    issue(k, slot_of(k), so)
                    st["k"] = k + 1
                if not isk:
                    SC = 16 + 2 * par
                    e("s_waitcnt lgkmcnt(0)")
                    e(f"ds_read_b64 v[{18-2*par}:{19-2*par}], v21 offset:{SO + 64*(par+1)}")
                    e(f"v_lshlrev_b32 v{T}, 16, v{SC}")
                    e(f"v_and_b32 v{T+1}, 0xffff0000, v{SC}")
                    e(f"v_lshlrev_b32 v{T+2}, 16, v{SC+1}")
                    e(f"v_and_b32 v{T+3}, 0xffff0000, v{SC+1}")
                    for r in range(4): e(f"v_fma_f32 v{P+r}, v{T+r}, s{S_C}, v{NRUN}")
                    for r in range(4): e(f"v_exp_f32 v{P+r}, v{P+r}")
                    for r in range(4): e(f"v_cvt_pk_bf16_f32 v{T+r}, v{P+r}, v{P+r}")
                    point()
                    for i in range(4): e(f"v_and_b32 v{AF+i}, v{T}, v{MK+i}")
                    e(f"v_add_f32 v{P}, v{P}, v{P+1}")
                    e(f"v_add_f32 v{P+2}, v{P+2}, v{P+3}")
                    for r in range(1, 4):
                        for i in range(4): e(f"v_and_b32 v{AF+4*r+i}, v{T+r}, v{MK+i}")
                    e(f"v_add_f32 v{P}, v{P}, v{P+2}")
                    e(f"v_add_f32 v{LRUN}, v{LRUN}, v{P}")
                for i in range(8):
                    n = 8 * u + i
                    w = st["k"] - 1 - n
                    assert w >= 0
                    if w < thr or not steady: e(f"s_waitcnt vmcnt({min(63, w)})")
                    if isk:
                        G, j = i >> 2, i & 3
                        D = D0 if G == 0 else D1
                        c = "0" if j == 0 else f"v[{D}:{D+3}]"
                        e(f"v_mfma_f32_16x16x32_bf16 v[{D}:{D+3}], {slot_regs(slot_of(n))}, v[{QF+4*j}:{QF+4*j+3}], {c}")
                    else:
                        j, hf = i >> 1, i & 1
                        A = ACC0 if hf == 0 else ACC1
                        e(f"v_mfma_f32_16x16x32_bf16 v[{A}:{A+3}], v[{AF+4*j}:{AF+4*j+3}], {slot_regs(slot_of(n))}, v[{A}:{A+3}]")
                    st["last"] = n
                    if i != 7 or isk: point()
                if isk:
                    for r in range(4): e(f"v_permlane32_swap_b32 v{D0+r}, v{D1+r}")
                    for r in range(4): e(f"v_add_f32_dpp v{T+r}, v{D1+r}, v{D0+r} row_half_mirror row_mask:0xf bank_mask:0x5")
                    for r in range(4): e(f"v_add_f32_dpp v{T+r}, v{D0+r}, v{D1+r} row_half_mirror row_mask:0xf bank_mask:0xa")
                    e(f"v_cvt_pk_bf16_f32 v{PK}, v{T}, v{T+1}")
                    e(f"v_cvt_pk_bf16_f32 v{PK+1}, v{T+2}, v{T+3}")
                    e(f"v_max3_f32 v{MRUN}, v{T}, v{T+1}, v{MRUN}")
                    e(f"ds_write_b64 v20, v[{PK}:{PK+1}] offset:{SO + (64*par if steady else 64*u)}")
                    e(f"v_max3_f32 v{MRUN}, v{T+2}, v{T+3}, v{MRUN}")
            def offsets(last_oob):
                if self.diag:
                    e("s_memrealtime s[98:99]"); e("s_waitcnt lgkmcnt(0)")
                    e("s_mov_b32 m0, s71"); e("s_nop 0")
                    e("v_writelane_b32 v22, s98, m0"); e("s_add_u32 s71, s71, 1")
                for i, so in enumerate((S_O1, S_O2, S_O3)):
                    e(f"s_add_u32 s{so}, s{S_R}, {i*32768}")
                    e(f"s_and_b32 s{so}, s{so}, 0xfffff")
                    e(f"s_add_u32 s{so}, s{so}, s{S_BASE}")
                e(f"s_add_u32 s{S_R}, s{S_R}, 65536")
                if last_oob:
                    e(f"s_cmp_eq_u32 s{S_CNT}, 1")
                    e(f"s_cselect_b32 s{S_O2}, 0x80000000, s{S_O2}")
                    e(f"s_cselect_b32 s{S_O3}, 0x80000000, s{S_O3}")
            assert 8 < d <= 16
            if self.diag: e("s_mov_b32 s71, 0"); e("v_mov_b32 v22, 0")
            u = 0
            while not (st["k"] - 8 * u == d and 8 * u >= npro and u % 2 == 0):
                unit(u, False, 0)
                u += 1
            ufirst = u
            self.stamp(8)
            e(f"s_add_u32 s{S_R}, s{S_R}, {(ufirst+1)*32768}")
            e(f"v_add_u32 v20, {64*ufirst}, v20")
            e(f"s_mov_b32 s{S_CNT}, {(NT-ufirst)//2 - 1}")
            L = self.lab("kloop")
            e.label(L)
            offsets(False)
            unit(ufirst, True, 0); unit(ufirst + 1, True, 1)
            e("v_add_u32 v20, 128, v20")
            e(f"s_sub_u32 s{S_CNT}, s{S_CNT}, 1")
            e(f"s_cmp_lg_u32 s{S_CNT}, 0")
            e(f"s_cbranch_scc1 {L}")
            offsets(False)
            st["k"] = 8 * (NT - 2) + d
            unit(NT - 2, True, 0); unit(NT - 1, True, 1)
            e(f"ds_read_b64 v[16:17], v21 offset:{SO}")
            self.cross_rows(MRUN, MX2, "max")
            self.rnd(MRUN)
            e(f"v_mul_f32 v{NRUN}, s{S_C}, v{MRUN}")
            e(f"v_sub_f32 v{NRUN}, 0, v{NRUN}")
            e(f"s_mov_b32 s{S_CNT}, {NT//2}")
            L = self.lab("vloop")
            e.label(L)
            offsets(True)
            e(f"v_mov_b32 v23, s{S_CNT}")
            e(f"ds_write_b32 v79, v23 offset:{MISC+12}")
            unit(NT, True, 0); unit(NT + 1, True, 1)
            e("v_add_u32 v21, 128, v21")
            e(f"s_sub_u32 s{S_CNT}, s{S_CNT}, 1")
            e(f"s_cmp_lg_u32 s{S_CNT}, 0")
            e(f"s_cbranch_scc1 {L}")
            e("s_waitcnt lgkmcnt(0)")
            if self.diag:
                e("s_lshl_b32 s98, s2, 2"); e(f"s_add_u32 s98, s98, s{S_HW}"); e("s_lshl_b32 s98, s98, 8"); e(f"s_add_u32 s98, s98, {STAMP + 0x40000}")
                e("v_lshlrev_b32 v23, 2, v1")
                e(f"buffer_store_dword v22, v23, s[{R_WS}:{R_WS+3}], s98 offen")
        else:
            d = self.dist
            NL = NT * 16
            def slot_of(n): return n if n < npro else n % 16
            def consume(n):
                i = n % 16
                if i < 8:
                    G, j = i >> 2, i & 3
                    D = D0 if G == 0 else D1
                    c = "0" if j == 0 else f"v[{D}:{D+3}]"
                    e(f"v_mfma_f32_16x16x32_bf16 v[{D}:{D+3}], {slot_regs(slot_of(n))}, v[{QF+4*j}:{QF+4*j+3}], {c}")
                else:
                    i -= 8
                    j, hf = i >> 1, i & 1
                    A = ACC0 if hf == 0 else ACC1
                    e(f"v_mfma_f32_16x16x32_bf16 v[{A}:{A+3}], v[{AF+4*j}:{AF+4*j+3}], {slot_regs(slot_of(n))}, v[{A}:{A+3}]")
            st = dict(k=npro)
            def tile(t, steady, thr=None):
                thr = self.thr if thr is None else thr
                st["j"] = 0
                st["last"] = 16 * t - 1
                def point():
                    j = st["j"]; st["j"] += 1
                    k = st["k"]
                    want = 16 * t + d + j
                    prev = k - 16 if k - 16 >= npro else k % 16
                    if prev > st["last"]:
                        assert not steady
                        return
                    if k > want and j % 2 == 0: return
                    if steady:
                        assert k == want
                        so = S_O1 if k // 16 == t else S_O2
                    else:
                        if st.get("so") != k // 16:
                            tile_off(S_O2, k // 16)
                            st["so"] = k // 16
                        so = S_O2
                    e(f"s_waitcnt vmcnt({thr-1})")
                    issue(k, slot_of(k), so)
                    st["k"] = k + 1
                for i in range(16):
                    n = 16 * t + i
                    if i == 8: softmax(point)
                    w = st["k"] - 1 - n
                    assert w >= 0
                    if w < thr or not steady: e(f"s_waitcnt vmcnt({min(63, w)})")
                    consume(n)
                    st["last"] = n
                    if i % 8 != 7: point()
            t = 0
            while not (st["k"] - 16 * t == d and 16 * t >= npro):
                tile(t, False)
                t += 1
            tfirst = t
            self.stamp(8)
            tile_off(S_O1, tfirst)
            e(f"s_add_u32 s{S_R}, s{S_R}, {tfirst*32768}")
            e(f"s_mov_b32 s{S_CNT}, {NT-tfirst}")
            for thr, stop in ([(self.thr, self.nl2), (self.thr2, 0)] if self.nl2 else [(self.thr, 0)]):
                L = self.lab("sloop")
                e.label(L)
                e(f"s_add_u32 s{S_R}, s{S_R}, 32768")
                e(f"s_and_b32 s{S_O2}, s{S_R}, 0xfffff")
                e(f"s_add_u32 s{S_O2}, s{S_O2}, s{S_BASE}")
                e(f"v_mov_b32 v23, s{S_CNT}")
                e(f"s_cmp_eq_u32 s{S_CNT}, 1")
                e(f"s_cselect_b32 s{S_O2}, 0x80000000, s{S_O2}")
                e(f"ds_write_b32 v79, v23 offset:{MISC+12}")
                st["k"] = 16 * tfirst + d
                tile(tfirst, True, thr)
                e(f"s_mov_b32 s{S_O1}, s{S_O2}")
                e(f"s_sub_u32 s{S_CNT}, s{S_CNT}, 1")
                e(f"s_cmp_lg_u32 s{S_CNT}, {stop}")
                e(f"s_cbranch_scc1 {L}")
        self.stamp(2)
        self.cross_rows(LRUN, MX2, "add")
        e(f"ds_write_b128 v76, v[{ACC0}:{ACC0+3}] offset:{SO}")
        e(f"ds_write_b128 v76, v[{ACC1}:{ACC1+3}] offset:{SO+512}")
        e("s_mov_b64 exec, 0x101")
        e(f"ds_write2_b32 v77, v{NRUN}, v{LRUN} offset0:{SML//4} offset1:{SML//4+1}") if SML // 4 + 1 < 256 else None
        e("s_mov_b64 exec, 1")
        e(f"ds_add_rtn_u32 v22, v79, v78 offset:{MISC+4}")
        e("s_mov_b64 exec, -1")
        e("s_waitcnt lgkmcnt(0)")
        e("v_readfirstlane_b32 s64, v22")
        e("s_cmp_eq_u32 s64, 3")
        Ld = self.lab("slast")
        e(f"s_cbranch_scc1 {Ld}")
        self.endpgm()
        e.label(Ld)
        e("s_waitcnt vmcnt(0)")
        e.label("L_sfinal")
        e("v_mov_b32 v20, 0")
        e("v_lshlrev_b32 v22, 4, v1")
        for w in range(4):
            e(f"ds_read_b128 v[{24+4*w}:{27+4*w}], v20 offset:{SML+16*w}")
        OB = 80
        for h in range(2):
            for w in range(4):
                r = OB + (h * 4 + w) * 4
                e(f"ds_read_b128 v[{r}:{r+3}], v22 offset:{SO + w*2048 + h*1024}")
        e(f"s_and_b32 s{S_TM}, s{S_TAG}, 0x3f")
        e("v_mov_b32 v21, 0xffffffc0")
        e("s_waitcnt lgkmcnt(8)")
        for h in range(2):
            n = [24 + 4 * w + 2 * h for w in range(4)]
            e(f"v_min3_f32 v{40+h}, v{n[0]}, v{n[1]}, v{n[2]}")
            e(f"v_min_f32 v{40+h}, v{40+h}, v{n[3]}")
        for h in range(2):
            for w in range(4):
                e(f"v_sub_f32 v{44+4*h+w}, v{40+h}, v{24+4*w+2*h}")
        for i in range(8): e(f"v_exp_f32 v{44+i}, v{44+i}")
        for h in range(2):
            e(f"v_mul_f32 v{42+h}, v{44+4*h}, v{25+2*h}")
        for w in range(1, 4):
            for h in range(2):
                e(f"v_fmac_f32 v{42+h}, v{44+4*h+w}, v{25+4*w+2*h}")
        for h in range(2): e(f"v_rcp_f32 v{52+h}, v{42+h}")
        for h in range(2): e(f"v_log_f32 v{54+h}, v{42+h}")
        for h in range(2):
            for w in range(4): e(f"v_mul_f32 v{44+4*h+w}, v{44+4*h+w}, v{52+h}")
        for h in range(2): e(f"v_sub_f32 v{54+h}, v{54+h}, v{40+h}")
        e(f"s_lshl_b32 s64, s2, 11")
        e(f"s_add_u32 s64, s64, {PBUF}")
        for h in range(2):
            e(f"s_waitcnt lgkmcnt({4-4*h})")
            o = 56 + 4 * h
            for i in range(4): e(f"v_mul_f32 v{o+i}, v{44+4*h}, v{OB+h*16+i}")
            for w in range(1, 4):
                for i in range(4): e(f"v_fmac_f32 v{o+i}, v{44+4*h+w}, v{OB+h*16+w*4+i}")
            for i in range(4): self.tagw(o + i, o + i, 21)
        e("v_cmp_eq_u32 vcc, 1, v1")
        e("v_cndmask_b32 v72, v54, v55, vcc")
        e(f"v_mov_b32 v73, s{S_TAG}")
        e("v_lshlrev_b32 v23, 11, v1")
        e("s_lshl_b32 s65, s2, 3")
        e(f"s_add_u32 s65, s65, {HBUF}")
        e("s_cmp_eq_u32 s68, 1")
        e("s_cbranch_scc1 L_sfinal_back")
        for h in range(2):
            o = 56 + 4 * h
            e(f"buffer_store_dwordx4 v[{o}:{o+3}], v22, s[{R_WS}:{R_WS+3}], s64 offen offset:{h*1024} sc1")
        e("s_mov_b64 exec, 3")
        e(f"buffer_store_dwordx2 v[72:73], v23, s[{R_WS}:{R_WS+3}], s65 offen sc1")
        e(f"ds_add_u32 v79, v78 offset:{MISC+4}")
        self.stamp(3)
        self.endpgm()

    def h_consts(self):
        e = self.e
        e("v_and_b32 v4, 15, v1")
        e("v_lshrrev_b32 v5, 4, v1")
        e("v_lshrrev_b32 v6, 2, v4")
        e("v_lshl_add_u32 v6, v5, 3, v6")
        e("v_and_b32 v7, 3, v4")
        e("v_lshlrev_b32 v7, 3, v7")
        e("v_and_b32 v8, 1, v1")
        e(f"v_mul_u32_u24 v8, {AVS}, v8")
        e("v_lshl_add_u32 v3, v5, 4, v8")
    def tr_addr(self, lgpitch, sbase):
        e = self.e
        e(f"v_lshl_add_u32 v2, v6, {lgpitch}, v7")
        e(f"v_add_u32 v2, s{sbase}, v2")
    def dma_voff(self, rowbytes, lgpitch, vout):
        e = self.e
        sh = lgpitch - 4
        e(f"v_lshrrev_b32 v{vout}, {sh}, v1")
        e(f"v_mul_u32_u24 v{vout}, {rowbytes}, v{vout}")
        e(f"v_and_b32 v{vout+1}, {(1<<sh)-1}, v1")
        e(f"v_lshl_add_u32 v{vout}, v{vout+1}, 4, v{vout}")
    def dma_loop(self, srd, voff, n, s_src, src_step, s_dst, inflight=None):
        e = self.e
        L = self.lab("dma")
        inflight = self.winfl_cur
        e(f"s_mov_b32 s66, {n}")
        e.label(L)
        e(f"s_mov_b32 m0, s{s_dst}")
        e(f"s_add_u32 s{s_dst}, s{s_dst}, 1024")
        e(f"buffer_load_dwordx4 v{voff}, s[{srd}:{srd+3}], s{s_src} offen {self.wflags} lds")
        e(f"s_add_u32 s{s_src}, s{s_src}, {src_step}")
        if inflight < 32: e(f"s_waitcnt vmcnt({inflight-1})")
        e("s_sub_u32 s66, s66, 1")
        e("s_cmp_lg_u32 s66, 0")
        e(f"s_cbranch_scc1 {L}")
    def h_sync(self):
        e = self.e
        L = self.lab("hs"); Lx = self.lab("hsx")
        e("s_waitcnt vmcnt(0)")
        e("v_mov_b32 v8, 0")
        e("v_mov_b32 v9, 1")
        e("s_mov_b64 exec, 1")
        e(f"ds_add_u32 v8, v9 offset:{MISC+8}")
        e("s_mov_b64 exec, -1")
        e.label(L)
        e(f"ds_read_b32 v9, v8 offset:{MISC+8}")
        e("s_waitcnt lgkmcnt(0)")
        e("v_readfirstlane_b32 s64, v9")
        e("s_cmp_ge_u32 s64, 4")
        e(f"s_cbranch_scc1 {Lx}")
        e("s_sleep 2")
        e(f"s_sub_u32 s{S_TO}, s{S_TO}, 1")
        e(f"s_cbranch_scc0 {L}")
        e(f"s_branch L_hfail")
        e.label(Lx)
    def tr_frags(self, nsteps, off, fbase, lgpitch):
        e = self.e
        for st in range(nsteps):
            f = fbase + 4 * st
            o = off + st * (32 << lgpitch)
            assert o + (4 << lgpitch) < 65536
            e(f"ds_read_b64_tr_b16 v[{f}:{f+1}], v2 offset:{o}")
            e(f"ds_read_b64_tr_b16 v[{f+2}:{f+3}], v2 offset:{o + (4 << lgpitch)}")
            if st % 4 == 3: e("s_waitcnt lgkmcnt(0)")
        e("s_waitcnt lgkmcnt(0)")
    def gemv(self, nsteps, abase, a_lds_off, chains, vaddr=3, ahead=12):
        e = self.e
        AHEAD = ahead
        def rd(st): e(f"ds_read_b128 v[{abase+4*st}:{abase+4*st+3}], v{vaddr} offset:{a_lds_off+st*64}")
        issued = min(nsteps, AHEAD)
        for st in range(issued): rd(st)
        for st in range(nsteps):
            e(f"s_waitcnt lgkmcnt({issued - 1 - st})")
            for D, fb in chains:
                c = "0" if st == 0 else f"v[{D}:{D+3}]"
                e(f"v_mfma_f32_16x16x32_bf16 v[{D}:{D+3}], v[{abase+4*st}:{abase+4*st+3}], v[{fb+4*st}:{fb+4*st+3}], {c}")
            if issued < nsteps:
                rd(issued); issued += 1
    def lds_wait(self, off, cmp, val, sleep=4, sreg=64):
        e = self.e
        L = self.lab("lw"); Lx = self.lab("lwx")
        e("v_mov_b32 v8, 0")
        e.label(L)
        e(f"ds_read_b32 v9, v8 offset:{off}")
        e("s_waitcnt lgkmcnt(0)")
        e(f"v_readfirstlane_b32 s{sreg}, v9")
        e(f"s_cmp_{cmp}_u32 s{sreg}, {val}")
        e(f"s_cbranch_scc1 {Lx}")
        e(f"s_sleep {sleep}")
        e(f"s_sub_u32 s{S_TO}, s{S_TO}, 1")
        e(f"s_cbranch_scc0 {L}")
        e(f"s_branch L_hfail")
        e.label(Lx)
    def lds_set(self, off, src):
        e = self.e
        e("v_mov_b32 v8, 0")
        e(f"v_mov_b32 v9, {src}")
        e(f"ds_write_b32 v8, v9 offset:{off}")
    def bar(self):
        e = self.e
        L = self.lab("nb")
        e("s_cmp_eq_u32 s68, 1")
        e(f"s_cbranch_scc1 {L}")
        e("s_barrier")
        e.label(L)
    def gate_all(self):
        e = self.e
        L = self.lab("gate"); Lx = self.lab("gatex"); Lo = self.lab("gateo"); Le = self.lab("gatee")
        e(f"s_cmp_lg_u32 s{S_HW}, 0")
        e(f"s_cbranch_scc1 {Lo}")
        e("v_lshlrev_b32 v8, 5, v1")
        e(f"s_mov_b32 s64, {HBUF}")
        e.label(L)
        e(f"buffer_load_dwordx4 v[40:43], v8, s[{R_WS}:{R_WS+3}], s64 offen sc1")
        e(f"buffer_load_dwordx4 v[44:47], v8, s[{R_WS}:{R_WS+3}], s64 offen offset:16 sc1")
        e("s_waitcnt vmcnt(0)")
        e(f"v_xor_b32 v41, s{S_TAG}, v41")
        e(f"v_xor_b32 v43, s{S_TAG}, v43")
        e(f"v_xor_b32 v45, s{S_TAG}, v45")
        e(f"v_xor_b32 v47, s{S_TAG}, v47")
        e("v_or3_b32 v41, v41, v43, v45")
        e("v_or_b32 v41, v41, v47")
        e("v_cmp_ne_u32 vcc, 0, v41")
        e("s_bcnt1_i32_b64 s65, vcc")
        e(f"s_cmp_le_u32 s65, {self.gthr}")
        e(f"s_cbranch_scc1 {Lx}")
        e("s_mov_b64 exec, vcc")
        e(f"s_sleep {self.gsleep}")
        e(f"s_sub_u32 s{S_TO}, s{S_TO}, 1")
        e(f"s_cbranch_scc0 {L}")
        e(f"s_branch L_hfail")
        e.label(Lx)
        e("s_mov_b64 exec, -1")
        self.lds_set(MISC + 20, 1)
        e(f"s_branch {Le}")
        e.label(Lo)
        self.lds_wait(MISC + 20, "eq", 1, 2)
        e.label(Le)
    def ln_finish(self, mean, var, out_mb, out_rs):
        e = self.e
        for m, o in zip(mean, out_mb):
            if m != o: e(f"v_mov_b32 v{o}, v{m}")
        self.rnd_many(list(out_mb) + list(var))
        for v in var: e(f"v_add_f32 v{v}, {f2u(1e-5):#x}, v{v}")
        self.rnd_many(var)
        for v in var: e(f"v_sqrt_f32 v{v}, v{v}")
        self.rnd_many(var)
        for v, o in zip(var, out_rs): e(f"v_rcp_f32 v{o}, v{v}")

    def q_path(self):
        e = self.e
        e("v_lshlrev_b32 v8, 4, v1")
        e("v_cmp_gt_u32 s[70:71], 56, v1")
        e("v_mov_b32 v9, 0x10000")
        e("v_cndmask_b32 v8, v9, v8, s[70:71]")
        e(f"buffer_load_dwordx4 v[12:15], v8, s[{R_X}:{R_X+3}], 0 offen")
        e(f"buffer_load_dwordx4 v[16:19], v8, s[{R_X}:{R_X+3}], 0 offen offset:896")
        e(f"buffer_load_dword v10, off, s[{R_WS}:{R_WS+3}], 0 offset:{EPOCH} sc1")
        e(f"s_and_b32 s12, s{S_SPL}, 3")
        e(f"s_lshr_b32 s13, s{S_SPL}, 2")
        e(f"s_lshl_b32 s64, s{S_B}, 2")
        e("s_add_u32 s13, s13, s64")
        e(f"s_mul_i32 s64, s12, {112*8192}")
        e(f"s_lshl_b32 s65, s{S_HKV}, 10")
        e("s_add_u32 s64, s64, s65")
        e("s_lshl_b32 s65, s13, 7")
        e("s_add_u32 s64, s64, s65")
        self.srd(R_W, P_WQ, 448 * 8192)
        self.dma_voff(8192, 7, 20)
        for st in range(14):
            e(f"s_mov_b32 m0, {STG + st*1024}")
            if st: e(f"s_add_u32 s64, s64, {8*8192}")
            e(f"buffer_load_dwordx4 v20, s[{R_W}:{R_W+3}], s64 offen {self.qflags} lds")
        self.stamp(9)
        self.h_consts()
        e("v_mov_b32 v20, 0")
        e("v_mov_b32 v21, 0")
        e("v_mov_b32 v21, 0x7fff")
        e(f"ds_write_b64 v20, v[20:21] offset:{MISC+8}")
        e("v_mov_b32 v21, 0")
        e(f"ds_write_b64 v20, v[20:21] offset:{MISC+16}")
        e(f"ds_write_b32 v20, v20 offset:{MISC+4}")
        e("s_waitcnt vmcnt(15)")
        self.stamp(10)
        for b in range(2):
            for i in range(4):
                e(f"v_lshlrev_b32 v{24+8*b+2*i}, 16, v{12+4*b+i}")
                e(f"v_and_b32 v{25+8*b+2*i}, 0xffff0000, v{12+4*b+i}")
        for b in range(2):
            x = 24 + 8 * b
            e(f"v_add_f32 v{40+b}, v{x}, v{x+1}")
            for i in range(2, 8): e(f"v_add_f32 v{40+b}, v{40+b}, v{x+i}")
        self.wave_sum_to_sgpr([40, 41], [64, 65])
        inv = f2u(1.0 / 448)
        for b in range(2):
            e(f"v_mov_b32 v{42+b}, {inv:#x}")
            e(f"v_mul_f32 v{42+b}, s{64+b}, v{42+b}")
        for b in range(2):
            x = 24 + 8 * b
            e(f"v_sub_f32 v44, v{x}, v{42+b}")
            e(f"v_mul_f32 v{40+b}, v44, v44")
            for i in range(1, 8):
                e(f"v_sub_f32 v44, v{x+i}, v{42+b}")
                e(f"v_fmac_f32 v{40+b}, v44, v44")
            e(f"v_cndmask_b32 v{40+b}, 0, v{40+b}, s[70:71]")
        self.wave_sum_to_sgpr([40, 41], [64, 65])
        for b in range(2):
            e(f"v_mov_b32 v{44+b}, {inv:#x}")
            e(f"v_mul_f32 v{44+b}, s{64+b}, v{44+b}")
        self.ln_finish([42, 43], [44, 45], [42, 43], [46, 47])
        for b in range(2):
            x = 24 + 8 * b
            for i in range(8): e(f"v_sub_f32 v{x+i}, v{x+i}, v{42+b}")
            for i in range(4): e(f"v_cvt_pk_bf16_f32 v{12+4*b+i}, v{x+2*i}, v{x+2*i+1}")
            for i in range(4):
                e(f"v_lshlrev_b32 v{x+2*i}, 16, v{12+4*b+i}")
                e(f"v_and_b32 v{x+2*i+1}, 0xffff0000, v{12+4*b+i}")
            for i in range(8): e(f"v_mul_f32 v{x+i}, v{x+i}, v{46+b}")
            for i in range(4): e(f"v_cvt_pk_bf16_f32 v{12+4*b+i}, v{x+2*i}, v{x+2*i+1}")
        e("v_lshlrev_b32 v8, 4, v1")
        e("s_mov_b64 exec, s[70:71]")
        e(f"ds_write_b128 v8, v[12:15] offset:{AV}")
        e(f"ds_write_b128 v8, v[16:19] offset:{AV+AVS}")
        e("s_mov_b64 exec, -1")
        e("s_waitcnt vmcnt(14)")
        e("v_readfirstlane_b32 s64, v10")
        self.set_tag(64)
        e(f"v_mov_b32 v21, s{S_TAG}")
        e(f"ds_write_b32 v20, v21 offset:{MISC}")
        e("s_waitcnt vmcnt(0) lgkmcnt(0)")
        self.stamp(1)
        e(f"s_mov_b32 s64, {STG}")
        self.tr_addr(7, 64)
        e("s_mul_i32 s64, s12, 224")
        e("v_add_u32 v9, s64, v3")
        for st in range(4): e(f"ds_read_b128 v[{128+4*st}:{131+4*st}], v9 offset:{AV+st*64}")
        for cg in range(4): self.tr_frags(4, cg * 32, 64 + 16 * cg, 7)
        e("v_cmp_gt_u32 vcc, 32, v1")
        for i in range(4): e(f"v_cndmask_b32 v{140+i}, 0, v{140+i}, vcc")
        for cg in range(4):
            for i in range(4): e(f"v_cndmask_b32 v{76+16*cg+i}, 0, v{76+16*cg+i}, vcc")
        for st in range(4):
            for cg in range(4):
                D = 144 + 4 * cg
                c = "0" if st == 0 else f"v[{D}:{D+3}]"
                e(f"v_mfma_f32_16x16x32_bf16 v[{D}:{D+3}], v[{128+4*st}:{131+4*st}], v[{64+16*cg+4*st}:{67+16*cg+4*st}], {c}")
        e("v_cmp_lt_u32 s[64:65], 15, v1")
        e("v_cmp_lt_u32 s[66:67], 31, v1")
        e("v_cmp_lt_u32 vcc, 47, v1")
        e(f"v_mov_b32 v53, s{S_TAG}")
        e(f"v_mov_b32 v55, s{S_TAG}")
        e("v_lshlrev_b32 v8, 3, v1")
        for b in range(2):
            e(f"v_cndmask_b32 v{52+2*b}, v{144+b}, v{148+b}, s[64:65]")
        for b in range(2):
            e(f"v_cndmask_b32 v{52+2*b}, v{52+2*b}, v{152+b}, s[66:67]")
        for b in range(2):
            e(f"v_cndmask_b32 v{52+2*b}, v{52+2*b}, v{156+b}, vcc")
        e(f"s_lshl_b32 s64, s{S_HKV}, 14")
        e("s_lshl_b32 s65, s12, 12")
        e("s_add_u32 s64, s64, s65")
        e("s_lshl_b32 s65, s13, 9")
        e("s_add_u32 s64, s64, s65")
        e(f"s_add_u32 s64, s64, {QBUF}")
        e(f"s_add_u32 s65, s64, {8*16384}")
        e(f"buffer_store_dwordx2 v[52:53], v8, s[{R_WS}:{R_WS+3}], s64 offen sc1")
        e(f"buffer_store_dwordx2 v[54:55], v8, s[{R_WS}:{R_WS+3}], s65 offen sc1")
        self.lds_set(MISC + 24, f"s{S_TAG}")
        self.stamp(2)

    def q_gather(self):
        e = self.e
        e("v_lshlrev_b32 v8, 4, v1")
        e(f"s_lshl_b32 s13, s{S_GRP}, 14")
        e(f"s_lshl_b32 s64, s{S_HW}, 10")
        e("s_add_u32 s13, s13, s64")
        e(f"s_add_u32 s13, s13, {QBUF}")
        for k in range(1, 4): e(f"s_add_u32 s{64+k}, s13, {k*4096}")
        qld = [f"buffer_load_dwordx4 v[{24+4*k}:{27+4*k}], v8, s[{R_WS}:{R_WS+3}], s{64+k if k else 13} offen sc1" for k in range(4)]
        e(f"s_sleep {self.qsleep0}")
        for l in qld: e(l)
        for k in range(4):
            L = self.lab("qp"); Lx = self.lab("qpx")
            e.label(L)
            e("s_waitcnt vmcnt(0)")
            self.check_words([25 + 4 * k, 27 + 4 * k], 40, mant=False)
            e(f"s_cbranch_vccz {Lx}")
            e(f"s_sleep {self.qsleep}")
            e(qld[k])
            e(f"s_sub_u32 s{S_TO}, s{S_TO}, 1")
            e(f"s_cbranch_scc0 {L}")
            e("s_branch L_hfail")
            e.label(Lx)
        e("v_add_f32 v24, v24, v28")
        e("v_add_f32 v26, v26, v30")
        e("v_add_f32 v32, v32, v36")
        e("v_add_f32 v34, v34, v38")
        e("v_add_f32 v24, v24, v32")
        e("v_add_f32 v26, v26, v34")
        e("v_cvt_pk_bf16_f32 v24, v24, v26")
        e("v_lshlrev_b32 v8, 2, v1")
        e(f"s_lshl_b32 s64, s{S_HW}, 8")
        e("v_add_u32 v8, s64, v8")
        e(f"ds_write_b32 v8, v24 offset:{QL}")
        e("s_waitcnt lgkmcnt(0)")

    def stage_a(self):
        e = self.e
        FB, PB = 64, 128
        if self.latea == 1: self.lds_wait(MISC + 4, "ge", 5, 2)
        if self.latea >= 2: self.lds_wait(MISC + 12, "le", self.latea - 1, 4)
        self.winfl_cur = self.winfl2 if self.latea else self.winfl
        self.srd(R_W, P_WO, 4096 * 896)
        e(f"s_mul_i32 s64, s{S_HKV}, {512*896}")
        e(f"s_lshl_b32 s65, s{S_SPL}, 7")
        e("s_add_u32 s64, s64, s65")
        e(f"s_mul_i32 s65, s{S_HW}, {128*896}")
        e("s_add_u32 s64, s64, s65")
        e(f"s_lshl_b32 s65, s{S_HW}, 14")
        e(f"s_add_u32 s65, s65, {STG}")
        self.dma_voff(896, 7, 20)
        self.dma_loop(R_W, 20, 16, 64, 8 * 896, 65)
        self.h_sync()
        e(f"s_lshl_b32 s64, s{S_HW}, 5")
        e(f"s_add_u32 s64, s64, {STG}")
        self.tr_addr(7, 64)
        self.tr_frags(16, 0, FB, 7)
        self.stamp(4)
        e(f"s_lshr_b32 s12, s{S_HW}, 1")
        e(f"s_and_b32 s13, s{S_HW}, 1")
        e("s_lshl_b32 s14, s12, 3")
        e(f"s_add_u32 s14, s14, s{S_HKV}")
        e("s_lshl_b32 s15, s14, 15")
        e("s_lshl_b32 s64, s13, 10")
        e("s_add_u32 s15, s15, s64")
        e(f"s_add_u32 s15, s15, {PBUF}")
        e("s_lshl_b32 s64, s13, 11")
        e("s_lshl_b32 s14, s14, 7")
        e("s_add_u32 s14, s14, s64")
        e(f"s_add_u32 s14, s14, {HBUF}")
        e("v_lshlrev_b32 v5, 4, v1")
        e("v_lshlrev_b32 v6, 3, v4")
        e(f"s_mul_i32 s64, s12, {AVS}")
        e("s_lshl_b32 s65, s13, 9")
        e("s_add_u32 s64, s64, s65")
        e("v_lshlrev_b32 v7, 3, v1")
        e("v_add_u32 v7, s64, v7")
        e("v_lshlrev_b32 v18, 3, v1")
        e("v_mov_b32 v19, 0xffffffc0")
        e(f"s_mul_i32 s52, s{S_HKV}, {448*8}")
        e(f"s_lshl_b32 s65, s{S_SPL}, 9")
        e("s_add_u32 s52, s52, s65")
        e(f"s_lshl_b32 s65, s{S_HW}, 7")
        e("s_add_u32 s52, s52, s65")
        e(f"s_add_u32 s52, s52, {YBUF}")
        e("s_mov_b32 s68, 1")
        e("s_branch L_a_go")
        e.label("L_a_poll")
        e("s_mov_b32 s68, 0")
        self.stamp(5)
        self.stamp(6)
        NB = self.aspec
        L = self.lab("asw"); Lz = self.lab("anl"); Li = self.lab("ais"); Lc = self.lab("ack")
        e("s_mov_b32 s69, 0xffff")
        e("s_mov_b32 s70, 0")
        e("v_mov_b32 v12, 0xff800000")
        for i in range(13, 18): e(f"v_mov_b32 v{i}, 0")
        e.label(L)
        e(f"buffer_load_dwordx2 v[10:11], v6, s[{R_WS}:{R_WS+3}], s14 offen sc1")
        for i in range(NB):
            r = PB + 4 * i
            e(f"s_ff1_i32_b32 s{40+i}, s70")
            e(f"s_cmp_lt_i32 s{40+i}, 0")
            e(f"s_cbranch_scc1 {Li}")
            e(f"s_lshl_b32 s64, s{40+i}, 11")
            e(f"s_bitset0_b32 s70, s{40+i}")
            e("s_add_u32 s64, s64, s15")
            e(f"buffer_load_dwordx4 v[{r}:{r+3}], v5, s[{R_WS}:{R_WS+3}], s64 offen sc1")
        e.label(Li)
        e("s_waitcnt vmcnt(0)")
        e(f"v_cmp_eq_u32 s[66:67], s{S_TAG}, v11")
        for i in range(NB):
            r = PB + 4 * i
            nx = self.lab("anx")
            e(f"s_cmp_lt_i32 s{40+i}, 0")
            e(f"s_cbranch_scc1 {Lc}")
            e(f"v_readlane_b32 s64, v10, s{40+i}")
            self.check_words([r, r + 2], 28)
            e(f"s_cbranch_vccnz {nx}")
            e(f"s_bitcmp1_b32 s66, s{40+i}")
            e(f"s_cbranch_scc0 {nx}")
            e("v_max_f32 v28, s64, v12")
            e("v_sub_f32 v24, v12, v28")
            e("v_sub_f32 v26, s64, v28")
            e("v_exp_f32 v24, v24")
            e("v_exp_f32 v26, v26")
            e("v_mov_b32 v12, v28")
            e(f"s_bitset0_b32 s69, s{40+i}")
            e("v_pk_mul_f32 v[14:15], v[14:15], v[24:25] op_sel_hi:[1,0]")
            e("v_pk_mul_f32 v[16:17], v[16:17], v[24:25] op_sel_hi:[1,0]")
            e("v_fma_f32 v13, v13, v24, v26")
            e(f"v_pk_fma_f32 v[14:15], v[{r}:{r+1}], v[26:27], v[14:15] op_sel_hi:[1,0,1]")
            e(f"v_pk_fma_f32 v[16:17], v[{r+2}:{r+3}], v[26:27], v[16:17] op_sel_hi:[1,0,1]")
            e.label(nx)
        e.label(Lc)
        e("s_cmp_eq_u32 s69, 0")
        e("s_cbranch_scc1 L_a_got")
        e("s_and_b32 s70, s69, s66")
        e("s_bcnt1_i32_b32 s64, s69")
        e(f"s_cmp_le_u32 s64, {NB}")
        e("s_cselect_b32 s70, s69, s70")
        e("s_cmp_lg_u32 s70, 0")
        e(f"s_cbranch_scc1 {Lz}")
        e(f"s_sleep {self.gsleep}")
        e.label(Lz)
        e(f"s_sub_u32 s{S_TO}, s{S_TO}, 1")
        e(f"s_cbranch_scc0 {L}")
        e("s_branch L_hfail")
        e.label("L_a_got")
        self.stamp(7)
        e.label("L_a_go")
        e("v_rcp_f32 v24, v13")
        e("v_pk_mul_f32 v[14:15], v[14:15], v[24:25] op_sel_hi:[1,0]")
        e("v_pk_mul_f32 v[16:17], v[16:17], v[24:25] op_sel_hi:[1,0]")
        e("v_cvt_pk_bf16_f32 v14, v14, v15")
        e("v_cvt_pk_bf16_f32 v15, v16, v17")
        e(f"ds_write_b64 v7, v[14:15] offset:{AV}")
        e("s_waitcnt lgkmcnt(0)")
        self.bar()
        self.gemv(16, PB + 64, AV, [(20, FB)])
        self.tagw(24, 20, 19)
        self.tagw(25, 21, 19)
        e("s_cmp_eq_u32 s68, 1")
        e("s_cbranch_scc1 L_a_poll")
        e("s_mov_b64 exec, 0xffff")
        e(f"buffer_store_dwordx2 v[24:25], v18, s[{R_WS}:{R_WS+3}], s52 offen sc1")
        self.stamp(8)
        self.endpgm()

    def stage_b(self):
        e = self.e
        FG, FU, GB = 64, 120, 176
        UPO = 448 * 128
        self.srd(R_W, P_WG, 448 * 3584)
        self.srd(R_W2, P_WU, 448 * 3584)
        if self.wtouch:
            e(f"v_mul_u32_u24 v20, {7*3584}, v1")
            e("s_lshl_b32 s64, s12, 7")
            e(f"s_bitcmp1_b32 s{S_HW}, 1")
            Lw = self.lab("wt"); e(f"s_cbranch_scc1 {Lw}")
            e(f"s_bitcmp1_b32 s{S_HW}, 0")
            La = self.lab("wt"); e(f"s_cbranch_scc1 {La}")
            e(f"buffer_load_dword v21, v20, s[{R_W}:{R_W+3}], s64 offen nt")
            e(f"s_branch {Lw}")
            e.label(La)
            e(f"buffer_load_dword v21, v20, s[{R_W2}:{R_W2+3}], s64 offen nt")
            e.label(Lw)
        e(f"s_mul_i32 s64, s{S_HW}, 56")
        e("v_min_u32 v5, 55, v1")
        e("v_add_u32 v5, s64, v5")
        e("v_cmp_gt_u32 s[70:71], 56, v1")
        e("v_lshlrev_b32 v14, 2, v5")
        e(f"buffer_load_dword v16, v14, s[{R_X}:{R_X+3}], 0 offen")
        e(f"buffer_load_dword v17, v14, s[{R_X}:{R_X+3}], 0 offen offset:896")
        e("v_lshlrev_b32 v5, 4, v5")
        e("s_waitcnt vmcnt(0)")
        e("v_and_b32 v18, 0xffff0000, v16")
        e("v_and_b32 v19, 0xffff0000, v17")
        e("v_lshlrev_b32 v16, 16, v16")
        e("v_lshlrev_b32 v17, 16, v17")
        for k in range(8): e(f"s_mov_b32 s{40+k}, {YBUF + k*3584}")
        e(f"s_lshl_b32 s64, s{S_HW}, 4")
        e("v_mov_b32 v10, s64")
        e("v_and_b32 v11, 7, v1")
        e("v_lshlrev_b32 v11, 4, v11")
        e("v_lshlrev_b32 v12, 3, v1")
        e("v_and_b32 v8, 16, v1")
        e("v_cmp_ne_u32 s[56:57], 0, v8")
        e("s_lshl_b32 s13, s12, 9")
        e(f"s_lshl_b32 s64, s{S_HW}, 7")
        e("s_add_u32 s13, s13, s64")
        e(f"s_add_u32 s13, s13, {GBUF}")
        e(f"s_mov_b32 s14, {f2u(0.044715):#x}")
        e(f"s_mov_b32 s15, {f2u(112.0):#x}")
        e(f"v_mov_b32 v35, s{S_TAG}")
        e("s_mov_b32 s68, 1")
        e("s_branch L_b_go")
        e.label("L_b_poll")
        e("s_mov_b32 s68, 0")
        self.srd(R_W, P_WG, 448 * 3584)
        if self.lateb == 1: self.lds_wait(MISC + 4, "ge", 5, 2)
        if self.lateb >= 2: self.lds_wait(MISC + 12, "le", self.lateb - 1, 4)
        self.winfl_cur = self.winfl2 if self.lateb else self.winfl
        e("s_waitcnt vmcnt(0)")
        self.dma_voff(3584, 7, 20)
        for m_, srd_ in enumerate((R_W, R_W2)):
            e("s_lshl_b32 s64, s12, 7")
            e(f"s_mul_i32 s65, s{S_HW}, {112*3584}")
            e("s_add_u32 s64, s64, s65")
            e(f"s_mul_i32 s65, s{S_HW}, {112*128}")
            e(f"s_add_u32 s65, s65, {STG + m_*UPO}")
            self.dma_loop(srd_, 20, 14, 64, 8 * 3584, 65)
        self.stamp(5)
        if self.gpos == 0: self.gate_all()
        self.h_sync()
        e(f"s_lshl_b32 s64, s{S_HW}, 5")
        e(f"s_add_u32 s64, s64, {STG}")
        self.tr_addr(7, 64)
        self.tr_frags(14, 0, FG, 7)
        e(f"v_add_u32 v2, {UPO}, v2")
        self.tr_frags(14, 0, FU, 7)
        self.stamp(4)
        if self.gpos == 1: self.gate_all()
        self.stamp(6)
        self.sweep_all([f"buffer_load_dwordx4 v[{GB+4*k}:{GB+4*k+3}], v5, s[{R_WS}:{R_WS+3}], s{40+k} offen sc1" for k in range(8)],
                       [GB + 2 * i for i in range(16)], 240)
        self.stamp(7)
        e.label("L_b_go")
        for k in range(1, 8):
            for j in (0, 2):
                a = GB + j if k == 1 else 20 + j
                e(f"v_pk_add_f32 v[{20+j}:{21+j}], v[{a}:{a+1}], v[{GB+4*k+j}:{GB+4*k+j+1}]")
        def rnd4():
            e("v_cvt_pk_bf16_f32 v24, v20, v21")
            e("v_cvt_pk_bf16_f32 v25, v22, v23")
            e("v_lshlrev_b32 v20, 16, v24")
            e("v_and_b32 v21, 0xffff0000, v24")
            e("v_lshlrev_b32 v22, 16, v25")
            e("v_and_b32 v23, 0xffff0000, v25")
        rnd4()
        e("v_pk_add_f32 v[20:21], v[20:21], v[16:17]")
        e("v_pk_add_f32 v[22:23], v[22:23], v[18:19]")
        rnd4()
        for b in range(2): e(f"v_readfirstlane_b32 s{66+b}, v{20+b}")
        e("v_pk_add_f32 v[36:37], v[20:21], s[66:67] neg_lo:[0,1] neg_hi:[0,1]")
        e("v_pk_add_f32 v[38:39], v[22:23], s[66:67] neg_lo:[0,1] neg_hi:[0,1]")
        for b in range(2): e(f"v_mov_b32 v{24+4*b}, s{66+b}")
        for b in range(2): e(f"v_add_f32 v{25+4*b}, v{36+b}, v{38+b}")
        for b in range(2): e(f"v_mul_f32 v{26+4*b}, v{36+b}, v{36+b}")
        for b in range(2): e(f"v_fmac_f32 v{26+4*b}, v{38+b}, v{38+b}")
        red = [25, 29, 26, 30]
        for v in red: e(f"v_cndmask_b32 v{v}, 0, v{v}, s[70:71]")
        self.row_reduce(red)
        for v in red: e(f"v_add_f32_dpp v{v}, v{v}, v{v} row_bcast:15 row_mask:0xa bank_mask:0xf")
        for v in red: e(f"v_add_f32_dpp v{v}, v{v}, v{v} row_bcast:31 row_mask:0xc bank_mask:0xf")
        e("s_mov_b64 exec, 0x8000000000000000") if False else None
        e("s_mov_b32 exec_lo, 0")
        e("s_mov_b32 exec_hi, 0x80000000")
        e(f"ds_write_b96 v10, v[24:26] offset:{STATS}")
        e(f"ds_write_b96 v10, v[28:30] offset:{STATS+64}")
        e("s_mov_b64 exec, -1")
        e("s_waitcnt lgkmcnt(0)")
        self.bar()
        e(f"ds_read_b96 v[24:26], v11 offset:{STATS}")
        e("s_waitcnt lgkmcnt(0)")
        e(f"v_mul_f32 v27, {f2u(1.0/112):#x}, v25")
        e("v_add_f32 v24, v24, v27")
        e("v_fma_f32 v26, -v27, v25, v26")
        e("v_add_f32_dpp v28, v24, v24 quad_perm:[1,0,3,2] row_mask:0xf bank_mask:0xf")
        e("v_add_f32_dpp v28, v28, v28 quad_perm:[2,3,0,1] row_mask:0xf bank_mask:0xf")
        e(f"v_mul_f32 v28, {f2u(0.25):#x}, v28")
        e("v_sub_f32 v24, v24, v28")
        e("v_mul_f32 v24, v24, v24")
        e("v_fmac_f32 v26, s15, v24")
        e("v_add_f32_dpp v26, v26, v26 quad_perm:[1,0,3,2] row_mask:0xf bank_mask:0xf")
        e("v_add_f32_dpp v26, v26, v26 quad_perm:[2,3,0,1] row_mask:0xf bank_mask:0xf")
        e(f"v_mul_f32 v26, {f2u(1.0/448):#x}, v26")
        e("v_cvt_pk_bf16_f32 v27, v28, v26")
        e("v_and_b32 v26, 0xffff0000, v27")
        e("v_lshlrev_b32 v28, 16, v27")
        e(f"v_add_f32 v26, {f2u(1e-5):#x}, v26")
        e("v_readlane_b32 s52, v28, 0")
        e("v_readlane_b32 s53, v28, 4")
        self.rnd(26)
        e("v_pk_add_f32 v[20:21], v[20:21], s[52:53] neg_lo:[0,1] neg_hi:[0,1]")
        e("v_sqrt_f32 v26, v26")
        e("v_pk_add_f32 v[22:23], v[22:23], s[52:53] neg_lo:[0,1] neg_hi:[0,1]")
        self.rnd(26)
        e("v_cvt_pk_bf16_f32 v24, v20, v21")
        e("v_rcp_f32 v26, v26")
        e("v_cvt_pk_bf16_f32 v25, v22, v23")
        e("v_lshlrev_b32 v20, 16, v24")
        e("v_readlane_b32 s54, v26, 0")
        e("v_readlane_b32 s55, v26, 4")
        e("v_and_b32 v21, 0xffff0000, v24")
        e("v_lshlrev_b32 v22, 16, v25")
        e("v_and_b32 v23, 0xffff0000, v25")
        e("v_pk_mul_f32 v[20:21], v[20:21], s[54:55]")
        e("v_pk_mul_f32 v[22:23], v[22:23], s[54:55]")
        for b in range(2): e(f"v_cvt_pk_bf16_f32 v{20+b}, v{20+b}, v{22+b}")
        e(f"ds_write_b32 v14, v20 offset:{AV}")
        e(f"ds_write_b32 v14, v21 offset:{AV+AVS}")
        e("s_waitcnt lgkmcnt(0)")
        self.bar()
        self.gemv(14, GB, AV, [(24, FG), (28, FU)])
        e("v_cndmask_b32 v24, v24, v25, s[56:57]")
        e("v_cndmask_b32 v29, v28, v29, s[56:57]")
        e("v_cvt_pk_bf16_f32 v29, v24, v29")
        e("v_lshlrev_b32 v28, 16, v29")
        e("v_and_b32 v29, 0xffff0000, v29")
        k0 = math.sqrt(2.0 / math.pi)
        c1 = f2u(-2.0 * k0 * math.log2(math.e))
        e("v_mul_f32 v32, v28, v28")
        e("v_mul_f32 v32, v32, v28")
        e("v_fma_f32 v32, v32, s14, v28")
        e(f"v_mul_f32 v32, {c1:#x}, v32")
        e("v_exp_f32 v32, v32")
        e("v_add_f32 v32, 1.0, v32")
        e("v_rcp_f32 v32, v32")
        e("v_mul_f32 v32, v32, v28")
        self.rnd(32)
        e("v_mul_f32 v32, v32, v29")
        e("v_mov_b32 v33, v32")
        e("v_permlane16_swap_b32 v32, v33")
        e("v_cvt_pk_bf16_f32 v34, v32, v33")
        e("s_cmp_eq_u32 s68, 1")
        e("s_cbranch_scc1 L_b_poll")
        e("s_mov_b64 exec, 0xffff")
        e(f"buffer_store_dwordx2 v[34:35], v12, s[{R_WS}:{R_WS+3}], s13 offen sc1")
        self.stamp(8)
        self.endpgm()

    def stage_c(self):
        e = self.e
        F0, F1, GB = 64, 120, 176
        self.srd(R_W, P_WD, 1792 * 896)
        self.srd(R_W2, P_OUT, 2 * 448 * 2)
        if self.wtouch:
            e(f"v_mul_u32_u24 v20, {28*896}, v1")
            e("s_lshl_b32 s64, s12, 6")
            e(f"s_cmp_lg_u32 s{S_HW}, 0")
            Lw = self.lab("wt"); e(f"s_cbranch_scc1 {Lw}")
            e(f"buffer_load_dword v21, v20, s[{R_W}:{R_W+3}], s64 offen nt")
            e.label(Lw)
        e(f"s_mul_i32 s65, s{S_HW}, {STGW}")
        e(f"s_add_u32 s65, s65, {STG}")
        self.tr_addr(6, 65)
        e("v_and_b32 v5, 31, v1")
        e("v_lshrrev_b32 v6, 5, v1")
        e("s_lshl_b32 s64, s12, 5")
        e("v_add_u32 v7, s64, v5")
        e("v_mul_u32_u24 v14, 448, v6")
        e("v_add_lshl_u32 v14, v14, v7, 1")
        e(f"buffer_load_ushort v16, v14, s[{R_X}:{R_X+3}], 0 offen")
        if self.otouch: e(f"buffer_load_ushort v18, v14, s[{R_W2}:{R_W2+3}], 0 offen")
        e("v_lshlrev_b32 v7, 3, v7")
        e("v_lshl_add_u32 v7, v6, 2, v7")
        e("s_waitcnt vmcnt(0)")
        e("v_lshlrev_b32 v16, 16, v16")
        e("v_lshlrev_b32 v10, 4, v1")
        e("v_lshlrev_b32 v11, 4, v5")
        e(f"s_mul_i32 s13, s{S_HW}, 3584")
        e(f"s_add_u32 s13, s13, {GBUF}")
        e(f"s_mul_i32 s14, s{S_HW}, {2*AVS}")
        e("v_lshlrev_b32 v12, 2, v1")
        e("v_add_u32 v12, s14, v12")
        e("v_lshlrev_b32 v13, 2, v5")
        e("v_add_u32 v13, s14, v13")
        e("v_add_u32 v3, s14, v3")
        e("v_mov_b32 v17, 0")
        e("s_mov_b32 s64, 0x05040100")
        e("s_mov_b32 s65, 0x07060302")
        e("s_mov_b32 s68, 1")
        e("s_branch L_c_go")
        e.label("L_c_poll")
        e("s_mov_b32 s68, 0")
        if self.latec == 1: self.lds_wait(MISC + 4, "ge", 5, 2)
        if self.latec >= 2: self.lds_wait(MISC + 12, "le", self.latec - 1, 4)
        self.winfl_cur = self.winfl2 if self.latec else self.winfl
        e("s_waitcnt vmcnt(0)")
        e(f"s_mul_i32 s64, s{S_HW}, {448*896}")
        e("s_lshl_b32 s65, s12, 6")
        e("s_add_u32 s64, s64, s65")
        e(f"s_mul_i32 s65, s{S_HW}, {STGW}")
        e(f"s_add_u32 s65, s65, {STG}")
        self.dma_voff(896, 6, 20)
        self.dma_loop(R_W, 20, 28, 64, 16 * 896, 65)
        self.stamp(5)
        if self.gpos == 0: self.gate_all()
        e("s_waitcnt vmcnt(0)")
        self.tr_frags(14, 0, F0, 6)
        self.tr_frags(14, 32, F1, 6)
        self.stamp(4)
        if self.gpos == 1: self.gate_all()
        self.stamp(6)
        Ln = self.lab("cnres")
        e(f"s_cmp_lg_u32 s{S_HW}, 0")
        e(f"s_cbranch_scc1 {Ln}")
        for k in range(8): e(f"s_mov_b32 s{40+k}, {YBUF + k*3584}")
        self.sweep_all([f"buffer_load_dword v{GB+k}, v7, s[{R_WS}:{R_WS+3}], s{40+k} offen sc1" for k in range(8)],
                       [GB + k for k in range(8)], 24)
        for k in range(1, 8): e(f"v_add_f32 v17, v{GB if k == 1 else 17}, v{GB+k}")
        self.rnd(17)
        e("v_add_f32 v17, v17, v16")
        self.rnd(17)
        e.label(Ln)
        e("s_mov_b32 s64, 0x05040100")
        e("s_mov_b32 s65, 0x07060302")
        sc = [24, 48, 232][:self.nset]
        def cput(i):
            g = sc[i]
            for k in range(4):
                e(f"v_perm_b32 v{g+1+4*k}, v{g+2+4*k}, v{g+4*k}, s64")
                e(f"v_perm_b32 v{g+3+4*k}, v{g+2+4*k}, v{g+4*k}, s65")
                a = 12 if k < 3 else 13
                e(f"ds_write_b32 v{a}, v{g+1+4*k} offset:{AV+k*256}")
                e(f"ds_write_b32 v{a}, v{g+3+4*k} offset:{AV+AVS+k*256}")
        self.sweep_pipe([([f"buffer_load_dwordx4 v[{g+4*k}:{g+3+4*k}], v{10 if k < 3 else 11}, s[{R_WS}:{R_WS+3}], s13 offen offset:{k*1024} sc1" for k in range(4)],
                          [g + 1 + 2 * i for i in range(8)]) for g in sc], 248, False, cput, "L_c_go")
        self.gemv(14, GB, AV, [(40, F0), (44, F1)], ahead=7)
        e(f"s_lshl_b32 s64, s{S_HW}, 8")
        e("v_lshlrev_b32 v8, 3, v1")
        e("v_add_u32 v8, s64, v8")
        e("s_mov_b64 exec, 0xffff")
        e(f"ds_write_b64 v8, v[40:41] offset:{RED}")
        e(f"ds_write_b64 v8, v[44:45] offset:{RED+128}")
        e("s_mov_b64 exec, -1")
        e("s_waitcnt lgkmcnt(0)")
        self.bar()
        Le = self.lab("cend")
        e(f"s_sub_u32 s64, s{S_HW}, s68")
        e(f"s_cmp_eq_u32 s68, 1")
        e(f"s_cselect_b32 s64, 0, s{S_HW}")
        e(f"s_cmp_lg_u32 s64, 0")
        e(f"s_cbranch_scc1 {Le}")
        e("v_lshlrev_b32 v8, 3, v5")
        e("v_lshl_add_u32 v8, v6, 2, v8")
        for w in range(4): e(f"ds_read_b32 v{20+w}, v8 offset:{RED+256*w}")
        e("s_waitcnt lgkmcnt(0)")
        e("v_add_f32 v20, v20, v21")
        e("v_add_f32 v22, v22, v23")
        e("v_add_f32 v20, v20, v22")
        self.rnd(20)
        e("v_add_f32 v20, v20, v17")
        e("v_cvt_pk_bf16_f32 v20, v20, v20")
        e("s_cmp_eq_u32 s68, 1")
        e("s_cbranch_scc1 L_c_poll")
        e(f"buffer_store_short v20, v14, s[{R_W2}:{R_W2+3}], 0 offen")
        e("s_cmp_lg_u32 s12, 0")
        e(f"s_cbranch_scc1 {Le}")
        e(f"v_mov_b32 v21, s{S_TAG}")
        e("s_mov_b64 exec, 1")
        e(f"buffer_store_dword v21, off, s[{R_WS}:{R_WS+3}], 0 offset:{EPOCH} sc1")
        e.label(Le)
        self.stamp(8)
        self.endpgm()

    def build(self):
        e = self.e
        e("s_cmp_ge_u32 s2, 256")
        e("s_cbranch_scc1 L_exit")
        e("s_load_dwordx16 s[16:31], s[0:1], 0")
        e("s_load_dwordx8 s[32:39], s[0:1], 64")
        self.stamp_init()
        e("v_lshrrev_b32 v2, 6, v0")
        e("v_and_b32 v1, 63, v0")
        e(f"v_readfirstlane_b32 s{S_WAVE}, v2")
        self.stamp(0)
        e(f"s_and_b32 s{S_HW}, s{S_WAVE}, 3")
        e(f"s_cmp_lt_u32 s{S_WAVE}, 4")
        e("s_cbranch_scc1 L_hpath")
        self.s_path()
        e.label("L_hpath")
        self.in_h = True
        e(f"s_lshr_b32 s{S_GRP}, s2, 4")
        e(f"s_and_b32 s{S_SPL}, s2, 15")
        e(f"s_lshr_b32 s{S_B}, s2, 7")
        e(f"s_and_b32 s{S_HKV}, s{S_GRP}, 7")
        e(f"s_mov_b32 s{S_TO}, {TIMEOUT}")
        e("s_waitcnt lgkmcnt(0)")
        self.srd(R_WS, P_WS, WS_SIZE)
        self.srd(R_X, P_X, 1792)
        if self.noq: e("s_branch L_hdone")
        e("s_setprio 2")
        e(f"s_cmp_lg_u32 s{S_HW}, 0")
        e("s_cbranch_scc1 L_hnq")
        self.q_path()
        e("s_branch L_hq")
        e.label("L_hnq")
        if self.tstride:
            Lt = self.lab("notouch")
            e(f"s_cmp_eq_u32 s{S_HW}, 3")
            e(f"s_cbranch_scc1 {Lt}")
            e(f"s_cmp_eq_u32 s{S_HW}, 1")
            e(f"s_cselect_b32 s{R_K}, s{P_K}, s{P_V}")
            e(f"s_cselect_b32 s{R_K+1}, s{P_K+1}, s{P_V+1}")
            e(f"s_mov_b32 s{R_K+2}, {1 << 28}")
            e(f"s_mov_b32 s{R_K+3}, 0x20000")
            e(f"v_lshlrev_b32 v11, {self.tstride}, v1")
            e("s_lshl_b32 s64, s2, 20")
            n = (1 << 20) >> self.tstride
            if n < 64: e(f"s_mov_b64 exec, {(1 << n) - 1:#x}")
            e(f"buffer_load_dword v12, v11, s[{R_K}:{R_K+3}], s64 offen nt")
            e("s_mov_b64 exec, -1")
            e.label(Lt)
        e(f"buffer_load_dword v10, off, s[{R_WS}:{R_WS+3}], 0 offset:{EPOCH} sc1")
        self.h_consts()
        e("s_waitcnt vmcnt(0)")
        e("v_readfirstlane_b32 s64, v10")
        self.set_tag(64)
        self.lds_wait(MISC + 24, "eq", f"s{S_TAG}", 2)
        e.label("L_hq")
        self.q_gather()
        e("s_setprio 0")
        e("s_barrier")
        self.stamp(3)
        e(f"s_cmp_lg_u32 s{S_HW}, 1")
        e("s_cbranch_scc1 L_sfinal_back")
        e("s_mov_b32 s68, 1")
        e("s_branch L_sfinal")
        e.label("L_sfinal_back")
        if self.noroles: e("s_branch L_hdone")
        e(f"s_cmp_lg_u32 s{S_HW}, 0")
        e("s_cbranch_scc1 L_rwait")
        self.lds_wait(MISC + 12, "le", self.trig, 8)
        self.srd(R_W, P_DBG, 256)
        e("v_mov_b32 v10, 1")
        e("s_mov_b64 exec, 1")
        e(f"buffer_atomic_add v10, off, s[{R_W}:{R_W+3}], 0 sc0 sc1")
        e("s_waitcnt vmcnt(0)")
        e("s_mov_b64 exec, -1")
        e("v_readfirstlane_b32 s12, v10")
        e("s_add_u32 s12, s12, 1")
        self.lds_set(MISC + 16, "s12")
        e("s_branch L_rgot")
        e.label("L_rwait")
        self.lds_wait(MISC + 16, "lg", 0, 8, 12)
        e.label("L_rgot")
        e("s_sub_u32 s12, s12, 1")
        e("s_cmp_ge_u32 s12, 98")
        if self.rorder == 2:
            e("s_cmp_ge_u32 s12, 42")
            e("s_cbranch_scc1 L_rord")
            e("s_add_u32 s12, s12, 14")
            e("s_cmp_lt_u32 s12, 42")
            e("s_cbranch_scc1 L_rord")
            e("s_sub_u32 s12, s12, 42")
            e.label("L_rord")
            e("s_cmp_ge_u32 s12, 98")
        if self.rorder == 1:
            e("s_cbranch_scc1 L_rord")
            e("s_sub_u32 s12, 97, s12")
            e.label("L_rord")
            e("s_cmp_ge_u32 s12, 98")
        if self.diag:
            e(f"s_mov_b32 s{ST0+22}, s12")
        e("s_cbranch_scc1 L_hdone")
        self.h_consts()
        e("s_cmp_lt_u32 s12, 14")
        e("s_cbranch_scc0 L_notc")
        self.stage_c()
        e.label("L_notc")
        e("s_sub_u32 s12, s12, 14")
        e("s_cmp_lt_u32 s12, 28")
        e("s_cbranch_scc0 L_notb")
        self.stage_b()
        e.label("L_notb")
        e("s_sub_u32 s12, s12, 28")
        e(f"s_mul_i32 s{S_HKV}, s12, 37")
        e(f"s_lshr_b32 s{S_HKV}, s{S_HKV}, 8")
        e(f"s_mul_i32 s64, s{S_HKV}, 7")
        e(f"s_sub_u32 s{S_SPL}, s12, s64")
        self.stage_a()
        e.label("L_hfail")
        e.label("L_hdone")
        self.endpgm()
        e.label("L_exit")
        e("s_endpgm")
        return e.text()

HEAD = """; fused pre-LN GQA decode attention + GEGLU FFN, one persistent launch (256 workgroups, one per CU).
; @launch grid=(256,1,1) block=(512,1,1) lds={lds}
.amdgcn_target "amdgcn-amd-amdhsa--gfx950"
.text
.globl {name}
.p2align 8
.type {name},@function
{name}:
"""
TAIL = """.section .rodata,"a"
.p2align 6
.amdhsa_kernel {name}
  .amdhsa_next_free_vgpr 256
  .amdhsa_next_free_sgpr 102
  .amdhsa_accum_offset 256
  .amdhsa_group_segment_fixed_size 0
  .amdhsa_kernarg_size 96
  .amdhsa_user_sgpr_count 2
  .amdhsa_user_sgpr_kernarg_segment_ptr 1
  .amdhsa_system_sgpr_workgroup_id_x 1
.end_amdhsa_kernel
"""

def make(path, **kw):
    g = Gen(**kw)
    body = g.build()
    if g.hf != "sc1": body = body.replace(" sc1\n", f" {g.hf}\n").replace("sc0 sc0", "sc0")
    open(path, "w").write(HEAD.format(lds=LDS_SIZE, name=NAME) + body + TAIL.format(name=NAME))
    return g

if __name__ == "__main__":
    import argparse
    ap = argparse.ArgumentParser()
    ap.add_argument("out")
    ap.add_argument("--diag", action="store_true")
    ap.add_argument("--npro", type=int, default=40)
    ap.add_argument("--kvflags", default="nt")
    ap.add_argument("--wflags", default="nt")
    ap.add_argument("--qflags", default="nt")
    ap.add_argument("--noroles", action="store_true")
    ap.add_argument("--athr", type=int, default=13)
    ap.add_argument("--gsleep", type=int, default=4)
    ap.add_argument("--winfl", type=int, default=4)
    ap.add_argument("--dist", type=int, default=12)
    ap.add_argument("--thr", type=int, default=6)
    ap.add_argument("--vflags", default=None)
    ap.add_argument("--rot", type=int, default=2)
    ap.add_argument("--nt", type=int, default=32)
    ap.add_argument("--thrp", type=int, default=6)
    ap.add_argument("--npl", type=int, default=40)
    ap.add_argument("--gthr", type=int, default=32)
    ap.add_argument("--psleep", type=int, default=0)
    ap.add_argument("--hf", default="sc1")
    ap.add_argument("--nset", type=int, default=1)
    ap.add_argument("--pgap", type=int, default=2)
    ap.add_argument("--thr2", type=int, default=9)
    ap.add_argument("--nl2", type=int, default=0)
    ap.add_argument("--lateb", type=int, default=1)
    ap.add_argument("--latec", type=int, default=1)
    ap.add_argument("--winfl2", type=int, default=12)
    ap.add_argument("--qsleep", type=int, default=8)
    ap.add_argument("--qsleep0", type=int, default=32)
    ap.add_argument("--latea", type=int, default=0)
    ap.add_argument("--tstride", type=int, default=0)
    ap.add_argument("--otouch", type=int, default=1)
    ap.add_argument("--seq", type=int, default=1)
    ap.add_argument("--wtouch", type=int, default=1)
    ap.add_argument("--gpos", type=int, default=1)
    ap.add_argument("--rorder", type=int, default=1)
    ap.add_argument("--nosoft", action="store_true")
    ap.add_argument("--noq", action="store_true")
    ap.add_argument("--trig", type=int, default=4)
    ap.add_argument("--aspec", type=int, default=6)
    a = ap.parse_args()
    g = make(a.out, diag=a.diag, npro=a.npro, kvflags=a.kvflags, wflags=a.wflags, qflags=a.qflags, noroles=a.noroles, athr=a.athr, gsleep=a.gsleep, winfl=a.winfl, dist=a.dist, nosoft=a.nosoft, noq=a.noq, trig=a.trig, aspec=a.aspec, thr=a.thr, vflags=a.vflags, rot=a.rot, nt=a.nt, thrp=a.thrp, npl=a.npl, gthr=a.gthr, psleep=a.psleep, hf=a.hf, nset=a.nset, pgap=a.pgap, thr2=a.thr2, nl2=a.nl2, lateb=a.lateb, latec=a.latec, winfl2=a.winfl2, qsleep=a.qsleep, qsleep0=a.qsleep0, latea=a.latea, rorder=a.rorder, tstride=a.tstride, otouch=a.otouch, seq=a.seq, wtouch=a.wtouch, gpos=a.gpos)
    print("pads inserted:", g.e.npad, "lines:", len(g.e.lines))
```

```python
import sys, struct, math
from emit import Emitter

NAME = "sequential_preLN__gqa_block_cached__geglu_ffn__decode_kernel"
def f2u(x): return struct.unpack("<I", struct.pack("<f", x))[0]

EPOCH = 0
QBUF = 0x140000
HBUF = 0x12000
YBUF = 0x14000
GBUF = 0x22000
PBUF = 0x40000
STAMP = 0x200000
WS_SIZE = 0x400000
QL = 0x0100
MISC = 0x0080
SML = 0x0000
STATS = 0x0600
AV = 0x0800
AVS = 1056
RED = 0x2A00
SO = 0x3000
STG = 0x5000
STGW = 28 * 1024
LDS_SIZE = STG + 4 * STGW

CSC = f2u(0.0625 * math.log2(math.e))
GOLD = 0x9E3779B9
TIMEOUT = 300000

S_WAVE, S_GRP, S_SPL, S_B, S_HKV, S_HW, S_TAG = 3, 4, 5, 6, 7, 8, 9
P_X, P_K, P_V, P_WQ, P_WO, P_BX, P_WG, P_WU, P_WD, P_OUT, P_DBG, P_WS = [16 + 2 * i for i in range(12)]
R_K, R_V, R_WS, R_W, R_X, R_W2 = 40, 44, 48, 52, 56, 60
S_C = 10
S_TO = 11
ST0 = 72
S_TM = 96

class Gen:
    def __init__(self, diag=False, npro=32, kvflags="nt", wflags="", qflags="", noroles=False, athr=13, gsleep=4, winfl=1, dist=8, nosoft=False, noq=False, trig=2, aspec=2, thr=5, vflags=None, rot=1, nt=32, thrp=6, npl=32, gthr=6, psleep=0, hf="sc1", nset=2, pgap=2, thr2=9, nl2=0, lateb=1, latec=1, winfl2=12, qsleep=8, qsleep0=16, latea=0, rorder=0, tstride=0, otouch=1, seq=0, wtouch=0, gpos=0, dbgtime=0):
        self.e = Emitter()
        self.diag = diag
        self.npro = npro
        self.kvflags = kvflags
        self.wflags = wflags
        self.qflags = qflags
        self.noroles = noroles
        self.athr = athr
        self.gsleep = gsleep
        self.winfl = winfl
        self.dist = dist
        self.nosoft = nosoft
        self.noq = noq
        self.trig = trig
        self.aspec = aspec
        self.thr = thr
        self.rot = rot
        self.nt = nt
        self.thrp = thrp
        self.npl = npl
        self.gthr = gthr
        self.psleep = psleep
        self.hf = hf
        self.nset = nset
        self.pgap = pgap
        self.thr2 = thr2
        self.nl2 = nl2
        self.lateb = lateb
        self.latec = latec
        self.winfl2 = winfl2
        self.qsleep = qsleep
        self.qsleep0 = qsleep0
        self.latea = latea
        self.rorder = rorder
        self.tstride = tstride
        self.otouch = otouch
        self.seq = seq
        self.wtouch = wtouch
        self.gpos = gpos
        self.dbgtime = dbgtime
        self.vflags = kvflags if vflags is None else vflags
        self.uid = 0
        self.in_h = False
    def lab(self, s):
        self.uid += 1
        return f"L_{s}_{self.uid}"
    def srd(self, r, p, size):
        e = self.e
        e(f"s_mov_b32 s{r}, s{p}")
        e(f"s_mov_b32 s{r+1}, s{p+1}")
        e(f"s_mov_b32 s{r+2}, {size}")
        e(f"s_mov_b32 s{r+3}, 0x20000")
    def stamp(self, i):
        if self.diag and i in (6, 7) and self.in_h:
            self.e(f"s_mov_b32 s{ST0+2*(i+3)}, s{S_TO}")
        if self.diag:
            self.e(f"s_memrealtime s[{ST0+2*i}:{ST0+2*i+1}]")
            self.e("s_waitcnt lgkmcnt(0)")
    def stamp_init(self):
        if self.diag:
            for i in range(12):
                self.e(f"s_mov_b64 s[{ST0+2*i}:{ST0+2*i+1}], 0")
    def stamp_flush(self):
        if not self.diag: return
        e = self.e
        e("s_mov_b64 exec, -1")
        e(f"s_lshl_b32 s64, s2, 3")
        e(f"s_add_u32 s64, s64, s{S_WAVE}")
        e(f"s_lshl_b32 s64, s64, 6")
        e(f"s_add_u32 s64, s64, {STAMP}")
        e(f"s_getreg_b32 s65, hwreg(HW_REG_XCC_ID)")
        e(f"s_getreg_b32 s66, hwreg(HW_REG_HW_ID)")
        for i in range(12):
            e(f"v_mov_b32 v{2+i}, s{ST0+2*i}")
        e("v_mov_b32 v14, s65")
        e("v_mov_b32 v15, s66")
        e("v_mov_b32 v16, 0")
        e("v_mov_b32 v17, 0")
        e("s_mov_b64 exec, 1")
        for i in range(4):
            e(f"buffer_store_dwordx4 v[{2+4*i}:{5+4*i}], off, s[{R_WS}:{R_WS+3}], s64 offset:{16*i}")
        e("s_waitcnt vmcnt(0)")
    def dbgt(self, slot, neg=False):
        if not self.dbgtime: return
        e = self.e
        e("s_memrealtime s[98:99]")
        e("s_waitcnt lgkmcnt(0)")
        if neg: e("s_not_b32 s98, s98")
        e(f"s_mov_b32 s92, s{P_DBG}"); e(f"s_mov_b32 s93, s{P_DBG+1}"); e("s_mov_b32 s94, 256"); e("s_mov_b32 s95, 0x20000")
        e("s_mov_b64 s[90:91], exec")
        e("s_mov_b64 exec, 1")
        e("v_mov_b32 v255, s98")
        e(f"buffer_atomic_umax v255, off, s[92:95], 0 offset:{4*slot} sc1")
        e("s_mov_b64 exec, s[90:91]")
    def endpgm(self):
        self.stamp_flush()
        self.e("s_endpgm")

    def rnd(self, v):
        self.e(f"v_cvt_pk_bf16_f32 v{v}, v{v}, v{v}")
        self.e(f"v_lshlrev_b32 v{v}, 16, v{v}")
    def rnd_many(self, vs):
        for v in vs: self.e(f"v_cvt_pk_bf16_f32 v{v}, v{v}, v{v}")
        for v in vs: self.e(f"v_lshlrev_b32 v{v}, 16, v{v}")
    def set_tag(self, src):
        self.e(f"s_add_u32 s{S_TAG}, s{src}, {GOLD:#x}")
        self.e(f"s_and_b32 s{S_TM}, s{S_TAG}, 0x3f")
    def tagw(self, dst, src, vmask):
        self.e(f"v_and_or_b32 v{dst}, v{src}, v{vmask}, s{S_TM}")
    def check_words(self, words, tmp, mant=True):
        e = self.e
        T = S_TM if mant else S_TAG
        acc = []
        n = len(words)
        for i in range(0, n - 1, 2):
            e(f"v_bitop3_b32 v{tmp+len(acc)}, v{words[i]}, v{words[i+1]}, s{T} bitop3:0x7e")
            acc.append(tmp + len(acc))
        if n % 2:
            e(f"v_xor_b32 v{tmp+len(acc)}, s{T}, v{words[-1]}")
            acc.append(tmp + len(acc))
        while len(acc) > 1:
            nxt = []
            while len(acc) >= 3:
                a, b, c = acc[:3]; acc = acc[3:]
                e(f"v_or3_b32 v{a}, v{a}, v{b}, v{c}"); nxt.append(a)
            if len(acc) == 2 and not nxt:
                e(f"v_or_b32 v{acc[0]}, v{acc[0]}, v{acc[1]}"); acc = [acc[0]]
            acc = nxt + acc
        if mant: e(f"v_and_b32 v{acc[0]}, 0x3f, v{acc[0]}")
        e(f"v_cmp_ne_u32 vcc, 0, v{acc[0]}")
    def sweep_all(self, loads, words, tmp, mant=True):
        e = self.e
        L = self.lab("sa"); Lx = self.lab("sax")
        e.label(L)
        if self.psleep: e(f"s_sleep {self.psleep}")
        for l in loads: e(l)
        e(f"s_sub_u32 s{S_TO}, s{S_TO}, 1")
        e("s_cbranch_scc1 L_hfail")
        e("s_waitcnt vmcnt(0)")
        self.check_words(words, tmp, mant)
        e(f"s_cbranch_vccnz {L}")
    def sweep_pipe(self, sets, tmp, mant, after, golabel):
        e = self.e
        n = len(sets); m = len(sets[0][0])
        L = self.lab("sp"); Lj = self.lab("spj")
        got = [self.lab("spg") for _ in sets]
        for i, (loads, words) in enumerate(sets):
            for l in loads: e(l)
            if i + 1 < n: e(f"s_sleep {self.pgap}")
        e.label(L)
        for i, (loads, words) in enumerate(sets):
            e(f"s_waitcnt vmcnt({m*(n-1)})")
            self.check_words(words, tmp, mant)
            e(f"s_cbranch_vccz {got[i]}")
            for l in loads: e(l)
        e(f"s_sub_u32 s{S_TO}, s{S_TO}, 1")
        e(f"s_cbranch_scc0 {L}")
        e("s_branch L_hfail")
        for i in reversed(range(n)):
            e.label(got[i])
            self.stamp(7)
            if i == 0: e.label(golabel)
            after(i)
            if i: e(f"s_branch {Lj}")
        e.label(Lj)
    def row_reduce(self, vs, op="add"):
        e = self.e
        for ctl in ("quad_perm:[1,0,3,2]", "quad_perm:[2,3,0,1]", "row_half_mirror", "row_mirror"):
            for v in vs:
                e(f"v_{op}_f32_dpp v{v}, v{v}, v{v} {ctl} row_mask:0xf bank_mask:0xf")
    def wave_sum_to_sgpr(self, vs, ss):
        e = self.e
        self.row_reduce(vs)
        for v in vs: e(f"v_add_f32_dpp v{v}, v{v}, v{v} row_bcast:15 row_mask:0xa bank_mask:0xf")
        for v in vs: e(f"v_add_f32_dpp v{v}, v{v}, v{v} row_bcast:31 row_mask:0xc bank_mask:0xf")
        for v, s in zip(vs, ss): e(f"v_readlane_b32 s{s}, v{v}, 63")
    def cross_rows(self, v, t, op):
        e = self.e
        e(f"v_mov_b32 v{t}, v{v}")
        e(f"v_permlane16_swap_b32 v{v}, v{t}")
        e(f"v_{op}_f32 v{v}, v{v}, v{t}")
        e(f"v_mov_b32 v{t}, v{v}")
        e(f"v_permlane32_swap_b32 v{v}, v{t}")
        e(f"v_{op}_f32 v{v}, v{v}, v{t}")

    def s_path(self):
        e = self.e
        KO0, KO1, VO = 2, 3, 4
        MK = 5
        MRUN, LRUN, NRUN = 9, 10, 11
        T = 12; PK = 16; MX, MX2, AL, ALD, NN = 18, 19, 20, 21, 22
        P = 24
        D0, D1, ACC0, ACC1, AF, QF, SLOT = 28, 32, 36, 40, 44, 60, 80
        S_BASE, S_O1, S_O2, S_CNT, S_R = 64, 65, 66, 67, 69
        def tile_off(dst, t):
            e(f"s_add_u32 s{dst}, s{S_R}, {t*32768}")
            e(f"s_and_b32 s{dst}, s{dst}, 0xfffff")
            e(f"s_add_u32 s{dst}, s{dst}, s{S_BASE}")
        NT = self.nt
        e("v_and_b32 v12, 15, v1")
        e("v_lshrrev_b32 v13, 4, v1")
        e("v_and_b32 v14, 7, v12")
        e("v_lshrrev_b32 v15, 3, v12")
        e(f"v_lshlrev_b32 v{KO0}, 9, v14")
        e("v_lshl_add_u32 v16, v15, 2, v13")
        e(f"v_lshl_add_u32 v{KO0}, v16, 4, v{KO0}")
        e(f"v_add_u32 v{KO1}, 0x1000, v{KO0}")
        e(f"v_lshlrev_b32 v{VO}, 11, v13")
        e(f"v_lshl_add_u32 v{VO}, v12, 4, v{VO}")
        e("s_mov_b32 s68, 0")
        e(f"s_lshl_b32 s{S_BASE}, s2, 20")
        e(f"s_lshl_b32 s65, s{S_HW}, 13")
        e(f"s_add_u32 s{S_BASE}, s{S_BASE}, s65")
        if self.rot == 2: e(f"s_and_b32 s{S_R}, s2, 31")
        else: e(f"s_lshr_b32 s{S_R}, s2, 3")
        e(f"s_lshl_b32 s{S_R}, s{S_R}, {15 if self.rot else 20}")
        e("s_waitcnt lgkmcnt(0)")
        self.srd(R_K, P_K, 1 << 28)
        self.srd(R_V, P_V, 1 << 28)
        state = dict(issued=-1)
        def slot_regs(s): return f"v[{SLOT+4*s}:{SLOT+4*s+3}]"
        def issue(n, slot, soff):
            i = n % 16
            if self.seq: i = n % 8 + (8 if n >= 8 * NT else 0)
            if i < 8:
                G, j = i >> 2, i & 3
                e(f"buffer_load_dwordx4 {slot_regs(slot)}, v{KO0+G}, s[{R_K}:{R_K+3}], s{soff} offen offset:{j*128} {self.kvflags}")
            else:
                i -= 8
                e(f"buffer_load_dwordx4 {slot_regs(slot)}, v{VO}, s[{R_V}:{R_V+3}], s{soff} offen offset:{(i>>1)*512+(i&1)*256} {self.vflags}")
        npro = self.npro
        assert 16 <= npro <= 44
        for n in range(npro):
            if n % (8 if self.seq else 16) == 0:
                tile_off(S_O1, n // (8 if self.seq else 16))
            tp = self.thrp if n < self.npl else self.thr
            if n >= tp: e(f"s_waitcnt vmcnt({tp-1})")
            issue(n, n, S_O1)
            if n in (5, 13, 19, 25): self.stamp({5: 6, 13: 7, 19: 9, 25: 10}[n])
            if n == 7:
                self.stamp(4)
                self.srd(R_WS, P_WS, WS_SIZE)
                e(f"s_mov_b32 s{S_C}, {CSC:#x}")
                e("v_lshrrev_b32 v16, 1, v14")
                e("v_and_b32 v17, 1, v14")
                e("v_mov_b32 v18, 0xffff")
                e("v_lshlrev_b32 v17, 4, v17")
                e("v_lshlrev_b32 v18, v17, v18")
                for i in range(4):
                    e(f"v_cmp_eq_u32 vcc, {i}, v16")
                    e(f"v_cndmask_b32 v{MK+i}, 0, v18, vcc")
                e(f"v_mov_b32 v{MRUN}, 0xff800000")
                e(f"v_mov_b32 v{NRUN}, 0x7f800000")
                e(f"v_mov_b32 v{LRUN}, 0")
                for i in range(8): e(f"v_mov_b32 v{ACC0+i}, 0")
                e("v_bfe_u32 v16, v12, 2, 1")
                e("v_lshl_add_u32 v16, v16, 2, v13")
                e("v_lshlrev_b32 v23, 9, v15")
                e("v_lshl_add_u32 v23, v16, 4, v23")
                e("v_lshrrev_b32 v16, 1, v13")
                e("v_and_b32 v17, 1, v13")
                e("v_lshlrev_b32 v76, 10, v16")
                e("v_lshl_add_u32 v76, v12, 5, v76")
                e("v_lshl_add_u32 v76, v17, 4, v76")
                e(f"s_lshl_b32 s70, s{S_HW}, 11")
                e("v_add_u32 v76, s70, v76")
                e(f"s_lshl_b32 s70, s{S_HW}, 4")
                e("v_add_u32 v77, s70, v1")
                e("v_mov_b32 v78, 1")
                e("v_mov_b32 v79, 0")
                if self.seq:
                    e("v_lshl_add_u32 v20, v15, 2, v13")
                    e("v_lshlrev_b32 v20, 3, v20")
                    e(f"s_lshl_b32 s70, s{S_HW}, 11")
                    e("v_add_u32 v20, s70, v20")
                    e("v_mov_b32 v21, v20")
        self.stamp(5)
        if not self.noq: e("s_barrier")
        self.stamp(1)
        for j in range(4):
            e(f"ds_read_b128 v[{QF+4*j}:{QF+4*j+3}], v23 offset:{QL+j*128}")
        e(f"ds_read_b32 v23, v79 offset:{MISC}")
        e("s_waitcnt lgkmcnt(0)")
        e(f"v_readfirstlane_b32 s{S_TAG}, v23")

        def softmax(point):
            for r in range(4): e(f"v_permlane32_swap_b32 v{D0+r}, v{D1+r}")
            for r in range(4): e(f"v_add_f32_dpp v{T+r}, v{D1+r}, v{D0+r} row_half_mirror row_mask:0xf bank_mask:0x5")
            for r in range(4): e(f"v_add_f32_dpp v{T+r}, v{D0+r}, v{D1+r} row_half_mirror row_mask:0xf bank_mask:0xa")
            e(f"v_cvt_pk_bf16_f32 v{PK}, v{T}, v{T+1}")
            e(f"v_cvt_pk_bf16_f32 v{PK+1}, v{T+2}, v{T+3}")
            e(f"v_lshlrev_b32 v{T}, 16, v{PK}")
            e(f"v_and_b32 v{T+1}, 0xffff0000, v{PK}")
            e(f"v_lshlrev_b32 v{T+2}, 16, v{PK+1}")
            e(f"v_and_b32 v{T+3}, 0xffff0000, v{PK+1}")
            point()
            e(f"v_max3_f32 v{MX}, v{T}, v{T+1}, v{T+2}")
            e(f"v_max3_f32 v{MX}, v{MX}, v{T+3}, v{MRUN}")
            self.cross_rows(MX, MX2, "max")
            e(f"v_mov_b32 v{MRUN}, v{MX}")
            e(f"v_mul_f32 v{NN}, s{S_C}, v{MX}")
            e(f"v_sub_f32 v{AL}, 0, v{NN}")
            for r in range(4): e(f"v_fma_f32 v{P+r}, v{T+r}, s{S_C}, v{AL}")
            e(f"v_sub_f32 v{NN}, v{AL}, v{NRUN}")
            e(f"v_mov_b32 v{NRUN}, v{AL}")
            e(f"v_exp_f32 v{AL}, v{NN}")
            for r in range(4): e(f"v_exp_f32 v{P+r}, v{P+r}")
            point()
            e(f"v_mov_b32 v{ALD}, v{AL}")
            e(f"v_mul_f32 v{LRUN}, v{LRUN}, v{AL}")
            e(f"v_mov_b32_dpp v{ALD}, v{AL} row_shr:8 row_mask:0x3 bank_mask:0xc")
            e(f"v_mov_b32_dpp v{ALD}, v{AL} row_shl:8 row_mask:0xc bank_mask:0x3")
            for r in range(4): e(f"v_cvt_pk_bf16_f32 v{T+r}, v{P+r}, v{P+r}")
            e(f"v_add_f32 v{P}, v{P}, v{P+1}")
            e(f"v_add_f32 v{P+2}, v{P+2}, v{P+3}")
            for i in range(4): e(f"v_and_b32 v{AF+i}, v{T}, v{MK+i}")
            for i in range(8): e(f"v_mul_f32 v{ACC0+i}, v{ACC0+i}, v{ALD}")
            e(f"v_add_f32 v{P}, v{P}, v{P+2}")
            for r in range(1, 4):
                for i in range(4): e(f"v_and_b32 v{AF+4*r+i}, v{T+r}, v{MK+i}")
            e(f"v_add_f32 v{LRUN}, v{LRUN}, v{P}")

        if self.seq:
            d = self.dist; thr = self.thr
            NK = 8 * NT
            S_O3 = 70
            def slot_of(n): return n if n < npro else n % 16
            st = dict(k=npro)
            def unit(u, steady, par):
                isk = u < NT
                st["j"] = 0
                st["last"] = 8 * u - 1
                def point():
                    j = st["j"]; st["j"] += 1
                    k = st["k"]
                    want = 8 * u + d + j
                    prev = k - 16 if k - 16 >= npro else k % 16
                    if prev > st["last"]:
                        assert not steady
                        return
                    if k > want and j % 2 == 0: return
                    if steady:
                        assert k == want
                        so = (S_O1, S_O2, S_O3)[k // 8 - (u - par) - 1]
                    else:
                        if st.get("so") != k // 8:
                            tile_off(S_O2, k // 8)
                            st["so"] = k // 8
                        so = S_O2
                    e(f"s_waitcnt vmcnt({thr-1})")
                    issue(k, slot_of(k), so)
                    st["k"] = k + 1
                if not isk:
                    SC = 16 + 2 * par
                    e("s_waitcnt lgkmcnt(0)")
                    e(f"ds_read_b64 v[{18-2*par}:{19-2*par}], v21 offset:{SO + 64*(par+1)}")
                    e(f"v_lshlrev_b32 v{T}, 16, v{SC}")
                    e(f"v_and_b32 v{T+1}, 0xffff0000, v{SC}")
                    e(f"v_lshlrev_b32 v{T+2}, 16, v{SC+1}")
                    e(f"v_and_b32 v{T+3}, 0xffff0000, v{SC+1}")
                    for r in range(4): e(f"v_fma_f32 v{P+r}, v{T+r}, s{S_C}, v{NRUN}")
                    for r in range(4): e(f"v_exp_f32 v{P+r}, v{P+r}")
                    for r in range(4): e(f"v_cvt_pk_bf16_f32 v{T+r}, v{P+r}, v{P+r}")
                    point()
                    for i in range(4): e(f"v_and_b32 v{AF+i}, v{T}, v{MK+i}")
                    e(f"v_add_f32 v{P}, v{P}, v{P+1}")
                    e(f"v_add_f32 v{P+2}, v{P+2}, v{P+3}")
                    for r in range(1, 4):
                        for i in range(4): e(f"v_and_b32 v{AF+4*r+i}, v{T+r}, v{MK+i}")
                    e(f"v_add_f32 v{P}, v{P}, v{P+2}")
                    e(f"v_add_f32 v{LRUN}, v{LRUN}, v{P}")
                for i in range(8):
                    n = 8 * u + i
                    w = st["k"] - 1 - n
                    assert w >= 0
                    if w < thr or not steady: e(f"s_waitcnt vmcnt({min(63, w)})")
                    if isk:
                        G, j = i >> 2, i & 3
                        D = D0 if G == 0 else D1
                        c = "0" if j == 0 else f"v[{D}:{D+3}]"
                        e(f"v_mfma_f32_16x16x32_bf16 v[{D}:{D+3}], {slot_regs(slot_of(n))}, v[{QF+4*j}:{QF+4*j+3}], {c}")
                    else:
                        j, hf = i >> 1, i & 1
                        A = ACC0 if hf == 0 else ACC1
                        e(f"v_mfma_f32_16x16x32_bf16 v[{A}:{A+3}], v[{AF+4*j}:{AF+4*j+3}], {slot_regs(slot_of(n))}, v[{A}:{A+3}]")
                    st["last"] = n
                    if i != 7 or isk: point()
                if isk:
                    for r in range(4): e(f"v_permlane32_swap_b32 v{D0+r}, v{D1+r}")
                    for r in range(4): e(f"v_add_f32_dpp v{T+r}, v{D1+r}, v{D0+r} row_half_mirror row_mask:0xf bank_mask:0x5")
                    for r in range(4): e(f"v_add_f32_dpp v{T+r}, v{D0+r}, v{D1+r} row_half_mirror row_mask:0xf bank_mask:0xa")
                    e(f"v_cvt_pk_bf16_f32 v{PK}, v{T}, v{T+1}")
                    e(f"v_cvt_pk_bf16_f32 v{PK+1}, v{T+2}, v{T+3}")
                    e(f"v_max3_f32 v{MRUN}, v{T}, v{T+1}, v{MRUN}")
                    e(f"ds_write_b64 v20, v[{PK}:{PK+1}] offset:{SO + (64*par if steady else 64*u)}")
                    e(f"v_max3_f32 v{MRUN}, v{T+2}, v{T+3}, v{MRUN}")
            def offsets(last_oob):
                if self.diag:
                    e("s_memrealtime s[98:99]"); e("s_waitcnt lgkmcnt(0)")
                    e("s_mov_b32 m0, s71"); e("s_nop 0")
                    e("v_writelane_b32 v22, s98, m0"); e("s_add_u32 s71, s71, 1")
                for i, so in enumerate((S_O1, S_O2, S_O3)):
                    e(f"s_add_u32 s{so}, s{S_R}, {i*32768}")
                    e(f"s_and_b32 s{so}, s{so}, 0xfffff")
                    e(f"s_add_u32 s{so}, s{so}, s{S_BASE}")
                e(f"s_add_u32 s{S_R}, s{S_R}, 65536")
                if last_oob:
                    e(f"s_cmp_eq_u32 s{S_CNT}, 1")
                    e(f"s_cselect_b32 s{S_O2}, 0x80000000, s{S_O2}")
                    e(f"s_cselect_b32 s{S_O3}, 0x80000000, s{S_O3}")
            assert 8 < d <= 16
            if self.diag: e("s_mov_b32 s71, 0"); e("v_mov_b32 v22, 0")
            u = 0
            while not (st["k"] - 8 * u == d and 8 * u >= npro and u % 2 == 0):
                unit(u, False, 0)
                u += 1
            ufirst = u
            self.stamp(8)
            e(f"s_add_u32 s{S_R}, s{S_R}, {(ufirst+1)*32768}")
            e(f"v_add_u32 v20, {64*ufirst}, v20")
            e(f"s_mov_b32 s{S_CNT}, {(NT-ufirst)//2 - 1}")
            L = self.lab("kloop")
            e.label(L)
            offsets(False)
            unit(ufirst, True, 0); unit(ufirst + 1, True, 1)
            e("v_add_u32 v20, 128, v20")
            e(f"s_sub_u32 s{S_CNT}, s{S_CNT}, 1")
            e(f"s_cmp_lg_u32 s{S_CNT}, 0")
            e(f"s_cbranch_scc1 {L}")
            offsets(False)
            st["k"] = 8 * (NT - 2) + d
            unit(NT - 2, True, 0); unit(NT - 1, True, 1)
            e(f"ds_read_b64 v[16:17], v21 offset:{SO}")
            self.cross_rows(MRUN, MX2, "max")
            self.rnd(MRUN)
            e(f"v_mul_f32 v{NRUN}, s{S_C}, v{MRUN}")
            e(f"v_sub_f32 v{NRUN}, 0, v{NRUN}")
            e(f"s_mov_b32 s{S_CNT}, {NT//2}")
            L = self.lab("vloop")
            e.label(L)
            offsets(True)
            e(f"v_mov_b32 v23, s{S_CNT}")
            e(f"ds_write_b32 v79, v23 offset:{MISC+12}")
            unit(NT, True, 0); unit(NT + 1, True, 1)
            e("v_add_u32 v21, 128, v21")
            e(f"s_sub_u32 s{S_CNT}, s{S_CNT}, 1")
            e(f"s_cmp_lg_u32 s{S_CNT}, 0")
            e(f"s_cbranch_scc1 {L}")
            e("s_waitcnt lgkmcnt(0)")
            if self.diag:
                e("s_lshl_b32 s98, s2, 2"); e(f"s_add_u32 s98, s98, s{S_HW}"); e("s_lshl_b32 s98, s98, 8"); e(f"s_add_u32 s98, s98, {STAMP + 0x40000}")
                e("v_lshlrev_b32 v23, 2, v1")
                e(f"buffer_store_dword v22, v23, s[{R_WS}:{R_WS+3}], s98 offen")
        else:
            d = self.dist
            NL = NT * 16
            def slot_of(n): return n if n < npro else n % 16
            def consume(n):
                i = n % 16
                if i < 8:
                    G, j = i >> 2, i & 3
                    D = D0 if G == 0 else D1
                    c = "0" if j == 0 else f"v[{D}:{D+3}]"
                    e(f"v_mfma_f32_16x16x32_bf16 v[{D}:{D+3}], {slot_regs(slot_of(n))}, v[{QF+4*j}:{QF+4*j+3}], {c}")
                else:
                    i -= 8
                    j, hf = i >> 1, i & 1
                    A = ACC0 if hf == 0 else ACC1
                    e(f"v_mfma_f32_16x16x32_bf16 v[{A}:{A+3}], v[{AF+4*j}:{AF+4*j+3}], {slot_regs(slot_of(n))}, v[{A}:{A+3}]")
            st = dict(k=npro)
            def tile(t, steady, thr=None):
                thr = self.thr if thr is None else thr
                st["j"] = 0
                st["last"] = 16 * t - 1
                def point():
                    j = st["j"]; st["j"] += 1
                    k = st["k"]
                    want = 16 * t + d + j
                    prev = k - 16 if k - 16 >= npro else k % 16
                    if prev > st["last"]:
                        assert not steady
                        return
                    if k > want and j % 2 == 0: return
                    if steady:
                        assert k == want
                        so = S_O1 if k // 16 == t else S_O2
                    else:
                        if st.get("so") != k // 16:
                            tile_off(S_O2, k // 16)
                            st["so"] = k // 16
                        so = S_O2
                    e(f"s_waitcnt vmcnt({thr-1})")
                    issue(k, slot_of(k), so)
                    st["k"] = k + 1
                for i in range(16):
                    n = 16 * t + i
                    if i == 8: softmax(point)
                    w = st["k"] - 1 - n
                    assert w >= 0
                    if w < thr or not steady: e(f"s_waitcnt vmcnt({min(63, w)})")
                    consume(n)
                    st["last"] = n
                    if i % 8 != 7: point()
            t = 0
            while not (st["k"] - 16 * t == d and 16 * t >= npro):
                tile(t, False)
                t += 1
            tfirst = t
            self.stamp(8)
            tile_off(S_O1, tfirst)
            e(f"s_add_u32 s{S_R}, s{S_R}, {tfirst*32768}")
            e(f"s_mov_b32 s{S_CNT}, {NT-tfirst}")
            for thr, stop in ([(self.thr, self.nl2), (self.thr2, 0)] if self.nl2 else [(self.thr, 0)]):
                L = self.lab("sloop")
                e.label(L)
                e(f"s_add_u32 s{S_R}, s{S_R}, 32768")
                e(f"s_and_b32 s{S_O2}, s{S_R}, 0xfffff")
                e(f"s_add_u32 s{S_O2}, s{S_O2}, s{S_BASE}")
                e(f"v_mov_b32 v23, s{S_CNT}")
                e(f"s_cmp_eq_u32 s{S_CNT}, 1")
                e(f"s_cselect_b32 s{S_O2}, 0x80000000, s{S_O2}")
                e(f"ds_write_b32 v79, v23 offset:{MISC+12}")
                st["k"] = 16 * tfirst + d
                tile(tfirst, True, thr)
                e(f"s_mov_b32 s{S_O1}, s{S_O2}")
                e(f"s_sub_u32 s{S_CNT}, s{S_CNT}, 1")
                e(f"s_cmp_lg_u32 s{S_CNT}, {stop}")
                e(f"s_cbranch_scc1 {L}")
        self.stamp(2)
        self.cross_rows(LRUN, MX2, "add")
        e(f"ds_write_b128 v76, v[{ACC0}:{ACC0+3}] offset:{SO}")
        e(f"ds_write_b128 v76, v[{ACC1}:{ACC1+3}] offset:{SO+512}")
        e("s_mov_b64 exec, 0x101")
        e(f"ds_write2_b32 v77, v{NRUN}, v{LRUN} offset0:{SML//4} offset1:{SML//4+1}") if SML // 4 + 1 < 256 else None
        e("s_mov_b64 exec, 1")
        e(f"ds_add_rtn_u32 v22, v79, v78 offset:{MISC+4}")
        e("s_mov_b64 exec, -1")
        e("s_waitcnt lgkmcnt(0)")
        e("v_readfirstlane_b32 s64, v22")
        e("s_cmp_eq_u32 s64, 3")
        Ld = self.lab("slast")
        e(f"s_cbranch_scc1 {Ld}")
        self.endpgm()
        e.label(Ld)
        e("s_waitcnt vmcnt(0)")
        e.label("L_sfinal")
        e("v_mov_b32 v20, 0")
        e("v_lshlrev_b32 v22, 4, v1")
        for w in range(4):
            e(f"ds_read_b128 v[{24+4*w}:{27+4*w}], v20 offset:{SML+16*w}")
        OB = 80
        for h in range(2):
            for w in range(4):
                r = OB + (h * 4 + w) * 4
                e(f"ds_read_b128 v[{r}:{r+3}], v22 offset:{SO + w*2048 + h*1024}")
        e(f"s_and_b32 s{S_TM}, s{S_TAG}, 0x3f")
        e("v_mov_b32 v21, 0xffffffc0")
        e("s_waitcnt lgkmcnt(8)")
        for h in range(2):
            n = [24 + 4 * w + 2 * h for w in range(4)]
            e(f"v_min3_f32 v{40+h}, v{n[0]}, v{n[1]}, v{n[2]}")
            e(f"v_min_f32 v{40+h}, v{40+h}, v{n[3]}")
        for h in range(2):
            for w in range(4):
                e(f"v_sub_f32 v{44+4*h+w}, v{40+h}, v{24+4*w+2*h}")
        for i in range(8): e(f"v_exp_f32 v{44+i}, v{44+i}")
        for h in range(2):
            e(f"v_mul_f32 v{42+h}, v{44+4*h}, v{25+2*h}")
        for w in range(1, 4):
            for h in range(2):
                e(f"v_fmac_f32 v{42+h}, v{44+4*h+w}, v{25+4*w+2*h}")
        for h in range(2): e(f"v_rcp_f32 v{52+h}, v{42+h}")
        for h in range(2): e(f"v_log_f32 v{54+h}, v{42+h}")
        for h in range(2):
            for w in range(4): e(f"v_mul_f32 v{44+4*h+w}, v{44+4*h+w}, v{52+h}")
        for h in range(2): e(f"v_sub_f32 v{54+h}, v{54+h}, v{40+h}")
        e(f"s_lshl_b32 s64, s2, 11")
        e(f"s_add_u32 s64, s64, {PBUF}")
        for h in range(2):
            e(f"s_waitcnt lgkmcnt({4-4*h})")
            o = 56 + 4 * h
            for i in range(4): e(f"v_mul_f32 v{o+i}, v{44+4*h}, v{OB+h*16+i}")
            for w in range(1, 4):
                for i in range(4): e(f"v_fmac_f32 v{o+i}, v{44+4*h+w}, v{OB+h*16+w*4+i}")
            for i in range(4): self.tagw(o + i, o + i, 21)
        e("v_cmp_eq_u32 vcc, 1, v1")
        e("v_cndmask_b32 v72, v54, v55, vcc")
        e(f"v_mov_b32 v73, s{S_TAG}")
        e("v_lshlrev_b32 v23, 11, v1")
        e("s_lshl_b32 s65, s2, 3")
        e(f"s_add_u32 s65, s65, {HBUF}")
        e("s_cmp_eq_u32 s68, 1")
        e("s_cbranch_scc1 L_sfinal_back")
        for h in range(2):
            o = 56 + 4 * h
            e(f"buffer_store_dwordx4 v[{o}:{o+3}], v22, s[{R_WS}:{R_WS+3}], s64 offen offset:{h*1024} sc1")
        e("s_mov_b64 exec, 3")
        e(f"buffer_store_dwordx2 v[72:73], v23, s[{R_WS}:{R_WS+3}], s65 offen sc1")
        e(f"ds_add_u32 v79, v78 offset:{MISC+4}")
        self.dbgt(34)
        self.stamp(3)
        self.endpgm()

    def h_consts(self):
        e = self.e
        e("v_and_b32 v4, 15, v1")
        e("v_lshrrev_b32 v5, 4, v1")
        e("v_lshrrev_b32 v6, 2, v4")
        e("v_lshl_add_u32 v6, v5, 3, v6")
        e("v_and_b32 v7, 3, v4")
        e("v_lshlrev_b32 v7, 3, v7")
        e("v_and_b32 v8, 1, v1")
        e(f"v_mul_u32_u24 v8, {AVS}, v8")
        e("v_lshl_add_u32 v3, v5, 4, v8")
    def tr_addr(self, lgpitch, sbase):
        e = self.e
        e(f"v_lshl_add_u32 v2, v6, {lgpitch}, v7")
        e(f"v_add_u32 v2, s{sbase}, v2")
    def dma_voff(self, rowbytes, lgpitch, vout):
        e = self.e
        sh = lgpitch - 4
        e(f"v_lshrrev_b32 v{vout}, {sh}, v1")
        e(f"v_mul_u32_u24 v{vout}, {rowbytes}, v{vout}")
        e(f"v_and_b32 v{vout+1}, {(1<<sh)-1}, v1")
        e(f"v_lshl_add_u32 v{vout}, v{vout+1}, 4, v{vout}")
    def dma_loop(self, srd, voff, n, s_src, src_step, s_dst, inflight=None):
        e = self.e
        L = self.lab("dma")
        inflight = self.winfl_cur
        e(f"s_mov_b32 s66, {n}")
        e.label(L)
        e(f"s_mov_b32 m0, s{s_dst}")
        e(f"s_add_u32 s{s_dst}, s{s_dst}, 1024")
        e(f"buffer_load_dwordx4 v{voff}, s[{srd}:{srd+3}], s{s_src} offen {self.wflags} lds")
        e(f"s_add_u32 s{s_src}, s{s_src}, {src_step}")
        if inflight < 32: e(f"s_waitcnt vmcnt({inflight-1})")
        e("s_sub_u32 s66, s66, 1")
        e("s_cmp_lg_u32 s66, 0")
        e(f"s_cbranch_scc1 {L}")
    def h_sync(self):
        e = self.e
        L = self.lab("hs"); Lx = self.lab("hsx")
        e("s_waitcnt vmcnt(0)")
        e("v_mov_b32 v8, 0")
        e("v_mov_b32 v9, 1")
        e("s_mov_b64 exec, 1")
        e(f"ds_add_u32 v8, v9 offset:{MISC+8}")
        e("s_mov_b64 exec, -1")
        e.label(L)
        e(f"ds_read_b32 v9, v8 offset:{MISC+8}")
        e("s_waitcnt lgkmcnt(0)")
        e("v_readfirstlane_b32 s64, v9")
        e("s_cmp_ge_u32 s64, 4")
        e(f"s_cbranch_scc1 {Lx}")
        e("s_sleep 2")
        e(f"s_sub_u32 s{S_TO}, s{S_TO}, 1")
        e(f"s_cbranch_scc0 {L}")
        e(f"s_branch L_hfail")
        e.label(Lx)
    def tr_frags(self, nsteps, off, fbase, lgpitch):
        e = self.e
        for st in range(nsteps):
            f = fbase + 4 * st
            o = off + st * (32 << lgpitch)
            assert o + (4 << lgpitch) < 65536
            e(f"ds_read_b64_tr_b16 v[{f}:{f+1}], v2 offset:{o}")
            e(f"ds_read_b64_tr_b16 v[{f+2}:{f+3}], v2 offset:{o + (4 << lgpitch)}")
            if st % 4 == 3: e("s_waitcnt lgkmcnt(0)")
        e("s_waitcnt lgkmcnt(0)")
    def gemv(self, nsteps, abase, a_lds_off, chains, vaddr=3, ahead=12):
        e = self.e
        AHEAD = ahead
        def rd(st): e(f"ds_read_b128 v[{abase+4*st}:{abase+4*st+3}], v{vaddr} offset:{a_lds_off+st*64}")
        issued = min(nsteps, AHEAD)
        for st in range(issued): rd(st)
        for st in range(nsteps):
            e(f"s_waitcnt lgkmcnt({issued - 1 - st})")
            for D, fb in chains:
                c = "0" if st == 0 else f"v[{D}:{D+3}]"
                e(f"v_mfma_f32_16x16x32_bf16 v[{D}:{D+3}], v[{abase+4*st}:{abase+4*st+3}], v[{fb+4*st}:{fb+4*st+3}], {c}")
            if issued < nsteps:
                rd(issued); issued += 1
    def lds_wait(self, off, cmp, val, sleep=4, sreg=64):
        e = self.e
        L = self.lab("lw"); Lx = self.lab("lwx")
        e("v_mov_b32 v8, 0")
        e.label(L)
        e(f"ds_read_b32 v9, v8 offset:{off}")
        e("s_waitcnt lgkmcnt(0)")
        e(f"v_readfirstlane_b32 s{sreg}, v9")
        e(f"s_cmp_{cmp}_u32 s{sreg}, {val}")
        e(f"s_cbranch_scc1 {Lx}")
        e(f"s_sleep {sleep}")
        e(f"s_sub_u32 s{S_TO}, s{S_TO}, 1")
        e(f"s_cbranch_scc0 {L}")
        e(f"s_branch L_hfail")
        e.label(Lx)
    def lds_set(self, off, src):
        e = self.e
        e("v_mov_b32 v8, 0")
        e(f"v_mov_b32 v9, {src}")
        e(f"ds_write_b32 v8, v9 offset:{off}")
    def bar(self):
        e = self.e
        L = self.lab("nb")
        e("s_cmp_eq_u32 s68, 1")
        e(f"s_cbranch_scc1 {L}")
        e("s_barrier")
        e.label(L)
    def gate_all(self):
        e = self.e
        L = self.lab("gate"); Lx = self.lab("gatex"); Lo = self.lab("gateo"); Le = self.lab("gatee")
        e(f"s_cmp_lg_u32 s{S_HW}, 0")
        e(f"s_cbranch_scc1 {Lo}")
        e("v_lshlrev_b32 v8, 5, v1")
        e(f"s_mov_b32 s64, {HBUF}")
        e.label(L)
        e(f"buffer_load_dwordx4 v[40:43], v8, s[{R_WS}:{R_WS+3}], s64 offen sc1")
        e(f"buffer_load_dwordx4 v[44:47], v8, s[{R_WS}:{R_WS+3}], s64 offen offset:16 sc1")
        e("s_waitcnt vmcnt(0)")
        e(f"v_xor_b32 v41, s{S_TAG}, v41")
        e(f"v_xor_b32 v43, s{S_TAG}, v43")
        e(f"v_xor_b32 v45, s{S_TAG}, v45")
        e(f"v_xor_b32 v47, s{S_TAG}, v47")
        e("v_or3_b32 v41, v41, v43, v45")
        e("v_or_b32 v41, v41, v47")
        e("v_cmp_ne_u32 vcc, 0, v41")
        e("s_bcnt1_i32_b64 s65, vcc")
        e(f"s_cmp_le_u32 s65, {self.gthr}")
        e(f"s_cbranch_scc1 {Lx}")
        e("s_mov_b64 exec, vcc")
        e(f"s_sleep {self.gsleep}")
        e(f"s_sub_u32 s{S_TO}, s{S_TO}, 1")
        e(f"s_cbranch_scc0 {L}")
        e(f"s_branch L_hfail")
        e.label(Lx)
        e("s_mov_b64 exec, -1")
        self.lds_set(MISC + 20, 1)
        e(f"s_branch {Le}")
        e.label(Lo)
        self.lds_wait(MISC + 20, "eq", 1, 2)
        e.label(Le)
    def ln_finish(self, mean, var, out_mb, out_rs):
        e = self.e
        for m, o in zip(mean, out_mb):
            if m != o: e(f"v_mov_b32 v{o}, v{m}")
        self.rnd_many(list(out_mb) + list(var))
        for v in var: e(f"v_add_f32 v{v}, {f2u(1e-5):#x}, v{v}")
        self.rnd_many(var)
        for v in var: e(f"v_sqrt_f32 v{v}, v{v}")
        self.rnd_many(var)
        for v, o in zip(var, out_rs): e(f"v_rcp_f32 v{o}, v{v}")

    def q_path(self):
        e = self.e
        e("v_lshlrev_b32 v8, 4, v1")
        e("v_cmp_gt_u32 s[70:71], 56, v1")
        e("v_mov_b32 v9, 0x10000")
        e("v_cndmask_b32 v8, v9, v8, s[70:71]")
        e(f"buffer_load_dwordx4 v[12:15], v8, s[{R_X}:{R_X+3}], 0 offen")
        e(f"buffer_load_dwordx4 v[16:19], v8, s[{R_X}:{R_X+3}], 0 offen offset:896")
        e(f"buffer_load_dword v10, off, s[{R_WS}:{R_WS+3}], 0 offset:{EPOCH} sc1")
        e(f"s_and_b32 s12, s{S_SPL}, 3")
        e(f"s_lshr_b32 s13, s{S_SPL}, 2")
        e(f"s_lshl_b32 s64, s{S_B}, 2")
        e("s_add_u32 s13, s13, s64")
        e(f"s_mul_i32 s64, s12, {112*8192}")
        e(f"s_lshl_b32 s65, s{S_HKV}, 10")
        e("s_add_u32 s64, s64, s65")
        e("s_lshl_b32 s65, s13, 7")
        e("s_add_u32 s64, s64, s65")
        self.srd(R_W, P_WQ, 448 * 8192)
        self.dma_voff(8192, 7, 20)
        for st in range(14):
            e(f"s_mov_b32 m0, {STG + st*1024}")
            if st: e(f"s_add_u32 s64, s64, {8*8192}")
            e(f"buffer_load_dwordx4 v20, s[{R_W}:{R_W+3}], s64 offen {self.qflags} lds")
        self.stamp(9)
        self.h_consts()
        e("v_mov_b32 v20, 0")
        e("v_mov_b32 v21, 0")
        e("v_mov_b32 v21, 0x7fff")
        e(f"ds_write_b64 v20, v[20:21] offset:{MISC+8}")
        e("v_mov_b32 v21, 0")
        e(f"ds_write_b64 v20, v[20:21] offset:{MISC+16}")
        e(f"ds_write_b32 v20, v20 offset:{MISC+4}")
        e("s_waitcnt vmcnt(15)")
        self.stamp(10)
        for b in range(2):
            for i in range(4):
                e(f"v_lshlrev_b32 v{24+8*b+2*i}, 16, v{12+4*b+i}")
                e(f"v_and_b32 v{25+8*b+2*i}, 0xffff0000, v{12+4*b+i}")
        for b in range(2):
            x = 24 + 8 * b
            e(f"v_add_f32 v{40+b}, v{x}, v{x+1}")
            for i in range(2, 8): e(f"v_add_f32 v{40+b}, v{40+b}, v{x+i}")
        self.wave_sum_to_sgpr([40, 41], [64, 65])
        inv = f2u(1.0 / 448)
        for b in range(2):
            e(f"v_mov_b32 v{42+b}, {inv:#x}")
            e(f"v_mul_f32 v{42+b}, s{64+b}, v{42+b}")
        for b in range(2):
            x = 24 + 8 * b
            e(f"v_sub_f32 v44, v{x}, v{42+b}")
            e(f"v_mul_f32 v{40+b}, v44, v44")
            for i in range(1, 8):
                e(f"v_sub_f32 v44, v{x+i}, v{42+b}")
                e(f"v_fmac_f32 v{40+b}, v44, v44")
            e(f"v_cndmask_b32 v{40+b}, 0, v{40+b}, s[70:71]")
        self.wave_sum_to_sgpr([40, 41], [64, 65])
        for b in range(2):
            e(f"v_mov_b32 v{44+b}, {inv:#x}")
            e(f"v_mul_f32 v{44+b}, s{64+b}, v{44+b}")
        self.ln_finish([42, 43], [44, 45], [42, 43], [46, 47])
        for b in range(2):
            x = 24 + 8 * b
            for i in range(8): e(f"v_sub_f32 v{x+i}, v{x+i}, v{42+b}")
            for i in range(4): e(f"v_cvt_pk_bf16_f32 v{12+4*b+i}, v{x+2*i}, v{x+2*i+1}")
            for i in range(4):
                e(f"v_lshlrev_b32 v{x+2*i}, 16, v{12+4*b+i}")
                e(f"v_and_b32 v{x+2*i+1}, 0xffff0000, v{12+4*b+i}")
            for i in range(8): e(f"v_mul_f32 v{x+i}, v{x+i}, v{46+b}")
            for i in range(4): e(f"v_cvt_pk_bf16_f32 v{12+4*b+i}, v{x+2*i}, v{x+2*i+1}")
        e("v_lshlrev_b32 v8, 4, v1")
        e("s_mov_b64 exec, s[70:71]")
        e(f"ds_write_b128 v8, v[12:15] offset:{AV}")
        e(f"ds_write_b128 v8, v[16:19] offset:{AV+AVS}")
        e("s_mov_b64 exec, -1")
        e("s_waitcnt vmcnt(14)")
        e("v_readfirstlane_b32 s64, v10")
        self.set_tag(64)
        e(f"v_mov_b32 v21, s{S_TAG}")
        e(f"ds_write_b32 v20, v21 offset:{MISC}")
        e("s_waitcnt vmcnt(0) lgkmcnt(0)")
        self.stamp(1)
        e(f"s_mov_b32 s64, {STG}")
        self.tr_addr(7, 64)
        e("s_mul_i32 s64, s12, 224")
        e("v_add_u32 v9, s64, v3")
        for st in range(4): e(f"ds_read_b128 v[{128+4*st}:{131+4*st}], v9 offset:{AV+st*64}")
        for cg in range(4): self.tr_frags(4, cg * 32, 64 + 16 * cg, 7)
        e("v_cmp_gt_u32 vcc, 32, v1")
        for i in range(4): e(f"v_cndmask_b32 v{140+i}, 0, v{140+i}, vcc")
        for cg in range(4):
            for i in range(4): e(f"v_cndmask_b32 v{76+16*cg+i}, 0, v{76+16*cg+i}, vcc")
        for st in range(4):
            for cg in range(4):
                D = 144 + 4 * cg
                c = "0" if st == 0 else f"v[{D}:{D+3}]"
                e(f"v_mfma_f32_16x16x32_bf16 v[{D}:{D+3}], v[{128+4*st}:{131+4*st}], v[{64+16*cg+4*st}:{67+16*cg+4*st}], {c}")
        e("v_cmp_lt_u32 s[64:65], 15, v1")
        e("v_cmp_lt_u32 s[66:67], 31, v1")
        e("v_cmp_lt_u32 vcc, 47, v1")
        e(f"v_mov_b32 v53, s{S_TAG}")
        e(f"v_mov_b32 v55, s{S_TAG}")
        e("v_lshlrev_b32 v8, 3, v1")
        for b in range(2):
            e(f"v_cndmask_b32 v{52+2*b}, v{144+b}, v{148+b}, s[64:65]")
        for b in range(2):
            e(f"v_cndmask_b32 v{52+2*b}, v{52+2*b}, v{152+b}, s[66:67]")
        for b in range(2):
            e(f"v_cndmask_b32 v{52+2*b}, v{52+2*b}, v{156+b}, vcc")
        e(f"s_lshl_b32 s64, s{S_HKV}, 14")
        e("s_lshl_b32 s65, s12, 12")
        e("s_add_u32 s64, s64, s65")
        e("s_lshl_b32 s65, s13, 9")
        e("s_add_u32 s64, s64, s65")
        e(f"s_add_u32 s64, s64, {QBUF}")
        e(f"s_add_u32 s65, s64, {8*16384}")
        e(f"buffer_store_dwordx2 v[52:53], v8, s[{R_WS}:{R_WS+3}], s64 offen sc1")
        e(f"buffer_store_dwordx2 v[54:55], v8, s[{R_WS}:{R_WS+3}], s65 offen sc1")
        self.lds_set(MISC + 24, f"s{S_TAG}")
        self.stamp(2)

    def q_gather(self):
        e = self.e
        e("v_lshlrev_b32 v8, 4, v1")
        e(f"s_lshl_b32 s13, s{S_GRP}, 14")
        e(f"s_lshl_b32 s64, s{S_HW}, 10")
        e("s_add_u32 s13, s13, s64")
        e(f"s_add_u32 s13, s13, {QBUF}")
        for k in range(1, 4): e(f"s_add_u32 s{64+k}, s13, {k*4096}")
        qld = [f"buffer_load_dwordx4 v[{24+4*k}:{27+4*k}], v8, s[{R_WS}:{R_WS+3}], s{64+k if k else 13} offen sc1" for k in range(4)]
        e(f"s_sleep {self.qsleep0}")
        for l in qld: e(l)
        for k in range(4):
            L = self.lab("qp"); Lx = self.lab("qpx")
            e.label(L)
            e("s_waitcnt vmcnt(0)")
            self.check_words([25 + 4 * k, 27 + 4 * k], 40, mant=False)
            e(f"s_cbranch_vccz {Lx}")
            e(f"s_sleep {self.qsleep}")
            e(qld[k])
            e(f"s_sub_u32 s{S_TO}, s{S_TO}, 1")
            e(f"s_cbranch_scc0 {L}")
            e("s_branch L_hfail")
            e.label(Lx)
        e("v_add_f32 v24, v24, v28")
        e("v_add_f32 v26, v26, v30")
        e("v_add_f32 v32, v32, v36")
        e("v_add_f32 v34, v34, v38")
        e("v_add_f32 v24, v24, v32")
        e("v_add_f32 v26, v26, v34")
        e("v_cvt_pk_bf16_f32 v24, v24, v26")
        e("v_lshlrev_b32 v8, 2, v1")
        e(f"s_lshl_b32 s64, s{S_HW}, 8")
        e("v_add_u32 v8, s64, v8")
        e(f"ds_write_b32 v8, v24 offset:{QL}")
        e("s_waitcnt lgkmcnt(0)")

    def stage_a(self):
        e = self.e
        FB, PB = 64, 128
        if self.latea == 1: self.lds_wait(MISC + 4, "ge", 5, 2)
        if self.latea >= 2: self.lds_wait(MISC + 12, "le", self.latea - 1, 4)
        self.winfl_cur = self.winfl2 if self.latea else self.winfl
        self.srd(R_W, P_WO, 4096 * 896)
        e(f"s_mul_i32 s64, s{S_HKV}, {512*896}")
        e(f"s_lshl_b32 s65, s{S_SPL}, 7")
        e("s_add_u32 s64, s64, s65")
        e(f"s_mul_i32 s65, s{S_HW}, {128*896}")
        e("s_add_u32 s64, s64, s65")
        e(f"s_lshl_b32 s65, s{S_HW}, 14")
        e(f"s_add_u32 s65, s65, {STG}")
        self.dma_voff(896, 7, 20)
        self.dma_loop(R_W, 20, 16, 64, 8 * 896, 65)
        self.h_sync()
        e(f"s_lshl_b32 s64, s{S_HW}, 5")
        e(f"s_add_u32 s64, s64, {STG}")
        self.tr_addr(7, 64)
        self.tr_frags(16, 0, FB, 7)
        self.stamp(4)
        e(f"s_lshr_b32 s12, s{S_HW}, 1")
        e(f"s_and_b32 s13, s{S_HW}, 1")
        e("s_lshl_b32 s14, s12, 3")
        e(f"s_add_u32 s14, s14, s{S_HKV}")
        e("s_lshl_b32 s15, s14, 15")
        e("s_lshl_b32 s64, s13, 10")
        e("s_add_u32 s15, s15, s64")
        e(f"s_add_u32 s15, s15, {PBUF}")
        e("s_lshl_b32 s64, s13, 11")
        e("s_lshl_b32 s14, s14, 7")
        e("s_add_u32 s14, s14, s64")
        e(f"s_add_u32 s14, s14, {HBUF}")
        e("v_lshlrev_b32 v5, 4, v1")
        e("v_lshlrev_b32 v6, 3, v4")
        e(f"s_mul_i32 s64, s12, {AVS}")
        e("s_lshl_b32 s65, s13, 9")
        e("s_add_u32 s64, s64, s65")
        e("v_lshlrev_b32 v7, 3, v1")
        e("v_add_u32 v7, s64, v7")
        e("v_lshlrev_b32 v18, 3, v1")
        e("v_mov_b32 v19, 0xffffffc0")
        e(f"s_mul_i32 s52, s{S_HKV}, {448*8}")
        e(f"s_lshl_b32 s65, s{S_SPL}, 9")
        e("s_add_u32 s52, s52, s65")
        e(f"s_lshl_b32 s65, s{S_HW}, 7")
        e("s_add_u32 s52, s52, s65")
        e(f"s_add_u32 s52, s52, {YBUF}")
        e("s_mov_b32 s68, 1")
        e("s_branch L_a_go")
        e.label("L_a_poll")
        e("s_mov_b32 s68, 0")
        self.stamp(5)
        self.stamp(6)
        NB = self.aspec
        L = self.lab("asw"); Lz = self.lab("anl"); Li = self.lab("ais"); Lc = self.lab("ack")
        e("s_mov_b32 s69, 0xffff")
        e("s_mov_b32 s70, 0")
        e("v_mov_b32 v12, 0xff800000")
        for i in range(13, 18): e(f"v_mov_b32 v{i}, 0")
        e.label(L)
        e(f"buffer_load_dwordx2 v[10:11], v6, s[{R_WS}:{R_WS+3}], s14 offen sc1")
        for i in range(NB):
            r = PB + 4 * i
            e(f"s_ff1_i32_b32 s{40+i}, s70")
            e(f"s_cmp_lt_i32 s{40+i}, 0")
            e(f"s_cbranch_scc1 {Li}")
            e(f"s_lshl_b32 s64, s{40+i}, 11")
            e(f"s_bitset0_b32 s70, s{40+i}")
            e("s_add_u32 s64, s64, s15")
            e(f"buffer_load_dwordx4 v[{r}:{r+3}], v5, s[{R_WS}:{R_WS+3}], s64 offen sc1")
        e.label(Li)
        e("s_waitcnt vmcnt(0)")
        e(f"v_cmp_eq_u32 s[66:67], s{S_TAG}, v11")
        for i in range(NB):
            r = PB + 4 * i
            nx = self.lab("anx")
            e(f"s_cmp_lt_i32 s{40+i}, 0")
            e(f"s_cbranch_scc1 {Lc}")
            e(f"v_readlane_b32 s64, v10, s{40+i}")
            self.check_words([r, r + 2], 28)
            e(f"s_cbranch_vccnz {nx}")
            e(f"s_bitcmp1_b32 s66, s{40+i}")
            e(f"s_cbranch_scc0 {nx}")
            e("v_max_f32 v28, s64, v12")
            e("v_sub_f32 v24, v12, v28")
            e("v_sub_f32 v26, s64, v28")
            e("v_exp_f32 v24, v24")
            e("v_exp_f32 v26, v26")
            e("v_mov_b32 v12, v28")
            e(f"s_bitset0_b32 s69, s{40+i}")
            e("v_pk_mul_f32 v[14:15], v[14:15], v[24:25] op_sel_hi:[1,0]")
            e("v_pk_mul_f32 v[16:17], v[16:17], v[24:25] op_sel_hi:[1,0]")
            e("v_fma_f32 v13, v13, v24, v26")
            e(f"v_pk_fma_f32 v[14:15], v[{r}:{r+1}], v[26:27], v[14:15] op_sel_hi:[1,0,1]")
            e(f"v_pk_fma_f32 v[16:17], v[{r+2}:{r+3}], v[26:27], v[16:17] op_sel_hi:[1,0,1]")
            e.label(nx)
        e.label(Lc)
        e("s_cmp_eq_u32 s69, 0")
        e("s_cbranch_scc1 L_a_got")
        e("s_and_b32 s70, s69, s66")
        e("s_bcnt1_i32_b32 s64, s69")
        e(f"s_cmp_le_u32 s64, {NB}")
        e("s_cselect_b32 s70, s69, s70")
        e("s_cmp_lg_u32 s70, 0")
        e(f"s_cbranch_scc1 {Lz}")
        e(f"s_sleep {self.gsleep}")
        e.label(Lz)
        e(f"s_sub_u32 s{S_TO}, s{S_TO}, 1")
        e(f"s_cbranch_scc0 {L}")
        e("s_branch L_hfail")
        e.label("L_a_got")
        self.stamp(7)
        e.label("L_a_go")
        e("v_rcp_f32 v24, v13")
        e("v_pk_mul_f32 v[14:15], v[14:15], v[24:25] op_sel_hi:[1,0]")
        e("v_pk_mul_f32 v[16:17], v[16:17], v[24:25] op_sel_hi:[1,0]")
        e("v_cvt_pk_bf16_f32 v14, v14, v15")
        e("v_cvt_pk_bf16_f32 v15, v16, v17")
        e(f"ds_write_b64 v7, v[14:15] offset:{AV}")
        e("s_waitcnt lgkmcnt(0)")
        self.bar()
        self.gemv(16, PB + 64, AV, [(20, FB)])
        self.tagw(24, 20, 19)
        self.tagw(25, 21, 19)
        e("s_cmp_eq_u32 s68, 1")
        e("s_cbranch_scc1 L_a_poll")
        e("s_mov_b64 exec, 0xffff")
        e(f"buffer_store_dwordx2 v[24:25], v18, s[{R_WS}:{R_WS+3}], s52 offen sc1")
        self.stamp(8)
        self.endpgm()

    def stage_b(self):
        e = self.e
        FG, FU, GB = 64, 120, 176
        UPO = 448 * 128
        self.srd(R_W, P_WG, 448 * 3584)
        self.srd(R_W2, P_WU, 448 * 3584)
        if self.wtouch:
            e(f"v_mul_u32_u24 v20, {7*3584}, v1")
            e("s_lshl_b32 s64, s12, 7")
            e(f"s_bitcmp1_b32 s{S_HW}, 1")
            Lw = self.lab("wt"); e(f"s_cbranch_scc1 {Lw}")
            e(f"s_bitcmp1_b32 s{S_HW}, 0")
            La = self.lab("wt"); e(f"s_cbranch_scc1 {La}")
            e(f"buffer_load_dword v21, v20, s[{R_W}:{R_W+3}], s64 offen nt")
            e(f"s_branch {Lw}")
            e.label(La)
            e(f"buffer_load_dword v21, v20, s[{R_W2}:{R_W2+3}], s64 offen nt")
            e.label(Lw)
        e(f"s_mul_i32 s64, s{S_HW}, 56")
        e("v_min_u32 v5, 55, v1")
        e("v_add_u32 v5, s64, v5")
        e("v_cmp_gt_u32 s[70:71], 56, v1")
        e("v_lshlrev_b32 v14, 2, v5")
        e(f"buffer_load_dword v16, v14, s[{R_X}:{R_X+3}], 0 offen")
        e(f"buffer_load_dword v17, v14, s[{R_X}:{R_X+3}], 0 offen offset:896")
        e("v_lshlrev_b32 v5, 4, v5")
        e("s_waitcnt vmcnt(0)")
        e("v_and_b32 v18, 0xffff0000, v16")
        e("v_and_b32 v19, 0xffff0000, v17")
        e("v_lshlrev_b32 v16, 16, v16")
        e("v_lshlrev_b32 v17, 16, v17")
        for k in range(8): e(f"s_mov_b32 s{40+k}, {YBUF + k*3584}")
        e(f"s_lshl_b32 s64, s{S_HW}, 4")
        e("v_mov_b32 v10, s64")
        e("v_and_b32 v11, 7, v1")
        e("v_lshlrev_b32 v11, 4, v11")
        e("v_lshlrev_b32 v12, 3, v1")
        e("v_and_b32 v8, 16, v1")
        e("v_cmp_ne_u32 s[56:57], 0, v8")
        e("s_lshl_b32 s13, s12, 9")
        e(f"s_lshl_b32 s64, s{S_HW}, 7")
        e("s_add_u32 s13, s13, s64")
        e(f"s_add_u32 s13, s13, {GBUF}")
        e(f"s_mov_b32 s14, {f2u(0.044715):#x}")
        e(f"s_mov_b32 s15, {f2u(112.0):#x}")
        e(f"v_mov_b32 v35, s{S_TAG}")
        e("s_mov_b32 s68, 1")
        e("s_branch L_b_go")
        e.label("L_b_poll")
        e("s_mov_b32 s68, 0")
        self.srd(R_W, P_WG, 448 * 3584)
        if self.lateb == 1: self.lds_wait(MISC + 4, "ge", 5, 2)
        if self.lateb >= 2: self.lds_wait(MISC + 12, "le", self.lateb - 1, 4)
        self.winfl_cur = self.winfl2 if self.lateb else self.winfl
        e("s_waitcnt vmcnt(0)")
        self.dma_voff(3584, 7, 20)
        for m_, srd_ in enumerate((R_W, R_W2)):
            e("s_lshl_b32 s64, s12, 7")
            e(f"s_mul_i32 s65, s{S_HW}, {112*3584}")
            e("s_add_u32 s64, s64, s65")
            e(f"s_mul_i32 s65, s{S_HW}, {112*128}")
            e(f"s_add_u32 s65, s65, {STG + m_*UPO}")
            self.dma_loop(srd_, 20, 14, 64, 8 * 3584, 65)
        self.stamp(5)
        if self.gpos == 0: self.gate_all()
        self.h_sync()
        e(f"s_lshl_b32 s64, s{S_HW}, 5")
        e(f"s_add_u32 s64, s64, {STG}")
        self.tr_addr(7, 64)
        self.tr_frags(14, 0, FG, 7)
        e(f"v_add_u32 v2, {UPO}, v2")
        self.tr_frags(14, 0, FU, 7)
        self.stamp(4)
        if self.gpos == 1: self.gate_all()
        self.stamp(6)
        self.sweep_all([f"buffer_load_dwordx4 v[{GB+4*k}:{GB+4*k+3}], v5, s[{R_WS}:{R_WS+3}], s{40+k} offen sc1" for k in range(8)],
                       [GB + 2 * i for i in range(16)], 240)
        self.stamp(7)
        e.label("L_b_go")
        for k in range(1, 8):
            for j in (0, 2):
                a = GB + j if k == 1 else 20 + j
                e(f"v_pk_add_f32 v[{20+j}:{21+j}], v[{a}:{a+1}], v[{GB+4*k+j}:{GB+4*k+j+1}]")
        def rnd4():
            e("v_cvt_pk_bf16_f32 v24, v20, v21")
            e("v_cvt_pk_bf16_f32 v25, v22, v23")
            e("v_lshlrev_b32 v20, 16, v24")
            e("v_and_b32 v21, 0xffff0000, v24")
            e("v_lshlrev_b32 v22, 16, v25")
            e("v_and_b32 v23, 0xffff0000, v25")
        rnd4()
        e("v_pk_add_f32 v[20:21], v[20:21], v[16:17]")
        e("v_pk_add_f32 v[22:23], v[22:23], v[18:19]")
        rnd4()
        for b in range(2): e(f"v_readfirstlane_b32 s{66+b}, v{20+b}")
        e("v_pk_add_f32 v[36:37], v[20:21], s[66:67] neg_lo:[0,1] neg_hi:[0,1]")
        e("v_pk_add_f32 v[38:39], v[22:23], s[66:67] neg_lo:[0,1] neg_hi:[0,1]")
        for b in range(2): e(f"v_mov_b32 v{24+4*b}, s{66+b}")
        for b in range(2): e(f"v_add_f32 v{25+4*b}, v{36+b}, v{38+b}")
        for b in range(2): e(f"v_mul_f32 v{26+4*b}, v{36+b}, v{36+b}")
        for b in range(2): e(f"v_fmac_f32 v{26+4*b}, v{38+b}, v{38+b}")
        red = [25, 29, 26, 30]
        for v in red: e(f"v_cndmask_b32 v{v}, 0, v{v}, s[70:71]")
        self.row_reduce(red)
        for v in red: e(f"v_add_f32_dpp v{v}, v{v}, v{v} row_bcast:15 row_mask:0xa bank_mask:0xf")
        for v in red: e(f"v_add_f32_dpp v{v}, v{v}, v{v} row_bcast:31 row_mask:0xc bank_mask:0xf")
        e("s_mov_b64 exec, 0x8000000000000000") if False else None
        e("s_mov_b32 exec_lo, 0")
        e("s_mov_b32 exec_hi, 0x80000000")
        e(f"ds_write_b96 v10, v[24:26] offset:{STATS}")
        e(f"ds_write_b96 v10, v[28:30] offset:{STATS+64}")
        e("s_mov_b64 exec, -1")
        e("s_waitcnt lgkmcnt(0)")
        self.bar()
        e(f"ds_read_b96 v[24:26], v11 offset:{STATS}")
        e("s_waitcnt lgkmcnt(0)")
        e(f"v_mul_f32 v27, {f2u(1.0/112):#x}, v25")
        e("v_add_f32 v24, v24, v27")
        e("v_fma_f32 v26, -v27, v25, v26")
        e("v_add_f32_dpp v28, v24, v24 quad_perm:[1,0,3,2] row_mask:0xf bank_mask:0xf")
        e("v_add_f32_dpp v28, v28, v28 quad_perm:[2,3,0,1] row_mask:0xf bank_mask:0xf")
        e(f"v_mul_f32 v28, {f2u(0.25):#x}, v28")
        e("v_sub_f32 v24, v24, v28")
        e("v_mul_f32 v24, v24, v24")
        e("v_fmac_f32 v26, s15, v24")
        e("v_add_f32_dpp v26, v26, v26 quad_perm:[1,0,3,2] row_mask:0xf bank_mask:0xf")
        e("v_add_f32_dpp v26, v26, v26 quad_perm:[2,3,0,1] row_mask:0xf bank_mask:0xf")
        e(f"v_mul_f32 v26, {f2u(1.0/448):#x}, v26")
        e("v_cvt_pk_bf16_f32 v27, v28, v26")
        e("v_and_b32 v26, 0xffff0000, v27")
        e("v_lshlrev_b32 v28, 16, v27")
        e(f"v_add_f32 v26, {f2u(1e-5):#x}, v26")
        e("v_readlane_b32 s52, v28, 0")
        e("v_readlane_b32 s53, v28, 4")
        self.rnd(26)
        e("v_pk_add_f32 v[20:21], v[20:21], s[52:53] neg_lo:[0,1] neg_hi:[0,1]")
        e("v_sqrt_f32 v26, v26")
        e("v_pk_add_f32 v[22:23], v[22:23], s[52:53] neg_lo:[0,1] neg_hi:[0,1]")
        self.rnd(26)
        e("v_cvt_pk_bf16_f32 v24, v20, v21")
        e("v_rcp_f32 v26, v26")
        e("v_cvt_pk_bf16_f32 v25, v22, v23")
        e("v_lshlrev_b32 v20, 16, v24")
        e("v_readlane_b32 s54, v26, 0")
        e("v_readlane_b32 s55, v26, 4")
        e("v_and_b32 v21, 0xffff0000, v24")
        e("v_lshlrev_b32 v22, 16, v25")
        e("v_and_b32 v23, 0xffff0000, v25")
        e("v_pk_mul_f32 v[20:21], v[20:21], s[54:55]")
        e("v_pk_mul_f32 v[22:23], v[22:23], s[54:55]")
        for b in range(2): e(f"v_cvt_pk_bf16_f32 v{20+b}, v{20+b}, v{22+b}")
        e(f"ds_write_b32 v14, v20 offset:{AV}")
        e(f"ds_write_b32 v14, v21 offset:{AV+AVS}")
        e("s_waitcnt lgkmcnt(0)")
        self.bar()
        self.gemv(14, GB, AV, [(24, FG), (28, FU)])
        e("v_cndmask_b32 v24, v24, v25, s[56:57]")
        e("v_cndmask_b32 v29, v28, v29, s[56:57]")
        e("v_cvt_pk_bf16_f32 v29, v24, v29")
        e("v_lshlrev_b32 v28, 16, v29")
        e("v_and_b32 v29, 0xffff0000, v29")
        k0 = math.sqrt(2.0 / math.pi)
        c1 = f2u(-2.0 * k0 * math.log2(math.e))
        e("v_mul_f32 v32, v28, v28")
        e("v_mul_f32 v32, v32, v28")
        e("v_fma_f32 v32, v32, s14, v28")
        e(f"v_mul_f32 v32, {c1:#x}, v32")
        e("v_exp_f32 v32, v32")
        e("v_add_f32 v32, 1.0, v32")
        e("v_rcp_f32 v32, v32")
        e("v_mul_f32 v32, v32, v28")
        self.rnd(32)
        e("v_mul_f32 v32, v32, v29")
        e("v_mov_b32 v33, v32")
        e("v_permlane16_swap_b32 v32, v33")
        e("v_cvt_pk_bf16_f32 v34, v32, v33")
        e("s_cmp_eq_u32 s68, 1")
        e("s_cbranch_scc1 L_b_poll")
        e("s_mov_b64 exec, 0xffff")
        e(f"buffer_store_dwordx2 v[34:35], v12, s[{R_WS}:{R_WS+3}], s13 offen sc1")
        self.stamp(8)
        self.endpgm()

    def stage_c(self):
        e = self.e
        F0, F1, GB = 64, 120, 176
        self.srd(R_W, P_WD, 1792 * 896)
        self.srd(R_W2, P_OUT, 2 * 448 * 2)
        if self.wtouch:
            e(f"v_mul_u32_u24 v20, {28*896}, v1")
            e("s_lshl_b32 s64, s12, 6")
            e(f"s_cmp_lg_u32 s{S_HW}, 0")
            Lw = self.lab("wt"); e(f"s_cbranch_scc1 {Lw}")
            e(f"buffer_load_dword v21, v20, s[{R_W}:{R_W+3}], s64 offen nt")
            e.label(Lw)
        e(f"s_mul_i32 s65, s{S_HW}, {STGW}")
        e(f"s_add_u32 s65, s65, {STG}")
        self.tr_addr(6, 65)
        e("v_and_b32 v5, 31, v1")
        e("v_lshrrev_b32 v6, 5, v1")
        e("s_lshl_b32 s64, s12, 5")
        e("v_add_u32 v7, s64, v5")
        e("v_mul_u32_u24 v14, 448, v6")
        e("v_add_lshl_u32 v14, v14, v7, 1")
        e(f"buffer_load_ushort v16, v14, s[{R_X}:{R_X+3}], 0 offen")
        if self.otouch: e(f"buffer_load_ushort v18, v14, s[{R_W2}:{R_W2+3}], 0 offen")
        e("v_lshlrev_b32 v7, 3, v7")
        e("v_lshl_add_u32 v7, v6, 2, v7")
        e("s_waitcnt vmcnt(0)")
        e("v_lshlrev_b32 v16, 16, v16")
        e("v_lshlrev_b32 v10, 4, v1")
        e("v_lshlrev_b32 v11, 4, v5")
        e(f"s_mul_i32 s13, s{S_HW}, 3584")
        e(f"s_add_u32 s13, s13, {GBUF}")
        e(f"s_mul_i32 s14, s{S_HW}, {2*AVS}")
        e("v_lshlrev_b32 v12, 2, v1")
        e("v_add_u32 v12, s14, v12")
        e("v_lshlrev_b32 v13, 2, v5")
        e("v_add_u32 v13, s14, v13")
        e("v_add_u32 v3, s14, v3")
        e("v_mov_b32 v17, 0")
        e("s_mov_b32 s64, 0x05040100")
        e("s_mov_b32 s65, 0x07060302")
        e("s_mov_b32 s68, 1")
        e("s_branch L_c_go")
        e.label("L_c_poll")
        e("s_mov_b32 s68, 0")
        if self.latec == 1: self.lds_wait(MISC + 4, "ge", 5, 2)
        if self.latec >= 2: self.lds_wait(MISC + 12, "le", self.latec - 1, 4)
        self.winfl_cur = self.winfl2 if self.latec else self.winfl
        e("s_waitcnt vmcnt(0)")
        e(f"s_mul_i32 s64, s{S_HW}, {448*896}")
        e("s_lshl_b32 s65, s12, 6")
        e("s_add_u32 s64, s64, s65")
        e(f"s_mul_i32 s65, s{S_HW}, {STGW}")
        e(f"s_add_u32 s65, s65, {STG}")
        self.dma_voff(896, 6, 20)
        self.dma_loop(R_W, 20, 28, 64, 16 * 896, 65)
        self.stamp(5)
        if self.gpos == 0: self.gate_all()
        e("s_waitcnt vmcnt(0)")
        self.tr_frags(14, 0, F0, 6)
        self.tr_frags(14, 32, F1, 6)
        self.stamp(4)
        if self.gpos == 1: self.gate_all()
        self.stamp(6)
        Ln = self.lab("cnres")
        e(f"s_cmp_lg_u32 s{S_HW}, 0")
        e(f"s_cbranch_scc1 {Ln}")
        for k in range(8): e(f"s_mov_b32 s{40+k}, {YBUF + k*3584}")
        self.sweep_all([f"buffer_load_dword v{GB+k}, v7, s[{R_WS}:{R_WS+3}], s{40+k} offen sc1" for k in range(8)],
                       [GB + k for k in range(8)], 24)
        for k in range(1, 8): e(f"v_add_f32 v17, v{GB if k == 1 else 17}, v{GB+k}")
        self.rnd(17)
        e("v_add_f32 v17, v17, v16")
        self.rnd(17)
        e.label(Ln)
        e("s_mov_b32 s64, 0x05040100")
        e("s_mov_b32 s65, 0x07060302")
        sc = [24, 48, 232][:self.nset]
        def cput(i):
            g = sc[i]
            for k in range(4):
                e(f"v_perm_b32 v{g+1+4*k}, v{g+2+4*k}, v{g+4*k}, s64")
                e(f"v_perm_b32 v{g+3+4*k}, v{g+2+4*k}, v{g+4*k}, s65")
                a = 12 if k < 3 else 13
                e(f"ds_write_b32 v{a}, v{g+1+4*k} offset:{AV+k*256}")
                e(f"ds_write_b32 v{a}, v{g+3+4*k} offset:{AV+AVS+k*256}")
        self.sweep_pipe([([f"buffer_load_dwordx4 v[{g+4*k}:{g+3+4*k}], v{10 if k < 3 else 11}, s[{R_WS}:{R_WS+3}], s13 offen offset:{k*1024} sc1" for k in range(4)],
                          [g + 1 + 2 * i for i in range(8)]) for g in sc], 248, False, cput, "L_c_go")
        self.gemv(14, GB, AV, [(40, F0), (44, F1)], ahead=7)
        e(f"s_lshl_b32 s64, s{S_HW}, 8")
        e("v_lshlrev_b32 v8, 3, v1")
        e("v_add_u32 v8, s64, v8")
        e("s_mov_b64 exec, 0xffff")
        e(f"ds_write_b64 v8, v[40:41] offset:{RED}")
        e(f"ds_write_b64 v8, v[44:45] offset:{RED+128}")
        e("s_mov_b64 exec, -1")
        e("s_waitcnt lgkmcnt(0)")
        self.bar()
        Le = self.lab("cend")
        e(f"s_sub_u32 s64, s{S_HW}, s68")
        e(f"s_cmp_eq_u32 s68, 1")
        e(f"s_cselect_b32 s64, 0, s{S_HW}")
        e(f"s_cmp_lg_u32 s64, 0")
        e(f"s_cbranch_scc1 {Le}")
        e("v_lshlrev_b32 v8, 3, v5")
        e("v_lshl_add_u32 v8, v6, 2, v8")
        for w in range(4): e(f"ds_read_b32 v{20+w}, v8 offset:{RED+256*w}")
        e("s_waitcnt lgkmcnt(0)")
        e("v_add_f32 v20, v20, v21")
        e("v_add_f32 v22, v22, v23")
        e("v_add_f32 v20, v20, v22")
        self.rnd(20)
        e("v_add_f32 v20, v20, v17")
        e("v_cvt_pk_bf16_f32 v20, v20, v20")
        e("s_cmp_eq_u32 s68, 1")
        e("s_cbranch_scc1 L_c_poll")
        e(f"buffer_store_short v20, v14, s[{R_W2}:{R_W2+3}], 0 offen")
        if self.dbgtime:
            self.dbgt(35)
            e("s_waitcnt vmcnt(0)")
            e("v_lshlrev_b32 v254, 2, v1")
            e("s_mov_b64 exec, 0xf")
            e("buffer_load_dword v253, v254, s[92:95], 0 offen offset:128 sc1")
            e("s_waitcnt vmcnt(0)")
            e("buffer_atomic_umax v253, v254, s[92:95], 0 offen offset:16 sc1")
            e("s_mov_b64 exec, -1")
        e("s_cmp_lg_u32 s12, 0")
        e(f"s_cbranch_scc1 {Le}")
        e(f"v_mov_b32 v21, s{S_TAG}")
        e("s_mov_b64 exec, 1")
        e(f"buffer_store_dword v21, off, s[{R_WS}:{R_WS+3}], 0 offset:{EPOCH} sc1")
        e.label(Le)
        self.stamp(8)
        self.endpgm()

    def build(self):
        e = self.e
        e("s_cmp_ge_u32 s2, 256")
        e("s_cbranch_scc1 L_exit")
        e("s_load_dwordx16 s[16:31], s[0:1], 0")
        e("s_load_dwordx8 s[32:39], s[0:1], 64")
        self.stamp_init()
        e("v_lshrrev_b32 v2, 6, v0")
        e("v_and_b32 v1, 63, v0")
        e(f"v_readfirstlane_b32 s{S_WAVE}, v2")
        self.stamp(0)
        e(f"s_and_b32 s{S_HW}, s{S_WAVE}, 3")
        e(f"s_cmp_lt_u32 s{S_WAVE}, 4")
        e("s_cbranch_scc1 L_hpath")
        self.s_path()
        e.label("L_hpath")
        self.in_h = True
        e(f"s_lshr_b32 s{S_GRP}, s2, 4")
        e(f"s_and_b32 s{S_SPL}, s2, 15")
        e(f"s_lshr_b32 s{S_B}, s2, 7")
        e(f"s_and_b32 s{S_HKV}, s{S_GRP}, 7")
        e(f"s_mov_b32 s{S_TO}, {TIMEOUT}")
        e("s_waitcnt lgkmcnt(0)")
        self.srd(R_WS, P_WS, WS_SIZE)
        self.srd(R_X, P_X, 1792)
        if self.noq: e("s_branch L_hdone")
        e("s_setprio 2")
        e(f"s_cmp_lg_u32 s{S_HW}, 0")
        e("s_cbranch_scc1 L_hnq")
        self.q_path()
        e("s_branch L_hq")
        e.label("L_hnq")
        if self.dbgtime:
            Ld = self.lab("dt"); e(f"s_cmp_lg_u32 s{S_HW}, 3"); e(f"s_cbranch_scc1 {Ld}")
            self.dbgt(32, True); self.dbgt(33)
            e.label(Ld)
        if self.tstride:
            Lt = self.lab("notouch")
            e(f"s_cmp_eq_u32 s{S_HW}, 3")
            e(f"s_cbranch_scc1 {Lt}")
            e(f"s_cmp_eq_u32 s{S_HW}, 1")
            e(f"s_cselect_b32 s{R_K}, s{P_K}, s{P_V}")
            e(f"s_cselect_b32 s{R_K+1}, s{P_K+1}, s{P_V+1}")
            e(f"s_mov_b32 s{R_K+2}, {1 << 28}")
            e(f"s_mov_b32 s{R_K+3}, 0x20000")
            e(f"v_lshlrev_b32 v11, {self.tstride}, v1")
            e("s_lshl_b32 s64, s2, 20")
            n = (1 << 20) >> self.tstride
            if n < 64: e(f"s_mov_b64 exec, {(1 << n) - 1:#x}")
            e(f"buffer_load_dword v12, v11, s[{R_K}:{R_K+3}], s64 offen nt")
            e("s_mov_b64 exec, -1")
            e.label(Lt)
        e(f"buffer_load_dword v10, off, s[{R_WS}:{R_WS+3}], 0 offset:{EPOCH} sc1")
        self.h_consts()
        e("s_waitcnt vmcnt(0)")
        e("v_readfirstlane_b32 s64, v10")
        self.set_tag(64)
        self.lds_wait(MISC + 24, "eq", f"s{S_TAG}", 2)
        e.label("L_hq")
        self.q_gather()
        e("s_setprio 0")
        e("s_barrier")
        self.stamp(3)
        e(f"s_cmp_lg_u32 s{S_HW}, 1")
        e("s_cbranch_scc1 L_sfinal_back")
        e("s_mov_b32 s68, 1")
        e("s_branch L_sfinal")
        e.label("L_sfinal_back")
        if self.noroles: e("s_branch L_hdone")
        e(f"s_cmp_lg_u32 s{S_HW}, 0")
        e("s_cbranch_scc1 L_rwait")
        self.lds_wait(MISC + 12, "le", self.trig, 8)
        self.srd(R_W, P_DBG, 256)
        e("v_mov_b32 v10, 1")
        e("s_mov_b64 exec, 1")
        e(f"buffer_atomic_add v10, off, s[{R_W}:{R_W+3}], 0 sc0 sc1")
        e("s_waitcnt vmcnt(0)")
        e("s_mov_b64 exec, -1")
        e("v_readfirstlane_b32 s12, v10")
        e("s_add_u32 s12, s12, 1")
        self.lds_set(MISC + 16, "s12")
        e("s_branch L_rgot")
        e.label("L_rwait")
        self.lds_wait(MISC + 16, "lg", 0, 8, 12)
        e.label("L_rgot")
        e("s_sub_u32 s12, s12, 1")
        e("s_cmp_ge_u32 s12, 98")
        if self.rorder == 2:
            e("s_cmp_ge_u32 s12, 42")
            e("s_cbranch_scc1 L_rord")
            e("s_add_u32 s12, s12, 14")
            e("s_cmp_lt_u32 s12, 42")
            e("s_cbranch_scc1 L_rord")
            e("s_sub_u32 s12, s12, 42")
            e.label("L_rord")
            e("s_cmp_ge_u32 s12, 98")
        if self.rorder == 1:
            e("s_cbranch_scc1 L_rord")
            e("s_sub_u32 s12, 97, s12")
            e.label("L_rord")
            e("s_cmp_ge_u32 s12, 98")
        if self.diag:
            e(f"s_mov_b32 s{ST0+22}, s12")
        e("s_cbranch_scc1 L_hdone")
        self.h_consts()
        e("s_cmp_lt_u32 s12, 14")
        e("s_cbranch_scc0 L_notc")
        self.stage_c()
        e.label("L_notc")
        e("s_sub_u32 s12, s12, 14")
        e("s_cmp_lt_u32 s12, 28")
        e("s_cbranch_scc0 L_notb")
        self.stage_b()
        e.label("L_notb")
        e("s_sub_u32 s12, s12, 28")
        e(f"s_mul_i32 s{S_HKV}, s12, 37")
        e(f"s_lshr_b32 s{S_HKV}, s{S_HKV}, 8")
        e(f"s_mul_i32 s64, s{S_HKV}, 7")
        e(f"s_sub_u32 s{S_SPL}, s12, s64")
        self.stage_a()
        e.label("L_hfail")
        e.label("L_hdone")
        self.endpgm()
        e.label("L_exit")
        e("s_endpgm")
        return e.text()

HEAD = """; fused pre-LN GQA decode attention + GEGLU FFN, one persistent launch (256 workgroups, one per CU).
; @launch grid=(256,1,1) block=(512,1,1) lds={lds}
.amdgcn_target "amdgcn-amd-amdhsa--gfx950"
.text
.globl {name}
.p2align 8
.type {name},@function
{name}:
"""
TAIL = """.section .rodata,"a"
.p2align 6
.amdhsa_kernel {name}
  .amdhsa_next_free_vgpr 256
  .amdhsa_next_free_sgpr 102
  .amdhsa_accum_offset 256
  .amdhsa_group_segment_fixed_size 0
  .amdhsa_kernarg_size 96
  .amdhsa_user_sgpr_count 2
  .amdhsa_user_sgpr_kernarg_segment_ptr 1
  .amdhsa_system_sgpr_workgroup_id_x 1
.end_amdhsa_kernel
"""

def make(path, **kw):
    g = Gen(**kw)
    body = g.build()
    if g.hf != "sc1": body = body.replace(" sc1\n", f" {g.hf}\n").replace("sc0 sc0", "sc0")
    open(path, "w").write(HEAD.format(lds=LDS_SIZE, name=NAME) + body + TAIL.format(name=NAME))
    return g

if __name__ == "__main__":
    import argparse
    ap = argparse.ArgumentParser()
    ap.add_argument("out")
    ap.add_argument("--diag", action="store_true")
    ap.add_argument("--npro", type=int, default=40)
    ap.add_argument("--kvflags", default="nt")
    ap.add_argument("--wflags", default="nt")
    ap.add_argument("--qflags", default="nt")
    ap.add_argument("--noroles", action="store_true")
    ap.add_argument("--athr", type=int, default=13)
    ap.add_argument("--gsleep", type=int, default=4)
    ap.add_argument("--winfl", type=int, default=6)
    ap.add_argument("--dist", type=int, default=12)
    ap.add_argument("--thr", type=int, default=6)
    ap.add_argument("--vflags", default=None)
    ap.add_argument("--rot", type=int, default=2)
    ap.add_argument("--nt", type=int, default=32)
    ap.add_argument("--thrp", type=int, default=6)
    ap.add_argument("--npl", type=int, default=40)
    ap.add_argument("--gthr", type=int, default=32)
    ap.add_argument("--psleep", type=int, default=0)
    ap.add_argument("--hf", default="sc1")
    ap.add_argument("--nset", type=int, default=1)
    ap.add_argument("--pgap", type=int, default=2)
    ap.add_argument("--thr2", type=int, default=9)
    ap.add_argument("--nl2", type=int, default=0)
    ap.add_argument("--lateb", type=int, default=1)
    ap.add_argument("--latec", type=int, default=1)
    ap.add_argument("--winfl2", type=int, default=12)
    ap.add_argument("--qsleep", type=int, default=8)
    ap.add_argument("--qsleep0", type=int, default=32)
    ap.add_argument("--latea", type=int, default=0)
    ap.add_argument("--tstride", type=int, default=0)
    ap.add_argument("--otouch", type=int, default=0)
    ap.add_argument("--seq", type=int, default=1)
    ap.add_argument("--wtouch", type=int, default=0)
    ap.add_argument("--gpos", type=int, default=1)
    ap.add_argument("--dbgtime", type=int, default=0)
    ap.add_argument("--rorder", type=int, default=1)
    ap.add_argument("--nosoft", action="store_true")
    ap.add_argument("--noq", action="store_true")
    ap.add_argument("--trig", type=int, default=3)
    ap.add_argument("--aspec", type=int, default=6)
    a = ap.parse_args()
    g = make(a.out, diag=a.diag, npro=a.npro, kvflags=a.kvflags, wflags=a.wflags, qflags=a.qflags, noroles=a.noroles, athr=a.athr, gsleep=a.gsleep, winfl=a.winfl, dist=a.dist, nosoft=a.nosoft, noq=a.noq, trig=a.trig, aspec=a.aspec, thr=a.thr, vflags=a.vflags, rot=a.rot, nt=a.nt, thrp=a.thrp, npl=a.npl, gthr=a.gthr, psleep=a.psleep, hf=a.hf, nset=a.nset, pgap=a.pgap, thr2=a.thr2, nl2=a.nl2, lateb=a.lateb, latec=a.latec, winfl2=a.winfl2, qsleep=a.qsleep, qsleep0=a.qsleep0, latea=a.latea, rorder=a.rorder, tstride=a.tstride, otouch=a.otouch, seq=a.seq, wtouch=a.wtouch, gpos=a.gpos, dbgtime=a.dbgtime)
    print("pads inserted:", g.e.npad, "lines:", len(g.e.lines))
```

```python
import re

TRANS = ("v_exp_f32", "v_log_f32", "v_rcp_f32", "v_rsq_f32", "v_sqrt_f32", "v_sin_f32", "v_cos_f32")

def regs_of(tok):
    tok = tok.strip()
    tok = tok.lstrip("-")
    if tok.startswith("abs(") or tok.startswith("|"):
        tok = tok.replace("abs(", "").replace(")", "").replace("|", "")
    m = re.fullmatch(r"([vsa])(\d+)", tok)
    if m: return {(m.group(1), int(m.group(2)))}
    m = re.fullmatch(r"([vsa])\[(\d+):(\d+)\]", tok)
    if m: return {(m.group(1), i) for i in range(int(m.group(2)), int(m.group(3)) + 1)}
    if tok in ("vcc",): return {("x", "vcc_lo"), ("x", "vcc_hi")}
    if tok in ("vcc_lo", "vcc_hi", "m0", "exec_lo", "exec_hi"): return {("x", tok)}
    if tok == "exec": return {("x", "exec_lo"), ("x", "exec_hi")}
    return set()

class Ins:
    def __init__(self, text):
        self.text = text
        t = text.split(";")[0].strip()
        self.op = t.split()[0] if t else ""
        rest = t[len(self.op):].strip()
        ops, depth, cur = [], 0, ""
        for ch in rest:
            if ch == "[": depth += 1
            if ch == "]": depth -= 1
            if ch == "," and depth == 0:
                ops.append(cur.strip()); cur = ""
            else: cur += ch
        if cur.strip(): ops.append(cur.strip())
        mods = ""
        if ops:
            parts = ops[-1].split(None, 1)
            ops[-1] = parts[0]
            mods = parts[1] if len(parts) > 1 else ""
        self.ops, self.mods = ops, mods
        op = self.op
        self.kind = "other"
        self.w, self.r = set(), set()
        R = [regs_of(o) for o in ops]
        allr = set().union(*R) if R else set()
        if op.startswith("v_mfma"):
            self.kind = "mfma"; self.w = R[0]; self.a = R[1] | R[2]; self.c = R[3]; self.r = self.a | self.c
            self.passes = 8 if "32x32" in op else 4
        elif op.startswith("v_permlane"):
            self.kind = "valu"; self.sub = "permlane"; self.w = allr; self.r = allr
        elif op.startswith("v_readlane") or op.startswith("v_readfirstlane"):
            self.kind = "valu"; self.sub = "readlane"; self.w = R[0]; self.r = set().union(*R[1:])
        elif op.startswith("v_cmp"):
            self.kind = "valu"; self.sub = "cmp"; self.w = R[0]; self.r = set().union(*R[1:])
        elif op.startswith("v_"):
            self.kind = "valu"; self.sub = "trans" if any(op.startswith(x) for x in TRANS) else ("dpp" if "_dpp" in op else "")
            if op == "v_nop": return
            self.w = R[0]; self.r = set().union(*R[1:]) if len(R) > 1 else set()
            if op.startswith("v_fmac") or "_dpp" in op or op.startswith("v_writelane"): self.r |= R[0]
            if op.startswith("v_cndmask") and len(ops) == 3: self.r |= regs_of("vcc")
        elif op.startswith("buffer_") or op.startswith("global_"):
            self.kind = "vmem"
            islds = " lds" in (" " + mods)
            self.islds = islds
            if "load" in op and not islds:
                self.w = R[0]; self.r = set().union(*R[1:])
            elif "atomic" in op and "sc0" in mods and op.startswith("global_"):
                self.w = R[0]; self.r = set().union(*R[1:])
            else:
                self.r = allr
            if islds: self.r |= {("x", "m0")}
            self.wide_store = ("store" in op and ("x4" in op or "x3" in op))
            self.data = (R[0] if op.startswith("buffer_") else (R[1] if len(R) > 1 else set())) if self.wide_store else set()
        elif op.startswith("ds_"):
            self.kind = "ds"
            if op.startswith("ds_read") or "_rtn" in op or "permute" in op or "swizzle" in op:
                self.w = R[0]; self.r = set().union(*R[1:])
            else: self.r = allr
        elif op.startswith("s_"):
            self.kind = "salu"
            if op.startswith(("s_cmp", "s_bitcmp", "s_cbranch", "s_branch", "s_waitcnt", "s_nop", "s_barrier", "s_sleep", "s_endpgm", "s_setprio")):
                self.r = allr
            else:
                self.w = R[0] if R else set(); self.r = set().union(*R[1:]) if len(R) > 1 else set()
        if not hasattr(self, "sub"): self.sub = ""
    def states(self):
        if getattr(self, "zero", False): return 0
        if self.op == "s_nop": return int(self.ops[0], 0) + 1
        return 1

def isv(s): return {x for x in s if x[0] in "va"}
def iss(s): return {x for x in s if x[0] in "sx"}

def need(p, c):
    n = 0
    if p.kind == "valu":
        wv = isv(p.w); ws = iss(p.w)
        if c.kind == "valu":
            if wv & c.r:
                if c.sub == "dpp": n = max(n, 2)
                if c.sub == "permlane": n = max(n, 2)
                if c.sub == "readlane": n = max(n, 1)
                if p.sub == "trans" and c.sub != "trans": n = max(n, 1)
            if ws & c.r:
                n = max(n, 4 if c.sub == "readlane" else 2)
        if c.kind == "mfma" and wv & c.r: n = max(n, 2)
        if c.kind == "vmem" and ws & c.r: n = max(n, 5)
        if c.kind == "salu" and ws & c.r: n = max(n, 1)
    if p.kind == "mfma":
        big = 12 if p.passes == 8 else 8
        if c.kind == "mfma":
            if p.w & c.a: n = max(n, big)
            if p.w & c.c and p.w != c.c: n = max(n, big - 2)
            if p.w & c.w and not (p.w & c.c): n = max(n, big)
        elif c.kind in ("valu", "vmem", "ds"):
            if p.w & (c.r | c.w): n = max(n, big)
            if c.kind == "valu" and p.c & c.w: n = max(n, 7 if p.passes == 8 else 3)
    if p.kind == "salu" and ("x", "m0") in p.w and c.kind == "vmem" and getattr(c, "islds", False): n = max(n, 1)
    if p.kind == "vmem" and getattr(p, "wide_store", False) and (p.data & c.w):
        n = max(n, 2)
    return n

class Emitter:
    def __init__(self):
        self.lines = []
        self.hist = []
        self.npad = 0
    def raw(self, text):
        self.lines.append(text)
    def label(self, name):
        self.lines.append(name + ":")
    def __call__(self, text):
        for t in text.split("\n"):
            t = t.strip()
            if not t or t.startswith(";"):
                continue
            if t.endswith(":"):
                self.label(t[:-1]); continue
            c = Ins(t)
            dist = 0; pad = 0
            for p in reversed(self.hist[-40:]):
                n = need(p, c)
                if n > dist: pad = max(pad, n - dist)
                dist += p.states()
                if dist > 20: break
            if pad:
                self.npad += 1
                nop = Ins(f"s_nop {pad-1}")
                self.lines.append(f"  s_nop {pad-1}"); self.hist.append(nop)
            self.lines.append("  " + t); self.hist.append(c)
    def skippable(self, text):
        self(text)
        self.hist[-1].zero = True
    def fence(self, n=8):
        self(f"s_nop {n-1}")
    def text(self):
        return "\n".join(self.lines) + "\n"
```

```python
import sys, struct, math
from emit import Emitter

NAME = "sequential_preLN__gqa_block_cached__geglu_ffn__decode_kernel"
def f2u(x): return struct.unpack("<I", struct.pack("<f", x))[0]

EPOCH = 0
QBUF = 0x140000
HBUF = 0x12000
YBUF = 0x14000
GBUF = 0x22000
PBUF = 0x40000
CNTB = 0x1c0000
STAMP = 0x200000
WS_SIZE = 0x400000
QL = 0x0100
MISC = 0x0080
SML = 0x0000
STATS = 0x0600
AV = 0x0800
AVS = 1056
RED = 0x2A00
SO = 0x3000
STG = 0x5000
STGW = 28 * 1024
LDS_SIZE = STG + 4 * STGW

CSC = f2u(0.0625 * math.log2(math.e))
GOLD = 0x9E3779B9
TIMEOUT = 300000

S_WAVE, S_GRP, S_SPL, S_B, S_HKV, S_HW, S_TAG = 3, 4, 5, 6, 7, 8, 9
P_X, P_K, P_V, P_WQ, P_WO, P_BX, P_WG, P_WU, P_WD, P_OUT, P_DBG, P_WS = [16 + 2 * i for i in range(12)]
R_K, R_V, R_WS, R_W, R_X, R_W2 = 40, 44, 48, 52, 56, 60
S_C = 10
S_TO = 11
ST0 = 72
S_TM = 96

class Gen:
    def __init__(self, diag=False, npro=32, kvflags="nt", wflags="", qflags="", noroles=False, athr=13, gsleep=4, winfl=1, dist=8, nosoft=False, noq=False, trig=2, aspec=2, thr=5, vflags=None, rot=1, nt=32, thrp=6, npl=32, gthr=6, psleep=0, hf="sc1", nset=2, pgap=2, thr2=9, nl2=0, lateb=1, latec=1, winfl2=12, qsleep=8, qsleep0=16, latea=0, rorder=0, tstride=0, otouch=1, seq=0, wtouch=0, gpos=0, dbgtime=0, trig2=1, fb=0, fbhi=7, fblo=5, fbl=5, fbend=3, ns=0, rp=0):
        self.e = Emitter()
        self.diag = diag
        self.npro = npro
        self.kvflags = kvflags
        self.wflags = wflags
        self.qflags = qflags
        self.noroles = noroles
        self.athr = athr
        self.gsleep = gsleep
        self.winfl = winfl
        self.dist = dist
        self.nosoft = nosoft
        self.noq = noq
        self.trig = trig
        self.aspec = aspec
        self.thr = thr
        self.rot = rot
        self.nt = nt
        self.thrp = thrp
        self.npl = npl
        self.gthr = gthr
        self.psleep = psleep
        self.hf = hf
        self.nset = nset
        self.pgap = pgap
        self.thr2 = thr2
        self.nl2 = nl2
        self.lateb = lateb
        self.latec = latec
        self.winfl2 = winfl2
        self.qsleep = qsleep
        self.qsleep0 = qsleep0
        self.latea = latea
        self.rorder = rorder
        self.tstride = tstride
        self.otouch = otouch
        self.seq = seq
        self.wtouch = wtouch
        self.gpos = gpos
        self.dbgtime = dbgtime
        self.trig2 = trig2
        self.fb = fb
        self.fbhi = fbhi
        self.fblo = fblo
        self.fbl = fbl
        self.fbend = fbend
        self.ns = ns
        self.rp = rp
        self.vflags = kvflags if vflags is None else vflags
        self.uid = 0
        self.in_h = False
    def lab(self, s):
        self.uid += 1
        return f"L_{s}_{self.uid}"
    def srd(self, r, p, size):
        e = self.e
        e(f"s_mov_b32 s{r}, s{p}")
        e(f"s_mov_b32 s{r+1}, s{p+1}")
        e(f"s_mov_b32 s{r+2}, {size}")
        e(f"s_mov_b32 s{r+3}, 0x20000")
    def stamp(self, i):
        if self.diag and i in (6, 7) and self.in_h:
            self.e(f"s_mov_b32 s{ST0+2*(i+3)}, s{S_TO}")
        if self.diag:
            self.e(f"s_memrealtime s[{ST0+2*i}:{ST0+2*i+1}]")
            self.e("s_waitcnt lgkmcnt(0)")
    def stamp_init(self):
        if self.diag:
            for i in range(12):
                self.e(f"s_mov_b64 s[{ST0+2*i}:{ST0+2*i+1}], 0")
    def stamp_flush(self):
        if not self.diag: return
        e = self.e
        e("s_mov_b64 exec, -1")
        e(f"s_lshl_b32 s64, s2, 3")
        e(f"s_add_u32 s64, s64, s{S_WAVE}")
        e(f"s_lshl_b32 s64, s64, 6")
        e(f"s_add_u32 s64, s64, {STAMP}")
        e(f"s_getreg_b32 s65, hwreg(HW_REG_XCC_ID)")
        e(f"s_getreg_b32 s66, hwreg(HW_REG_HW_ID)")
        for i in range(12):
            e(f"v_mov_b32 v{2+i}, s{ST0+2*i}")
        e("v_mov_b32 v14, s65")
        e("v_mov_b32 v15, s66")
        e("v_mov_b32 v16, 0")
        e("v_mov_b32 v17, 0")
        e("s_mov_b64 exec, 1")
        for i in range(4):
            e(f"buffer_store_dwordx4 v[{2+4*i}:{5+4*i}], off, s[{R_WS}:{R_WS+3}], s64 offset:{16*i}")
        e("s_waitcnt vmcnt(0)")
    def dbgt(self, slot, neg=False):
        if not self.dbgtime: return
        e = self.e
        e("s_memrealtime s[98:99]")
        e("s_waitcnt lgkmcnt(0)")
        if neg: e("s_not_b32 s98, s98")
        e(f"s_mov_b32 s92, s{P_DBG}"); e(f"s_mov_b32 s93, s{P_DBG+1}"); e("s_mov_b32 s94, 256"); e("s_mov_b32 s95, 0x20000")
        e("s_mov_b64 s[90:91], exec")
        e("s_mov_b64 exec, 1")
        e("v_mov_b32 v255, s98")
        e(f"buffer_atomic_umax v255, off, s[92:95], 0 offset:{4*slot} sc1")
        e("s_mov_b64 exec, s[90:91]")
    def endpgm(self):
        self.stamp_flush()
        self.e("s_endpgm")

    def rnd(self, v):
        self.e(f"v_cvt_pk_bf16_f32 v{v}, v{v}, v{v}")
        self.e(f"v_lshlrev_b32 v{v}, 16, v{v}")
    def rnd_many(self, vs):
        for v in vs: self.e(f"v_cvt_pk_bf16_f32 v{v}, v{v}, v{v}")
        for v in vs: self.e(f"v_lshlrev_b32 v{v}, 16, v{v}")
    def set_tag(self, src):
        self.e(f"s_add_u32 s{S_TAG}, s{src}, {GOLD:#x}")
        self.e(f"s_and_b32 s{S_TM}, s{S_TAG}, 0x3f")
    def tagw(self, dst, src, vmask):
        self.e(f"v_and_or_b32 v{dst}, v{src}, v{vmask}, s{S_TM}")
    def check_words(self, words, tmp, mant=True):
        e = self.e
        T = S_TM if mant else S_TAG
        acc = []
        n = len(words)
        for i in range(0, n - 1, 2):
            e(f"v_bitop3_b32 v{tmp+len(acc)}, v{words[i]}, v{words[i+1]}, s{T} bitop3:0x7e")
            acc.append(tmp + len(acc))
        if n % 2:
            e(f"v_xor_b32 v{tmp+len(acc)}, s{T}, v{words[-1]}")
            acc.append(tmp + len(acc))
        while len(acc) > 1:
            nxt = []
            while len(acc) >= 3:
                a, b, c = acc[:3]; acc = acc[3:]
                e(f"v_or3_b32 v{a}, v{a}, v{b}, v{c}"); nxt.append(a)
            if len(acc) == 2 and not nxt:
                e(f"v_or_b32 v{acc[0]}, v{acc[0]}, v{acc[1]}"); acc = [acc[0]]
            acc = nxt + acc
        if mant: e(f"v_and_b32 v{acc[0]}, 0x3f, v{acc[0]}")
        e(f"v_cmp_ne_u32 vcc, 0, v{acc[0]}")
    def sweep_all(self, loads, words, tmp, mant=True):
        e = self.e
        L = self.lab("sa"); Lx = self.lab("sax")
        e.label(L)
        if self.psleep: e(f"s_sleep {self.psleep}")
        for l in loads: e(l)
        e(f"s_sub_u32 s{S_TO}, s{S_TO}, 1")
        e("s_cbranch_scc1 L_hfail")
        e("s_waitcnt vmcnt(0)")
        self.check_words(words, tmp, mant)
        e(f"s_cbranch_vccnz {L}")
    def sweep_pipe(self, sets, tmp, mant, after, golabel):
        e = self.e
        n = len(sets); m = len(sets[0][0])
        L = self.lab("sp"); Lj = self.lab("spj")
        got = [self.lab("spg") for _ in sets]
        for i, (loads, words) in enumerate(sets):
            for l in loads: e(l)
            if i + 1 < n: e(f"s_sleep {self.pgap}")
        e.label(L)
        for i, (loads, words) in enumerate(sets):
            e(f"s_waitcnt vmcnt({m*(n-1)})")
            self.check_words(words, tmp, mant)
            e(f"s_cbranch_vccz {got[i]}")
            for l in loads: e(l)
        e(f"s_sub_u32 s{S_TO}, s{S_TO}, 1")
        e(f"s_cbranch_scc0 {L}")
        e("s_branch L_hfail")
        for i in reversed(range(n)):
            e.label(got[i])
            self.stamp(7)
            if i == 0: e.label(golabel)
            after(i)
            if i: e(f"s_branch {Lj}")
        e.label(Lj)
    def row_reduce(self, vs, op="add"):
        e = self.e
        for ctl in ("quad_perm:[1,0,3,2]", "quad_perm:[2,3,0,1]", "row_half_mirror", "row_mirror"):
            for v in vs:
                e(f"v_{op}_f32_dpp v{v}, v{v}, v{v} {ctl} row_mask:0xf bank_mask:0xf")
    def wave_sum_to_sgpr(self, vs, ss):
        e = self.e
        self.row_reduce(vs)
        for v in vs: e(f"v_add_f32_dpp v{v}, v{v}, v{v} row_bcast:15 row_mask:0xa bank_mask:0xf")
        for v in vs: e(f"v_add_f32_dpp v{v}, v{v}, v{v} row_bcast:31 row_mask:0xc bank_mask:0xf")
        for v, s in zip(vs, ss): e(f"v_readlane_b32 s{s}, v{v}, 63")
    def cross_rows(self, v, t, op):
        e = self.e
        e(f"v_mov_b32 v{t}, v{v}")
        e(f"v_permlane16_swap_b32 v{v}, v{t}")
        e(f"v_{op}_f32 v{v}, v{v}, v{t}")
        e(f"v_mov_b32 v{t}, v{v}")
        e(f"v_permlane32_swap_b32 v{v}, v{t}")
        e(f"v_{op}_f32 v{v}, v{v}, v{t}")

    def s_path(self):
        e = self.e
        KO0, KO1, VO = 2, 3, 4
        MK = 5
        MRUN, LRUN, NRUN = 9, 10, 11
        T = 12; PK = 16; MX, MX2, AL, ALD, NN = 18, 19, 20, 21, 22
        P = 24
        D0, D1, ACC0, ACC1, AF, QF, SLOT = 28, 32, 36, 40, 44, 60, 80
        S_BASE, S_O1, S_O2, S_CNT, S_R = 64, 65, 66, 67, 69
        PADDR = 0
        def tile_off(dst, t):
            e(f"s_add_u32 s{dst}, s{S_R}, {t*32768}")
            e(f"s_and_b32 s{dst}, s{dst}, 0xfffff")
            e(f"s_add_u32 s{dst}, s{dst}, s{S_BASE}")
        NT = self.ns if self.ns else self.nt
        e("v_and_b32 v12, 15, v1")
        e("v_lshrrev_b32 v13, 4, v1")
        e("v_and_b32 v14, 7, v12")
        e("v_lshrrev_b32 v15, 3, v12")
        e(f"v_lshlrev_b32 v{KO0}, 9, v14")
        e("v_lshl_add_u32 v16, v15, 2, v13")
        e(f"v_lshl_add_u32 v{KO0}, v16, 4, v{KO0}")
        e(f"v_add_u32 v{KO1}, 0x1000, v{KO0}")
        e(f"v_lshlrev_b32 v{VO}, 11, v13")
        e(f"v_lshl_add_u32 v{VO}, v12, 4, v{VO}")
        e("s_mov_b32 s68, 0")
        e(f"s_lshl_b32 s{S_BASE}, s2, 20")
        e(f"s_lshl_b32 s65, s{S_HW}, 13")
        e(f"s_add_u32 s{S_BASE}, s{S_BASE}, s65")
        if self.rot == 2: e(f"s_and_b32 s{S_R}, s2, 31")
        else: e(f"s_lshr_b32 s{S_R}, s2, 3")
        e(f"s_lshl_b32 s{S_R}, s{S_R}, {15 if self.rot else 20}")
        e("s_waitcnt lgkmcnt(0)")
        self.srd(R_K, P_K, 1 << 28)
        self.srd(R_V, P_V, 1 << 28)
        state = dict(issued=-1)
        def slot_regs(s): return f"v[{SLOT+4*s}:{SLOT+4*s+3}]"
        def issue(n, slot, soff):
            i = n % 16
            if self.seq: i = n % 8 + (8 if n >= 8 * NT else 0)
            if i < 8:
                G, j = i >> 2, i & 3
                e(f"buffer_load_dwordx4 {slot_regs(slot)}, v{KO0+G}, s[{R_K}:{R_K+3}], s{soff} offen offset:{j*128} {self.kvflags}")
            else:
                i -= 8
                e(f"buffer_load_dwordx4 {slot_regs(slot)}, v{VO}, s[{R_V}:{R_V+3}], s{soff} offen offset:{(i>>1)*512+(i&1)*256} {self.vflags}")
        npro = self.npro
        assert 16 <= npro <= 44
        for n in range(npro):
            if n % (8 if self.seq else 16) == 0:
                tile_off(S_O1, n // (8 if self.seq else 16))
            tp = self.thrp if n < self.npl else self.thr
            if n >= tp: e(f"s_waitcnt vmcnt({tp-1})")
            issue(n, n, S_O1)
            if n in ((5, 13) if self.ns else (5, 13, 19, 25)): self.stamp({5: 6, 13: 7, 19: 9, 25: 10}[n])
            if n == 7:
                self.stamp(4)
                self.srd(R_WS, P_WS, WS_SIZE)
                e(f"s_mov_b32 s{S_C}, {CSC:#x}")
                e("v_lshrrev_b32 v16, 1, v14")
                e("v_and_b32 v17, 1, v14")
                e("v_mov_b32 v18, 0xffff")
                e("v_lshlrev_b32 v17, 4, v17")
                e("v_lshlrev_b32 v18, v17, v18")
                for i in range(4):
                    e(f"v_cmp_eq_u32 vcc, {i}, v16")
                    e(f"v_cndmask_b32 v{MK+i}, 0, v18, vcc")
                e(f"v_mov_b32 v{MRUN}, 0xff800000")
                e(f"v_mov_b32 v{NRUN}, 0x7f800000")
                e(f"v_mov_b32 v{LRUN}, 0")
                for i in range(8): e(f"v_mov_b32 v{ACC0+i}, 0")
                e("v_bfe_u32 v16, v12, 2, 1")
                e("v_lshl_add_u32 v16, v16, 2, v13")
                e("v_lshlrev_b32 v23, 9, v15")
                e("v_lshl_add_u32 v23, v16, 4, v23")
                e("v_lshrrev_b32 v16, 1, v13")
                e("v_and_b32 v17, 1, v13")
                e("v_lshlrev_b32 v76, 10, v16")
                e("v_lshl_add_u32 v76, v12, 5, v76")
                e("v_lshl_add_u32 v76, v17, 4, v76")
                e(f"s_lshl_b32 s70, s{S_HW}, 11")
                e("v_add_u32 v76, s70, v76")
                e(f"s_lshl_b32 s70, s{S_HW}, 4")
                e("v_add_u32 v77, s70, v1")
                e("v_mov_b32 v78, 1")
                e("v_mov_b32 v79, 0")
                if self.seq:
                    e("v_lshl_add_u32 v20, v15, 2, v13")
                    e("v_lshlrev_b32 v20, 3, v20")
                    e(f"s_lshl_b32 s70, s{S_HW}, 11")
                    e("v_add_u32 v20, s70, v20")
                    e("v_mov_b32 v21, v20")
                    e(f"s_lshl_b32 s70, s{S_HW}, 2")
                    e(f"v_mov_b32 v{PADDR}, s70")
        self.stamp(5)
        if not self.noq: e("s_barrier")
        self.stamp(1)
        for j in range(4):
            e(f"ds_read_b128 v[{QF+4*j}:{QF+4*j+3}], v23 offset:{QL+j*128}")
        e(f"ds_read_b32 v23, v79 offset:{MISC}")
        e("s_waitcnt lgkmcnt(0)")
        e(f"v_readfirstlane_b32 s{S_TAG}, v23")

        def softmax(point):
            for r in range(4): e(f"v_permlane32_swap_b32 v{D0+r}, v{D1+r}")
            for r in range(4): e(f"v_add_f32_dpp v{T+r}, v{D1+r}, v{D0+r} row_half_mirror row_mask:0xf bank_mask:0x5")
            for r in range(4): e(f"v_add_f32_dpp v{T+r}, v{D0+r}, v{D1+r} row_half_mirror row_mask:0xf bank_mask:0xa")
            e(f"v_cvt_pk_bf16_f32 v{PK}, v{T}, v{T+1}")
            e(f"v_cvt_pk_bf16_f32 v{PK+1}, v{T+2}, v{T+3}")
            e(f"v_lshlrev_b32 v{T}, 16, v{PK}")
            e(f"v_and_b32 v{T+1}, 0xffff0000, v{PK}")
            e(f"v_lshlrev_b32 v{T+2}, 16, v{PK+1}")
            e(f"v_and_b32 v{T+3}, 0xffff0000, v{PK+1}")
            point()
            e(f"v_max3_f32 v{MX}, v{T}, v{T+1}, v{T+2}")
            e(f"v_max3_f32 v{MX}, v{MX}, v{T+3}, v{MRUN}")
            self.cross_rows(MX, MX2, "max")
            e(f"v_mov_b32 v{MRUN}, v{MX}")
            e(f"v_mul_f32 v{NN}, s{S_C}, v{MX}")
            e(f"v_sub_f32 v{AL}, 0, v{NN}")
            for r in range(4): e(f"v_fma_f32 v{P+r}, v{T+r}, s{S_C}, v{AL}")
            e(f"v_sub_f32 v{NN}, v{AL}, v{NRUN}")
            e(f"v_mov_b32 v{NRUN}, v{AL}")
            e(f"v_exp_f32 v{AL}, v{NN}")
            for r in range(4): e(f"v_exp_f32 v{P+r}, v{P+r}")
            point()
            e(f"v_mov_b32 v{ALD}, v{AL}")
            e(f"v_mul_f32 v{LRUN}, v{LRUN}, v{AL}")
            e(f"v_mov_b32_dpp v{ALD}, v{AL} row_shr:8 row_mask:0x3 bank_mask:0xc")
            e(f"v_mov_b32_dpp v{ALD}, v{AL} row_shl:8 row_mask:0xc bank_mask:0x3")
            for r in range(4): e(f"v_cvt_pk_bf16_f32 v{T+r}, v{P+r}, v{P+r}")
            e(f"v_add_f32 v{P}, v{P}, v{P+1}")
            e(f"v_add_f32 v{P+2}, v{P+2}, v{P+3}")
            for i in range(4): e(f"v_and_b32 v{AF+i}, v{T}, v{MK+i}")
            for i in range(8): e(f"v_mul_f32 v{ACC0+i}, v{ACC0+i}, v{ALD}")
            e(f"v_add_f32 v{P}, v{P}, v{P+2}")
            for r in range(1, 4):
                for i in range(4): e(f"v_and_b32 v{AF+4*r+i}, v{T+r}, v{MK+i}")
            e(f"v_add_f32 v{LRUN}, v{LRUN}, v{P}")

        if self.seq:
            d = self.dist; thr = self.thr
            NK = 8 * NT
            S_O3 = 70
            def slot_of(n): return n if n < npro else n % 16
            st = dict(k=npro)
            def unit(u, steady, par):
                isk = u < NT
                st["j"] = 0
                st["last"] = 8 * u - 1
                def point():
                    j = st["j"]; st["j"] += 1
                    k = st["k"]
                    want = 8 * u + d + j
                    prev = k - 16 if k - 16 >= npro else k % 16
                    if prev > st["last"]:
                        assert not steady
                        return
                    if k > want and j % 2 == 0: return
                    if steady:
                        assert k == want
                        so = (S_O1, S_O2, S_O3)[k // 8 - (u - par) - 1]
                    else:
                        if st.get("so") != k // 8:
                            tile_off(S_O2, k // 8)
                            st["so"] = k // 8
                        so = S_O2
                    if steady and self.fb:
                        Ls = self.lab("t")
                        e(f"s_waitcnt vmcnt({self.fbhi-1})")
                        e(f"s_cbranch_scc1 {Ls}")
                        e.skippable(f"s_waitcnt vmcnt({thr-1})")
                        e.skippable(f"s_cbranch_vccz {Ls}")
                        e.skippable(f"s_waitcnt vmcnt({self.fblo-1})")
                        e.label(Ls)
                    else:
                        e(f"s_waitcnt vmcnt({thr-1})")
                    issue(k, slot_of(k), so)
                    st["k"] = k + 1
                if not isk:
                    SC = 16 + 2 * par
                    e("s_waitcnt lgkmcnt(0)")
                    e(f"ds_read_b64 v[{18-2*par}:{19-2*par}], v21 offset:{SO + 64*(par+1)}")
                    e(f"v_lshlrev_b32 v{T}, 16, v{SC}")
                    e(f"v_and_b32 v{T+1}, 0xffff0000, v{SC}")
                    e(f"v_lshlrev_b32 v{T+2}, 16, v{SC+1}")
                    e(f"v_and_b32 v{T+3}, 0xffff0000, v{SC+1}")
                    for r in range(4): e(f"v_fma_f32 v{P+r}, v{T+r}, s{S_C}, v{NRUN}")
                    for r in range(4): e(f"v_exp_f32 v{P+r}, v{P+r}")
                    for r in range(4): e(f"v_cvt_pk_bf16_f32 v{T+r}, v{P+r}, v{P+r}")
                    point()
                    for i in range(4): e(f"v_and_b32 v{AF+i}, v{T}, v{MK+i}")
                    e(f"v_add_f32 v{P}, v{P}, v{P+1}")
                    e(f"v_add_f32 v{P+2}, v{P+2}, v{P+3}")
                    for r in range(1, 4):
                        for i in range(4): e(f"v_and_b32 v{AF+4*r+i}, v{T+r}, v{MK+i}")
                    e(f"v_add_f32 v{P}, v{P}, v{P+2}")
                    e(f"v_add_f32 v{LRUN}, v{LRUN}, v{P}")
                for i in range(8):
                    n = 8 * u + i
                    w = st["k"] - 1 - n
                    assert w >= 0
                    if w < max(thr, self.fbhi if self.fb else 0) or not steady: e(f"s_waitcnt vmcnt({min(63, w)})")
                    if isk:
                        G, j = i >> 2, i & 3
                        D = D0 if G == 0 else D1
                        c = "0" if j == 0 else f"v[{D}:{D+3}]"
                        e(f"v_mfma_f32_16x16x32_bf16 v[{D}:{D+3}], {slot_regs(slot_of(n))}, v[{QF+4*j}:{QF+4*j+3}], {c}")
                    else:
                        j, hf = i >> 1, i & 1
                        A = ACC0 if hf == 0 else ACC1
                        e(f"v_mfma_f32_16x16x32_bf16 v[{A}:{A+3}], v[{AF+4*j}:{AF+4*j+3}], {slot_regs(slot_of(n))}, v[{A}:{A+3}]")
                    st["last"] = n
                    if i != 7 or isk: point()
                if isk:
                    for r in range(4): e(f"v_permlane32_swap_b32 v{D0+r}, v{D1+r}")
                    for r in range(4): e(f"v_add_f32_dpp v{T+r}, v{D1+r}, v{D0+r} row_half_mirror row_mask:0xf bank_mask:0x5")
                    for r in range(4): e(f"v_add_f32_dpp v{T+r}, v{D0+r}, v{D1+r} row_half_mirror row_mask:0xf bank_mask:0xa")
                    e(f"v_cvt_pk_bf16_f32 v{PK}, v{T}, v{T+1}")
                    e(f"v_cvt_pk_bf16_f32 v{PK+1}, v{T+2}, v{T+3}")
                    e(f"v_max3_f32 v{MRUN}, v{T}, v{T+1}, v{MRUN}")
                    e(f"ds_write_b64 v20, v[{PK}:{PK+1}] offset:{SO + (64*par if steady else 64*u)}")
                    e(f"v_max3_f32 v{MRUN}, v{T+2}, v{T+3}, v{MRUN}")
            def offsets(last_oob, skip=0):
                if self.diag:
                    e("s_memrealtime s[98:99]"); e("s_waitcnt lgkmcnt(0)")
                    e("s_mov_b32 m0, s100"); e("s_nop 0")
                    e("v_writelane_b32 v254, s98, m0"); e("s_add_u32 s100, s100, 1")
                for i, so in enumerate((S_O1, S_O2, S_O3)):
                    e(f"s_add_u32 s{so}, s{S_R}, {i*32768}")
                    e(f"s_and_b32 s{so}, s{so}, 0xfffff")
                    e(f"s_add_u32 s{so}, s{so}, s{S_BASE}")
                    if i == 0 and skip: e(f"s_add_u32 s{S_R}, s{S_R}, {skip}")
                e(f"s_add_u32 s{S_R}, s{S_R}, 65536")
                if last_oob:
                    e(f"s_cmp_eq_u32 s{S_CNT}, 1")
                    e(f"s_cselect_b32 s{S_O2}, 0x80000000, s{S_O2}")
                    e(f"s_cselect_b32 s{S_O3}, 0x80000000, s{S_O3}")
            def top(bias):
                if self.fb:
                    e("s_waitcnt lgkmcnt(0)")
                    e("v_readfirstlane_b32 s71, v22")
                if bias: e(f"s_add_u32 s72, s{S_CNT}, {bias}") if not self.diag else e(f"s_add_u32 s97, s{S_CNT}, {bias}")
                src = (f"s72" if not self.diag else "s97") if bias else f"s{S_CNT}"
                e(f"v_mov_b32 v23, {src}")
                e(f"ds_write_b32 v28, v23 offset:{MISC+32}") if False else e(f"ds_write_b32 v{PADDR}, v23 offset:{MISC+32}")
                if self.fb:
                    e(f"ds_read_b32 v22, v79 offset:{MISC+28}")
                    e("s_cmp_eq_u32 s71, 1")
                    e("s_cselect_b64 vcc, -1, 0")
                    e("s_cmp_eq_u32 s71, 2")
            assert 8 < d <= 16
            if self.diag: e("s_mov_b32 s100, 0"); e("v_mov_b32 v254, 0")
            u = 0
            while not (st["k"] - 8 * u == d and 8 * u >= npro and u % 2 == 0):
                unit(u, False, 0)
                u += 1
            ufirst = u
            self.stamp(8)
            if self.fb: e("v_mov_b32 v22, 0")
            e(f"s_add_u32 s{S_R}, s{S_R}, {(ufirst+1)*32768}")
            e(f"v_add_u32 v20, {64*ufirst}, v20")
            e(f"s_mov_b32 s{S_CNT}, {(NT-ufirst)//2 - 1}")
            L = self.lab("kloop")
            e.label(L)
            offsets(False)
            if self.fb: top(NT // 2 + 1)
            unit(ufirst, True, 0); unit(ufirst + 1, True, 1)
            e("v_add_u32 v20, 128, v20")
            e(f"s_sub_u32 s{S_CNT}, s{S_CNT}, 1")
            e(f"s_cmp_lg_u32 s{S_CNT}, 0")
            e(f"s_cbranch_scc1 {L}")
            offsets(False, (32 - NT) * 32768 if self.ns else 0)
            if self.fb: top(NT // 2 + 1)
            st["k"] = 8 * (NT - 2) + d
            unit(NT - 2, True, 0); unit(NT - 1, True, 1)
            e(f"ds_read_b64 v[16:17], v21 offset:{SO}")
            self.cross_rows(MRUN, MX2, "max")
            self.rnd(MRUN)
            e(f"v_mul_f32 v{NRUN}, s{S_C}, v{MRUN}")
            e(f"v_sub_f32 v{NRUN}, 0, v{NRUN}")
            e(f"s_mov_b32 s{S_CNT}, {NT//2}")
            L = self.lab("vloop")
            e.label(L)
            offsets(True)
            top(0)
            PN = 16 * (32 - NT) * 4
            def claim():
                Ln = self.lab("ncl")
                e(f"v_mov_b32 v240, {PN}")
                e("s_cmp_eq_u32 s12, 0")
                e(f"s_cbranch_scc1 {Ln}")
                e.skippable("s_sub_u32 s12, s12, 1")
                e.skippable("v_mov_b32 v240, 1")
                e.skippable("s_mov_b64 exec, 1")
                e.skippable(f"buffer_atomic_add v240, off, s[{R_WS}:{R_WS+3}], s14 sc0 sc1")
                e.skippable("s_mov_b64 exec, -1")
                e.label(Ln)
            if self.ns:
                assert self.rot == 2 and not self.fb
                Lk = self.lab("ncp")
                e(f"s_cmp_lg_u32 s{S_CNT}, 1")
                e(f"s_cbranch_scc1 {Lk}")
                e(f"ds_read_b32 v240, v79 offset:{MISC+16}")
                e("s_lshr_b32 s14, s2, 4")
                e("s_lshl_b32 s14, s14, 8")
                e(f"s_add_u32 s14, s14, {CNTB}")
                e("s_waitcnt lgkmcnt(0)")
                e("v_readfirstlane_b32 s12, v240")
                e("s_sub_u32 s12, s12, 1")
                e("s_cmp_lt_u32 s12, 98")
                e(f"s_cselect_b32 s12, {self.rp}, {PN + 1}")
                claim()
                e.label(Lk)
            unit(NT, True, 0); unit(NT + 1, True, 1)
            e("v_add_u32 v21, 128, v21")
            e(f"s_sub_u32 s{S_CNT}, s{S_CNT}, 1")
            e(f"s_cmp_lg_u32 s{S_CNT}, 0")
            e(f"s_cbranch_scc1 {L}")
            e("s_waitcnt lgkmcnt(0)")
            if self.ns:
                self.stamp(9)
                Lp = self.lab("pool"); Lq = self.lab("poolx")
                e.label(Lp)
                e("s_waitcnt vmcnt(0)")
                e("v_readfirstlane_b32 s13, v240")
                e(f"s_cmp_ge_u32 s13, {PN}")
                e(f"s_cbranch_scc1 {Lq}")
                e("s_bfe_u32 s15, s13, 0x40002")
                e("s_lshr_b32 s65, s13, 6")
                e("s_add_u32 s65, s65, s15")
                e("s_and_b32 s66, s2, 16")
                e("s_add_u32 s65, s65, s66")
                e(f"s_add_u32 s65, s65, {NT}")
                e("s_and_b32 s65, s65, 31")
                e("s_lshl_b32 s65, s65, 15")
                e("s_lshl_b32 s15, s15, 20")
                e("s_add_u32 s65, s65, s15")
                e("s_and_b32 s15, s13, 3")
                e("s_lshl_b32 s15, s15, 13")
                e("s_add_u32 s65, s65, s15")
                e("s_lshr_b32 s15, s2, 4")
                e("s_lshl_b32 s15, s15, 24")
                e("s_add_u32 s65, s65, s15")
                claim()
                for i in range(8): issue(i, i, S_O1)
                for i in range(8): issue(8 * NT + i, 8 + i, S_O1)
                for i in range(8):
                    G, j = i >> 2, i & 3
                    D = D0 if G == 0 else D1
                    c = "0" if j == 0 else f"v[{D}:{D+3}]"
                    e(f"s_waitcnt vmcnt({15-i})")
                    e(f"v_mfma_f32_16x16x32_bf16 v[{D}:{D+3}], {slot_regs(i)}, v[{QF+4*j}:{QF+4*j+3}], {c}")
                softmax(lambda: None)
                for i in range(8):
                    j, hf = i >> 1, i & 1
                    A = ACC0 if hf == 0 else ACC1
                    e(f"s_waitcnt vmcnt({7-i})")
                    e(f"v_mfma_f32_16x16x32_bf16 v[{A}:{A+3}], v[{AF+4*j}:{AF+4*j+3}], {slot_regs(8+i)}, v[{A}:{A+3}]")
                if self.diag: e(f"s_add_u32 s{ST0+20}, s{ST0+20}, 1")
                e(f"s_branch {Lp}")
                e.label(Lq)
                e.fence(8)
            if self.diag:
                e("s_lshl_b32 s98, s2, 2"); e(f"s_add_u32 s98, s98, s{S_HW}"); e("s_lshl_b32 s98, s98, 8"); e(f"s_add_u32 s98, s98, {STAMP + 0x40000}")
                e("v_lshlrev_b32 v23, 2, v1")
                e(f"buffer_store_dword v254, v23, s[{R_WS}:{R_WS+3}], s98 offen")
        else:
            d = self.dist
            NL = NT * 16
            def slot_of(n): return n if n < npro else n % 16
            def consume(n):
                i = n % 16
                if i < 8:
                    G, j = i >> 2, i & 3
                    D = D0 if G == 0 else D1
                    c = "0" if j == 0 else f"v[{D}:{D+3}]"
                    e(f"v_mfma_f32_16x16x32_bf16 v[{D}:{D+3}], {slot_regs(slot_of(n))}, v[{QF+4*j}:{QF+4*j+3}], {c}")
                else:
                    i -= 8
                    j, hf = i >> 1, i & 1
                    A = ACC0 if hf == 0 else ACC1
                    e(f"v_mfma_f32_16x16x32_bf16 v[{A}:{A+3}], v[{AF+4*j}:{AF+4*j+3}], {slot_regs(slot_of(n))}, v[{A}:{A+3}]")
            st = dict(k=npro)
            def tile(t, steady, thr=None):
                thr = self.thr if thr is None else thr
                st["j"] = 0
                st["last"] = 16 * t - 1
                def point():
                    j = st["j"]; st["j"] += 1
                    k = st["k"]
                    want = 16 * t + d + j
                    prev = k - 16 if k - 16 >= npro else k % 16
                    if prev > st["last"]:
                        assert not steady
                        return
                    if k > want and j % 2 == 0: return
                    if steady:
                        assert k == want
                        so = S_O1 if k // 16 == t else S_O2
                    else:
                        if st.get("so") != k // 16:
                            tile_off(S_O2, k // 16)
                            st["so"] = k // 16
                        so = S_O2
                    e(f"s_waitcnt vmcnt({thr-1})")
                    issue(k, slot_of(k), so)
                    st["k"] = k + 1
                for i in range(16):
                    n = 16 * t + i
                    if i == 8: softmax(point)
                    w = st["k"] - 1 - n
                    assert w >= 0
                    if w < thr or not steady: e(f"s_waitcnt vmcnt({min(63, w)})")
                    consume(n)
                    st["last"] = n
                    if i % 8 != 7: point()
            t = 0
            while not (st["k"] - 16 * t == d and 16 * t >= npro):
                tile(t, False)
                t += 1
            tfirst = t
            self.stamp(8)
            tile_off(S_O1, tfirst)
            e(f"s_add_u32 s{S_R}, s{S_R}, {tfirst*32768}")
            e(f"s_mov_b32 s{S_CNT}, {NT-tfirst}")
            for thr, stop in ([(self.thr, self.nl2), (self.thr2, 0)] if self.nl2 else [(self.thr, 0)]):
                L = self.lab("sloop")
                e.label(L)
                e(f"s_add_u32 s{S_R}, s{S_R}, 32768")
                e(f"s_and_b32 s{S_O2}, s{S_R}, 0xfffff")
                e(f"s_add_u32 s{S_O2}, s{S_O2}, s{S_BASE}")
                e(f"v_mov_b32 v23, s{S_CNT}")
                e(f"s_cmp_eq_u32 s{S_CNT}, 1")
                e(f"s_cselect_b32 s{S_O2}, 0x80000000, s{S_O2}")
                e(f"ds_write_b32 v79, v23 offset:{MISC+12}")
                st["k"] = 16 * tfirst + d
                tile(tfirst, True, thr)
                e(f"s_mov_b32 s{S_O1}, s{S_O2}")
                e(f"s_sub_u32 s{S_CNT}, s{S_CNT}, 1")
                e(f"s_cmp_lg_u32 s{S_CNT}, {stop}")
                e(f"s_cbranch_scc1 {L}")
        self.stamp(2)
        self.cross_rows(LRUN, MX2, "add")
        e(f"ds_write_b128 v76, v[{ACC0}:{ACC0+3}] offset:{SO}")
        e(f"ds_write_b128 v76, v[{ACC1}:{ACC1+3}] offset:{SO+512}")
        e("s_mov_b64 exec, 0x101")
        e(f"ds_write2_b32 v77, v{NRUN}, v{LRUN} offset0:{SML//4} offset1:{SML//4+1}") if SML // 4 + 1 < 256 else None
        e("s_mov_b64 exec, 1")
        e(f"ds_add_rtn_u32 v22, v79, v78 offset:{MISC+4}")
        e("s_mov_b64 exec, -1")
        e("s_waitcnt lgkmcnt(0)")
        e("v_readfirstlane_b32 s64, v22")
        e("s_cmp_eq_u32 s64, 3")
        Ld = self.lab("slast")
        e(f"s_cbranch_scc1 {Ld}")
        self.endpgm()
        e.label(Ld)
        e("s_waitcnt vmcnt(0)")
        e.label("L_sfinal")
        e("v_mov_b32 v20, 0")
        e("v_lshlrev_b32 v22, 4, v1")
        for w in range(4):
            e(f"ds_read_b128 v[{24+4*w}:{27+4*w}], v20 offset:{SML+16*w}")
        OB = 80
        for h in range(2):
            for w in range(4):
                r = OB + (h * 4 + w) * 4
                e(f"ds_read_b128 v[{r}:{r+3}], v22 offset:{SO + w*2048 + h*1024}")
        e(f"s_and_b32 s{S_TM}, s{S_TAG}, 0x3f")
        e("v_mov_b32 v21, 0xffffffc0")
        e("s_waitcnt lgkmcnt(8)")
        for h in range(2):
            n = [24 + 4 * w + 2 * h for w in range(4)]
            e(f"v_min3_f32 v{40+h}, v{n[0]}, v{n[1]}, v{n[2]}")
            e(f"v_min_f32 v{40+h}, v{40+h}, v{n[3]}")
        for h in range(2):
            for w in range(4):
                e(f"v_sub_f32 v{44+4*h+w}, v{40+h}, v{24+4*w+2*h}")
        for i in range(8): e(f"v_exp_f32 v{44+i}, v{44+i}")
        for h in range(2):
            e(f"v_mul_f32 v{42+h}, v{44+4*h}, v{25+2*h}")
        for w in range(1, 4):
            for h in range(2):
                e(f"v_fmac_f32 v{42+h}, v{44+4*h+w}, v{25+4*w+2*h}")
        for h in range(2): e(f"v_rcp_f32 v{52+h}, v{42+h}")
        for h in range(2): e(f"v_log_f32 v{54+h}, v{42+h}")
        for h in range(2):
            for w in range(4): e(f"v_mul_f32 v{44+4*h+w}, v{44+4*h+w}, v{52+h}")
        for h in range(2): e(f"v_sub_f32 v{54+h}, v{54+h}, v{40+h}")
        e(f"s_lshl_b32 s64, s2, 11")
        e(f"s_add_u32 s64, s64, {PBUF}")
        for h in range(2):
            e(f"s_waitcnt lgkmcnt({4-4*h})")
            o = 56 + 4 * h
            for i in range(4): e(f"v_mul_f32 v{o+i}, v{44+4*h}, v{OB+h*16+i}")
            for w in range(1, 4):
                for i in range(4): e(f"v_fmac_f32 v{o+i}, v{44+4*h+w}, v{OB+h*16+w*4+i}")
            for i in range(4): self.tagw(o + i, o + i, 21)
        e("v_cmp_eq_u32 vcc, 1, v1")
        e("v_cndmask_b32 v72, v54, v55, vcc")
        e(f"v_mov_b32 v73, s{S_TAG}")
        e("v_lshlrev_b32 v23, 11, v1")
        e("s_lshl_b32 s65, s2, 3")
        e(f"s_add_u32 s65, s65, {HBUF}")
        e("s_cmp_eq_u32 s68, 1")
        e("s_cbranch_scc1 L_sfinal_back")
        for h in range(2):
            o = 56 + 4 * h
            e(f"buffer_store_dwordx4 v[{o}:{o+3}], v22, s[{R_WS}:{R_WS+3}], s64 offen offset:{h*1024} sc1")
        e("s_mov_b64 exec, 3")
        e(f"buffer_store_dwordx2 v[72:73], v23, s[{R_WS}:{R_WS+3}], s65 offen sc1")
        e(f"ds_add_u32 v79, v78 offset:{MISC+4}")
        self.dbgt(34)
        self.stamp(3)
        self.endpgm()

    def h_consts(self):
        e = self.e
        e("v_and_b32 v4, 15, v1")
        e("v_lshrrev_b32 v5, 4, v1")
        e("v_lshrrev_b32 v6, 2, v4")
        e("v_lshl_add_u32 v6, v5, 3, v6")
        e("v_and_b32 v7, 3, v4")
        e("v_lshlrev_b32 v7, 3, v7")
        e("v_and_b32 v8, 1, v1")
        e(f"v_mul_u32_u24 v8, {AVS}, v8")
        e("v_lshl_add_u32 v3, v5, 4, v8")
    def tr_addr(self, lgpitch, sbase):
        e = self.e
        e(f"v_lshl_add_u32 v2, v6, {lgpitch}, v7")
        e(f"v_add_u32 v2, s{sbase}, v2")
    def dma_voff(self, rowbytes, lgpitch, vout):
        e = self.e
        sh = lgpitch - 4
        e(f"v_lshrrev_b32 v{vout}, {sh}, v1")
        e(f"v_mul_u32_u24 v{vout}, {rowbytes}, v{vout}")
        e(f"v_and_b32 v{vout+1}, {(1<<sh)-1}, v1")
        e(f"v_lshl_add_u32 v{vout}, v{vout+1}, 4, v{vout}")
    def dma_loop(self, srd, voff, n, s_src, src_step, s_dst, inflight=None):
        e = self.e
        L = self.lab("dma")
        inflight = self.winfl_cur
        e(f"s_mov_b32 s66, {n}")
        e.label(L)
        e(f"s_mov_b32 m0, s{s_dst}")
        e(f"s_add_u32 s{s_dst}, s{s_dst}, 1024")
        e(f"buffer_load_dwordx4 v{voff}, s[{srd}:{srd+3}], s{s_src} offen {self.wflags} lds")
        e(f"s_add_u32 s{s_src}, s{s_src}, {src_step}")
        if inflight < 32: e(f"s_waitcnt vmcnt({inflight-1})")
        e("s_sub_u32 s66, s66, 1")
        e("s_cmp_lg_u32 s66, 0")
        e(f"s_cbranch_scc1 {L}")
    def h_sync(self):
        e = self.e
        L = self.lab("hs"); Lx = self.lab("hsx")
        e("s_waitcnt vmcnt(0)")
        e("v_mov_b32 v8, 0")
        e("v_mov_b32 v9, 1")
        e("s_mov_b64 exec, 1")
        e(f"ds_add_u32 v8, v9 offset:{MISC+8}")
        e("s_mov_b64 exec, -1")
        e.label(L)
        e(f"ds_read_b32 v9, v8 offset:{MISC+8}")
        e("s_waitcnt lgkmcnt(0)")
        e("v_readfirstlane_b32 s64, v9")
        e("s_cmp_ge_u32 s64, 4")
        e(f"s_cbranch_scc1 {Lx}")
        e("s_sleep 2")
        e(f"s_sub_u32 s{S_TO}, s{S_TO}, 1")
        e(f"s_cbranch_scc0 {L}")
        e(f"s_branch L_hfail")
        e.label(Lx)
    def tr_frags(self, nsteps, off, fbase, lgpitch):
        e = self.e
        for st in range(nsteps):
            f = fbase + 4 * st
            o = off + st * (32 << lgpitch)
            assert o + (4 << lgpitch) < 65536
            e(f"ds_read_b64_tr_b16 v[{f}:{f+1}], v2 offset:{o}")
            e(f"ds_read_b64_tr_b16 v[{f+2}:{f+3}], v2 offset:{o + (4 << lgpitch)}")
            if st % 4 == 3: e("s_waitcnt lgkmcnt(0)")
        e("s_waitcnt lgkmcnt(0)")
    def gemv(self, nsteps, abase, a_lds_off, chains, vaddr=3, ahead=12):
        e = self.e
        AHEAD = ahead
        def rd(st): e(f"ds_read_b128 v[{abase+4*st}:{abase+4*st+3}], v{vaddr} offset:{a_lds_off+st*64}")
        issued = min(nsteps, AHEAD)
        for st in range(issued): rd(st)
        for st in range(nsteps):
            e(f"s_waitcnt lgkmcnt({issued - 1 - st})")
            for D, fb in chains:
                c = "0" if st == 0 else f"v[{D}:{D+3}]"
                e(f"v_mfma_f32_16x16x32_bf16 v[{D}:{D+3}], v[{abase+4*st}:{abase+4*st+3}], v[{fb+4*st}:{fb+4*st+3}], {c}")
            if issued < nsteps:
                rd(issued); issued += 1
    def lds_wait(self, off, cmp, val, sleep=4, sreg=64):
        e = self.e
        L = self.lab("lw"); Lx = self.lab("lwx")
        e("v_mov_b32 v8, 0")
        e.label(L)
        e(f"ds_read_b32 v9, v8 offset:{off}")
        e("s_waitcnt lgkmcnt(0)")
        e(f"v_readfirstlane_b32 s{sreg}, v9")
        e(f"s_cmp_{cmp}_u32 s{sreg}, {val}")
        e(f"s_cbranch_scc1 {Lx}")
        e(f"s_sleep {sleep}")
        e(f"s_sub_u32 s{S_TO}, s{S_TO}, 1")
        e(f"s_cbranch_scc0 {L}")
        e(f"s_branch L_hfail")
        e.label(Lx)
    def lds_set(self, off, src):
        e = self.e
        e("v_mov_b32 v8, 0")
        e(f"v_mov_b32 v9, {src}")
        e(f"ds_write_b32 v8, v9 offset:{off}")
    def bar(self):
        e = self.e
        L = self.lab("nb")
        e("s_cmp_eq_u32 s68, 1")
        e(f"s_cbranch_scc1 {L}")
        e("s_barrier")
        e.label(L)
    def gate_all(self):
        e = self.e
        L = self.lab("gate"); Lx = self.lab("gatex"); Lo = self.lab("gateo"); Le = self.lab("gatee")
        e(f"s_cmp_lg_u32 s{S_HW}, 0")
        e(f"s_cbranch_scc1 {Lo}")
        e("v_lshlrev_b32 v8, 5, v1")
        e(f"s_mov_b32 s64, {HBUF}")
        e.label(L)
        e(f"buffer_load_dwordx4 v[40:43], v8, s[{R_WS}:{R_WS+3}], s64 offen sc1")
        e(f"buffer_load_dwordx4 v[44:47], v8, s[{R_WS}:{R_WS+3}], s64 offen offset:16 sc1")
        e("s_waitcnt vmcnt(0)")
        e(f"v_xor_b32 v41, s{S_TAG}, v41")
        e(f"v_xor_b32 v43, s{S_TAG}, v43")
        e(f"v_xor_b32 v45, s{S_TAG}, v45")
        e(f"v_xor_b32 v47, s{S_TAG}, v47")
        e("v_or3_b32 v41, v41, v43, v45")
        e("v_or_b32 v41, v41, v47")
        e("v_cmp_ne_u32 vcc, 0, v41")
        e("s_bcnt1_i32_b64 s65, vcc")
        e(f"s_cmp_le_u32 s65, {self.gthr}")
        e(f"s_cbranch_scc1 {Lx}")
        e("s_mov_b64 exec, vcc")
        e(f"s_sleep {self.gsleep}")
        e(f"s_sub_u32 s{S_TO}, s{S_TO}, 1")
        e(f"s_cbranch_scc0 {L}")
        e(f"s_branch L_hfail")
        e.label(Lx)
        e("s_mov_b64 exec, -1")
        self.lds_set(MISC + 20, 1)
        e(f"s_branch {Le}")
        e.label(Lo)
        self.lds_wait(MISC + 20, "eq", 1, 2)
        e.label(Le)
    def ln_finish(self, mean, var, out_mb, out_rs):
        e = self.e
        for m, o in zip(mean, out_mb):
            if m != o: e(f"v_mov_b32 v{o}, v{m}")
        self.rnd_many(list(out_mb) + list(var))
        for v in var: e(f"v_add_f32 v{v}, {f2u(1e-5):#x}, v{v}")
        self.rnd_many(var)
        for v in var: e(f"v_sqrt_f32 v{v}, v{v}")
        self.rnd_many(var)
        for v, o in zip(var, out_rs): e(f"v_rcp_f32 v{o}, v{v}")

    def q_path(self):
        e = self.e
        e("v_lshlrev_b32 v8, 4, v1")
        e("v_cmp_gt_u32 s[70:71], 56, v1")
        e("v_mov_b32 v9, 0x10000")
        e("v_cndmask_b32 v8, v9, v8, s[70:71]")
        e(f"buffer_load_dwordx4 v[12:15], v8, s[{R_X}:{R_X+3}], 0 offen")
        e(f"buffer_load_dwordx4 v[16:19], v8, s[{R_X}:{R_X+3}], 0 offen offset:896")
        e(f"buffer_load_dword v10, off, s[{R_WS}:{R_WS+3}], 0 offset:{EPOCH} sc1")
        e(f"s_and_b32 s12, s{S_SPL}, 3")
        e(f"s_lshr_b32 s13, s{S_SPL}, 2")
        e(f"s_lshl_b32 s64, s{S_B}, 2")
        e("s_add_u32 s13, s13, s64")
        e(f"s_mul_i32 s64, s12, {112*8192}")
        e(f"s_lshl_b32 s65, s{S_HKV}, 10")
        e("s_add_u32 s64, s64, s65")
        e("s_lshl_b32 s65, s13, 7")
        e("s_add_u32 s64, s64, s65")
        self.srd(R_W, P_WQ, 448 * 8192)
        self.dma_voff(8192, 7, 20)
        for st in range(14):
            e(f"s_mov_b32 m0, {STG + st*1024}")
            if st: e(f"s_add_u32 s64, s64, {8*8192}")
            e(f"buffer_load_dwordx4 v20, s[{R_W}:{R_W+3}], s64 offen {self.qflags} lds")
        self.stamp(9)
        self.h_consts()
        e("v_mov_b32 v20, 0")
        e("v_mov_b32 v21, 0")
        e("v_mov_b32 v21, 0x7fff")
        e(f"ds_write_b64 v20, v[20:21] offset:{MISC+8}")
        e("v_mov_b32 v21, 0")
        e(f"ds_write_b64 v20, v[20:21] offset:{MISC+16}")
        e(f"ds_write_b32 v20, v20 offset:{MISC+4}")
        e(f"ds_write_b32 v20, v20 offset:{MISC+28}")
        e("v_mov_b32 v21, 0x7fff")
        e(f"ds_write_b32 v20, v21 offset:{MISC+32}")
        if self.fb or self.ns:
            Lz = self.lab("nz")
            e(f"s_cmp_lg_u32 s{S_SPL}, 0")
            e(f"s_cbranch_scc1 {Lz}")
            e(f"s_lshl_b32 s64, s{S_GRP}, 8")
            e(f"s_add_u32 s64, s64, {CNTB}")
            e("s_mov_b64 exec, 1")
            e(f"buffer_store_dword v20, off, s[{R_WS}:{R_WS+3}], s64 sc1")
            e("s_mov_b64 exec, -1")
            e.label(Lz)
        e("s_waitcnt vmcnt(15)")
        self.stamp(10)
        for b in range(2):
            for i in range(4):
                e(f"v_lshlrev_b32 v{24+8*b+2*i}, 16, v{12+4*b+i}")
                e(f"v_and_b32 v{25+8*b+2*i}, 0xffff0000, v{12+4*b+i}")
        for b in range(2):
            x = 24 + 8 * b
            e(f"v_add_f32 v{40+b}, v{x}, v{x+1}")
            for i in range(2, 8): e(f"v_add_f32 v{40+b}, v{40+b}, v{x+i}")
        self.wave_sum_to_sgpr([40, 41], [64, 65])
        inv = f2u(1.0 / 448)
        for b in range(2):
            e(f"v_mov_b32 v{42+b}, {inv:#x}")
            e(f"v_mul_f32 v{42+b}, s{64+b}, v{42+b}")
        for b in range(2):
            x = 24 + 8 * b
            e(f"v_sub_f32 v44, v{x}, v{42+b}")
            e(f"v_mul_f32 v{40+b}, v44, v44")
            for i in range(1, 8):
                e(f"v_sub_f32 v44, v{x+i}, v{42+b}")
                e(f"v_fmac_f32 v{40+b}, v44, v44")
            e(f"v_cndmask_b32 v{40+b}, 0, v{40+b}, s[70:71]")
        self.wave_sum_to_sgpr([40, 41], [64, 65])
        for b in range(2):
            e(f"v_mov_b32 v{44+b}, {inv:#x}")
            e(f"v_mul_f32 v{44+b}, s{64+b}, v{44+b}")
        self.ln_finish([42, 43], [44, 45], [42, 43], [46, 47])
        for b in range(2):
            x = 24 + 8 * b
            for i in range(8): e(f"v_sub_f32 v{x+i}, v{x+i}, v{42+b}")
            for i in range(4): e(f"v_cvt_pk_bf16_f32 v{12+4*b+i}, v{x+2*i}, v{x+2*i+1}")
            for i in range(4):
                e(f"v_lshlrev_b32 v{x+2*i}, 16, v{12+4*b+i}")
                e(f"v_and_b32 v{x+2*i+1}, 0xffff0000, v{12+4*b+i}")
            for i in range(8): e(f"v_mul_f32 v{x+i}, v{x+i}, v{46+b}")
            for i in range(4): e(f"v_cvt_pk_bf16_f32 v{12+4*b+i}, v{x+2*i}, v{x+2*i+1}")
        e("v_lshlrev_b32 v8, 4, v1")
        e("s_mov_b64 exec, s[70:71]")
        e(f"ds_write_b128 v8, v[12:15] offset:{AV}")
        e(f"ds_write_b128 v8, v[16:19] offset:{AV+AVS}")
        e("s_mov_b64 exec, -1")
        e("s_waitcnt vmcnt(14)")
        e("v_readfirstlane_b32 s64, v10")
        self.set_tag(64)
        e(f"v_mov_b32 v21, s{S_TAG}")
        e(f"ds_write_b32 v20, v21 offset:{MISC}")
        e("s_waitcnt vmcnt(0) lgkmcnt(0)")
        self.stamp(1)
        e(f"s_mov_b32 s64, {STG}")
        self.tr_addr(7, 64)
        e("s_mul_i32 s64, s12, 224")
        e("v_add_u32 v9, s64, v3")
        for st in range(4): e(f"ds_read_b128 v[{128+4*st}:{131+4*st}], v9 offset:{AV+st*64}")
        for cg in range(4): self.tr_frags(4, cg * 32, 64 + 16 * cg, 7)
        e("v_cmp_gt_u32 vcc, 32, v1")
        for i in range(4): e(f"v_cndmask_b32 v{140+i}, 0, v{140+i}, vcc")
        for cg in range(4):
            for i in range(4): e(f"v_cndmask_b32 v{76+16*cg+i}, 0, v{76+16*cg+i}, vcc")
        for st in range(4):
            for cg in range(4):
                D = 144 + 4 * cg
                c = "0" if st == 0 else f"v[{D}:{D+3}]"
                e(f"v_mfma_f32_16x16x32_bf16 v[{D}:{D+3}], v[{128+4*st}:{131+4*st}], v[{64+16*cg+4*st}:{67+16*cg+4*st}], {c}")
        e("v_cmp_lt_u32 s[64:65], 15, v1")
        e("v_cmp_lt_u32 s[66:67], 31, v1")
        e("v_cmp_lt_u32 vcc, 47, v1")
        e(f"v_mov_b32 v53, s{S_TAG}")
        e(f"v_mov_b32 v55, s{S_TAG}")
        e("v_lshlrev_b32 v8, 3, v1")
        for b in range(2):
            e(f"v_cndmask_b32 v{52+2*b}, v{144+b}, v{148+b}, s[64:65]")
        for b in range(2):
            e(f"v_cndmask_b32 v{52+2*b}, v{52+2*b}, v{152+b}, s[66:67]")
        for b in range(2):
            e(f"v_cndmask_b32 v{52+2*b}, v{52+2*b}, v{156+b}, vcc")
        e(f"s_lshl_b32 s64, s{S_HKV}, 14")
        e("s_lshl_b32 s65, s12, 12")
        e("s_add_u32 s64, s64, s65")
        e("s_lshl_b32 s65, s13, 9")
        e("s_add_u32 s64, s64, s65")
        e(f"s_add_u32 s64, s64, {QBUF}")
        e(f"s_add_u32 s65, s64, {8*16384}")
        e(f"buffer_store_dwordx2 v[52:53], v8, s[{R_WS}:{R_WS+3}], s64 offen sc1")
        e(f"buffer_store_dwordx2 v[54:55], v8, s[{R_WS}:{R_WS+3}], s65 offen sc1")
        self.lds_set(MISC + 24, f"s{S_TAG}")
        self.stamp(2)

    def q_gather(self):
        e = self.e
        e("v_lshlrev_b32 v8, 4, v1")
        e(f"s_lshl_b32 s13, s{S_GRP}, 14")
        e(f"s_lshl_b32 s64, s{S_HW}, 10")
        e("s_add_u32 s13, s13, s64")
        e(f"s_add_u32 s13, s13, {QBUF}")
        for k in range(1, 4): e(f"s_add_u32 s{64+k}, s13, {k*4096}")
        qld = [f"buffer_load_dwordx4 v[{24+4*k}:{27+4*k}], v8, s[{R_WS}:{R_WS+3}], s{64+k if k else 13} offen sc1" for k in range(4)]
        e(f"s_sleep {self.qsleep0}")
        for l in qld: e(l)
        for k in range(4):
            L = self.lab("qp"); Lx = self.lab("qpx")
            e.label(L)
            e("s_waitcnt vmcnt(0)")
            self.check_words([25 + 4 * k, 27 + 4 * k], 40, mant=False)
            e(f"s_cbranch_vccz {Lx}")
            e(f"s_sleep {self.qsleep}")
            e(qld[k])
            e(f"s_sub_u32 s{S_TO}, s{S_TO}, 1")
            e(f"s_cbranch_scc0 {L}")
            e("s_branch L_hfail")
            e.label(Lx)
        e("v_add_f32 v24, v24, v28")
        e("v_add_f32 v26, v26, v30")
        e("v_add_f32 v32, v32, v36")
        e("v_add_f32 v34, v34, v38")
        e("v_add_f32 v24, v24, v32")
        e("v_add_f32 v26, v26, v34")
        e("v_cvt_pk_bf16_f32 v24, v24, v26")
        e("v_lshlrev_b32 v8, 2, v1")
        e(f"s_lshl_b32 s64, s{S_HW}, 8")
        e("v_add_u32 v8, s64, v8")
        e(f"ds_write_b32 v8, v24 offset:{QL}")
        e("s_waitcnt lgkmcnt(0)")

    def stage_a(self):
        e = self.e
        FB, PB = 64, 128
        if self.latea == 1: self.lds_wait(MISC + 4, "ge", 5, 2)
        if self.latea >= 2: self.lds_wait(MISC + 32, "le", self.latea - 1, 4)
        self.winfl_cur = self.winfl2 if self.latea else self.winfl
        self.srd(R_W, P_WO, 4096 * 896)
        e(f"s_mul_i32 s64, s{S_HKV}, {512*896}")
        e(f"s_lshl_b32 s65, s{S_SPL}, 7")
        e("s_add_u32 s64, s64, s65")
        e(f"s_mul_i32 s65, s{S_HW}, {128*896}")
        e("s_add_u32 s64, s64, s65")
        e(f"s_lshl_b32 s65, s{S_HW}, 14")
        e(f"s_add_u32 s65, s65, {STG}")
        self.dma_voff(896, 7, 20)
        self.dma_loop(R_W, 20, 16, 64, 8 * 896, 65)
        self.h_sync()
        e(f"s_lshl_b32 s64, s{S_HW}, 5")
        e(f"s_add_u32 s64, s64, {STG}")
        self.tr_addr(7, 64)
        self.tr_frags(16, 0, FB, 7)
        self.stamp(4)
        e(f"s_lshr_b32 s12, s{S_HW}, 1")
        e(f"s_and_b32 s13, s{S_HW}, 1")
        e("s_lshl_b32 s14, s12, 3")
        e(f"s_add_u32 s14, s14, s{S_HKV}")
        e("s_lshl_b32 s15, s14, 15")
        e("s_lshl_b32 s64, s13, 10")
        e("s_add_u32 s15, s15, s64")
        e(f"s_add_u32 s15, s15, {PBUF}")
        e("s_lshl_b32 s64, s13, 11")
        e("s_lshl_b32 s14, s14, 7")
        e("s_add_u32 s14, s14, s64")
        e(f"s_add_u32 s14, s14, {HBUF}")
        e("v_lshlrev_b32 v5, 4, v1")
        e("v_lshlrev_b32 v6, 3, v4")
        e(f"s_mul_i32 s64, s12, {AVS}")
        e("s_lshl_b32 s65, s13, 9")
        e("s_add_u32 s64, s64, s65")
        e("v_lshlrev_b32 v7, 3, v1")
        e("v_add_u32 v7, s64, v7")
        e("v_lshlrev_b32 v18, 3, v1")
        e("v_mov_b32 v19, 0xffffffc0")
        e(f"s_mul_i32 s52, s{S_HKV}, {448*8}")
        e(f"s_lshl_b32 s65, s{S_SPL}, 9")
        e("s_add_u32 s52, s52, s65")
        e(f"s_lshl_b32 s65, s{S_HW}, 7")
        e("s_add_u32 s52, s52, s65")
        e(f"s_add_u32 s52, s52, {YBUF}")
        e("s_mov_b32 s68, 1")
        e("s_branch L_a_go")
        e.label("L_a_poll")
        e("s_mov_b32 s68, 0")
        self.stamp(5)
        self.stamp(6)
        NB = self.aspec
        L = self.lab("asw"); Lz = self.lab("anl"); Li = self.lab("ais"); Lc = self.lab("ack")
        e("s_mov_b32 s69, 0xffff")
        e("s_mov_b32 s70, 0")
        e("v_mov_b32 v12, 0xff800000")
        for i in range(13, 18): e(f"v_mov_b32 v{i}, 0")
        e.label(L)
        e(f"buffer_load_dwordx2 v[10:11], v6, s[{R_WS}:{R_WS+3}], s14 offen sc1")
        for i in range(NB):
            r = PB + 4 * i
            e(f"s_ff1_i32_b32 s{40+i}, s70")
            e(f"s_cmp_lt_i32 s{40+i}, 0")
            e(f"s_cbranch_scc1 {Li}")
            e(f"s_lshl_b32 s64, s{40+i}, 11")
            e(f"s_bitset0_b32 s70, s{40+i}")
            e("s_add_u32 s64, s64, s15")
            e(f"buffer_load_dwordx4 v[{r}:{r+3}], v5, s[{R_WS}:{R_WS+3}], s64 offen sc1")
        e.label(Li)
        e("s_waitcnt vmcnt(0)")
        e(f"v_cmp_eq_u32 s[66:67], s{S_TAG}, v11")
        for i in range(NB):
            r = PB + 4 * i
            nx = self.lab("anx")
            e(f"s_cmp_lt_i32 s{40+i}, 0")
            e(f"s_cbranch_scc1 {Lc}")
            e(f"v_readlane_b32 s64, v10, s{40+i}")
            self.check_words([r, r + 2], 28)
            e(f"s_cbranch_vccnz {nx}")
            e(f"s_bitcmp1_b32 s66, s{40+i}")
            e(f"s_cbranch_scc0 {nx}")
            e("v_max_f32 v28, s64, v12")
            e("v_sub_f32 v24, v12, v28")
            e("v_sub_f32 v26, s64, v28")
            e("v_exp_f32 v24, v24")
            e("v_exp_f32 v26, v26")
            e("v_mov_b32 v12, v28")
            e(f"s_bitset0_b32 s69, s{40+i}")
            e("v_pk_mul_f32 v[14:15], v[14:15], v[24:25] op_sel_hi:[1,0]")
            e("v_pk_mul_f32 v[16:17], v[16:17], v[24:25] op_sel_hi:[1,0]")
            e("v_fma_f32 v13, v13, v24, v26")
            e(f"v_pk_fma_f32 v[14:15], v[{r}:{r+1}], v[26:27], v[14:15] op_sel_hi:[1,0,1]")
            e(f"v_pk_fma_f32 v[16:17], v[{r+2}:{r+3}], v[26:27], v[16:17] op_sel_hi:[1,0,1]")
            e.label(nx)
        e.label(Lc)
        e("s_cmp_eq_u32 s69, 0")
        e("s_cbranch_scc1 L_a_got")
        e("s_and_b32 s70, s69, s66")
        e("s_bcnt1_i32_b32 s64, s69")
        e(f"s_cmp_le_u32 s64, {NB}")
        e("s_cselect_b32 s70, s69, s70")
        e("s_cmp_lg_u32 s70, 0")
        e(f"s_cbranch_scc1 {Lz}")
        e(f"s_sleep {self.gsleep}")
        e.label(Lz)
        e(f"s_sub_u32 s{S_TO}, s{S_TO}, 1")
        e(f"s_cbranch_scc0 {L}")
        e("s_branch L_hfail")
        e.label("L_a_got")
        self.stamp(7)
        e.label("L_a_go")
        e("v_rcp_f32 v24, v13")
        e("v_pk_mul_f32 v[14:15], v[14:15], v[24:25] op_sel_hi:[1,0]")
        e("v_pk_mul_f32 v[16:17], v[16:17], v[24:25] op_sel_hi:[1,0]")
        e("v_cvt_pk_bf16_f32 v14, v14, v15")
        e("v_cvt_pk_bf16_f32 v15, v16, v17")
        e(f"ds_write_b64 v7, v[14:15] offset:{AV}")
        e("s_waitcnt lgkmcnt(0)")
        self.bar()
        self.gemv(16, PB + 64, AV, [(20, FB)])
        self.tagw(24, 20, 19)
        self.tagw(25, 21, 19)
        e("s_cmp_eq_u32 s68, 1")
        e("s_cbranch_scc1 L_a_poll")
        e("s_mov_b64 exec, 0xffff")
        e(f"buffer_store_dwordx2 v[24:25], v18, s[{R_WS}:{R_WS+3}], s52 offen sc1")
        self.stamp(8)
        self.endpgm()

    def stage_b(self):
        e = self.e
        FG, FU, GB = 64, 120, 176
        UPO = 448 * 128
        self.srd(R_W, P_WG, 448 * 3584)
        self.srd(R_W2, P_WU, 448 * 3584)
        if self.wtouch:
            e(f"v_mul_u32_u24 v20, {7*3584}, v1")
            e("s_lshl_b32 s64, s12, 7")
            e(f"s_bitcmp1_b32 s{S_HW}, 1")
            Lw = self.lab("wt"); e(f"s_cbranch_scc1 {Lw}")
            e(f"s_bitcmp1_b32 s{S_HW}, 0")
            La = self.lab("wt"); e(f"s_cbranch_scc1 {La}")
            e(f"buffer_load_dword v21, v20, s[{R_W}:{R_W+3}], s64 offen nt")
            e(f"s_branch {Lw}")
            e.label(La)
            e(f"buffer_load_dword v21, v20, s[{R_W2}:{R_W2+3}], s64 offen nt")
            e.label(Lw)
        e(f"s_mul_i32 s64, s{S_HW}, 56")
        e("v_min_u32 v5, 55, v1")
        e("v_add_u32 v5, s64, v5")
        e("v_cmp_gt_u32 s[70:71], 56, v1")
        e("v_lshlrev_b32 v14, 2, v5")
        e(f"buffer_load_dword v16, v14, s[{R_X}:{R_X+3}], 0 offen")
        e(f"buffer_load_dword v17, v14, s[{R_X}:{R_X+3}], 0 offen offset:896")
        e("v_lshlrev_b32 v5, 4, v5")
        e("s_waitcnt vmcnt(0)")
        e("v_and_b32 v18, 0xffff0000, v16")
        e("v_and_b32 v19, 0xffff0000, v17")
        e("v_lshlrev_b32 v16, 16, v16")
        e("v_lshlrev_b32 v17, 16, v17")
        for k in range(8): e(f"s_mov_b32 s{40+k}, {YBUF + k*3584}")
        e(f"s_lshl_b32 s64, s{S_HW}, 4")
        e("v_mov_b32 v10, s64")
        e("v_and_b32 v11, 7, v1")
        e("v_lshlrev_b32 v11, 4, v11")
        e("v_lshlrev_b32 v12, 3, v1")
        e("v_and_b32 v8, 16, v1")
        e("v_cmp_ne_u32 s[56:57], 0, v8")
        e("s_lshl_b32 s13, s12, 9")
        e(f"s_lshl_b32 s64, s{S_HW}, 7")
        e("s_add_u32 s13, s13, s64")
        e(f"s_add_u32 s13, s13, {GBUF}")
        e(f"s_mov_b32 s14, {f2u(0.044715):#x}")
        e(f"s_mov_b32 s15, {f2u(112.0):#x}")
        e(f"v_mov_b32 v35, s{S_TAG}")
        e("s_mov_b32 s68, 1")
        e("s_branch L_b_go")
        e.label("L_b_poll")
        e("s_mov_b32 s68, 0")
        self.srd(R_W, P_WG, 448 * 3584)
        if self.lateb == 1: self.lds_wait(MISC + 4, "ge", 5, 2)
        if self.lateb >= 2: self.lds_wait(MISC + 32, "le", self.lateb - 1, 4)
        self.winfl_cur = self.winfl2 if self.lateb else self.winfl
        e("s_waitcnt vmcnt(0)")
        self.dma_voff(3584, 7, 20)
        for m_, srd_ in enumerate((R_W, R_W2)):
            e("s_lshl_b32 s64, s12, 7")
            e(f"s_mul_i32 s65, s{S_HW}, {112*3584}")
            e("s_add_u32 s64, s64, s65")
            e(f"s_mul_i32 s65, s{S_HW}, {112*128}")
            e(f"s_add_u32 s65, s65, {STG + m_*UPO}")
            self.dma_loop(srd_, 20, 14, 64, 8 * 3584, 65)
        self.stamp(5)
        if self.gpos == 0: self.gate_all()
        self.h_sync()
        e(f"s_lshl_b32 s64, s{S_HW}, 5")
        e(f"s_add_u32 s64, s64, {STG}")
        self.tr_addr(7, 64)
        self.tr_frags(14, 0, FG, 7)
        e(f"v_add_u32 v2, {UPO}, v2")
        self.tr_frags(14, 0, FU, 7)
        self.stamp(4)
        if self.gpos == 1: self.gate_all()
        self.stamp(6)
        self.sweep_all([f"buffer_load_dwordx4 v[{GB+4*k}:{GB+4*k+3}], v5, s[{R_WS}:{R_WS+3}], s{40+k} offen sc1" for k in range(8)],
                       [GB + 2 * i for i in range(16)], 240)
        self.stamp(7)
        e.label("L_b_go")
        for k in range(1, 8):
            for j in (0, 2):
                a = GB + j if k == 1 else 20 + j
                e(f"v_pk_add_f32 v[{20+j}:{21+j}], v[{a}:{a+1}], v[{GB+4*k+j}:{GB+4*k+j+1}]")
        def rnd4():
            e("v_cvt_pk_bf16_f32 v24, v20, v21")
            e("v_cvt_pk_bf16_f32 v25, v22, v23")
            e("v_lshlrev_b32 v20, 16, v24")
            e("v_and_b32 v21, 0xffff0000, v24")
            e("v_lshlrev_b32 v22, 16, v25")
            e("v_and_b32 v23, 0xffff0000, v25")
        rnd4()
        e("v_pk_add_f32 v[20:21], v[20:21], v[16:17]")
        e("v_pk_add_f32 v[22:23], v[22:23], v[18:19]")
        rnd4()
        for b in range(2): e(f"v_readfirstlane_b32 s{66+b}, v{20+b}")
        e("v_pk_add_f32 v[36:37], v[20:21], s[66:67] neg_lo:[0,1] neg_hi:[0,1]")
        e("v_pk_add_f32 v[38:39], v[22:23], s[66:67] neg_lo:[0,1] neg_hi:[0,1]")
        for b in range(2): e(f"v_mov_b32 v{24+4*b}, s{66+b}")
        for b in range(2): e(f"v_add_f32 v{25+4*b}, v{36+b}, v{38+b}")
        for b in range(2): e(f"v_mul_f32 v{26+4*b}, v{36+b}, v{36+b}")
        for b in range(2): e(f"v_fmac_f32 v{26+4*b}, v{38+b}, v{38+b}")
        red = [25, 29, 26, 30]
        for v in red: e(f"v_cndmask_b32 v{v}, 0, v{v}, s[70:71]")
        self.row_reduce(red)
        for v in red: e(f"v_add_f32_dpp v{v}, v{v}, v{v} row_bcast:15 row_mask:0xa bank_mask:0xf")
        for v in red: e(f"v_add_f32_dpp v{v}, v{v}, v{v} row_bcast:31 row_mask:0xc bank_mask:0xf")
        e("s_mov_b64 exec, 0x8000000000000000") if False else None
        e("s_mov_b32 exec_lo, 0")
        e("s_mov_b32 exec_hi, 0x80000000")
        e(f"ds_write_b96 v10, v[24:26] offset:{STATS}")
        e(f"ds_write_b96 v10, v[28:30] offset:{STATS+64}")
        e("s_mov_b64 exec, -1")
        e("s_waitcnt lgkmcnt(0)")
        self.bar()
        e(f"ds_read_b96 v[24:26], v11 offset:{STATS}")
        e("s_waitcnt lgkmcnt(0)")
        e(f"v_mul_f32 v27, {f2u(1.0/112):#x}, v25")
        e("v_add_f32 v24, v24, v27")
        e("v_fma_f32 v26, -v27, v25, v26")
        e("v_add_f32_dpp v28, v24, v24 quad_perm:[1,0,3,2] row_mask:0xf bank_mask:0xf")
        e("v_add_f32_dpp v28, v28, v28 quad_perm:[2,3,0,1] row_mask:0xf bank_mask:0xf")
        e(f"v_mul_f32 v28, {f2u(0.25):#x}, v28")
        e("v_sub_f32 v24, v24, v28")
        e("v_mul_f32 v24, v24, v24")
        e("v_fmac_f32 v26, s15, v24")
        e("v_add_f32_dpp v26, v26, v26 quad_perm:[1,0,3,2] row_mask:0xf bank_mask:0xf")
        e("v_add_f32_dpp v26, v26, v26 quad_perm:[2,3,0,1] row_mask:0xf bank_mask:0xf")
        e(f"v_mul_f32 v26, {f2u(1.0/448):#x}, v26")
        e("v_cvt_pk_bf16_f32 v27, v28, v26")
        e("v_and_b32 v26, 0xffff0000, v27")
        e("v_lshlrev_b32 v28, 16, v27")
        e(f"v_add_f32 v26, {f2u(1e-5):#x}, v26")
        e("v_readlane_b32 s52, v28, 0")
        e("v_readlane_b32 s53, v28, 4")
        self.rnd(26)
        e("v_pk_add_f32 v[20:21], v[20:21], s[52:53] neg_lo:[0,1] neg_hi:[0,1]")
        e("v_sqrt_f32 v26, v26")
        e("v_pk_add_f32 v[22:23], v[22:23], s[52:53] neg_lo:[0,1] neg_hi:[0,1]")
        self.rnd(26)
        e("v_cvt_pk_bf16_f32 v24, v20, v21")
        e("v_rcp_f32 v26, v26")
        e("v_cvt_pk_bf16_f32 v25, v22, v23")
        e("v_lshlrev_b32 v20, 16, v24")
        e("v_readlane_b32 s54, v26, 0")
        e("v_readlane_b32 s55, v26, 4")
        e("v_and_b32 v21, 0xffff0000, v24")
        e("v_lshlrev_b32 v22, 16, v25")
        e("v_and_b32 v23, 0xffff0000, v25")
        e("v_pk_mul_f32 v[20:21], v[20:21], s[54:55]")
        e("v_pk_mul_f32 v[22:23], v[22:23], s[54:55]")
        for b in range(2): e(f"v_cvt_pk_bf16_f32 v{20+b}, v{20+b}, v{22+b}")
        e(f"ds_write_b32 v14, v20 offset:{AV}")
        e(f"ds_write_b32 v14, v21 offset:{AV+AVS}")
        e("s_waitcnt lgkmcnt(0)")
        self.bar()
        self.gemv(14, GB, AV, [(24, FG), (28, FU)])
        e("v_cndmask_b32 v24, v24, v25, s[56:57]")
        e("v_cndmask_b32 v29, v28, v29, s[56:57]")
        e("v_cvt_pk_bf16_f32 v29, v24, v29")
        e("v_lshlrev_b32 v28, 16, v29")
        e("v_and_b32 v29, 0xffff0000, v29")
        k0 = math.sqrt(2.0 / math.pi)
        c1 = f2u(-2.0 * k0 * math.log2(math.e))
        e("v_mul_f32 v32, v28, v28")
        e("v_mul_f32 v32, v32, v28")
        e("v_fma_f32 v32, v32, s14, v28")
        e(f"v_mul_f32 v32, {c1:#x}, v32")
        e("v_exp_f32 v32, v32")
        e("v_add_f32 v32, 1.0, v32")
        e("v_rcp_f32 v32, v32")
        e("v_mul_f32 v32, v32, v28")
        self.rnd(32)
        e("v_mul_f32 v32, v32, v29")
        e("v_mov_b32 v33, v32")
        e("v_permlane16_swap_b32 v32, v33")
        e("v_cvt_pk_bf16_f32 v34, v32, v33")
        e("s_cmp_eq_u32 s68, 1")
        e("s_cbranch_scc1 L_b_poll")
        e("s_mov_b64 exec, 0xffff")
        e(f"buffer_store_dwordx2 v[34:35], v12, s[{R_WS}:{R_WS+3}], s13 offen sc1")
        self.stamp(8)
        self.endpgm()

    def stage_c(self):
        e = self.e
        F0, F1, GB = 64, 120, 176
        self.srd(R_W, P_WD, 1792 * 896)
        self.srd(R_W2, P_OUT, 2 * 448 * 2)
        if self.wtouch:
            e(f"v_mul_u32_u24 v20, {28*896}, v1")
            e("s_lshl_b32 s64, s12, 6")
            e(f"s_cmp_lg_u32 s{S_HW}, 0")
            Lw = self.lab("wt"); e(f"s_cbranch_scc1 {Lw}")
            e(f"buffer_load_dword v21, v20, s[{R_W}:{R_W+3}], s64 offen nt")
            e.label(Lw)
        e(f"s_mul_i32 s65, s{S_HW}, {STGW}")
        e(f"s_add_u32 s65, s65, {STG}")
        self.tr_addr(6, 65)
        e("v_and_b32 v5, 31, v1")
        e("v_lshrrev_b32 v6, 5, v1")
        e("s_lshl_b32 s64, s12, 5")
        e("v_add_u32 v7, s64, v5")
        e("v_mul_u32_u24 v14, 448, v6")
        e("v_add_lshl_u32 v14, v14, v7, 1")
        e(f"buffer_load_ushort v16, v14, s[{R_X}:{R_X+3}], 0 offen")
        if self.otouch: e(f"buffer_load_ushort v18, v14, s[{R_W2}:{R_W2+3}], 0 offen")
        e("v_lshlrev_b32 v7, 3, v7")
        e("v_lshl_add_u32 v7, v6, 2, v7")
        e("s_waitcnt vmcnt(0)")
        e("v_lshlrev_b32 v16, 16, v16")
        e("v_lshlrev_b32 v10, 4, v1")
        e("v_lshlrev_b32 v11, 4, v5")
        e(f"s_mul_i32 s13, s{S_HW}, 3584")
        e(f"s_add_u32 s13, s13, {GBUF}")
        e(f"s_mul_i32 s14, s{S_HW}, {2*AVS}")
        e("v_lshlrev_b32 v12, 2, v1")
        e("v_add_u32 v12, s14, v12")
        e("v_lshlrev_b32 v13, 2, v5")
        e("v_add_u32 v13, s14, v13")
        e("v_add_u32 v3, s14, v3")
        e("v_mov_b32 v17, 0")
        e("s_mov_b32 s64, 0x05040100")
        e("s_mov_b32 s65, 0x07060302")
        e("s_mov_b32 s68, 1")
        e("s_branch L_c_go")
        e.label("L_c_poll")
        e("s_mov_b32 s68, 0")
        if self.latec == 1: self.lds_wait(MISC + 4, "ge", 5, 2)
        if self.latec >= 2: self.lds_wait(MISC + 32, "le", self.latec - 1, 4)
        self.winfl_cur = self.winfl2 if self.latec else self.winfl
        e("s_waitcnt vmcnt(0)")
        e(f"s_mul_i32 s64, s{S_HW}, {448*896}")
        e("s_lshl_b32 s65, s12, 6")
        e("s_add_u32 s64, s64, s65")
        e(f"s_mul_i32 s65, s{S_HW}, {STGW}")
        e(f"s_add_u32 s65, s65, {STG}")
        self.dma_voff(896, 6, 20)
        self.dma_loop(R_W, 20, 28, 64, 16 * 896, 65)
        self.stamp(5)
        if self.gpos == 0: self.gate_all()
        e("s_waitcnt vmcnt(0)")
        self.tr_frags(14, 0, F0, 6)
        self.tr_frags(14, 32, F1, 6)
        self.stamp(4)
        if self.gpos == 1: self.gate_all()
        self.stamp(6)
        Ln = self.lab("cnres")
        e(f"s_cmp_lg_u32 s{S_HW}, 0")
        e(f"s_cbranch_scc1 {Ln}")
        for k in range(8): e(f"s_mov_b32 s{40+k}, {YBUF + k*3584}")
        self.sweep_all([f"buffer_load_dword v{GB+k}, v7, s[{R_WS}:{R_WS+3}], s{40+k} offen sc1" for k in range(8)],
                       [GB + k for k in range(8)], 24)
        for k in range(1, 8): e(f"v_add_f32 v17, v{GB if k == 1 else 17}, v{GB+k}")
        self.rnd(17)
        e("v_add_f32 v17, v17, v16")
        self.rnd(17)
        e.label(Ln)
        e("s_mov_b32 s64, 0x05040100")
        e("s_mov_b32 s65, 0x07060302")
        sc = [24, 48, 232][:self.nset]
        def cput(i):
            g = sc[i]
            for k in range(4):
                e(f"v_perm_b32 v{g+1+4*k}, v{g+2+4*k}, v{g+4*k}, s64")
                e(f"v_perm_b32 v{g+3+4*k}, v{g+2+4*k}, v{g+4*k}, s65")
                a = 12 if k < 3 else 13
                e(f"ds_write_b32 v{a}, v{g+1+4*k} offset:{AV+k*256}")
                e(f"ds_write_b32 v{a}, v{g+3+4*k} offset:{AV+AVS+k*256}")
        self.sweep_pipe([([f"buffer_load_dwordx4 v[{g+4*k}:{g+3+4*k}], v{10 if k < 3 else 11}, s[{R_WS}:{R_WS+3}], s13 offen offset:{k*1024} sc1" for k in range(4)],
                          [g + 1 + 2 * i for i in range(8)]) for g in sc], 248, False, cput, "L_c_go")
        self.gemv(14, GB, AV, [(40, F0), (44, F1)], ahead=7)
        e(f"s_lshl_b32 s64, s{S_HW}, 8")
        e("v_lshlrev_b32 v8, 3, v1")
        e("v_add_u32 v8, s64, v8")
        e("s_mov_b64 exec, 0xffff")
        e(f"ds_write_b64 v8, v[40:41] offset:{RED}")
        e(f"ds_write_b64 v8, v[44:45] offset:{RED+128}")
        e("s_mov_b64 exec, -1")
        e("s_waitcnt lgkmcnt(0)")
        self.bar()
        Le = self.lab("cend")
        e(f"s_sub_u32 s64, s{S_HW}, s68")
        e(f"s_cmp_eq_u32 s68, 1")
        e(f"s_cselect_b32 s64, 0, s{S_HW}")
        e(f"s_cmp_lg_u32 s64, 0")
        e(f"s_cbranch_scc1 {Le}")
        e("v_lshlrev_b32 v8, 3, v5")
        e("v_lshl_add_u32 v8, v6, 2, v8")
        for w in range(4): e(f"ds_read_b32 v{20+w}, v8 offset:{RED+256*w}")
        e("s_waitcnt lgkmcnt(0)")
        e("v_add_f32 v20, v20, v21")
        e("v_add_f32 v22, v22, v23")
        e("v_add_f32 v20, v20, v22")
        self.rnd(20)
        e("v_add_f32 v20, v20, v17")
        e("v_cvt_pk_bf16_f32 v20, v20, v20")
        e("s_cmp_eq_u32 s68, 1")
        e("s_cbranch_scc1 L_c_poll")
        e(f"buffer_store_short v20, v14, s[{R_W2}:{R_W2+3}], 0 offen")
        if self.dbgtime:
            self.dbgt(35)
            e("s_waitcnt vmcnt(0)")
            e("v_lshlrev_b32 v254, 2, v1")
            e("s_mov_b64 exec, 0xf")
            e("buffer_load_dword v253, v254, s[92:95], 0 offen offset:128 sc1")
            e("s_waitcnt vmcnt(0)")
            e("buffer_atomic_umax v253, v254, s[92:95], 0 offen offset:16 sc1")
            e("s_mov_b64 exec, -1")
        e("s_cmp_lg_u32 s12, 0")
        e(f"s_cbranch_scc1 {Le}")
        e(f"v_mov_b32 v21, s{S_TAG}")
        e("s_mov_b64 exec, 1")
        e(f"buffer_store_dword v21, off, s[{R_WS}:{R_WS+3}], 0 offset:{EPOCH} sc1")
        e.label(Le)
        self.stamp(8)
        self.endpgm()

    def build(self):
        e = self.e
        e("s_cmp_ge_u32 s2, 256")
        e("s_cbranch_scc1 L_exit")
        e("s_load_dwordx16 s[16:31], s[0:1], 0")
        e("s_load_dwordx8 s[32:39], s[0:1], 64")
        self.stamp_init()
        e("v_lshrrev_b32 v2, 6, v0")
        e("v_and_b32 v1, 63, v0")
        e(f"v_readfirstlane_b32 s{S_WAVE}, v2")
        self.stamp(0)
        e(f"s_and_b32 s{S_HW}, s{S_WAVE}, 3")
        e(f"s_cmp_lt_u32 s{S_WAVE}, 4")
        e("s_cbranch_scc1 L_hpath")
        self.s_path()
        e.label("L_hpath")
        self.in_h = True
        e(f"s_lshr_b32 s{S_GRP}, s2, 4")
        e(f"s_and_b32 s{S_SPL}, s2, 15")
        e(f"s_lshr_b32 s{S_B}, s2, 7")
        e(f"s_and_b32 s{S_HKV}, s{S_GRP}, 7")
        e(f"s_mov_b32 s{S_TO}, {TIMEOUT}")
        e("s_waitcnt lgkmcnt(0)")
        self.srd(R_WS, P_WS, WS_SIZE)
        self.srd(R_X, P_X, 1792)
        if self.noq: e("s_branch L_hdone")
        e("s_setprio 2")
        e(f"s_cmp_lg_u32 s{S_HW}, 0")
        e("s_cbranch_scc1 L_hnq")
        self.q_path()
        e("s_branch L_hq")
        e.label("L_hnq")
        if self.dbgtime:
            Ld = self.lab("dt"); e(f"s_cmp_lg_u32 s{S_HW}, 3"); e(f"s_cbranch_scc1 {Ld}")
            self.dbgt(32, True); self.dbgt(33)
            e.label(Ld)
        if self.tstride:
            Lt = self.lab("notouch")
            e(f"s_cmp_eq_u32 s{S_HW}, 3")
            e(f"s_cbranch_scc1 {Lt}")
            e(f"s_cmp_eq_u32 s{S_HW}, 1")
            e(f"s_cselect_b32 s{R_K}, s{P_K}, s{P_V}")
            e(f"s_cselect_b32 s{R_K+1}, s{P_K+1}, s{P_V+1}")
            e(f"s_mov_b32 s{R_K+2}, {1 << 28}")
            e(f"s_mov_b32 s{R_K+3}, 0x20000")
            e(f"v_lshlrev_b32 v11, {self.tstride}, v1")
            e("s_lshl_b32 s64, s2, 20")
            n = (1 << 20) >> self.tstride
            if n < 64: e(f"s_mov_b64 exec, {(1 << n) - 1:#x}")
            e(f"buffer_load_dword v12, v11, s[{R_K}:{R_K+3}], s64 offen nt")
            e("s_mov_b64 exec, -1")
            e.label(Lt)
        e(f"buffer_load_dword v10, off, s[{R_WS}:{R_WS+3}], 0 offset:{EPOCH} sc1")
        self.h_consts()
        e("s_waitcnt vmcnt(0)")
        e("v_readfirstlane_b32 s64, v10")
        self.set_tag(64)
        self.lds_wait(MISC + 24, "eq", f"s{S_TAG}", 2)
        e.label("L_hq")
        self.q_gather()
        e("s_setprio 0")
        e("s_barrier")
        self.stamp(3)
        e(f"s_cmp_lg_u32 s{S_HW}, 1")
        e("s_cbranch_scc1 L_sfinal_back")
        e("s_mov_b32 s68, 1")
        e("s_branch L_sfinal")
        e.label("L_sfinal_back")
        if self.noroles: e("s_branch L_hdone")
        e(f"s_cmp_lg_u32 s{S_HW}, 0")
        e("s_cbranch_scc1 L_rwait")
        if self.ns:
            e("s_mov_b32 s12, 98")
            e(f"s_cmp_eq_u32 s{S_SPL}, 15")
            e("s_cbranch_scc1 L_rpost0")
        self.lds_wait(MISC + 32, "le", self.trig, 8)
        self.srd(R_W, P_DBG, 256)
        e("v_mov_b32 v10, 1")
        e("s_mov_b64 exec, 1")
        e(f"buffer_atomic_add v10, off, s[{R_W}:{R_W+3}], 0 sc0 sc1")
        e("s_waitcnt vmcnt(0)")
        e("s_mov_b64 exec, -1")
        e("v_readfirstlane_b32 s12, v10")
        if self.rorder == 3:
            e("s_add_u32 s12, s12, 42")
            e("s_cmp_lt_u32 s12, 98")
            e("s_cbranch_scc1 L_rpost")
            self.lds_wait(MISC + 32, "le", self.trig2, 4)
            e("v_mov_b32 v10, 1")
            e("s_mov_b64 exec, 1")
            e(f"buffer_atomic_add v10, off, s[{R_W}:{R_W+3}], 0 offset:128 sc0 sc1")
            e("s_waitcnt vmcnt(0)")
            e("s_mov_b64 exec, -1")
            e("v_readfirstlane_b32 s12, v10")
            e("s_add_u32 s12, s12, 14")
            e("s_cmp_lt_u32 s12, 42")
            e("s_cbranch_scc1 L_rpost")
            e("s_sub_u32 s12, s12, 42")
            e("s_cmp_lt_u32 s12, 14")
            e("s_cbranch_scc1 L_rpost")
            e("s_mov_b32 s12, 98")
            e.label("L_rpost")
        e.label("L_rpost0")
        e("s_add_u32 s12, s12, 1")
        self.lds_set(MISC + 16, "s12")
        e("s_branch L_rgot")
        e.label("L_rwait")
        if self.fb:
            Lx = self.lab("fbx"); L = self.lab("fb"); Lw = self.lab("fbw")
            e(f"s_cmp_lg_u32 s{S_HW}, 2")
            e(f"s_cbranch_scc1 {Lx}")
            e(f"s_lshl_b32 s12, s{S_GRP}, 8")
            e(f"s_add_u32 s12, s12, {CNTB}")
            e("s_mov_b32 s13, 0x7fff")
            e("s_mov_b32 s14, 0")
            e("v_mov_b32 v8, 0")
            e.label(L)
            e(f"ds_read_b32 v9, v8 offset:{MISC+32}")
            e("s_waitcnt lgkmcnt(0)")
            e("v_readfirstlane_b32 s64, v9")
            e("s_cmp_lt_u32 s64, s13")
            e(f"s_cbranch_scc1 {Lw}")
            e("s_sleep 2")
            e(f"s_sub_u32 s{S_TO}, s{S_TO}, 1")
            e(f"s_cbranch_scc0 {L}")
            e("s_branch L_hfail")
            e.label(Lw)
            e("s_sub_u32 s65, s13, s64")
            e("s_cmp_eq_u32 s13, 0x7fff")
            e("s_cselect_b32 s65, 1, s65")
            e("s_mov_b32 s13, s64")
            e("v_mov_b32 v10, s65")
            e("s_mov_b64 exec, 1")
            e(f"buffer_atomic_add v10, off, s[{R_WS}:{R_WS+3}], s12 sc0 sc1")
            e("s_lshl_b32 s65, s65, 4")
            e("s_add_u32 s14, s14, s65")
            e("s_waitcnt vmcnt(0)")
            e("s_mov_b64 exec, -1")
            e("v_readfirstlane_b32 s64, v10")
            e("s_sub_u32 s64, s64, s14")
            e("s_mov_b32 s65, 0")
            e(f"s_cmp_lt_i32 s64, {self.fbl - 16}")
            e("s_cselect_b32 s65, 1, s65")
            e(f"s_cmp_ge_i32 s64, {-self.fbl}")
            e("s_cselect_b32 s65, 2, s65")
            e("v_mov_b32 v9, s65")
            e(f"ds_write_b32 v8, v9 offset:{MISC+28}")
            e(f"s_cmp_gt_u32 s13, {self.fbend}")
            e(f"s_cbranch_scc1 {L}")
            e.label(Lx)
        self.lds_wait(MISC + 16, "lg", 0, 8, 12)
        e.label("L_rgot")
        e("s_sub_u32 s12, s12, 1")
        e("s_cmp_ge_u32 s12, 98")
        if self.rorder == 2:
            e("s_cmp_ge_u32 s12, 42")
            e("s_cbranch_scc1 L_rord")
            e("s_add_u32 s12, s12, 14")
            e("s_cmp_lt_u32 s12, 42")
            e("s_cbranch_scc1 L_rord")
            e("s_sub_u32 s12, s12, 42")
            e.label("L_rord")
            e("s_cmp_ge_u32 s12, 98")
        if self.rorder == 1:
            e("s_cbranch_scc1 L_rord")
            e("s_sub_u32 s12, 97, s12")
            e.label("L_rord")
            e("s_cmp_ge_u32 s12, 98")
        if self.diag:
            e(f"s_mov_b32 s{ST0+22}, s12")
        e("s_cbranch_scc1 L_hdone")
        self.h_consts()
        e("s_cmp_lt_u32 s12, 14")
        e("s_cbranch_scc0 L_notc")
        self.stage_c()
        e.label("L_notc")
        e("s_sub_u32 s12, s12, 14")
        e("s_cmp_lt_u32 s12, 28")
        e("s_cbranch_scc0 L_notb")
        self.stage_b()
        e.label("L_notb")
        e("s_sub_u32 s12, s12, 28")
        e(f"s_mul_i32 s{S_HKV}, s12, 37")
        e(f"s_lshr_b32 s{S_HKV}, s{S_HKV}, 8")
        e(f"s_mul_i32 s64, s{S_HKV}, 7")
        e(f"s_sub_u32 s{S_SPL}, s12, s64")
        self.stage_a()
        e.label("L_hfail")
        e.label("L_hdone")
        self.endpgm()
        e.label("L_exit")
        e("s_endpgm")
        return e.text()

HEAD = """; Pre-LN GQA decode attention + GEGLU FFN in one persistent launch: 256 workgroups of 8 waves, one per CU.
;
; @launch grid=(256,1,1) block=(512,1,1) lds={lds}
.amdgcn_target "amdgcn-amd-amdhsa--gfx950"
.text
.globl {name}
.p2align 8
.type {name},@function
{name}:
"""
TAIL = """.section .rodata,"a"
.p2align 6
.amdhsa_kernel {name}
  .amdhsa_next_free_vgpr 256
  .amdhsa_next_free_sgpr 102
  .amdhsa_accum_offset 256
  .amdhsa_group_segment_fixed_size 0
  .amdhsa_kernarg_size 96
  .amdhsa_user_sgpr_count 2
  .amdhsa_user_sgpr_kernarg_segment_ptr 1
  .amdhsa_system_sgpr_workgroup_id_x 1
.end_amdhsa_kernel
"""

def make(path, **kw):
    g = Gen(**kw)
    body = g.build()
    if g.hf != "sc1": body = body.replace(" sc1\n", f" {g.hf}\n").replace("sc0 sc0", "sc0")
    open(path, "w").write(HEAD.format(lds=LDS_SIZE, name=NAME) + body + TAIL.format(name=NAME))
    return g

if __name__ == "__main__":
    import argparse
    ap = argparse.ArgumentParser()
    ap.add_argument("out")
    ap.add_argument("--diag", action="store_true")
    ap.add_argument("--npro", type=int, default=40)
    ap.add_argument("--kvflags", default="nt")
    ap.add_argument("--wflags", default="nt")
    ap.add_argument("--qflags", default="nt")
    ap.add_argument("--noroles", action="store_true")
    ap.add_argument("--athr", type=int, default=13)
    ap.add_argument("--gsleep", type=int, default=4)
    ap.add_argument("--winfl", type=int, default=6)
    ap.add_argument("--dist", type=int, default=12)
    ap.add_argument("--thr", type=int, default=6)
    ap.add_argument("--vflags", default=None)
    ap.add_argument("--rot", type=int, default=2)
    ap.add_argument("--nt", type=int, default=32)
    ap.add_argument("--thrp", type=int, default=6)
    ap.add_argument("--npl", type=int, default=40)
    ap.add_argument("--gthr", type=int, default=32)
    ap.add_argument("--psleep", type=int, default=0)
    ap.add_argument("--hf", default="sc1")
    ap.add_argument("--nset", type=int, default=1)
    ap.add_argument("--pgap", type=int, default=2)
    ap.add_argument("--thr2", type=int, default=9)
    ap.add_argument("--nl2", type=int, default=0)
    ap.add_argument("--lateb", type=int, default=1)
    ap.add_argument("--latec", type=int, default=1)
    ap.add_argument("--winfl2", type=int, default=8)
    ap.add_argument("--qsleep", type=int, default=8)
    ap.add_argument("--qsleep0", type=int, default=32)
    ap.add_argument("--latea", type=int, default=0)
    ap.add_argument("--tstride", type=int, default=0)
    ap.add_argument("--otouch", type=int, default=0)
    ap.add_argument("--seq", type=int, default=1)
    ap.add_argument("--wtouch", type=int, default=0)
    ap.add_argument("--gpos", type=int, default=1)
    ap.add_argument("--dbgtime", type=int, default=0)
    ap.add_argument("--trig2", type=int, default=1)
    ap.add_argument("--fb", type=int, default=0)
    ap.add_argument("--fbhi", type=int, default=7)
    ap.add_argument("--fblo", type=int, default=5)
    ap.add_argument("--fbl", type=int, default=5)
    ap.add_argument("--fbend", type=int, default=3)
    ap.add_argument("--ns", type=int, default=0)
    ap.add_argument("--rp", type=int, default=0)
    ap.add_argument("--rorder", type=int, default=1)
    ap.add_argument("--nosoft", action="store_true")
    ap.add_argument("--noq", action="store_true")
    ap.add_argument("--trig", type=int, default=3)
    ap.add_argument("--aspec", type=int, default=6)
    a = ap.parse_args()
    g = make(a.out, diag=a.diag, npro=a.npro, kvflags=a.kvflags, wflags=a.wflags, qflags=a.qflags, noroles=a.noroles, athr=a.athr, gsleep=a.gsleep, winfl=a.winfl, dist=a.dist, nosoft=a.nosoft, noq=a.noq, trig=a.trig, aspec=a.aspec, thr=a.thr, vflags=a.vflags, rot=a.rot, nt=a.nt, thrp=a.thrp, npl=a.npl, gthr=a.gthr, psleep=a.psleep, hf=a.hf, nset=a.nset, pgap=a.pgap, thr2=a.thr2, nl2=a.nl2, lateb=a.lateb, latec=a.latec, winfl2=a.winfl2, qsleep=a.qsleep, qsleep0=a.qsleep0, latea=a.latea, rorder=a.rorder, tstride=a.tstride, otouch=a.otouch, seq=a.seq, wtouch=a.wtouch, gpos=a.gpos, dbgtime=a.dbgtime, trig2=a.trig2, fb=a.fb, fbhi=a.fbhi, fblo=a.fblo, fbl=a.fbl, fbend=a.fbend, ns=a.ns, rp=a.rp)
    print("pads inserted:", g.e.npad, "lines:", len(g.e.lines))
```

```python
import sys, struct, math
from emit import Emitter

NAME = "sequential_preLN__gqa_block_cached__geglu_ffn__decode_kernel"
def f2u(x): return struct.unpack("<I", struct.pack("<f", x))[0]

EPOCH = 0
QBUF = 0x140000
HBUF = 0x12000
YBUF = 0xc0000
YCP = 0x8000
GBUF = 0x100000
GCP = 0x4000
PBUF = 0x40000
CNTB = 0x1c0000
STAMP = 0x200000
WS_SIZE = 0x400000
QL = 0x0100
MISC = 0x0080
SML = 0x0000
STATS = 0x0600
AV = 0x0800
AVS = 1056
RED = 0x2A00
SO = 0x3000
STG = 0x5000
STGW = 28 * 1024
LDS_SIZE = STG + 4 * STGW

CSC = f2u(0.0625 * math.log2(math.e))
GOLD = 0x9E3779B9
TIMEOUT = 300000

S_WAVE, S_GRP, S_SPL, S_B, S_HKV, S_HW, S_TAG = 3, 4, 5, 6, 7, 8, 9
P_X, P_K, P_V, P_WQ, P_WO, P_BX, P_WG, P_WU, P_WD, P_OUT, P_DBG, P_WS = [16 + 2 * i for i in range(12)]
R_K, R_V, R_WS, R_W, R_X, R_W2 = 40, 44, 48, 52, 56, 60
S_C = 10
S_TO = 11
ST0 = 72
S_TM = 96

class Gen:
    def __init__(self, diag=False, npro=32, kvflags="nt", wflags="", qflags="", noroles=False, athr=13, gsleep=4, winfl=1, dist=8, nosoft=False, noq=False, trig=2, aspec=2, thr=5, vflags=None, rot=1, nt=32, thrp=6, npl=32, gthr=6, psleep=0, hf="sc1", nset=2, pgap=2, thr2=9, nl2=0, lateb=1, latec=1, winfl2=12, qsleep=8, qsleep0=16, latea=0, rorder=0, tstride=0, otouch=1, seq=0, wtouch=0, gpos=0, dbgtime=0, trig2=1, fb=0, fbhi=7, fblo=5, fbl=5, fbend=3, ns=0, rp=0, xcp=0):
        self.e = Emitter()
        self.diag = diag
        self.npro = npro
        self.kvflags = kvflags
        self.wflags = wflags
        self.qflags = qflags
        self.noroles = noroles
        self.athr = athr
        self.gsleep = gsleep
        self.winfl = winfl
        self.dist = dist
        self.nosoft = nosoft
        self.noq = noq
        self.trig = trig
        self.aspec = aspec
        self.thr = thr
        self.rot = rot
        self.nt = nt
        self.thrp = thrp
        self.npl = npl
        self.gthr = gthr
        self.psleep = psleep
        self.hf = hf
        self.nset = nset
        self.pgap = pgap
        self.thr2 = thr2
        self.nl2 = nl2
        self.lateb = lateb
        self.latec = latec
        self.winfl2 = winfl2
        self.qsleep = qsleep
        self.qsleep0 = qsleep0
        self.latea = latea
        self.rorder = rorder
        self.tstride = tstride
        self.otouch = otouch
        self.seq = seq
        self.wtouch = wtouch
        self.gpos = gpos
        self.dbgtime = dbgtime
        self.trig2 = trig2
        self.fb = fb
        self.fbhi = fbhi
        self.fblo = fblo
        self.fbl = fbl
        self.fbend = fbend
        self.ns = ns
        self.rp = rp
        self.xcp = xcp
        self.vflags = kvflags if vflags is None else vflags
        self.uid = 0
        self.in_h = False
    def lab(self, s):
        self.uid += 1
        return f"L_{s}_{self.uid}"
    def srd(self, r, p, size):
        e = self.e
        e(f"s_mov_b32 s{r}, s{p}")
        e(f"s_mov_b32 s{r+1}, s{p+1}")
        e(f"s_mov_b32 s{r+2}, {size}")
        e(f"s_mov_b32 s{r+3}, 0x20000")
    def stamp(self, i):
        if self.diag and i in (6, 7) and self.in_h:
            self.e(f"s_mov_b32 s{ST0+2*(i+3)}, s{S_TO}")
        if self.diag:
            self.e(f"s_memrealtime s[{ST0+2*i}:{ST0+2*i+1}]")
            self.e("s_waitcnt lgkmcnt(0)")
    def stamp_init(self):
        if self.diag:
            for i in range(12):
                self.e(f"s_mov_b64 s[{ST0+2*i}:{ST0+2*i+1}], 0")
    def stamp_flush(self):
        if not self.diag: return
        e = self.e
        e("s_mov_b64 exec, -1")
        e(f"s_lshl_b32 s64, s2, 3")
        e(f"s_add_u32 s64, s64, s{S_WAVE}")
        e(f"s_lshl_b32 s64, s64, 6")
        e(f"s_add_u32 s64, s64, {STAMP}")
        e(f"s_getreg_b32 s65, hwreg(HW_REG_XCC_ID)")
        e(f"s_getreg_b32 s66, hwreg(HW_REG_HW_ID)")
        for i in range(12):
            e(f"v_mov_b32 v{2+i}, s{ST0+2*i}")
        e("v_mov_b32 v14, s65")
        e("v_mov_b32 v15, s66")
        e("v_mov_b32 v16, 0")
        e("v_mov_b32 v17, 0")
        e("s_mov_b64 exec, 1")
        for i in range(4):
            e(f"buffer_store_dwordx4 v[{2+4*i}:{5+4*i}], off, s[{R_WS}:{R_WS+3}], s64 offset:{16*i}")
        e("s_waitcnt vmcnt(0)")
    def dbgt(self, slot, neg=False):
        if not self.dbgtime: return
        e = self.e
        e("s_memrealtime s[98:99]")
        e("s_waitcnt lgkmcnt(0)")
        if neg: e("s_not_b32 s98, s98")
        e(f"s_mov_b32 s92, s{P_DBG}"); e(f"s_mov_b32 s93, s{P_DBG+1}"); e("s_mov_b32 s94, 256"); e("s_mov_b32 s95, 0x20000")
        e("s_mov_b64 s[90:91], exec")
        e("s_mov_b64 exec, 1")
        e("v_mov_b32 v255, s98")
        e(f"buffer_atomic_umax v255, off, s[92:95], 0 offset:{4*slot} sc1")
        e("s_mov_b64 exec, s[90:91]")
    def endpgm(self):
        self.stamp_flush()
        self.e("s_endpgm")

    def rnd(self, v):
        self.e(f"v_cvt_pk_bf16_f32 v{v}, v{v}, v{v}")
        self.e(f"v_lshlrev_b32 v{v}, 16, v{v}")
    def rnd_many(self, vs):
        for v in vs: self.e(f"v_cvt_pk_bf16_f32 v{v}, v{v}, v{v}")
        for v in vs: self.e(f"v_lshlrev_b32 v{v}, 16, v{v}")
    def set_tag(self, src):
        self.e(f"s_add_u32 s{S_TAG}, s{src}, {GOLD:#x}")
        self.e(f"s_and_b32 s{S_TM}, s{S_TAG}, 0x3f")
    def tagw(self, dst, src, vmask):
        self.e(f"v_and_or_b32 v{dst}, v{src}, v{vmask}, s{S_TM}")
    def check_words(self, words, tmp, mant=True):
        e = self.e
        T = S_TM if mant else S_TAG
        acc = []
        n = len(words)
        for i in range(0, n - 1, 2):
            e(f"v_bitop3_b32 v{tmp+len(acc)}, v{words[i]}, v{words[i+1]}, s{T} bitop3:0x7e")
            acc.append(tmp + len(acc))
        if n % 2:
            e(f"v_xor_b32 v{tmp+len(acc)}, s{T}, v{words[-1]}")
            acc.append(tmp + len(acc))
        while len(acc) > 1:
            nxt = []
            while len(acc) >= 3:
                a, b, c = acc[:3]; acc = acc[3:]
                e(f"v_or3_b32 v{a}, v{a}, v{b}, v{c}"); nxt.append(a)
            if len(acc) == 2 and not nxt:
                e(f"v_or_b32 v{acc[0]}, v{acc[0]}, v{acc[1]}"); acc = [acc[0]]
            acc = nxt + acc
        if mant: e(f"v_and_b32 v{acc[0]}, 0x3f, v{acc[0]}")
        e(f"v_cmp_ne_u32 vcc, 0, v{acc[0]}")
    def sweep_all(self, loads, words, tmp, mant=True):
        e = self.e
        L = self.lab("sa"); Lx = self.lab("sax")
        e.label(L)
        if self.psleep: e(f"s_sleep {self.psleep}")
        for l in loads: e(l)
        e(f"s_sub_u32 s{S_TO}, s{S_TO}, 1")
        e("s_cbranch_scc1 L_hfail")
        e("s_waitcnt vmcnt(0)")
        self.check_words(words, tmp, mant)
        e(f"s_cbranch_vccnz {L}")
    def sweep_pipe(self, sets, tmp, mant, after, golabel):
        e = self.e
        n = len(sets); m = len(sets[0][0])
        L = self.lab("sp"); Lj = self.lab("spj")
        got = [self.lab("spg") for _ in sets]
        for i, (loads, words) in enumerate(sets):
            for l in loads: e(l)
            if i + 1 < n: e(f"s_sleep {self.pgap}")
        e.label(L)
        for i, (loads, words) in enumerate(sets):
            e(f"s_waitcnt vmcnt({m*(n-1)})")
            self.check_words(words, tmp, mant)
            e(f"s_cbranch_vccz {got[i]}")
            for l in loads: e(l)
        e(f"s_sub_u32 s{S_TO}, s{S_TO}, 1")
        e(f"s_cbranch_scc0 {L}")
        e("s_branch L_hfail")
        for i in reversed(range(n)):
            e.label(got[i])
            self.stamp(7)
            if i == 0: e.label(golabel)
            after(i)
            if i: e(f"s_branch {Lj}")
        e.label(Lj)
    def row_reduce(self, vs, op="add"):
        e = self.e
        for ctl in ("quad_perm:[1,0,3,2]", "quad_perm:[2,3,0,1]", "row_half_mirror", "row_mirror"):
            for v in vs:
                e(f"v_{op}_f32_dpp v{v}, v{v}, v{v} {ctl} row_mask:0xf bank_mask:0xf")
    def wave_sum_to_sgpr(self, vs, ss):
        e = self.e
        self.row_reduce(vs)
        for v in vs: e(f"v_add_f32_dpp v{v}, v{v}, v{v} row_bcast:15 row_mask:0xa bank_mask:0xf")
        for v in vs: e(f"v_add_f32_dpp v{v}, v{v}, v{v} row_bcast:31 row_mask:0xc bank_mask:0xf")
        for v, s in zip(vs, ss): e(f"v_readlane_b32 s{s}, v{v}, 63")
    def cross_rows(self, v, t, op):
        e = self.e
        e(f"v_mov_b32 v{t}, v{v}")
        e(f"v_permlane16_swap_b32 v{v}, v{t}")
        e(f"v_{op}_f32 v{v}, v{v}, v{t}")
        e(f"v_mov_b32 v{t}, v{v}")
        e(f"v_permlane32_swap_b32 v{v}, v{t}")
        e(f"v_{op}_f32 v{v}, v{v}, v{t}")

    def s_path(self):
        e = self.e
        KO0, KO1, VO = 2, 3, 4
        MK = 5
        MRUN, LRUN, NRUN = 9, 10, 11
        T = 12; PK = 16; MX, MX2, AL, ALD, NN = 18, 19, 20, 21, 22
        P = 24
        D0, D1, ACC0, ACC1, AF, QF, SLOT = 28, 32, 36, 40, 44, 60, 80
        S_BASE, S_O1, S_O2, S_CNT, S_R = 64, 65, 66, 67, 69
        PADDR = 0
        def tile_off(dst, t):
            e(f"s_add_u32 s{dst}, s{S_R}, {t*32768}")
            e(f"s_and_b32 s{dst}, s{dst}, 0xfffff")
            e(f"s_add_u32 s{dst}, s{dst}, s{S_BASE}")
        NT = self.ns if self.ns else self.nt
        e("v_and_b32 v12, 15, v1")
        e("v_lshrrev_b32 v13, 4, v1")
        e("v_and_b32 v14, 7, v12")
        e("v_lshrrev_b32 v15, 3, v12")
        e(f"v_lshlrev_b32 v{KO0}, 9, v14")
        e("v_lshl_add_u32 v16, v15, 2, v13")
        e(f"v_lshl_add_u32 v{KO0}, v16, 4, v{KO0}")
        e(f"v_add_u32 v{KO1}, 0x1000, v{KO0}")
        e(f"v_lshlrev_b32 v{VO}, 11, v13")
        e(f"v_lshl_add_u32 v{VO}, v12, 4, v{VO}")
        e("s_mov_b32 s68, 0")
        e(f"s_lshl_b32 s{S_BASE}, s2, 20")
        e(f"s_lshl_b32 s65, s{S_HW}, 13")
        e(f"s_add_u32 s{S_BASE}, s{S_BASE}, s65")
        if self.rot == 2: e(f"s_and_b32 s{S_R}, s2, 31")
        elif self.rot == 3:
            e(f"s_and_b32 s{S_R}, s2, 7"); e("s_lshr_b32 s65, s2, 6"); e("s_lshl_b32 s65, s65, 3"); e(f"s_or_b32 s{S_R}, s{S_R}, s65")
        elif self.rot == 4:
            e(f"s_and_b32 s{S_R}, s2, 7"); e(f"s_lshl_b32 s{S_R}, s{S_R}, 2"); e("s_lshr_b32 s65, s2, 6"); e(f"s_or_b32 s{S_R}, s{S_R}, s65")
        elif self.rot == 5: e(f"s_and_b32 s{S_R}, s2, 7")
        elif self.rot == 6:
            e(f"s_and_b32 s{S_R}, s2, 7"); e(f"s_lshl_b32 s{S_R}, s{S_R}, 2")
        elif self.rot == 7: e(f"s_and_b32 s{S_R}, s2, 24")
        elif self.rot == 8:
            e(f"s_and_b32 s{S_R}, s2, 15"); e(f"s_lshl_b32 s{S_R}, s{S_R}, 1")
        else: e(f"s_lshr_b32 s{S_R}, s2, 3")
        e(f"s_lshl_b32 s{S_R}, s{S_R}, {15 if self.rot else 20}")
        e("s_waitcnt lgkmcnt(0)")
        self.srd(R_K, P_K, 1 << 28)
        self.srd(R_V, P_V, 1 << 28)
        state = dict(issued=-1)
        def slot_regs(s): return f"v[{SLOT+4*s}:{SLOT+4*s+3}]"
        def issue(n, slot, soff):
            i = n % 16
            if self.seq: i = n % 8 + (8 if n >= 8 * NT else 0)
            if i < 8:
                G, j = i >> 2, i & 3
                e(f"buffer_load_dwordx4 {slot_regs(slot)}, v{KO0+G}, s[{R_K}:{R_K+3}], s{soff} offen offset:{j*128} {self.kvflags}")
            else:
                i -= 8
                e(f"buffer_load_dwordx4 {slot_regs(slot)}, v{VO}, s[{R_V}:{R_V+3}], s{soff} offen offset:{(i>>1)*512+(i&1)*256} {self.vflags}")
        npro = self.npro
        assert 16 <= npro <= 44
        for n in range(npro):
            if n % (8 if self.seq else 16) == 0:
                tile_off(S_O1, n // (8 if self.seq else 16))
            tp = self.thrp if n < self.npl else self.thr
            if n >= tp: e(f"s_waitcnt vmcnt({tp-1})")
            issue(n, n, S_O1)
            if n in ((5, 13) if self.ns else (5, 13, 19, 25)): self.stamp({5: 6, 13: 7, 19: 9, 25: 10}[n])
            if n == 7:
                self.stamp(4)
                self.srd(R_WS, P_WS, WS_SIZE)
                e(f"s_mov_b32 s{S_C}, {CSC:#x}")
                e("v_lshrrev_b32 v16, 1, v14")
                e("v_and_b32 v17, 1, v14")
                e("v_mov_b32 v18, 0xffff")
                e("v_lshlrev_b32 v17, 4, v17")
                e("v_lshlrev_b32 v18, v17, v18")
                for i in range(4):
                    e(f"v_cmp_eq_u32 vcc, {i}, v16")
                    e(f"v_cndmask_b32 v{MK+i}, 0, v18, vcc")
                e(f"v_mov_b32 v{MRUN}, 0xff800000")
                e(f"v_mov_b32 v{NRUN}, 0x7f800000")
                e(f"v_mov_b32 v{LRUN}, 0")
                for i in range(8): e(f"v_mov_b32 v{ACC0+i}, 0")
                e("v_bfe_u32 v16, v12, 2, 1")
                e("v_lshl_add_u32 v16, v16, 2, v13")
                e("v_lshlrev_b32 v23, 9, v15")
                e("v_lshl_add_u32 v23, v16, 4, v23")
                e("v_lshrrev_b32 v16, 1, v13")
                e("v_and_b32 v17, 1, v13")
                e("v_lshlrev_b32 v76, 10, v16")
                e("v_lshl_add_u32 v76, v12, 5, v76")
                e("v_lshl_add_u32 v76, v17, 4, v76")
                e(f"s_lshl_b32 s70, s{S_HW}, 11")
                e("v_add_u32 v76, s70, v76")
                e(f"s_lshl_b32 s70, s{S_HW}, 4")
                e("v_add_u32 v77, s70, v1")
                e("v_mov_b32 v78, 1")
                e("v_mov_b32 v79, 0")
                if self.seq:
                    e("v_lshl_add_u32 v20, v15, 2, v13")
                    e("v_lshlrev_b32 v20, 3, v20")
                    e(f"s_lshl_b32 s70, s{S_HW}, 11")
                    e("v_add_u32 v20, s70, v20")
                    e("v_mov_b32 v21, v20")
                    e(f"s_lshl_b32 s70, s{S_HW}, 2")
                    e(f"v_mov_b32 v{PADDR}, s70")
        self.stamp(5)
        if not self.noq: e("s_barrier")
        self.stamp(1)
        for j in range(4):
            e(f"ds_read_b128 v[{QF+4*j}:{QF+4*j+3}], v23 offset:{QL+j*128}")
        e(f"ds_read_b32 v23, v79 offset:{MISC}")
        e("s_waitcnt lgkmcnt(0)")
        e(f"v_readfirstlane_b32 s{S_TAG}, v23")

        def softmax(point):
            for r in range(4): e(f"v_permlane32_swap_b32 v{D0+r}, v{D1+r}")
            for r in range(4): e(f"v_add_f32_dpp v{T+r}, v{D1+r}, v{D0+r} row_half_mirror row_mask:0xf bank_mask:0x5")
            for r in range(4): e(f"v_add_f32_dpp v{T+r}, v{D0+r}, v{D1+r} row_half_mirror row_mask:0xf bank_mask:0xa")
            e(f"v_cvt_pk_bf16_f32 v{PK}, v{T}, v{T+1}")
            e(f"v_cvt_pk_bf16_f32 v{PK+1}, v{T+2}, v{T+3}")
            e(f"v_lshlrev_b32 v{T}, 16, v{PK}")
            e(f"v_and_b32 v{T+1}, 0xffff0000, v{PK}")
            e(f"v_lshlrev_b32 v{T+2}, 16, v{PK+1}")
            e(f"v_and_b32 v{T+3}, 0xffff0000, v{PK+1}")
            point()
            e(f"v_max3_f32 v{MX}, v{T}, v{T+1}, v{T+2}")
            e(f"v_max3_f32 v{MX}, v{MX}, v{T+3}, v{MRUN}")
            self.cross_rows(MX, MX2, "max")
            e(f"v_mov_b32 v{MRUN}, v{MX}")
            e(f"v_mul_f32 v{NN}, s{S_C}, v{MX}")
            e(f"v_sub_f32 v{AL}, 0, v{NN}")
            for r in range(4): e(f"v_fma_f32 v{P+r}, v{T+r}, s{S_C}, v{AL}")
            e(f"v_sub_f32 v{NN}, v{AL}, v{NRUN}")
            e(f"v_mov_b32 v{NRUN}, v{AL}")
            e(f"v_exp_f32 v{AL}, v{NN}")
            for r in range(4): e(f"v_exp_f32 v{P+r}, v{P+r}")
            point()
            e(f"v_mov_b32 v{ALD}, v{AL}")
            e(f"v_mul_f32 v{LRUN}, v{LRUN}, v{AL}")
            e(f"v_mov_b32_dpp v{ALD}, v{AL} row_shr:8 row_mask:0x3 bank_mask:0xc")
            e(f"v_mov_b32_dpp v{ALD}, v{AL} row_shl:8 row_mask:0xc bank_mask:0x3")
            for r in range(4): e(f"v_cvt_pk_bf16_f32 v{T+r}, v{P+r}, v{P+r}")
            e(f"v_add_f32 v{P}, v{P}, v{P+1}")
            e(f"v_add_f32 v{P+2}, v{P+2}, v{P+3}")
            for i in range(4): e(f"v_and_b32 v{AF+i}, v{T}, v{MK+i}")
            for i in range(8): e(f"v_mul_f32 v{ACC0+i}, v{ACC0+i}, v{ALD}")
            e(f"v_add_f32 v{P}, v{P}, v{P+2}")
            for r in range(1, 4):
                for i in range(4): e(f"v_and_b32 v{AF+4*r+i}, v{T+r}, v{MK+i}")
            e(f"v_add_f32 v{LRUN}, v{LRUN}, v{P}")

        if self.seq:
            d = self.dist; thr = self.thr
            NK = 8 * NT
            S_O3 = 70
            def slot_of(n): return n if n < npro else n % 16
            st = dict(k=npro)
            def unit(u, steady, par):
                isk = u < NT
                st["j"] = 0
                st["last"] = 8 * u - 1
                def point():
                    j = st["j"]; st["j"] += 1
                    k = st["k"]
                    want = 8 * u + d + j
                    prev = k - 16 if k - 16 >= npro else k % 16
                    if prev > st["last"]:
                        assert not steady
                        return
                    if k > want and j % 2 == 0: return
                    if steady:
                        assert k == want
                        so = (S_O1, S_O2, S_O3)[k // 8 - (u - par) - 1]
                    else:
                        if st.get("so") != k // 8:
                            tile_off(S_O2, k // 8)
                            st["so"] = k // 8
                        so = S_O2
                    if steady and self.fb:
                        Ls = self.lab("t")
                        e(f"s_waitcnt vmcnt({self.fbhi-1})")
                        e(f"s_cbranch_scc1 {Ls}")
                        e.skippable(f"s_waitcnt vmcnt({thr-1})")
                        e.skippable(f"s_cbranch_vccz {Ls}")
                        e.skippable(f"s_waitcnt vmcnt({self.fblo-1})")
                        e.label(Ls)
                    else:
                        e(f"s_waitcnt vmcnt({thr-1})")
                    issue(k, slot_of(k), so)
                    st["k"] = k + 1
                if not isk:
                    SC = 16 + 2 * par
                    e("s_waitcnt lgkmcnt(0)")
                    e(f"ds_read_b64 v[{18-2*par}:{19-2*par}], v21 offset:{SO + 64*(par+1)}")
                    e(f"v_lshlrev_b32 v{T}, 16, v{SC}")
                    e(f"v_and_b32 v{T+1}, 0xffff0000, v{SC}")
                    e(f"v_lshlrev_b32 v{T+2}, 16, v{SC+1}")
                    e(f"v_and_b32 v{T+3}, 0xffff0000, v{SC+1}")
                    for r in range(4): e(f"v_fma_f32 v{P+r}, v{T+r}, s{S_C}, v{NRUN}")
                    for r in range(4): e(f"v_exp_f32 v{P+r}, v{P+r}")
                    for r in range(4): e(f"v_cvt_pk_bf16_f32 v{T+r}, v{P+r}, v{P+r}")
                    point()
                    for i in range(4): e(f"v_and_b32 v{AF+i}, v{T}, v{MK+i}")
                    e(f"v_add_f32 v{P}, v{P}, v{P+1}")
                    e(f"v_add_f32 v{P+2}, v{P+2}, v{P+3}")
                    for r in range(1, 4):
                        for i in range(4): e(f"v_and_b32 v{AF+4*r+i}, v{T+r}, v{MK+i}")
                    e(f"v_add_f32 v{P}, v{P}, v{P+2}")
                    e(f"v_add_f32 v{LRUN}, v{LRUN}, v{P}")
                for i in range(8):
                    n = 8 * u + i
                    w = st["k"] - 1 - n
                    assert w >= 0
                    if w < max(thr, self.fbhi if self.fb else 0) or not steady: e(f"s_waitcnt vmcnt({min(63, w)})")
                    if isk:
                        G, j = i >> 2, i & 3
                        D = D0 if G == 0 else D1
                        c = "0" if j == 0 else f"v[{D}:{D+3}]"
                        e(f"v_mfma_f32_16x16x32_bf16 v[{D}:{D+3}], {slot_regs(slot_of(n))}, v[{QF+4*j}:{QF+4*j+3}], {c}")
                    else:
                        j, hf = i >> 1, i & 1
                        A = ACC0 if hf == 0 else ACC1
                        e(f"v_mfma_f32_16x16x32_bf16 v[{A}:{A+3}], v[{AF+4*j}:{AF+4*j+3}], {slot_regs(slot_of(n))}, v[{A}:{A+3}]")
                    st["last"] = n
                    if i != 7 or isk: point()
                if isk:
                    for r in range(4): e(f"v_permlane32_swap_b32 v{D0+r}, v{D1+r}")
                    for r in range(4): e(f"v_add_f32_dpp v{T+r}, v{D1+r}, v{D0+r} row_half_mirror row_mask:0xf bank_mask:0x5")
                    for r in range(4): e(f"v_add_f32_dpp v{T+r}, v{D0+r}, v{D1+r} row_half_mirror row_mask:0xf bank_mask:0xa")
                    e(f"v_cvt_pk_bf16_f32 v{PK}, v{T}, v{T+1}")
                    e(f"v_cvt_pk_bf16_f32 v{PK+1}, v{T+2}, v{T+3}")
                    e(f"v_max3_f32 v{MRUN}, v{T}, v{T+1}, v{MRUN}")
                    e(f"ds_write_b64 v20, v[{PK}:{PK+1}] offset:{SO + (64*par if steady else 64*u)}")
                    e(f"v_max3_f32 v{MRUN}, v{T+2}, v{T+3}, v{MRUN}")
            def offsets(last_oob, skip=0):
                if self.diag:
                    e("s_memrealtime s[98:99]"); e("s_waitcnt lgkmcnt(0)")
                    e("s_mov_b32 m0, s100"); e("s_nop 0")
                    e("v_writelane_b32 v254, s98, m0"); e("s_add_u32 s100, s100, 1")
                for i, so in enumerate((S_O1, S_O2, S_O3)):
                    e(f"s_add_u32 s{so}, s{S_R}, {i*32768}")
                    e(f"s_and_b32 s{so}, s{so}, 0xfffff")
                    e(f"s_add_u32 s{so}, s{so}, s{S_BASE}")
                    if i == 0 and skip: e(f"s_add_u32 s{S_R}, s{S_R}, {skip}")
                e(f"s_add_u32 s{S_R}, s{S_R}, 65536")
                if last_oob:
                    e(f"s_cmp_eq_u32 s{S_CNT}, 1")
                    e(f"s_cselect_b32 s{S_O2}, 0x80000000, s{S_O2}")
                    e(f"s_cselect_b32 s{S_O3}, 0x80000000, s{S_O3}")
            def top(bias):
                if self.fb:
                    e("s_waitcnt lgkmcnt(0)")
                    e("v_readfirstlane_b32 s71, v22")
                if bias: e(f"s_add_u32 s72, s{S_CNT}, {bias}") if not self.diag else e(f"s_add_u32 s97, s{S_CNT}, {bias}")
                src = (f"s72" if not self.diag else "s97") if bias else f"s{S_CNT}"
                e(f"v_mov_b32 v23, {src}")
                e(f"ds_write_b32 v28, v23 offset:{MISC+32}") if False else e(f"ds_write_b32 v{PADDR}, v23 offset:{MISC+32}")
                if self.fb:
                    e(f"ds_read_b32 v22, v79 offset:{MISC+28}")
                    e("s_cmp_eq_u32 s71, 1")
                    e("s_cselect_b64 vcc, -1, 0")
                    e("s_cmp_eq_u32 s71, 2")
            assert 8 < d <= 16
            if self.diag: e("s_mov_b32 s100, 0"); e("v_mov_b32 v254, 0")
            u = 0
            while not (st["k"] - 8 * u == d and 8 * u >= npro and u % 2 == 0):
                unit(u, False, 0)
                u += 1
            ufirst = u
            self.stamp(8)
            if self.fb: e("v_mov_b32 v22, 0")
            e(f"s_add_u32 s{S_R}, s{S_R}, {(ufirst+1)*32768}")
            e(f"v_add_u32 v20, {64*ufirst}, v20")
            e(f"s_mov_b32 s{S_CNT}, {(NT-ufirst)//2 - 1}")
            L = self.lab("kloop")
            e.label(L)
            offsets(False)
            if self.fb: top(NT // 2 + 1)
            unit(ufirst, True, 0); unit(ufirst + 1, True, 1)
            e("v_add_u32 v20, 128, v20")
            e(f"s_sub_u32 s{S_CNT}, s{S_CNT}, 1")
            e(f"s_cmp_lg_u32 s{S_CNT}, 0")
            e(f"s_cbranch_scc1 {L}")
            offsets(False, (32 - NT) * 32768 if self.ns else 0)
            if self.fb: top(NT // 2 + 1)
            st["k"] = 8 * (NT - 2) + d
            unit(NT - 2, True, 0); unit(NT - 1, True, 1)
            e(f"ds_read_b64 v[16:17], v21 offset:{SO}")
            self.cross_rows(MRUN, MX2, "max")
            self.rnd(MRUN)
            e(f"v_mul_f32 v{NRUN}, s{S_C}, v{MRUN}")
            e(f"v_sub_f32 v{NRUN}, 0, v{NRUN}")
            e(f"s_mov_b32 s{S_CNT}, {NT//2}")
            L = self.lab("vloop")
            e.label(L)
            offsets(True)
            top(0)
            PN = 16 * (32 - NT) * 4
            def claim():
                Ln = self.lab("ncl")
                e(f"v_mov_b32 v240, {PN}")
                e("s_cmp_eq_u32 s12, 0")
                e(f"s_cbranch_scc1 {Ln}")
                e.skippable("s_sub_u32 s12, s12, 1")
                e.skippable("v_mov_b32 v240, 1")
                e.skippable("s_mov_b64 exec, 1")
                e.skippable(f"buffer_atomic_add v240, off, s[{R_WS}:{R_WS+3}], s14 sc0 sc1")
                e.skippable("s_mov_b64 exec, -1")
                e.label(Ln)
            if self.ns:
                assert self.rot == 2 and not self.fb
                Lk = self.lab("ncp")
                e(f"s_cmp_lg_u32 s{S_CNT}, 1")
                e(f"s_cbranch_scc1 {Lk}")
                e(f"ds_read_b32 v240, v79 offset:{MISC+16}")
                e("s_lshr_b32 s14, s2, 4")
                e("s_lshl_b32 s14, s14, 8")
                e(f"s_add_u32 s14, s14, {CNTB}")
                e("s_waitcnt lgkmcnt(0)")
                e("v_readfirstlane_b32 s12, v240")
                e("s_sub_u32 s12, s12, 1")
                e("s_cmp_lt_u32 s12, 98")
                e(f"s_cselect_b32 s12, {self.rp}, {PN + 1}")
                claim()
                e.label(Lk)
            unit(NT, True, 0); unit(NT + 1, True, 1)
            e("v_add_u32 v21, 128, v21")
            e(f"s_sub_u32 s{S_CNT}, s{S_CNT}, 1")
            e(f"s_cmp_lg_u32 s{S_CNT}, 0")
            e(f"s_cbranch_scc1 {L}")
            e("s_waitcnt lgkmcnt(0)")
            if self.ns:
                self.stamp(9)
                Lp = self.lab("pool"); Lq = self.lab("poolx")
                e.label(Lp)
                e("s_waitcnt vmcnt(0)")
                e("v_readfirstlane_b32 s13, v240")
                e(f"s_cmp_ge_u32 s13, {PN}")
                e(f"s_cbranch_scc1 {Lq}")
                e("s_bfe_u32 s15, s13, 0x40002")
                e("s_lshr_b32 s65, s13, 6")
                e("s_add_u32 s65, s65, s15")
                e("s_and_b32 s66, s2, 16")
                e("s_add_u32 s65, s65, s66")
                e(f"s_add_u32 s65, s65, {NT}")
                e("s_and_b32 s65, s65, 31")
                e("s_lshl_b32 s65, s65, 15")
                e("s_lshl_b32 s15, s15, 20")
                e("s_add_u32 s65, s65, s15")
                e("s_and_b32 s15, s13, 3")
                e("s_lshl_b32 s15, s15, 13")
                e("s_add_u32 s65, s65, s15")
                e("s_lshr_b32 s15, s2, 4")
                e("s_lshl_b32 s15, s15, 24")
                e("s_add_u32 s65, s65, s15")
                claim()
                for i in range(8): issue(i, i, S_O1)
                for i in range(8): issue(8 * NT + i, 8 + i, S_O1)
                for i in range(8):
                    G, j = i >> 2, i & 3
                    D = D0 if G == 0 else D1
                    c = "0" if j == 0 else f"v[{D}:{D+3}]"
                    e(f"s_waitcnt vmcnt({15-i})")
                    e(f"v_mfma_f32_16x16x32_bf16 v[{D}:{D+3}], {slot_regs(i)}, v[{QF+4*j}:{QF+4*j+3}], {c}")
                softmax(lambda: None)
                for i in range(8):
                    j, hf = i >> 1, i & 1
                    A = ACC0 if hf == 0 else ACC1
                    e(f"s_waitcnt vmcnt({7-i})")
                    e(f"v_mfma_f32_16x16x32_bf16 v[{A}:{A+3}], v[{AF+4*j}:{AF+4*j+3}], {slot_regs(8+i)}, v[{A}:{A+3}]")
                if self.diag: e(f"s_add_u32 s{ST0+20}, s{ST0+20}, 1")
                e(f"s_branch {Lp}")
                e.label(Lq)
                e.fence(8)
            if self.diag:
                e("s_lshl_b32 s98, s2, 2"); e(f"s_add_u32 s98, s98, s{S_HW}"); e("s_lshl_b32 s98, s98, 8"); e(f"s_add_u32 s98, s98, {STAMP + 0x40000}")
                e("v_lshlrev_b32 v23, 2, v1")
                e(f"buffer_store_dword v254, v23, s[{R_WS}:{R_WS+3}], s98 offen")
        else:
            d = self.dist
            NL = NT * 16
            def slot_of(n): return n if n < npro else n % 16
            def consume(n):
                i = n % 16
                if i < 8:
                    G, j = i >> 2, i & 3
                    D = D0 if G == 0 else D1
                    c = "0" if j == 0 else f"v[{D}:{D+3}]"
                    e(f"v_mfma_f32_16x16x32_bf16 v[{D}:{D+3}], {slot_regs(slot_of(n))}, v[{QF+4*j}:{QF+4*j+3}], {c}")
                else:
                    i -= 8
                    j, hf = i >> 1, i & 1
                    A = ACC0 if hf == 0 else ACC1
                    e(f"v_mfma_f32_16x16x32_bf16 v[{A}:{A+3}], v[{AF+4*j}:{AF+4*j+3}], {slot_regs(slot_of(n))}, v[{A}:{A+3}]")
            st = dict(k=npro)
            def tile(t, steady, thr=None):
                thr = self.thr if thr is None else thr
                st["j"] = 0
                st["last"] = 16 * t - 1
                def point():
                    j = st["j"]; st["j"] += 1
                    k = st["k"]
                    want = 16 * t + d + j
                    prev = k - 16 if k - 16 >= npro else k % 16
                    if prev > st["last"]:
                        assert not steady
                        return
                    if k > want and j % 2 == 0: return
                    if steady:
                        assert k == want
                        so = S_O1 if k // 16 == t else S_O2
                    else:
                        if st.get("so") != k // 16:
                            tile_off(S_O2, k // 16)
                            st["so"] = k // 16
                        so = S_O2
                    e(f"s_waitcnt vmcnt({thr-1})")
                    issue(k, slot_of(k), so)
                    st["k"] = k + 1
                for i in range(16):
                    n = 16 * t + i
                    if i == 8: softmax(point)
                    w = st["k"] - 1 - n
                    assert w >= 0
                    if w < thr or not steady: e(f"s_waitcnt vmcnt({min(63, w)})")
                    consume(n)
                    st["last"] = n
                    if i % 8 != 7: point()
            t = 0
            while not (st["k"] - 16 * t == d and 16 * t >= npro):
                tile(t, False)
                t += 1
            tfirst = t
            self.stamp(8)
            tile_off(S_O1, tfirst)
            e(f"s_add_u32 s{S_R}, s{S_R}, {tfirst*32768}")
            e(f"s_mov_b32 s{S_CNT}, {NT-tfirst}")
            for thr, stop in ([(self.thr, self.nl2), (self.thr2, 0)] if self.nl2 else [(self.thr, 0)]):
                L = self.lab("sloop")
                e.label(L)
                e(f"s_add_u32 s{S_R}, s{S_R}, 32768")
                e(f"s_and_b32 s{S_O2}, s{S_R}, 0xfffff")
                e(f"s_add_u32 s{S_O2}, s{S_O2}, s{S_BASE}")
                e(f"v_mov_b32 v23, s{S_CNT}")
                e(f"s_cmp_eq_u32 s{S_CNT}, 1")
                e(f"s_cselect_b32 s{S_O2}, 0x80000000, s{S_O2}")
                e(f"ds_write_b32 v79, v23 offset:{MISC+12}")
                st["k"] = 16 * tfirst + d
                tile(tfirst, True, thr)
                e(f"s_mov_b32 s{S_O1}, s{S_O2}")
                e(f"s_sub_u32 s{S_CNT}, s{S_CNT}, 1")
                e(f"s_cmp_lg_u32 s{S_CNT}, {stop}")
                e(f"s_cbranch_scc1 {L}")
        self.stamp(2)
        self.cross_rows(LRUN, MX2, "add")
        e(f"ds_write_b128 v76, v[{ACC0}:{ACC0+3}] offset:{SO}")
        e(f"ds_write_b128 v76, v[{ACC1}:{ACC1+3}] offset:{SO+512}")
        e("s_mov_b64 exec, 0x101")
        e(f"ds_write2_b32 v77, v{NRUN}, v{LRUN} offset0:{SML//4} offset1:{SML//4+1}") if SML // 4 + 1 < 256 else None
        e("s_mov_b64 exec, 1")
        e(f"ds_add_rtn_u32 v22, v79, v78 offset:{MISC+4}")
        e("s_mov_b64 exec, -1")
        e("s_waitcnt lgkmcnt(0)")
        e("v_readfirstlane_b32 s64, v22")
        e("s_cmp_eq_u32 s64, 3")
        Ld = self.lab("slast")
        e(f"s_cbranch_scc1 {Ld}")
        self.endpgm()
        e.label(Ld)
        e("s_waitcnt vmcnt(0)")
        e.label("L_sfinal")
        e("v_mov_b32 v20, 0")
        e("v_lshlrev_b32 v22, 4, v1")
        for w in range(4):
            e(f"ds_read_b128 v[{24+4*w}:{27+4*w}], v20 offset:{SML+16*w}")
        OB = 80
        for h in range(2):
            for w in range(4):
                r = OB + (h * 4 + w) * 4
                e(f"ds_read_b128 v[{r}:{r+3}], v22 offset:{SO + w*2048 + h*1024}")
        e(f"s_and_b32 s{S_TM}, s{S_TAG}, 0x3f")
        e("v_mov_b32 v21, 0xffffffc0")
        e("s_waitcnt lgkmcnt(8)")
        for h in range(2):
            n = [24 + 4 * w + 2 * h for w in range(4)]
            e(f"v_min3_f32 v{40+h}, v{n[0]}, v{n[1]}, v{n[2]}")
            e(f"v_min_f32 v{40+h}, v{40+h}, v{n[3]}")
        for h in range(2):
            for w in range(4):
                e(f"v_sub_f32 v{44+4*h+w}, v{40+h}, v{24+4*w+2*h}")
        for i in range(8): e(f"v_exp_f32 v{44+i}, v{44+i}")
        for h in range(2):
            e(f"v_mul_f32 v{42+h}, v{44+4*h}, v{25+2*h}")
        for w in range(1, 4):
            for h in range(2):
                e(f"v_fmac_f32 v{42+h}, v{44+4*h+w}, v{25+4*w+2*h}")
        for h in range(2): e(f"v_rcp_f32 v{52+h}, v{42+h}")
        for h in range(2): e(f"v_log_f32 v{54+h}, v{42+h}")
        for h in range(2):
            for w in range(4): e(f"v_mul_f32 v{44+4*h+w}, v{44+4*h+w}, v{52+h}")
        for h in range(2): e(f"v_sub_f32 v{54+h}, v{54+h}, v{40+h}")
        e(f"s_lshl_b32 s64, s2, 11")
        e(f"s_add_u32 s64, s64, {PBUF}")
        for h in range(2):
            e(f"s_waitcnt lgkmcnt({4-4*h})")
            o = 56 + 4 * h
            for i in range(4): e(f"v_mul_f32 v{o+i}, v{44+4*h}, v{OB+h*16+i}")
            for w in range(1, 4):
                for i in range(4): e(f"v_fmac_f32 v{o+i}, v{44+4*h+w}, v{OB+h*16+w*4+i}")
            for i in range(4): self.tagw(o + i, o + i, 21)
        e("v_cmp_eq_u32 vcc, 1, v1")
        e("v_cndmask_b32 v72, v54, v55, vcc")
        e(f"v_mov_b32 v73, s{S_TAG}")
        e("v_lshlrev_b32 v23, 11, v1")
        e("s_lshl_b32 s65, s2, 3")
        e(f"s_add_u32 s65, s65, {HBUF}")
        e("s_cmp_eq_u32 s68, 1")
        e("s_cbranch_scc1 L_sfinal_back")
        for h in range(2):
            o = 56 + 4 * h
            e(f"buffer_store_dwordx4 v[{o}:{o+3}], v22, s[{R_WS}:{R_WS+3}], s64 offen offset:{h*1024} sc1")
        e("s_mov_b64 exec, 3")
        e(f"buffer_store_dwordx2 v[72:73], v23, s[{R_WS}:{R_WS+3}], s65 offen sc1")
        e(f"ds_add_u32 v79, v78 offset:{MISC+4}")
        self.dbgt(34)
        self.stamp(3)
        self.endpgm()

    def h_consts(self):
        e = self.e
        e("v_and_b32 v4, 15, v1")
        e("v_lshrrev_b32 v5, 4, v1")
        e("v_lshrrev_b32 v6, 2, v4")
        e("v_lshl_add_u32 v6, v5, 3, v6")
        e("v_and_b32 v7, 3, v4")
        e("v_lshlrev_b32 v7, 3, v7")
        e("v_and_b32 v8, 1, v1")
        e(f"v_mul_u32_u24 v8, {AVS}, v8")
        e("v_lshl_add_u32 v3, v5, 4, v8")
    def tr_addr(self, lgpitch, sbase):
        e = self.e
        e(f"v_lshl_add_u32 v2, v6, {lgpitch}, v7")
        e(f"v_add_u32 v2, s{sbase}, v2")
    def dma_voff(self, rowbytes, lgpitch, vout):
        e = self.e
        sh = lgpitch - 4
        e(f"v_lshrrev_b32 v{vout}, {sh}, v1")
        e(f"v_mul_u32_u24 v{vout}, {rowbytes}, v{vout}")
        e(f"v_and_b32 v{vout+1}, {(1<<sh)-1}, v1")
        e(f"v_lshl_add_u32 v{vout}, v{vout+1}, 4, v{vout}")
    def dma_loop(self, srd, voff, n, s_src, src_step, s_dst, inflight=None):
        e = self.e
        L = self.lab("dma")
        inflight = self.winfl_cur
        e(f"s_mov_b32 s66, {n}")
        e.label(L)
        e(f"s_mov_b32 m0, s{s_dst}")
        e(f"s_add_u32 s{s_dst}, s{s_dst}, 1024")
        e(f"buffer_load_dwordx4 v{voff}, s[{srd}:{srd+3}], s{s_src} offen {self.wflags} lds")
        e(f"s_add_u32 s{s_src}, s{s_src}, {src_step}")
        if inflight < 32: e(f"s_waitcnt vmcnt({inflight-1})")
        e("s_sub_u32 s66, s66, 1")
        e("s_cmp_lg_u32 s66, 0")
        e(f"s_cbranch_scc1 {L}")
    def h_sync(self):
        e = self.e
        L = self.lab("hs"); Lx = self.lab("hsx")
        e("s_waitcnt vmcnt(0)")
        e("v_mov_b32 v8, 0")
        e("v_mov_b32 v9, 1")
        e("s_mov_b64 exec, 1")
        e(f"ds_add_u32 v8, v9 offset:{MISC+8}")
        e("s_mov_b64 exec, -1")
        e.label(L)
        e(f"ds_read_b32 v9, v8 offset:{MISC+8}")
        e("s_waitcnt lgkmcnt(0)")
        e("v_readfirstlane_b32 s64, v9")
        e("s_cmp_ge_u32 s64, 4")
        e(f"s_cbranch_scc1 {Lx}")
        e("s_sleep 2")
        e(f"s_sub_u32 s{S_TO}, s{S_TO}, 1")
        e(f"s_cbranch_scc0 {L}")
        e(f"s_branch L_hfail")
        e.label(Lx)
    def tr_frags(self, nsteps, off, fbase, lgpitch):
        e = self.e
        for st in range(nsteps):
            f = fbase + 4 * st
            o = off + st * (32 << lgpitch)
            assert o + (4 << lgpitch) < 65536
            e(f"ds_read_b64_tr_b16 v[{f}:{f+1}], v2 offset:{o}")
            e(f"ds_read_b64_tr_b16 v[{f+2}:{f+3}], v2 offset:{o + (4 << lgpitch)}")
            if st % 4 == 3: e("s_waitcnt lgkmcnt(0)")
        e("s_waitcnt lgkmcnt(0)")
    def gemv(self, nsteps, abase, a_lds_off, chains, vaddr=3, ahead=12):
        e = self.e
        AHEAD = ahead
        def rd(st): e(f"ds_read_b128 v[{abase+4*st}:{abase+4*st+3}], v{vaddr} offset:{a_lds_off+st*64}")
        issued = min(nsteps, AHEAD)
        for st in range(issued): rd(st)
        for st in range(nsteps):
            e(f"s_waitcnt lgkmcnt({issued - 1 - st})")
            for D, fb in chains:
                c = "0" if st == 0 else f"v[{D}:{D+3}]"
                e(f"v_mfma_f32_16x16x32_bf16 v[{D}:{D+3}], v[{abase+4*st}:{abase+4*st+3}], v[{fb+4*st}:{fb+4*st+3}], {c}")
            if issued < nsteps:
                rd(issued); issued += 1
    def lds_wait(self, off, cmp, val, sleep=4, sreg=64):
        e = self.e
        L = self.lab("lw"); Lx = self.lab("lwx")
        e("v_mov_b32 v8, 0")
        e.label(L)
        e(f"ds_read_b32 v9, v8 offset:{off}")
        e("s_waitcnt lgkmcnt(0)")
        e(f"v_readfirstlane_b32 s{sreg}, v9")
        e(f"s_cmp_{cmp}_u32 s{sreg}, {val}")
        e(f"s_cbranch_scc1 {Lx}")
        e(f"s_sleep {sleep}")
        e(f"s_sub_u32 s{S_TO}, s{S_TO}, 1")
        e(f"s_cbranch_scc0 {L}")
        e(f"s_branch L_hfail")
        e.label(Lx)
    def lds_set(self, off, src):
        e = self.e
        e("v_mov_b32 v8, 0")
        e(f"v_mov_b32 v9, {src}")
        e(f"ds_write_b32 v8, v9 offset:{off}")
    def bar(self):
        e = self.e
        L = self.lab("nb")
        e("s_cmp_eq_u32 s68, 1")
        e(f"s_cbranch_scc1 {L}")
        e("s_barrier")
        e.label(L)
    def gate_all(self):
        e = self.e
        L = self.lab("gate"); Lx = self.lab("gatex"); Lo = self.lab("gateo"); Le = self.lab("gatee")
        e(f"s_cmp_lg_u32 s{S_HW}, 0")
        e(f"s_cbranch_scc1 {Lo}")
        e("v_lshlrev_b32 v8, 5, v1")
        e(f"s_mov_b32 s64, {HBUF}")
        e.label(L)
        e(f"buffer_load_dwordx4 v[40:43], v8, s[{R_WS}:{R_WS+3}], s64 offen sc1")
        e(f"buffer_load_dwordx4 v[44:47], v8, s[{R_WS}:{R_WS+3}], s64 offen offset:16 sc1")
        e("s_waitcnt vmcnt(0)")
        e(f"v_xor_b32 v41, s{S_TAG}, v41")
        e(f"v_xor_b32 v43, s{S_TAG}, v43")
        e(f"v_xor_b32 v45, s{S_TAG}, v45")
        e(f"v_xor_b32 v47, s{S_TAG}, v47")
        e("v_or3_b32 v41, v41, v43, v45")
        e("v_or_b32 v41, v41, v47")
        e("v_cmp_ne_u32 vcc, 0, v41")
        e("s_bcnt1_i32_b64 s65, vcc")
        e(f"s_cmp_le_u32 s65, {self.gthr}")
        e(f"s_cbranch_scc1 {Lx}")
        e("s_mov_b64 exec, vcc")
        e(f"s_sleep {self.gsleep}")
        e(f"s_sub_u32 s{S_TO}, s{S_TO}, 1")
        e(f"s_cbranch_scc0 {L}")
        e(f"s_branch L_hfail")
        e.label(Lx)
        e("s_mov_b64 exec, -1")
        self.lds_set(MISC + 20, 1)
        e(f"s_branch {Le}")
        e.label(Lo)
        self.lds_wait(MISC + 20, "eq", 1, 2)
        e.label(Le)
    def xcc(self, dst, stride):
        e = self.e
        if self.xcp:
            e(f"s_getreg_b32 s{dst}, hwreg(HW_REG_XCC_ID)")
            e(f"s_and_b32 s{dst}, s{dst}, 7")
            e(f"s_mul_i32 s{dst}, s{dst}, {stride}")
        else:
            e(f"s_mov_b32 s{dst}, 0")
    def ybases(self):
        self.xcc(47, YCP)
        for k in range(8): self.e(f"s_add_u32 s{40+k}, s47, {YBUF + k*3584}")
    def ln_finish(self, mean, var, out_mb, out_rs):
        e = self.e
        for m, o in zip(mean, out_mb):
            if m != o: e(f"v_mov_b32 v{o}, v{m}")
        self.rnd_many(list(out_mb) + list(var))
        for v in var: e(f"v_add_f32 v{v}, {f2u(1e-5):#x}, v{v}")
        self.rnd_many(var)
        for v in var: e(f"v_sqrt_f32 v{v}, v{v}")
        self.rnd_many(var)
        for v, o in zip(var, out_rs): e(f"v_rcp_f32 v{o}, v{v}")

    def q_path(self):
        e = self.e
        e("v_lshlrev_b32 v8, 4, v1")
        e("v_cmp_gt_u32 s[70:71], 56, v1")
        e("v_mov_b32 v9, 0x10000")
        e("v_cndmask_b32 v8, v9, v8, s[70:71]")
        e(f"buffer_load_dwordx4 v[12:15], v8, s[{R_X}:{R_X+3}], 0 offen")
        e(f"buffer_load_dwordx4 v[16:19], v8, s[{R_X}:{R_X+3}], 0 offen offset:896")
        e(f"buffer_load_dword v10, off, s[{R_WS}:{R_WS+3}], 0 offset:{EPOCH} sc1")
        e(f"s_and_b32 s12, s{S_SPL}, 3")
        e(f"s_lshr_b32 s13, s{S_SPL}, 2")
        e(f"s_lshl_b32 s64, s{S_B}, 2")
        e("s_add_u32 s13, s13, s64")
        e(f"s_mul_i32 s64, s12, {112*8192}")
        e(f"s_lshl_b32 s65, s{S_HKV}, 10")
        e("s_add_u32 s64, s64, s65")
        e("s_lshl_b32 s65, s13, 7")
        e("s_add_u32 s64, s64, s65")
        self.srd(R_W, P_WQ, 448 * 8192)
        self.dma_voff(8192, 7, 20)
        for st in range(14):
            e(f"s_mov_b32 m0, {STG + st*1024}")
            if st: e(f"s_add_u32 s64, s64, {8*8192}")
            e(f"buffer_load_dwordx4 v20, s[{R_W}:{R_W+3}], s64 offen {self.qflags} lds")
        self.stamp(9)
        self.h_consts()
        e("v_mov_b32 v20, 0")
        e("v_mov_b32 v21, 0")
        e("v_mov_b32 v21, 0x7fff")
        e(f"ds_write_b64 v20, v[20:21] offset:{MISC+8}")
        e("v_mov_b32 v21, 0")
        e(f"ds_write_b64 v20, v[20:21] offset:{MISC+16}")
        e(f"ds_write_b32 v20, v20 offset:{MISC+4}")
        e(f"ds_write_b32 v20, v20 offset:{MISC+28}")
        e("v_mov_b32 v21, 0x7fff")
        e(f"ds_write_b32 v20, v21 offset:{MISC+32}")
        if self.fb or self.ns:
            Lz = self.lab("nz")
            e(f"s_cmp_lg_u32 s{S_SPL}, 0")
            e(f"s_cbranch_scc1 {Lz}")
            e(f"s_lshl_b32 s64, s{S_GRP}, 8")
            e(f"s_add_u32 s64, s64, {CNTB}")
            e("s_mov_b64 exec, 1")
            e(f"buffer_store_dword v20, off, s[{R_WS}:{R_WS+3}], s64 sc1")
            e("s_mov_b64 exec, -1")
            e.label(Lz)
        e("s_waitcnt vmcnt(15)")
        self.stamp(10)
        for b in range(2):
            for i in range(4):
                e(f"v_lshlrev_b32 v{24+8*b+2*i}, 16, v{12+4*b+i}")
                e(f"v_and_b32 v{25+8*b+2*i}, 0xffff0000, v{12+4*b+i}")
        for b in range(2):
            x = 24 + 8 * b
            e(f"v_add_f32 v{40+b}, v{x}, v{x+1}")
            for i in range(2, 8): e(f"v_add_f32 v{40+b}, v{40+b}, v{x+i}")
        self.wave_sum_to_sgpr([40, 41], [64, 65])
        inv = f2u(1.0 / 448)
        for b in range(2):
            e(f"v_mov_b32 v{42+b}, {inv:#x}")
            e(f"v_mul_f32 v{42+b}, s{64+b}, v{42+b}")
        for b in range(2):
            x = 24 + 8 * b
            e(f"v_sub_f32 v44, v{x}, v{42+b}")
            e(f"v_mul_f32 v{40+b}, v44, v44")
            for i in range(1, 8):
                e(f"v_sub_f32 v44, v{x+i}, v{42+b}")
                e(f"v_fmac_f32 v{40+b}, v44, v44")
            e(f"v_cndmask_b32 v{40+b}, 0, v{40+b}, s[70:71]")
        self.wave_sum_to_sgpr([40, 41], [64, 65])
        for b in range(2):
            e(f"v_mov_b32 v{44+b}, {inv:#x}")
            e(f"v_mul_f32 v{44+b}, s{64+b}, v{44+b}")
        self.ln_finish([42, 43], [44, 45], [42, 43], [46, 47])
        for b in range(2):
            x = 24 + 8 * b
            for i in range(8): e(f"v_sub_f32 v{x+i}, v{x+i}, v{42+b}")
            for i in range(4): e(f"v_cvt_pk_bf16_f32 v{12+4*b+i}, v{x+2*i}, v{x+2*i+1}")
            for i in range(4):
                e(f"v_lshlrev_b32 v{x+2*i}, 16, v{12+4*b+i}")
                e(f"v_and_b32 v{x+2*i+1}, 0xffff0000, v{12+4*b+i}")
            for i in range(8): e(f"v_mul_f32 v{x+i}, v{x+i}, v{46+b}")
            for i in range(4): e(f"v_cvt_pk_bf16_f32 v{12+4*b+i}, v{x+2*i}, v{x+2*i+1}")
        e("v_lshlrev_b32 v8, 4, v1")
        e("s_mov_b64 exec, s[70:71]")
        e(f"ds_write_b128 v8, v[12:15] offset:{AV}")
        e(f"ds_write_b128 v8, v[16:19] offset:{AV+AVS}")
        e("s_mov_b64 exec, -1")
        e("s_waitcnt vmcnt(14)")
        e("v_readfirstlane_b32 s64, v10")
        self.set_tag(64)
        e(f"v_mov_b32 v21, s{S_TAG}")
        e(f"ds_write_b32 v20, v21 offset:{MISC}")
        e("s_waitcnt vmcnt(0) lgkmcnt(0)")
        self.stamp(1)
        e(f"s_mov_b32 s64, {STG}")
        self.tr_addr(7, 64)
        e("s_mul_i32 s64, s12, 224")
        e("v_add_u32 v9, s64, v3")
        for st in range(4): e(f"ds_read_b128 v[{128+4*st}:{131+4*st}], v9 offset:{AV+st*64}")
        for cg in range(4): self.tr_frags(4, cg * 32, 64 + 16 * cg, 7)
        e("v_cmp_gt_u32 vcc, 32, v1")
        for i in range(4): e(f"v_cndmask_b32 v{140+i}, 0, v{140+i}, vcc")
        for cg in range(4):
            for i in range(4): e(f"v_cndmask_b32 v{76+16*cg+i}, 0, v{76+16*cg+i}, vcc")
        for st in range(4):
            for cg in range(4):
                D = 144 + 4 * cg
                c = "0" if st == 0 else f"v[{D}:{D+3}]"
                e(f"v_mfma_f32_16x16x32_bf16 v[{D}:{D+3}], v[{128+4*st}:{131+4*st}], v[{64+16*cg+4*st}:{67+16*cg+4*st}], {c}")
        e("v_cmp_lt_u32 s[64:65], 15, v1")
        e("v_cmp_lt_u32 s[66:67], 31, v1")
        e("v_cmp_lt_u32 vcc, 47, v1")
        e(f"v_mov_b32 v53, s{S_TAG}")
        e(f"v_mov_b32 v55, s{S_TAG}")
        e("v_lshlrev_b32 v8, 3, v1")
        for b in range(2):
            e(f"v_cndmask_b32 v{52+2*b}, v{144+b}, v{148+b}, s[64:65]")
        for b in range(2):
            e(f"v_cndmask_b32 v{52+2*b}, v{52+2*b}, v{152+b}, s[66:67]")
        for b in range(2):
            e(f"v_cndmask_b32 v{52+2*b}, v{52+2*b}, v{156+b}, vcc")
        e(f"s_lshl_b32 s64, s{S_HKV}, 14")
        e("s_lshl_b32 s65, s12, 12")
        e("s_add_u32 s64, s64, s65")
        e("s_lshl_b32 s65, s13, 9")
        e("s_add_u32 s64, s64, s65")
        e(f"s_add_u32 s64, s64, {QBUF}")
        e(f"s_add_u32 s65, s64, {8*16384}")
        e(f"buffer_store_dwordx2 v[52:53], v8, s[{R_WS}:{R_WS+3}], s64 offen sc1")
        e(f"buffer_store_dwordx2 v[54:55], v8, s[{R_WS}:{R_WS+3}], s65 offen sc1")
        self.lds_set(MISC + 24, f"s{S_TAG}")
        self.stamp(2)

    def q_gather(self):
        e = self.e
        e("v_lshlrev_b32 v8, 4, v1")
        e(f"s_lshl_b32 s13, s{S_GRP}, 14")
        e(f"s_lshl_b32 s64, s{S_HW}, 10")
        e("s_add_u32 s13, s13, s64")
        e(f"s_add_u32 s13, s13, {QBUF}")
        for k in range(1, 4): e(f"s_add_u32 s{64+k}, s13, {k*4096}")
        qld = [f"buffer_load_dwordx4 v[{24+4*k}:{27+4*k}], v8, s[{R_WS}:{R_WS+3}], s{64+k if k else 13} offen sc1" for k in range(4)]
        e(f"s_sleep {self.qsleep0}")
        for l in qld: e(l)
        for k in range(4):
            L = self.lab("qp"); Lx = self.lab("qpx")
            e.label(L)
            e("s_waitcnt vmcnt(0)")
            self.check_words([25 + 4 * k, 27 + 4 * k], 40, mant=False)
            e(f"s_cbranch_vccz {Lx}")
            e(f"s_sleep {self.qsleep}")
            e(qld[k])
            e(f"s_sub_u32 s{S_TO}, s{S_TO}, 1")
            e(f"s_cbranch_scc0 {L}")
            e("s_branch L_hfail")
            e.label(Lx)
        e("v_add_f32 v24, v24, v28")
        e("v_add_f32 v26, v26, v30")
        e("v_add_f32 v32, v32, v36")
        e("v_add_f32 v34, v34, v38")
        e("v_add_f32 v24, v24, v32")
        e("v_add_f32 v26, v26, v34")
        e("v_cvt_pk_bf16_f32 v24, v24, v26")
        e("v_lshlrev_b32 v8, 2, v1")
        e(f"s_lshl_b32 s64, s{S_HW}, 8")
        e("v_add_u32 v8, s64, v8")
        e(f"ds_write_b32 v8, v24 offset:{QL}")
        e("s_waitcnt lgkmcnt(0)")

    def stage_a(self):
        e = self.e
        FB, PB = 64, 128
        if self.latea == 1: self.lds_wait(MISC + 4, "ge", 5, 2)
        if self.latea >= 2: self.lds_wait(MISC + 32, "le", self.latea - 1, 4)
        self.winfl_cur = self.winfl2 if self.latea else self.winfl
        self.srd(R_W, P_WO, 4096 * 896)
        e(f"s_mul_i32 s64, s{S_HKV}, {512*896}")
        e(f"s_lshl_b32 s65, s{S_SPL}, 7")
        e("s_add_u32 s64, s64, s65")
        e(f"s_mul_i32 s65, s{S_HW}, {128*896}")
        e("s_add_u32 s64, s64, s65")
        e(f"s_lshl_b32 s65, s{S_HW}, 14")
        e(f"s_add_u32 s65, s65, {STG}")
        self.dma_voff(896, 7, 20)
        self.dma_loop(R_W, 20, 16, 64, 8 * 896, 65)
        self.h_sync()
        e(f"s_lshl_b32 s64, s{S_HW}, 5")
        e(f"s_add_u32 s64, s64, {STG}")
        self.tr_addr(7, 64)
        self.tr_frags(16, 0, FB, 7)
        self.stamp(4)
        e(f"s_lshr_b32 s12, s{S_HW}, 1")
        e(f"s_and_b32 s13, s{S_HW}, 1")
        e("s_lshl_b32 s14, s12, 3")
        e(f"s_add_u32 s14, s14, s{S_HKV}")
        e("s_lshl_b32 s15, s14, 15")
        e("s_lshl_b32 s64, s13, 10")
        e("s_add_u32 s15, s15, s64")
        e(f"s_add_u32 s15, s15, {PBUF}")
        e("s_lshl_b32 s64, s13, 11")
        e("s_lshl_b32 s14, s14, 7")
        e("s_add_u32 s14, s14, s64")
        e(f"s_add_u32 s14, s14, {HBUF}")
        e("v_lshlrev_b32 v5, 4, v1")
        e("v_lshlrev_b32 v6, 3, v4")
        e(f"s_mul_i32 s64, s12, {AVS}")
        e("s_lshl_b32 s65, s13, 9")
        e("s_add_u32 s64, s64, s65")
        e("v_lshlrev_b32 v7, 3, v1")
        e("v_add_u32 v7, s64, v7")
        e("v_lshlrev_b32 v18, 3, v1")
        if self.xcp:
            e("v_lshrrev_b32 v18, 4, v1")
            e(f"v_mul_u32_u24 v18, {YCP}, v18")
            e("v_lshl_add_u32 v18, v4, 3, v18")
        e("v_mov_b32 v19, 0xffffffc0")
        e(f"s_mul_i32 s52, s{S_HKV}, {448*8}")
        e(f"s_lshl_b32 s65, s{S_SPL}, 9")
        e("s_add_u32 s52, s52, s65")
        e(f"s_lshl_b32 s65, s{S_HW}, 7")
        e("s_add_u32 s52, s52, s65")
        e(f"s_add_u32 s52, s52, {YBUF}")
        e(f"s_add_u32 s53, s52, {4*YCP}")
        e("s_mov_b32 s68, 1")
        e("s_branch L_a_go")
        e.label("L_a_poll")
        e("s_mov_b32 s68, 0")
        self.stamp(5)
        self.stamp(6)
        NB = self.aspec
        L = self.lab("asw"); Lz = self.lab("anl"); Li = self.lab("ais"); Lc = self.lab("ack")
        e("s_mov_b32 s69, 0xffff")
        e("s_mov_b32 s70, 0")
        e("v_mov_b32 v12, 0xff800000")
        for i in range(13, 18): e(f"v_mov_b32 v{i}, 0")
        e.label(L)
        e(f"buffer_load_dwordx2 v[10:11], v6, s[{R_WS}:{R_WS+3}], s14 offen sc1")
        for i in range(NB):
            r = PB + 4 * i
            e(f"s_ff1_i32_b32 s{40+i}, s70")
            e(f"s_cmp_lt_i32 s{40+i}, 0")
            e(f"s_cbranch_scc1 {Li}")
            e(f"s_lshl_b32 s64, s{40+i}, 11")
            e(f"s_bitset0_b32 s70, s{40+i}")
            e("s_add_u32 s64, s64, s15")
            e(f"buffer_load_dwordx4 v[{r}:{r+3}], v5, s[{R_WS}:{R_WS+3}], s64 offen sc1")
        e.label(Li)
        e("s_waitcnt vmcnt(0)")
        e(f"v_cmp_eq_u32 s[66:67], s{S_TAG}, v11")
        for i in range(NB):
            r = PB + 4 * i
            nx = self.lab("anx")
            e(f"s_cmp_lt_i32 s{40+i}, 0")
            e(f"s_cbranch_scc1 {Lc}")
            e(f"v_readlane_b32 s64, v10, s{40+i}")
            self.check_words([r, r + 2], 28)
            e(f"s_cbranch_vccnz {nx}")
            e(f"s_bitcmp1_b32 s66, s{40+i}")
            e(f"s_cbranch_scc0 {nx}")
            e("v_max_f32 v28, s64, v12")
            e("v_sub_f32 v24, v12, v28")
            e("v_sub_f32 v26, s64, v28")
            e("v_exp_f32 v24, v24")
            e("v_exp_f32 v26, v26")
            e("v_mov_b32 v12, v28")
            e(f"s_bitset0_b32 s69, s{40+i}")
            e("v_pk_mul_f32 v[14:15], v[14:15], v[24:25] op_sel_hi:[1,0]")
            e("v_pk_mul_f32 v[16:17], v[16:17], v[24:25] op_sel_hi:[1,0]")
            e("v_fma_f32 v13, v13, v24, v26")
            e(f"v_pk_fma_f32 v[14:15], v[{r}:{r+1}], v[26:27], v[14:15] op_sel_hi:[1,0,1]")
            e(f"v_pk_fma_f32 v[16:17], v[{r+2}:{r+3}], v[26:27], v[16:17] op_sel_hi:[1,0,1]")
            e.label(nx)
        e.label(Lc)
        e("s_cmp_eq_u32 s69, 0")
        e("s_cbranch_scc1 L_a_got")
        e("s_and_b32 s70, s69, s66")
        e("s_bcnt1_i32_b32 s64, s69")
        e(f"s_cmp_le_u32 s64, {NB}")
        e("s_cselect_b32 s70, s69, s70")
        e("s_cmp_lg_u32 s70, 0")
        e(f"s_cbranch_scc1 {Lz}")
        e(f"s_sleep {self.gsleep}")
        e.label(Lz)
        e(f"s_sub_u32 s{S_TO}, s{S_TO}, 1")
        e(f"s_cbranch_scc0 {L}")
        e("s_branch L_hfail")
        e.label("L_a_got")
        self.stamp(7)
        e.label("L_a_go")
        e("v_rcp_f32 v24, v13")
        e("v_pk_mul_f32 v[14:15], v[14:15], v[24:25] op_sel_hi:[1,0]")
        e("v_pk_mul_f32 v[16:17], v[16:17], v[24:25] op_sel_hi:[1,0]")
        e("v_cvt_pk_bf16_f32 v14, v14, v15")
        e("v_cvt_pk_bf16_f32 v15, v16, v17")
        e(f"ds_write_b64 v7, v[14:15] offset:{AV}")
        e("s_waitcnt lgkmcnt(0)")
        self.bar()
        self.gemv(16, PB + 64, AV, [(20, FB)])
        self.tagw(24, 20, 19)
        self.tagw(25, 21, 19)
        e("s_cmp_eq_u32 s68, 1")
        e("s_cbranch_scc1 L_a_poll")
        if self.xcp:
            e(f"buffer_store_dwordx2 v[24:25], v18, s[{R_WS}:{R_WS+3}], s52 offen sc1")
            e(f"buffer_store_dwordx2 v[24:25], v18, s[{R_WS}:{R_WS+3}], s53 offen sc1")
        else:
            e("s_mov_b64 exec, 0xffff")
            e(f"buffer_store_dwordx2 v[24:25], v18, s[{R_WS}:{R_WS+3}], s52 offen sc1")
        self.stamp(8)
        self.endpgm()

    def stage_b(self):
        e = self.e
        FG, FU, GB = 64, 120, 176
        UPO = 448 * 128
        self.srd(R_W, P_WG, 448 * 3584)
        self.srd(R_W2, P_WU, 448 * 3584)
        if self.wtouch:
            e(f"v_mul_u32_u24 v20, {7*3584}, v1")
            e("s_lshl_b32 s64, s12, 7")
            e(f"s_bitcmp1_b32 s{S_HW}, 1")
            Lw = self.lab("wt"); e(f"s_cbranch_scc1 {Lw}")
            e(f"s_bitcmp1_b32 s{S_HW}, 0")
            La = self.lab("wt"); e(f"s_cbranch_scc1 {La}")
            e(f"buffer_load_dword v21, v20, s[{R_W}:{R_W+3}], s64 offen nt")
            e(f"s_branch {Lw}")
            e.label(La)
            e(f"buffer_load_dword v21, v20, s[{R_W2}:{R_W2+3}], s64 offen nt")
            e.label(Lw)
        e(f"s_mul_i32 s64, s{S_HW}, 56")
        e("v_min_u32 v5, 55, v1")
        e("v_add_u32 v5, s64, v5")
        e("v_cmp_gt_u32 s[70:71], 56, v1")
        e("v_lshlrev_b32 v14, 2, v5")
        e(f"buffer_load_dword v16, v14, s[{R_X}:{R_X+3}], 0 offen")
        e(f"buffer_load_dword v17, v14, s[{R_X}:{R_X+3}], 0 offen offset:896")
        e("v_lshlrev_b32 v5, 4, v5")
        e("s_waitcnt vmcnt(0)")
        e("v_and_b32 v18, 0xffff0000, v16")
        e("v_and_b32 v19, 0xffff0000, v17")
        e("v_lshlrev_b32 v16, 16, v16")
        e("v_lshlrev_b32 v17, 16, v17")
        self.ybases()
        e(f"s_lshl_b32 s64, s{S_HW}, 4")
        e("v_mov_b32 v10, s64")
        e("v_and_b32 v11, 7, v1")
        e("v_lshlrev_b32 v11, 4, v11")
        e("v_lshlrev_b32 v12, 3, v1")
        if self.xcp:
            e("v_lshrrev_b32 v12, 4, v1")
            e(f"v_mul_u32_u24 v12, {GCP}, v12")
            e("v_lshl_add_u32 v12, v4, 3, v12")
        e("v_and_b32 v8, 16, v1")
        e("v_cmp_ne_u32 s[56:57], 0, v8")
        e("s_lshl_b32 s13, s12, 9")
        e(f"s_lshl_b32 s64, s{S_HW}, 7")
        e("s_add_u32 s13, s13, s64")
        e(f"s_add_u32 s13, s13, {GBUF}")
        e(f"s_add_u32 s58, s13, {4*GCP}")
        e(f"s_mov_b32 s14, {f2u(0.044715):#x}")
        e(f"s_mov_b32 s15, {f2u(112.0):#x}")
        e(f"v_mov_b32 v35, s{S_TAG}")
        e("s_mov_b32 s68, 1")
        e("s_branch L_b_go")
        e.label("L_b_poll")
        e("s_mov_b32 s68, 0")
        self.srd(R_W, P_WG, 448 * 3584)
        if self.lateb == 1: self.lds_wait(MISC + 4, "ge", 5, 2)
        if self.lateb >= 2: self.lds_wait(MISC + 32, "le", self.lateb - 1, 4)
        self.winfl_cur = self.winfl2 if self.lateb else self.winfl
        e("s_waitcnt vmcnt(0)")
        self.dma_voff(3584, 7, 20)
        for m_, srd_ in enumerate((R_W, R_W2)):
            e("s_lshl_b32 s64, s12, 7")
            e(f"s_mul_i32 s65, s{S_HW}, {112*3584}")
            e("s_add_u32 s64, s64, s65")
            e(f"s_mul_i32 s65, s{S_HW}, {112*128}")
            e(f"s_add_u32 s65, s65, {STG + m_*UPO}")
            self.dma_loop(srd_, 20, 14, 64, 8 * 3584, 65)
        self.stamp(5)
        if self.gpos == 0: self.gate_all()
        self.h_sync()
        e(f"s_lshl_b32 s64, s{S_HW}, 5")
        e(f"s_add_u32 s64, s64, {STG}")
        self.tr_addr(7, 64)
        self.tr_frags(14, 0, FG, 7)
        e(f"v_add_u32 v2, {UPO}, v2")
        self.tr_frags(14, 0, FU, 7)
        self.stamp(4)
        if self.gpos == 1: self.gate_all()
        self.stamp(6)
        self.sweep_all([f"buffer_load_dwordx4 v[{GB+4*k}:{GB+4*k+3}], v5, s[{R_WS}:{R_WS+3}], s{40+k} offen sc1" for k in range(8)],
                       [GB + 2 * i for i in range(16)], 240)
        self.stamp(7)
        e.label("L_b_go")
        for k in range(1, 8):
            for j in (0, 2):
                a = GB + j if k == 1 else 20 + j
                e(f"v_pk_add_f32 v[{20+j}:{21+j}], v[{a}:{a+1}], v[{GB+4*k+j}:{GB+4*k+j+1}]")
        def rnd4():
            e("v_cvt_pk_bf16_f32 v24, v20, v21")
            e("v_cvt_pk_bf16_f32 v25, v22, v23")
            e("v_lshlrev_b32 v20, 16, v24")
            e("v_and_b32 v21, 0xffff0000, v24")
            e("v_lshlrev_b32 v22, 16, v25")
            e("v_and_b32 v23, 0xffff0000, v25")
        rnd4()
        e("v_pk_add_f32 v[20:21], v[20:21], v[16:17]")
        e("v_pk_add_f32 v[22:23], v[22:23], v[18:19]")
        rnd4()
        for b in range(2): e(f"v_readfirstlane_b32 s{66+b}, v{20+b}")
        e("v_pk_add_f32 v[36:37], v[20:21], s[66:67] neg_lo:[0,1] neg_hi:[0,1]")
        e("v_pk_add_f32 v[38:39], v[22:23], s[66:67] neg_lo:[0,1] neg_hi:[0,1]")
        for b in range(2): e(f"v_mov_b32 v{24+4*b}, s{66+b}")
        for b in range(2): e(f"v_add_f32 v{25+4*b}, v{36+b}, v{38+b}")
        for b in range(2): e(f"v_mul_f32 v{26+4*b}, v{36+b}, v{36+b}")
        for b in range(2): e(f"v_fmac_f32 v{26+4*b}, v{38+b}, v{38+b}")
        red = [25, 29, 26, 30]
        for v in red: e(f"v_cndmask_b32 v{v}, 0, v{v}, s[70:71]")
        self.row_reduce(red)
        for v in red: e(f"v_add_f32_dpp v{v}, v{v}, v{v} row_bcast:15 row_mask:0xa bank_mask:0xf")
        for v in red: e(f"v_add_f32_dpp v{v}, v{v}, v{v} row_bcast:31 row_mask:0xc bank_mask:0xf")
        e("s_mov_b64 exec, 0x8000000000000000") if False else None
        e("s_mov_b32 exec_lo, 0")
        e("s_mov_b32 exec_hi, 0x80000000")
        e(f"ds_write_b96 v10, v[24:26] offset:{STATS}")
        e(f"ds_write_b96 v10, v[28:30] offset:{STATS+64}")
        e("s_mov_b64 exec, -1")
        e("s_waitcnt lgkmcnt(0)")
        self.bar()
        e(f"ds_read_b96 v[24:26], v11 offset:{STATS}")
        e("s_waitcnt lgkmcnt(0)")
        e(f"v_mul_f32 v27, {f2u(1.0/112):#x}, v25")
        e("v_add_f32 v24, v24, v27")
        e("v_fma_f32 v26, -v27, v25, v26")
        e("v_add_f32_dpp v28, v24, v24 quad_perm:[1,0,3,2] row_mask:0xf bank_mask:0xf")
        e("v_add_f32_dpp v28, v28, v28 quad_perm:[2,3,0,1] row_mask:0xf bank_mask:0xf")
        e(f"v_mul_f32 v28, {f2u(0.25):#x}, v28")
        e("v_sub_f32 v24, v24, v28")
        e("v_mul_f32 v24, v24, v24")
        e("v_fmac_f32 v26, s15, v24")
        e("v_add_f32_dpp v26, v26, v26 quad_perm:[1,0,3,2] row_mask:0xf bank_mask:0xf")
        e("v_add_f32_dpp v26, v26, v26 quad_perm:[2,3,0,1] row_mask:0xf bank_mask:0xf")
        e(f"v_mul_f32 v26, {f2u(1.0/448):#x}, v26")
        e("v_cvt_pk_bf16_f32 v27, v28, v26")
        e("v_and_b32 v26, 0xffff0000, v27")
        e("v_lshlrev_b32 v28, 16, v27")
        e(f"v_add_f32 v26, {f2u(1e-5):#x}, v26")
        e("v_readlane_b32 s52, v28, 0")
        e("v_readlane_b32 s53, v28, 4")
        self.rnd(26)
        e("v_pk_add_f32 v[20:21], v[20:21], s[52:53] neg_lo:[0,1] neg_hi:[0,1]")
        e("v_sqrt_f32 v26, v26")
        e("v_pk_add_f32 v[22:23], v[22:23], s[52:53] neg_lo:[0,1] neg_hi:[0,1]")
        self.rnd(26)
        e("v_cvt_pk_bf16_f32 v24, v20, v21")
        e("v_rcp_f32 v26, v26")
        e("v_cvt_pk_bf16_f32 v25, v22, v23")
        e("v_lshlrev_b32 v20, 16, v24")
        e("v_readlane_b32 s54, v26, 0")
        e("v_readlane_b32 s55, v26, 4")
        e("v_and_b32 v21, 0xffff0000, v24")
        e("v_lshlrev_b32 v22, 16, v25")
        e("v_and_b32 v23, 0xffff0000, v25")
        e("v_pk_mul_f32 v[20:21], v[20:21], s[54:55]")
        e("v_pk_mul_f32 v[22:23], v[22:23], s[54:55]")
        for b in range(2): e(f"v_cvt_pk_bf16_f32 v{20+b}, v{20+b}, v{22+b}")
        e(f"ds_write_b32 v14, v20 offset:{AV}")
        e(f"ds_write_b32 v14, v21 offset:{AV+AVS}")
        e("s_waitcnt lgkmcnt(0)")
        self.bar()
        self.gemv(14, GB, AV, [(24, FG), (28, FU)])
        e("v_cndmask_b32 v24, v24, v25, s[56:57]")
        e("v_cndmask_b32 v29, v28, v29, s[56:57]")
        e("v_cvt_pk_bf16_f32 v29, v24, v29")
        e("v_lshlrev_b32 v28, 16, v29")
        e("v_and_b32 v29, 0xffff0000, v29")
        k0 = math.sqrt(2.0 / math.pi)
        c1 = f2u(-2.0 * k0 * math.log2(math.e))
        e("v_mul_f32 v32, v28, v28")
        e("v_mul_f32 v32, v32, v28")
        e("v_fma_f32 v32, v32, s14, v28")
        e(f"v_mul_f32 v32, {c1:#x}, v32")
        e("v_exp_f32 v32, v32")
        e("v_add_f32 v32, 1.0, v32")
        e("v_rcp_f32 v32, v32")
        e("v_mul_f32 v32, v32, v28")
        self.rnd(32)
        e("v_mul_f32 v32, v32, v29")
        e("v_mov_b32 v33, v32")
        e("v_permlane16_swap_b32 v32, v33")
        e("v_cvt_pk_bf16_f32 v34, v32, v33")
        e("s_cmp_eq_u32 s68, 1")
        e("s_cbranch_scc1 L_b_poll")
        if self.xcp:
            e(f"buffer_store_dwordx2 v[34:35], v12, s[{R_WS}:{R_WS+3}], s13 offen sc1")
            e(f"buffer_store_dwordx2 v[34:35], v12, s[{R_WS}:{R_WS+3}], s58 offen sc1")
        else:
            e("s_mov_b64 exec, 0xffff")
            e(f"buffer_store_dwordx2 v[34:35], v12, s[{R_WS}:{R_WS+3}], s13 offen sc1")
        self.stamp(8)
        self.endpgm()

    def stage_c(self):
        e = self.e
        F0, F1, GB = 64, 120, 176
        self.srd(R_W, P_WD, 1792 * 896)
        self.srd(R_W2, P_OUT, 2 * 448 * 2)
        if self.wtouch:
            e(f"v_mul_u32_u24 v20, {28*896}, v1")
            e("s_lshl_b32 s64, s12, 6")
            e(f"s_cmp_lg_u32 s{S_HW}, 0")
            Lw = self.lab("wt"); e(f"s_cbranch_scc1 {Lw}")
            e(f"buffer_load_dword v21, v20, s[{R_W}:{R_W+3}], s64 offen nt")
            e.label(Lw)
        e(f"s_mul_i32 s65, s{S_HW}, {STGW}")
        e(f"s_add_u32 s65, s65, {STG}")
        self.tr_addr(6, 65)
        e("v_and_b32 v5, 31, v1")
        e("v_lshrrev_b32 v6, 5, v1")
        e("s_lshl_b32 s64, s12, 5")
        e("v_add_u32 v7, s64, v5")
        e("v_mul_u32_u24 v14, 448, v6")
        e("v_add_lshl_u32 v14, v14, v7, 1")
        e(f"buffer_load_ushort v16, v14, s[{R_X}:{R_X+3}], 0 offen")
        if self.otouch: e(f"buffer_load_ushort v18, v14, s[{R_W2}:{R_W2+3}], 0 offen")
        e("v_lshlrev_b32 v7, 3, v7")
        e("v_lshl_add_u32 v7, v6, 2, v7")
        e("s_waitcnt vmcnt(0)")
        e("v_lshlrev_b32 v16, 16, v16")
        e("v_lshlrev_b32 v10, 4, v1")
        e("v_lshlrev_b32 v11, 4, v5")
        e(f"s_mul_i32 s13, s{S_HW}, 3584")
        e(f"s_add_u32 s13, s13, {GBUF}")
        self.xcc(64, GCP)
        e("s_add_u32 s13, s13, s64")
        e(f"s_mul_i32 s14, s{S_HW}, {2*AVS}")
        e("v_lshlrev_b32 v12, 2, v1")
        e("v_add_u32 v12, s14, v12")
        e("v_lshlrev_b32 v13, 2, v5")
        e("v_add_u32 v13, s14, v13")
        e("v_add_u32 v3, s14, v3")
        e(f"s_lshl_b32 s64, s{S_HW}, 8")
        e("v_lshlrev_b32 v18, 3, v1")
        e("v_add_u32 v18, s64, v18")
        e("v_lshlrev_b32 v19, 3, v5")
        e("v_lshl_add_u32 v19, v6, 2, v19")
        e("v_mov_b32 v17, 0")
        e("s_mov_b32 s64, 0x05040100")
        e("s_mov_b32 s65, 0x07060302")
        e("s_mov_b32 s68, 1")
        e("s_branch L_c_go")
        e.label("L_c_poll")
        e("s_mov_b32 s68, 0")
        if self.latec == 1: self.lds_wait(MISC + 4, "ge", 5, 2)
        if self.latec >= 2: self.lds_wait(MISC + 32, "le", self.latec - 1, 4)
        self.winfl_cur = self.winfl2 if self.latec else self.winfl
        e("s_waitcnt vmcnt(0)")
        e(f"s_mul_i32 s64, s{S_HW}, {448*896}")
        e("s_lshl_b32 s65, s12, 6")
        e("s_add_u32 s64, s64, s65")
        e(f"s_mul_i32 s65, s{S_HW}, {STGW}")
        e(f"s_add_u32 s65, s65, {STG}")
        self.dma_voff(896, 6, 20)
        self.dma_loop(R_W, 20, 28, 64, 16 * 896, 65)
        self.stamp(5)
        if self.gpos == 0: self.gate_all()
        e("s_waitcnt vmcnt(0)")
        self.tr_frags(14, 0, F0, 6)
        self.tr_frags(14, 32, F1, 6)
        self.stamp(4)
        if self.gpos == 1: self.gate_all()
        self.stamp(6)
        Ln = self.lab("cnres")
        e(f"s_cmp_lg_u32 s{S_HW}, 0")
        e(f"s_cbranch_scc1 {Ln}")
        self.ybases()
        self.sweep_all([f"buffer_load_dword v{GB+k}, v7, s[{R_WS}:{R_WS+3}], s{40+k} offen sc1" for k in range(8)],
                       [GB + k for k in range(8)], 24)
        for k in range(1, 8): e(f"v_add_f32 v17, v{GB if k == 1 else 17}, v{GB+k}")
        self.rnd(17)
        e("v_add_f32 v17, v17, v16")
        self.rnd(17)
        e.label(Ln)
        e("s_mov_b32 s64, 0x05040100")
        e("s_mov_b32 s65, 0x07060302")
        sc = [24, 48, 232][:self.nset]
        def cput(i):
            g = sc[i]
            for k in range(4):
                e(f"v_perm_b32 v{g+1+4*k}, v{g+2+4*k}, v{g+4*k}, s64")
                e(f"v_perm_b32 v{g+3+4*k}, v{g+2+4*k}, v{g+4*k}, s65")
                a = 12 if k < 3 else 13
                e(f"ds_write_b32 v{a}, v{g+1+4*k} offset:{AV+k*256}")
                e(f"ds_write_b32 v{a}, v{g+3+4*k} offset:{AV+AVS+k*256}")
        self.sweep_pipe([([f"buffer_load_dwordx4 v[{g+4*k}:{g+3+4*k}], v{10 if k < 3 else 11}, s[{R_WS}:{R_WS+3}], s13 offen offset:{k*1024} sc1" for k in range(4)],
                          [g + 1 + 2 * i for i in range(8)]) for g in sc], 248, False, cput, "L_c_go")
        self.gemv(14, GB, AV, [(40, F0), (44, F1)], ahead=7)
        e("s_mov_b64 exec, 0xffff")
        e(f"ds_write_b64 v18, v[40:41] offset:{RED}")
        e(f"ds_write_b64 v18, v[44:45] offset:{RED+128}")
        e("s_mov_b64 exec, -1")
        e("s_waitcnt lgkmcnt(0)")
        self.bar()
        Le = self.lab("cend")
        for w in range(4): e(f"ds_read_b32 v{20+w}, v19 offset:{RED+256*w}")
        e(f"s_cmp_eq_u32 s68, 1")
        e(f"s_cselect_b32 s64, 0, s{S_HW}")
        e(f"s_cmp_lg_u32 s64, 0")
        e(f"s_cbranch_scc1 {Le}")
        e("s_waitcnt lgkmcnt(0)")
        e("v_add_f32 v20, v20, v21")
        e("v_add_f32 v22, v22, v23")
        e("v_add_f32 v20, v20, v22")
        self.rnd(20)
        e("v_add_f32 v20, v20, v17")
        e("v_cvt_pk_bf16_f32 v20, v20, v20")
        e("s_cmp_eq_u32 s68, 1")
        e("s_cbranch_scc1 L_c_poll")
        e(f"buffer_store_short v20, v14, s[{R_W2}:{R_W2+3}], 0 offen")
        if self.dbgtime:
            self.dbgt(35)
            e("s_waitcnt vmcnt(0)")
            e("v_lshlrev_b32 v254, 2, v1")
            e("s_mov_b64 exec, 0xf")
            e("buffer_load_dword v253, v254, s[92:95], 0 offen offset:128 sc1")
            e("s_waitcnt vmcnt(0)")
            e("buffer_atomic_umax v253, v254, s[92:95], 0 offen offset:16 sc1")
            e("s_mov_b64 exec, -1")
        e("s_cmp_lg_u32 s12, 0")
        e(f"s_cbranch_scc1 {Le}")
        e(f"v_mov_b32 v21, s{S_TAG}")
        e("s_mov_b64 exec, 1")
        e(f"buffer_store_dword v21, off, s[{R_WS}:{R_WS+3}], 0 offset:{EPOCH} sc1")
        e.label(Le)
        self.stamp(8)
        self.endpgm()

    def build(self):
        e = self.e
        e("s_cmp_ge_u32 s2, 256")
        e("s_cbranch_scc1 L_exit")
        e("s_load_dwordx16 s[16:31], s[0:1], 0")
        e("s_load_dwordx8 s[32:39], s[0:1], 64")
        self.stamp_init()
        e("v_lshrrev_b32 v2, 6, v0")
        e("v_and_b32 v1, 63, v0")
        e(f"v_readfirstlane_b32 s{S_WAVE}, v2")
        self.stamp(0)
        e(f"s_and_b32 s{S_HW}, s{S_WAVE}, 3")
        e(f"s_cmp_lt_u32 s{S_WAVE}, 4")
        e("s_cbranch_scc1 L_hpath")
        self.s_path()
        e.label("L_hpath")
        self.in_h = True
        e(f"s_lshr_b32 s{S_GRP}, s2, 4")
        e(f"s_and_b32 s{S_SPL}, s2, 15")
        e(f"s_lshr_b32 s{S_B}, s2, 7")
        e(f"s_and_b32 s{S_HKV}, s{S_GRP}, 7")
        e(f"s_mov_b32 s{S_TO}, {TIMEOUT}")
        e("s_waitcnt lgkmcnt(0)")
        self.srd(R_WS, P_WS, WS_SIZE)
        self.srd(R_X, P_X, 1792)
        if self.noq: e("s_branch L_hdone")
        e("s_setprio 2")
        e(f"s_cmp_lg_u32 s{S_HW}, 0")
        e("s_cbranch_scc1 L_hnq")
        self.q_path()
        e("s_branch L_hq")
        e.label("L_hnq")
        if self.dbgtime:
            Ld = self.lab("dt"); e(f"s_cmp_lg_u32 s{S_HW}, 3"); e(f"s_cbranch_scc1 {Ld}")
            self.dbgt(32, True); self.dbgt(33)
            e.label(Ld)
        if self.tstride:
            Lt = self.lab("notouch")
            e(f"s_cmp_eq_u32 s{S_HW}, 3")
            e(f"s_cbranch_scc1 {Lt}")
            e(f"s_cmp_eq_u32 s{S_HW}, 1")
            e(f"s_cselect_b32 s{R_K}, s{P_K}, s{P_V}")
            e(f"s_cselect_b32 s{R_K+1}, s{P_K+1}, s{P_V+1}")
            e(f"s_mov_b32 s{R_K+2}, {1 << 28}")
            e(f"s_mov_b32 s{R_K+3}, 0x20000")
            e(f"v_lshlrev_b32 v11, {self.tstride}, v1")
            e("s_lshl_b32 s64, s2, 20")
            n = (1 << 20) >> self.tstride
            if n < 64: e(f"s_mov_b64 exec, {(1 << n) - 1:#x}")
            e(f"buffer_load_dword v12, v11, s[{R_K}:{R_K+3}], s64 offen nt")
            e("s_mov_b64 exec, -1")
            e.label(Lt)
        e(f"buffer_load_dword v10, off, s[{R_WS}:{R_WS+3}], 0 offset:{EPOCH} sc1")
        self.h_consts()
        e("s_waitcnt vmcnt(0)")
        e("v_readfirstlane_b32 s64, v10")
        self.set_tag(64)
        self.lds_wait(MISC + 24, "eq", f"s{S_TAG}", 2)
        e.label("L_hq")
        self.q_gather()
        e("s_setprio 0")
        e("s_barrier")
        self.stamp(3)
        e(f"s_cmp_lg_u32 s{S_HW}, 1")
        e("s_cbranch_scc1 L_sfinal_back")
        e("s_mov_b32 s68, 1")
        e("s_branch L_sfinal")
        e.label("L_sfinal_back")
        if self.noroles: e("s_branch L_hdone")
        e(f"s_cmp_lg_u32 s{S_HW}, 0")
        e("s_cbranch_scc1 L_rwait")
        if self.ns:
            e("s_mov_b32 s12, 98")
            e(f"s_cmp_eq_u32 s{S_SPL}, 15")
            e("s_cbranch_scc1 L_rpost0")
        self.lds_wait(MISC + 32, "le", self.trig, 8)
        self.srd(R_W, P_DBG, 256)
        e("v_mov_b32 v10, 1")
        e("s_mov_b64 exec, 1")
        e(f"buffer_atomic_add v10, off, s[{R_W}:{R_W+3}], 0 sc0 sc1")
        e("s_waitcnt vmcnt(0)")
        e("s_mov_b64 exec, -1")
        e("v_readfirstlane_b32 s12, v10")
        if self.rorder == 3:
            e("s_add_u32 s12, s12, 42")
            e("s_cmp_lt_u32 s12, 98")
            e("s_cbranch_scc1 L_rpost")
            self.lds_wait(MISC + 32, "le", self.trig2, 4)
            e("v_mov_b32 v10, 1")
            e("s_mov_b64 exec, 1")
            e(f"buffer_atomic_add v10, off, s[{R_W}:{R_W+3}], 0 offset:128 sc0 sc1")
            e("s_waitcnt vmcnt(0)")
            e("s_mov_b64 exec, -1")
            e("v_readfirstlane_b32 s12, v10")
            e("s_add_u32 s12, s12, 14")
            e("s_cmp_lt_u32 s12, 42")
            e("s_cbranch_scc1 L_rpost")
            e("s_sub_u32 s12, s12, 42")
            e("s_cmp_lt_u32 s12, 14")
            e("s_cbranch_scc1 L_rpost")
            e("s_mov_b32 s12, 98")
            e.label("L_rpost")
        e.label("L_rpost0")
        e("s_add_u32 s12, s12, 1")
        self.lds_set(MISC + 16, "s12")
        e("s_branch L_rgot")
        e.label("L_rwait")
        if self.fb:
            Lx = self.lab("fbx"); L = self.lab("fb"); Lw = self.lab("fbw")
            e(f"s_cmp_lg_u32 s{S_HW}, 2")
            e(f"s_cbranch_scc1 {Lx}")
            e(f"s_lshl_b32 s12, s{S_GRP}, 8")
            e(f"s_add_u32 s12, s12, {CNTB}")
            e("s_mov_b32 s13, 0x7fff")
            e("s_mov_b32 s14, 0")
            e("v_mov_b32 v8, 0")
            e.label(L)
            e(f"ds_read_b32 v9, v8 offset:{MISC+32}")
            e("s_waitcnt lgkmcnt(0)")
            e("v_readfirstlane_b32 s64, v9")
            e("s_cmp_lt_u32 s64, s13")
            e(f"s_cbranch_scc1 {Lw}")
            e("s_sleep 2")
            e(f"s_sub_u32 s{S_TO}, s{S_TO}, 1")
            e(f"s_cbranch_scc0 {L}")
            e("s_branch L_hfail")
            e.label(Lw)
            e("s_sub_u32 s65, s13, s64")
            e("s_cmp_eq_u32 s13, 0x7fff")
            e("s_cselect_b32 s65, 1, s65")
            e("s_mov_b32 s13, s64")
            e("v_mov_b32 v10, s65")
            e("s_mov_b64 exec, 1")
            e(f"buffer_atomic_add v10, off, s[{R_WS}:{R_WS+3}], s12 sc0 sc1")
            e("s_lshl_b32 s65, s65, 4")
            e("s_add_u32 s14, s14, s65")
            e("s_waitcnt vmcnt(0)")
            e("s_mov_b64 exec, -1")
            e("v_readfirstlane_b32 s64, v10")
            e("s_sub_u32 s64, s64, s14")
            e("s_mov_b32 s65, 0")
            e(f"s_cmp_lt_i32 s64, {self.fbl - 16}")
            e("s_cselect_b32 s65, 1, s65")
            e(f"s_cmp_ge_i32 s64, {-self.fbl}")
            e("s_cselect_b32 s65, 2, s65")
            e("v_mov_b32 v9, s65")
            e(f"ds_write_b32 v8, v9 offset:{MISC+28}")
            e(f"s_cmp_gt_u32 s13, {self.fbend}")
            e(f"s_cbranch_scc1 {L}")
            e.label(Lx)
        self.lds_wait(MISC + 16, "lg", 0, 8, 12)
        e.label("L_rgot")
        e("s_sub_u32 s12, s12, 1")
        e("s_cmp_ge_u32 s12, 98")
        if self.rorder == 2:
            e("s_cmp_ge_u32 s12, 42")
            e("s_cbranch_scc1 L_rord")
            e("s_add_u32 s12, s12, 14")
            e("s_cmp_lt_u32 s12, 42")
            e("s_cbranch_scc1 L_rord")
            e("s_sub_u32 s12, s12, 42")
            e.label("L_rord")
            e("s_cmp_ge_u32 s12, 98")
        if self.rorder == 1:
            e("s_cbranch_scc1 L_rord")
            e("s_sub_u32 s12, 97, s12")
            e.label("L_rord")
            e("s_cmp_ge_u32 s12, 98")
        if self.diag:
            e(f"s_mov_b32 s{ST0+22}, s12")
        e("s_cbranch_scc1 L_hdone")
        self.h_consts()
        e("s_cmp_lt_u32 s12, 14")
        e("s_cbranch_scc0 L_notc")
        self.stage_c()
        e.label("L_notc")
        e("s_sub_u32 s12, s12, 14")
        e("s_cmp_lt_u32 s12, 28")
        e("s_cbranch_scc0 L_notb")
        self.stage_b()
        e.label("L_notb")
        e("s_sub_u32 s12, s12, 28")
        e(f"s_mul_i32 s{S_HKV}, s12, 37")
        e(f"s_lshr_b32 s{S_HKV}, s{S_HKV}, 8")
        e(f"s_mul_i32 s64, s{S_HKV}, 7")
        e(f"s_sub_u32 s{S_SPL}, s12, s64")
        self.stage_a()
        e.label("L_hfail")
        e.label("L_hdone")
        self.endpgm()
        e.label("L_exit")
        e("s_endpgm")
        return e.text()

HEAD = """; Pre-LN GQA decode attention + GEGLU FFN in one persistent launch: 256 workgroups of 8 waves, one per CU.
;
; @launch grid=(256,1,1) block=(512,1,1) lds={lds}
.amdgcn_target "amdgcn-amd-amdhsa--gfx950"
.text
.globl {name}
.p2align 8
.type {name},@function
{name}:
"""
TAIL = """.section .rodata,"a"
.p2align 6
.amdhsa_kernel {name}
  .amdhsa_next_free_vgpr 256
  .amdhsa_next_free_sgpr 102
  .amdhsa_accum_offset 256
  .amdhsa_group_segment_fixed_size 0
  .amdhsa_kernarg_size 96
  .amdhsa_user_sgpr_count 2
  .amdhsa_user_sgpr_kernarg_segment_ptr 1
  .amdhsa_system_sgpr_workgroup_id_x 1
.end_amdhsa_kernel
"""

def make(path, **kw):
    g = Gen(**kw)
    body = g.build()
    if g.hf != "sc1": body = body.replace(" sc1\n", f" {g.hf}\n").replace("sc0 sc0", "sc0")
    open(path, "w").write(HEAD.format(lds=LDS_SIZE, name=NAME) + body + TAIL.format(name=NAME))
    return g

if __name__ == "__main__":
    import argparse
    ap = argparse.ArgumentParser()
    ap.add_argument("out")
    ap.add_argument("--diag", action="store_true")
    ap.add_argument("--npro", type=int, default=40)
    ap.add_argument("--kvflags", default="nt")
    ap.add_argument("--wflags", default="nt")
    ap.add_argument("--qflags", default="nt")
    ap.add_argument("--noroles", action="store_true")
    ap.add_argument("--athr", type=int, default=13)
    ap.add_argument("--gsleep", type=int, default=4)
    ap.add_argument("--winfl", type=int, default=6)
    ap.add_argument("--dist", type=int, default=12)
    ap.add_argument("--thr", type=int, default=6)
    ap.add_argument("--vflags", default=None)
    ap.add_argument("--rot", type=int, default=2)
    ap.add_argument("--nt", type=int, default=32)
    ap.add_argument("--thrp", type=int, default=6)
    ap.add_argument("--npl", type=int, default=40)
    ap.add_argument("--gthr", type=int, default=32)
    ap.add_argument("--psleep", type=int, default=0)
    ap.add_argument("--hf", default="sc1")
    ap.add_argument("--nset", type=int, default=1)
    ap.add_argument("--pgap", type=int, default=2)
    ap.add_argument("--thr2", type=int, default=9)
    ap.add_argument("--nl2", type=int, default=0)
    ap.add_argument("--lateb", type=int, default=1)
    ap.add_argument("--latec", type=int, default=1)
    ap.add_argument("--winfl2", type=int, default=8)
    ap.add_argument("--qsleep", type=int, default=8)
    ap.add_argument("--qsleep0", type=int, default=32)
    ap.add_argument("--latea", type=int, default=0)
    ap.add_argument("--tstride", type=int, default=0)
    ap.add_argument("--otouch", type=int, default=0)
    ap.add_argument("--seq", type=int, default=1)
    ap.add_argument("--wtouch", type=int, default=0)
    ap.add_argument("--gpos", type=int, default=1)
    ap.add_argument("--dbgtime", type=int, default=0)
    ap.add_argument("--trig2", type=int, default=1)
    ap.add_argument("--fb", type=int, default=0)
    ap.add_argument("--fbhi", type=int, default=7)
    ap.add_argument("--fblo", type=int, default=5)
    ap.add_argument("--fbl", type=int, default=5)
    ap.add_argument("--fbend", type=int, default=3)
    ap.add_argument("--ns", type=int, default=0)
    ap.add_argument("--rp", type=int, default=0)
    ap.add_argument("--xcp", type=int, default=1)
    ap.add_argument("--rorder", type=int, default=1)
    ap.add_argument("--nosoft", action="store_true")
    ap.add_argument("--noq", action="store_true")
    ap.add_argument("--trig", type=int, default=3)
    ap.add_argument("--aspec", type=int, default=6)
    a = ap.parse_args()
    g = make(a.out, diag=a.diag, npro=a.npro, kvflags=a.kvflags, wflags=a.wflags, qflags=a.qflags, noroles=a.noroles, athr=a.athr, gsleep=a.gsleep, winfl=a.winfl, dist=a.dist, nosoft=a.nosoft, noq=a.noq, trig=a.trig, aspec=a.aspec, thr=a.thr, vflags=a.vflags, rot=a.rot, nt=a.nt, thrp=a.thrp, npl=a.npl, gthr=a.gthr, psleep=a.psleep, hf=a.hf, nset=a.nset, pgap=a.pgap, thr2=a.thr2, nl2=a.nl2, lateb=a.lateb, latec=a.latec, winfl2=a.winfl2, qsleep=a.qsleep, qsleep0=a.qsleep0, latea=a.latea, rorder=a.rorder, tstride=a.tstride, otouch=a.otouch, seq=a.seq, wtouch=a.wtouch, gpos=a.gpos, dbgtime=a.dbgtime, trig2=a.trig2, fb=a.fb, fbhi=a.fbhi, fblo=a.fblo, fbl=a.fbl, fbend=a.fbend, ns=a.ns, rp=a.rp, xcp=a.xcp)
    print("pads inserted:", g.e.npad, "lines:", len(g.e.lines))
```

```python
import sys, struct, math
from emit import Emitter

NAME = "sequential_preLN__gqa_block_cached__geglu_ffn__decode_kernel"
def f2u(x): return struct.unpack("<I", struct.pack("<f", x))[0]

EPOCH = 0
QBUF = 0x140000
HBUF = 0x12000
YBUF = 0x14000
YCP = 0x8000
GBUF = 0x22000
GCP = 0x4000
PBUF = 0x40000
CNTB = 0x1c0000
STAMP = 0x200000
WS_SIZE = 0x400000
QL = 0x0100
MISC = 0x0080
SML = 0x0000
STATS = 0x0600
AV = 0x0800
AVS = 1056
RED = 0x2A00
SO = 0x3000
STG = 0x5000
STGW = 28 * 1024
LDS_SIZE = STG + 4 * STGW

CSC = f2u(0.0625 * math.log2(math.e))
GOLD = 0x9E3779B9
TIMEOUT = 300000

S_WAVE, S_GRP, S_SPL, S_B, S_HKV, S_HW, S_TAG = 3, 4, 5, 6, 7, 8, 9
P_X, P_K, P_V, P_WQ, P_WO, P_BX, P_WG, P_WU, P_WD, P_OUT, P_DBG, P_WS = [16 + 2 * i for i in range(12)]
R_K, R_V, R_WS, R_W, R_X, R_W2 = 40, 44, 48, 52, 56, 60
S_C = 10
S_TO = 11
ST0 = 72
S_TM = 96

class Gen:
    def __init__(self, diag=False, npro=32, kvflags="nt", wflags="", qflags="", noroles=False, athr=13, gsleep=4, winfl=1, dist=8, nosoft=False, noq=False, trig=2, aspec=2, thr=5, vflags=None, rot=1, nt=32, thrp=6, npl=32, gthr=6, psleep=0, hf="sc1", nset=2, pgap=2, thr2=9, nl2=0, lateb=1, latec=1, winfl2=12, qsleep=8, qsleep0=16, latea=0, rorder=0, tstride=0, otouch=1, seq=0, wtouch=0, gpos=0, dbgtime=0, trig2=1, fb=0, fbhi=7, fblo=5, fbl=5, fbend=3, ns=0, rp=0, xcp=0, stouch=0, qtrig=0):
        self.e = Emitter()
        self.diag = diag
        self.npro = npro
        self.kvflags = kvflags
        self.wflags = wflags
        self.qflags = qflags
        self.noroles = noroles
        self.athr = athr
        self.gsleep = gsleep
        self.winfl = winfl
        self.dist = dist
        self.nosoft = nosoft
        self.noq = noq
        self.trig = trig
        self.aspec = aspec
        self.thr = thr
        self.rot = rot
        self.nt = nt
        self.thrp = thrp
        self.npl = npl
        self.gthr = gthr
        self.psleep = psleep
        self.hf = hf
        self.nset = nset
        self.pgap = pgap
        self.thr2 = thr2
        self.nl2 = nl2
        self.lateb = lateb
        self.latec = latec
        self.winfl2 = winfl2
        self.qsleep = qsleep
        self.qsleep0 = qsleep0
        self.latea = latea
        self.rorder = rorder
        self.tstride = tstride
        self.otouch = otouch
        self.seq = seq
        self.wtouch = wtouch
        self.gpos = gpos
        self.dbgtime = dbgtime
        self.trig2 = trig2
        self.fb = fb
        self.fbhi = fbhi
        self.fblo = fblo
        self.fbl = fbl
        self.fbend = fbend
        self.ns = ns
        self.rp = rp
        self.xcp = xcp
        self.stouch = stouch
        self.qtrig = qtrig
        self.vflags = kvflags if vflags is None else vflags
        self.uid = 0
        self.in_h = False
    def lab(self, s):
        self.uid += 1
        return f"L_{s}_{self.uid}"
    def srd(self, r, p, size):
        e = self.e
        e(f"s_mov_b32 s{r}, s{p}")
        e(f"s_mov_b32 s{r+1}, s{p+1}")
        e(f"s_mov_b32 s{r+2}, {size}")
        e(f"s_mov_b32 s{r+3}, 0x20000")
    def stamp(self, i):
        if self.diag and i in (6, 7) and self.in_h:
            self.e(f"s_mov_b32 s{ST0+2*(i+3)}, s{S_TO}")
        if self.diag:
            self.e(f"s_memrealtime s[{ST0+2*i}:{ST0+2*i+1}]")
            self.e("s_waitcnt lgkmcnt(0)")
    def stamp_init(self):
        if self.diag:
            for i in range(12):
                self.e(f"s_mov_b64 s[{ST0+2*i}:{ST0+2*i+1}], 0")
    def stamp_flush(self):
        if not self.diag: return
        e = self.e
        e("s_mov_b64 exec, -1")
        e(f"s_lshl_b32 s64, s2, 3")
        e(f"s_add_u32 s64, s64, s{S_WAVE}")
        e(f"s_lshl_b32 s64, s64, 6")
        e(f"s_add_u32 s64, s64, {STAMP}")
        e(f"s_getreg_b32 s65, hwreg(HW_REG_XCC_ID)")
        e(f"s_getreg_b32 s66, hwreg(HW_REG_HW_ID)")
        for i in range(12):
            e(f"v_mov_b32 v{2+i}, s{ST0+2*i}")
        e("v_mov_b32 v14, s65")
        e("v_mov_b32 v15, s66")
        e("v_mov_b32 v16, 0")
        e("v_mov_b32 v17, 0")
        e("s_mov_b64 exec, 1")
        for i in range(4):
            e(f"buffer_store_dwordx4 v[{2+4*i}:{5+4*i}], off, s[{R_WS}:{R_WS+3}], s64 offset:{16*i}")
        e("s_waitcnt vmcnt(0)")
    def dbgt(self, slot, neg=False):
        if not self.dbgtime: return
        e = self.e
        e("s_memrealtime s[98:99]")
        e("s_waitcnt lgkmcnt(0)")
        if neg: e("s_not_b32 s98, s98")
        e(f"s_mov_b32 s92, s{P_DBG}"); e(f"s_mov_b32 s93, s{P_DBG+1}"); e("s_mov_b32 s94, 256"); e("s_mov_b32 s95, 0x20000")
        e("s_mov_b64 s[90:91], exec")
        e("s_mov_b64 exec, 1")
        e("v_mov_b32 v255, s98")
        e(f"buffer_atomic_umax v255, off, s[92:95], 0 offset:{4*slot} sc1")
        e("s_mov_b64 exec, s[90:91]")
    def endpgm(self):
        self.stamp_flush()
        self.e("s_endpgm")

    def rnd(self, v):
        self.e(f"v_cvt_pk_bf16_f32 v{v}, v{v}, v{v}")
        self.e(f"v_lshlrev_b32 v{v}, 16, v{v}")
    def rnd_many(self, vs):
        for v in vs: self.e(f"v_cvt_pk_bf16_f32 v{v}, v{v}, v{v}")
        for v in vs: self.e(f"v_lshlrev_b32 v{v}, 16, v{v}")
    def set_tag(self, src):
        self.e(f"s_add_u32 s{S_TAG}, s{src}, {GOLD:#x}")
        self.e(f"s_and_b32 s{S_TM}, s{S_TAG}, 0x3f")
    def tagw(self, dst, src, vmask):
        self.e(f"v_and_or_b32 v{dst}, v{src}, v{vmask}, s{S_TM}")
    def check_words(self, words, tmp, mant=True):
        e = self.e
        T = S_TM if mant else S_TAG
        acc = []
        n = len(words)
        for i in range(0, n - 1, 2):
            e(f"v_bitop3_b32 v{tmp+len(acc)}, v{words[i]}, v{words[i+1]}, s{T} bitop3:0x7e")
            acc.append(tmp + len(acc))
        if n % 2:
            e(f"v_xor_b32 v{tmp+len(acc)}, s{T}, v{words[-1]}")
            acc.append(tmp + len(acc))
        while len(acc) > 1:
            nxt = []
            while len(acc) >= 3:
                a, b, c = acc[:3]; acc = acc[3:]
                e(f"v_or3_b32 v{a}, v{a}, v{b}, v{c}"); nxt.append(a)
            if len(acc) == 2 and not nxt:
                e(f"v_or_b32 v{acc[0]}, v{acc[0]}, v{acc[1]}"); acc = [acc[0]]
            acc = nxt + acc
        if mant: e(f"v_and_b32 v{acc[0]}, 0x3f, v{acc[0]}")
        e(f"v_cmp_ne_u32 vcc, 0, v{acc[0]}")
    def sweep_all(self, loads, words, tmp, mant=True):
        e = self.e
        L = self.lab("sa"); Lx = self.lab("sax")
        e.label(L)
        if self.psleep: e(f"s_sleep {self.psleep}")
        for l in loads: e(l)
        e(f"s_sub_u32 s{S_TO}, s{S_TO}, 1")
        e("s_cbranch_scc1 L_hfail")
        e("s_waitcnt vmcnt(0)")
        self.check_words(words, tmp, mant)
        e(f"s_cbranch_vccnz {L}")
    def sweep_pipe(self, sets, tmp, mant, after, golabel):
        e = self.e
        n = len(sets); m = len(sets[0][0])
        L = self.lab("sp"); Lj = self.lab("spj")
        got = [self.lab("spg") for _ in sets]
        for i, (loads, words) in enumerate(sets):
            for l in loads: e(l)
            if i + 1 < n: e(f"s_sleep {self.pgap}")
        e.label(L)
        for i, (loads, words) in enumerate(sets):
            e(f"s_waitcnt vmcnt({m*(n-1)})")
            self.check_words(words, tmp, mant)
            e(f"s_cbranch_vccz {got[i]}")
            for l in loads: e(l)
        e(f"s_sub_u32 s{S_TO}, s{S_TO}, 1")
        e(f"s_cbranch_scc0 {L}")
        e("s_branch L_hfail")
        for i in reversed(range(n)):
            e.label(got[i])
            self.stamp(7)
            if i == 0: e.label(golabel)
            after(i)
            if i: e(f"s_branch {Lj}")
        e.label(Lj)
    def row_reduce(self, vs, op="add"):
        e = self.e
        for ctl in ("quad_perm:[1,0,3,2]", "quad_perm:[2,3,0,1]", "row_half_mirror", "row_mirror"):
            for v in vs:
                e(f"v_{op}_f32_dpp v{v}, v{v}, v{v} {ctl} row_mask:0xf bank_mask:0xf")
    def wave_sum_to_sgpr(self, vs, ss):
        e = self.e
        self.row_reduce(vs)
        for v in vs: e(f"v_add_f32_dpp v{v}, v{v}, v{v} row_bcast:15 row_mask:0xa bank_mask:0xf")
        for v in vs: e(f"v_add_f32_dpp v{v}, v{v}, v{v} row_bcast:31 row_mask:0xc bank_mask:0xf")
        for v, s in zip(vs, ss): e(f"v_readlane_b32 s{s}, v{v}, 63")
    def cross_rows(self, v, t, op):
        e = self.e
        e(f"v_mov_b32 v{t}, v{v}")
        e(f"v_permlane16_swap_b32 v{v}, v{t}")
        e(f"v_{op}_f32 v{v}, v{v}, v{t}")
        e(f"v_mov_b32 v{t}, v{v}")
        e(f"v_permlane32_swap_b32 v{v}, v{t}")
        e(f"v_{op}_f32 v{v}, v{v}, v{t}")

    def s_path(self):
        e = self.e
        KO0, KO1, VO = 2, 3, 4
        MK = 5
        MRUN, LRUN, NRUN = 9, 10, 11
        T = 12; PK = 16; MX, MX2, AL, ALD, NN = 18, 19, 20, 21, 22
        P = 24
        D0, D1, ACC0, ACC1, AF, QF, SLOT = 28, 32, 36, 40, 44, 60, 80
        S_BASE, S_O1, S_O2, S_CNT, S_R = 64, 65, 66, 67, 69
        PADDR = 0
        def tile_off(dst, t):
            e(f"s_add_u32 s{dst}, s{S_R}, {t*32768}")
            e(f"s_and_b32 s{dst}, s{dst}, 0xfffff")
            e(f"s_add_u32 s{dst}, s{dst}, s{S_BASE}")
        NT = self.ns if self.ns else self.nt
        e("v_and_b32 v12, 15, v1")
        e("v_lshrrev_b32 v13, 4, v1")
        e("v_and_b32 v14, 7, v12")
        e("v_lshrrev_b32 v15, 3, v12")
        e(f"v_lshlrev_b32 v{KO0}, 9, v14")
        e("v_lshl_add_u32 v16, v15, 2, v13")
        e(f"v_lshl_add_u32 v{KO0}, v16, 4, v{KO0}")
        e(f"v_add_u32 v{KO1}, 0x1000, v{KO0}")
        e(f"v_lshlrev_b32 v{VO}, 11, v13")
        e(f"v_lshl_add_u32 v{VO}, v12, 4, v{VO}")
        if self.qtrig:
            e(f"s_lshl_b32 s70, s{S_HW}, 2")
            e(f"v_mov_b32 v{PADDR}, s70")
            e("v_mov_b32 v79, 0")
            e(f"ds_write_b32 v{PADDR}, v79 offset:{MISC+48}")
        e("s_mov_b32 s68, 0")
        e(f"s_lshl_b32 s{S_BASE}, s2, 20")
        e(f"s_lshl_b32 s65, s{S_HW}, 13")
        e(f"s_add_u32 s{S_BASE}, s{S_BASE}, s65")
        if self.rot == 2: e(f"s_and_b32 s{S_R}, s2, 31")
        elif self.rot == 3:
            e(f"s_and_b32 s{S_R}, s2, 7"); e("s_lshr_b32 s65, s2, 6"); e("s_lshl_b32 s65, s65, 3"); e(f"s_or_b32 s{S_R}, s{S_R}, s65")
        elif self.rot == 4:
            e(f"s_and_b32 s{S_R}, s2, 7"); e(f"s_lshl_b32 s{S_R}, s{S_R}, 2"); e("s_lshr_b32 s65, s2, 6"); e(f"s_or_b32 s{S_R}, s{S_R}, s65")
        elif self.rot == 5: e(f"s_and_b32 s{S_R}, s2, 7")
        elif self.rot == 6:
            e(f"s_and_b32 s{S_R}, s2, 7"); e(f"s_lshl_b32 s{S_R}, s{S_R}, 2")
        elif self.rot == 7: e(f"s_and_b32 s{S_R}, s2, 24")
        elif self.rot == 8:
            e(f"s_and_b32 s{S_R}, s2, 15"); e(f"s_lshl_b32 s{S_R}, s{S_R}, 1")
        else: e(f"s_lshr_b32 s{S_R}, s2, 3")
        e(f"s_lshl_b32 s{S_R}, s{S_R}, {15 if self.rot else 20}")
        e("s_waitcnt lgkmcnt(0)")
        self.srd(R_K, P_K, 1 << 28)
        self.srd(R_V, P_V, 1 << 28)
        state = dict(issued=-1)
        def slot_regs(s): return f"v[{SLOT+4*s}:{SLOT+4*s+3}]"
        def issue(n, slot, soff):
            i = n % 16
            if self.seq: i = n % 8 + (8 if n >= 8 * NT else 0)
            if i < 8:
                G, j = i >> 2, i & 3
                e(f"buffer_load_dwordx4 {slot_regs(slot)}, v{KO0+G}, s[{R_K}:{R_K+3}], s{soff} offen offset:{j*128} {self.kvflags}")
            else:
                i -= 8
                e(f"buffer_load_dwordx4 {slot_regs(slot)}, v{VO}, s[{R_V}:{R_V+3}], s{soff} offen offset:{(i>>1)*512+(i&1)*256} {self.vflags}")
        npro = self.npro
        assert 16 <= npro <= 44
        for n in range(npro):
            if n % (8 if self.seq else 16) == 0:
                tile_off(S_O1, n // (8 if self.seq else 16))
            tp = self.thrp if n < self.npl else self.thr
            if n >= tp: e(f"s_waitcnt vmcnt({tp-1})")
            issue(n, n, S_O1)
            if self.qtrig and n == self.qtrig: e(f"ds_write_b32 v{PADDR}, v78 offset:{MISC+48}")
            if n in ((5, 13) if self.ns else (5, 13, 19, 25)): self.stamp({5: 6, 13: 7, 19: 9, 25: 10}[n])
            if n == 7:
                self.stamp(4)
                self.srd(R_WS, P_WS, WS_SIZE)
                e(f"s_mov_b32 s{S_C}, {CSC:#x}")
                e("v_lshrrev_b32 v16, 1, v14")
                e("v_and_b32 v17, 1, v14")
                e("v_mov_b32 v18, 0xffff")
                e("v_lshlrev_b32 v17, 4, v17")
                e("v_lshlrev_b32 v18, v17, v18")
                for i in range(4):
                    e(f"v_cmp_eq_u32 vcc, {i}, v16")
                    e(f"v_cndmask_b32 v{MK+i}, 0, v18, vcc")
                e(f"v_mov_b32 v{MRUN}, 0xff800000")
                e(f"v_mov_b32 v{NRUN}, 0x7f800000")
                e(f"v_mov_b32 v{LRUN}, 0")
                for i in range(8): e(f"v_mov_b32 v{ACC0+i}, 0")
                e("v_bfe_u32 v16, v12, 2, 1")
                e("v_lshl_add_u32 v16, v16, 2, v13")
                e("v_lshlrev_b32 v23, 9, v15")
                e("v_lshl_add_u32 v23, v16, 4, v23")
                e("v_lshrrev_b32 v16, 1, v13")
                e("v_and_b32 v17, 1, v13")
                e("v_lshlrev_b32 v76, 10, v16")
                e("v_lshl_add_u32 v76, v12, 5, v76")
                e("v_lshl_add_u32 v76, v17, 4, v76")
                e(f"s_lshl_b32 s70, s{S_HW}, 11")
                e("v_add_u32 v76, s70, v76")
                e(f"s_lshl_b32 s70, s{S_HW}, 4")
                e("v_add_u32 v77, s70, v1")
                e("v_mov_b32 v78, 1")
                e("v_mov_b32 v79, 0")
                if self.seq:
                    e("v_lshl_add_u32 v20, v15, 2, v13")
                    e("v_lshlrev_b32 v20, 3, v20")
                    e(f"s_lshl_b32 s70, s{S_HW}, 11")
                    e("v_add_u32 v20, s70, v20")
                    e("v_mov_b32 v21, v20")
                    e(f"s_lshl_b32 s70, s{S_HW}, 2")
                    e(f"v_mov_b32 v{PADDR}, s70")
        self.stamp(5)
        if not self.noq: e("s_barrier")
        self.stamp(1)
        for j in range(4):
            e(f"ds_read_b128 v[{QF+4*j}:{QF+4*j+3}], v23 offset:{QL+j*128}")
        e(f"ds_read_b32 v23, v79 offset:{MISC}")
        e("s_waitcnt lgkmcnt(0)")
        e(f"v_readfirstlane_b32 s{S_TAG}, v23")

        def softmax(point):
            for r in range(4): e(f"v_permlane32_swap_b32 v{D0+r}, v{D1+r}")
            for r in range(4): e(f"v_add_f32_dpp v{T+r}, v{D1+r}, v{D0+r} row_half_mirror row_mask:0xf bank_mask:0x5")
            for r in range(4): e(f"v_add_f32_dpp v{T+r}, v{D0+r}, v{D1+r} row_half_mirror row_mask:0xf bank_mask:0xa")
            e(f"v_cvt_pk_bf16_f32 v{PK}, v{T}, v{T+1}")
            e(f"v_cvt_pk_bf16_f32 v{PK+1}, v{T+2}, v{T+3}")
            e(f"v_lshlrev_b32 v{T}, 16, v{PK}")
            e(f"v_and_b32 v{T+1}, 0xffff0000, v{PK}")
            e(f"v_lshlrev_b32 v{T+2}, 16, v{PK+1}")
            e(f"v_and_b32 v{T+3}, 0xffff0000, v{PK+1}")
            point()
            e(f"v_max3_f32 v{MX}, v{T}, v{T+1}, v{T+2}")
            e(f"v_max3_f32 v{MX}, v{MX}, v{T+3}, v{MRUN}")
            self.cross_rows(MX, MX2, "max")
            e(f"v_mov_b32 v{MRUN}, v{MX}")
            e(f"v_mul_f32 v{NN}, s{S_C}, v{MX}")
            e(f"v_sub_f32 v{AL}, 0, v{NN}")
            for r in range(4): e(f"v_fma_f32 v{P+r}, v{T+r}, s{S_C}, v{AL}")
            e(f"v_sub_f32 v{NN}, v{AL}, v{NRUN}")
            e(f"v_mov_b32 v{NRUN}, v{AL}")
            e(f"v_exp_f32 v{AL}, v{NN}")
            for r in range(4): e(f"v_exp_f32 v{P+r}, v{P+r}")
            point()
            e(f"v_mov_b32 v{ALD}, v{AL}")
            e(f"v_mul_f32 v{LRUN}, v{LRUN}, v{AL}")
            e(f"v_mov_b32_dpp v{ALD}, v{AL} row_shr:8 row_mask:0x3 bank_mask:0xc")
            e(f"v_mov_b32_dpp v{ALD}, v{AL} row_shl:8 row_mask:0xc bank_mask:0x3")
            for r in range(4): e(f"v_cvt_pk_bf16_f32 v{T+r}, v{P+r}, v{P+r}")
            e(f"v_add_f32 v{P}, v{P}, v{P+1}")
            e(f"v_add_f32 v{P+2}, v{P+2}, v{P+3}")
            for i in range(4): e(f"v_and_b32 v{AF+i}, v{T}, v{MK+i}")
            for i in range(8): e(f"v_mul_f32 v{ACC0+i}, v{ACC0+i}, v{ALD}")
            e(f"v_add_f32 v{P}, v{P}, v{P+2}")
            for r in range(1, 4):
                for i in range(4): e(f"v_and_b32 v{AF+4*r+i}, v{T+r}, v{MK+i}")
            e(f"v_add_f32 v{LRUN}, v{LRUN}, v{P}")

        if self.seq:
            d = self.dist; thr = self.thr
            NK = 8 * NT
            S_O3 = 70
            def slot_of(n): return n if n < npro else n % 16
            st = dict(k=npro)
            def unit(u, steady, par):
                isk = u < NT
                st["j"] = 0
                st["last"] = 8 * u - 1
                def point():
                    j = st["j"]; st["j"] += 1
                    k = st["k"]
                    want = 8 * u + d + j
                    prev = k - 16 if k - 16 >= npro else k % 16
                    if prev > st["last"]:
                        assert not steady
                        return
                    if k > want and j % 2 == 0: return
                    if steady:
                        assert k == want
                        so = (S_O1, S_O2, S_O3)[k // 8 - (u - par) - 1]
                    else:
                        if st.get("so") != k // 8:
                            tile_off(S_O2, k // 8)
                            st["so"] = k // 8
                        so = S_O2
                    if steady and self.fb:
                        Ls = self.lab("t")
                        e(f"s_waitcnt vmcnt({self.fbhi-1})")
                        e(f"s_cbranch_scc1 {Ls}")
                        e.skippable(f"s_waitcnt vmcnt({thr-1})")
                        e.skippable(f"s_cbranch_vccz {Ls}")
                        e.skippable(f"s_waitcnt vmcnt({self.fblo-1})")
                        e.label(Ls)
                    else:
                        e(f"s_waitcnt vmcnt({thr-1})")
                    issue(k, slot_of(k), so)
                    st["k"] = k + 1
                if not isk:
                    SC = 16 + 2 * par
                    e("s_waitcnt lgkmcnt(0)")
                    e(f"ds_read_b64 v[{18-2*par}:{19-2*par}], v21 offset:{SO + 64*(par+1)}")
                    e(f"v_lshlrev_b32 v{T}, 16, v{SC}")
                    e(f"v_and_b32 v{T+1}, 0xffff0000, v{SC}")
                    e(f"v_lshlrev_b32 v{T+2}, 16, v{SC+1}")
                    e(f"v_and_b32 v{T+3}, 0xffff0000, v{SC+1}")
                    for r in range(4): e(f"v_fma_f32 v{P+r}, v{T+r}, s{S_C}, v{NRUN}")
                    for r in range(4): e(f"v_exp_f32 v{P+r}, v{P+r}")
                    for r in range(4): e(f"v_cvt_pk_bf16_f32 v{T+r}, v{P+r}, v{P+r}")
                    point()
                    for i in range(4): e(f"v_and_b32 v{AF+i}, v{T}, v{MK+i}")
                    e(f"v_add_f32 v{P}, v{P}, v{P+1}")
                    e(f"v_add_f32 v{P+2}, v{P+2}, v{P+3}")
                    for r in range(1, 4):
                        for i in range(4): e(f"v_and_b32 v{AF+4*r+i}, v{T+r}, v{MK+i}")
                    e(f"v_add_f32 v{P}, v{P}, v{P+2}")
                    e(f"v_add_f32 v{LRUN}, v{LRUN}, v{P}")
                for i in range(8):
                    n = 8 * u + i
                    w = st["k"] - 1 - n
                    assert w >= 0
                    if w < max(thr, self.fbhi if self.fb else 0) or not steady: e(f"s_waitcnt vmcnt({min(63, w)})")
                    if isk:
                        G, j = i >> 2, i & 3
                        D = D0 if G == 0 else D1
                        c = "0" if j == 0 else f"v[{D}:{D+3}]"
                        e(f"v_mfma_f32_16x16x32_bf16 v[{D}:{D+3}], {slot_regs(slot_of(n))}, v[{QF+4*j}:{QF+4*j+3}], {c}")
                    else:
                        j, hf = i >> 1, i & 1
                        A = ACC0 if hf == 0 else ACC1
                        e(f"v_mfma_f32_16x16x32_bf16 v[{A}:{A+3}], v[{AF+4*j}:{AF+4*j+3}], {slot_regs(slot_of(n))}, v[{A}:{A+3}]")
                    st["last"] = n
                    if i != 7 or isk: point()
                if isk:
                    for r in range(4): e(f"v_permlane32_swap_b32 v{D0+r}, v{D1+r}")
                    for r in range(4): e(f"v_add_f32_dpp v{T+r}, v{D1+r}, v{D0+r} row_half_mirror row_mask:0xf bank_mask:0x5")
                    for r in range(4): e(f"v_add_f32_dpp v{T+r}, v{D0+r}, v{D1+r} row_half_mirror row_mask:0xf bank_mask:0xa")
                    e(f"v_cvt_pk_bf16_f32 v{PK}, v{T}, v{T+1}")
                    e(f"v_cvt_pk_bf16_f32 v{PK+1}, v{T+2}, v{T+3}")
                    e(f"v_max3_f32 v{MRUN}, v{T}, v{T+1}, v{MRUN}")
                    e(f"ds_write_b64 v20, v[{PK}:{PK+1}] offset:{SO + (64*par if steady else 64*u)}")
                    e(f"v_max3_f32 v{MRUN}, v{T+2}, v{T+3}, v{MRUN}")
            def offsets(last_oob, skip=0):
                if self.diag:
                    e("s_memrealtime s[98:99]"); e("s_waitcnt lgkmcnt(0)")
                    e("s_mov_b32 m0, s100"); e("s_nop 0")
                    e("v_writelane_b32 v254, s98, m0"); e("s_add_u32 s100, s100, 1")
                for i, so in enumerate((S_O1, S_O2, S_O3)):
                    e(f"s_add_u32 s{so}, s{S_R}, {i*32768}")
                    e(f"s_and_b32 s{so}, s{so}, 0xfffff")
                    e(f"s_add_u32 s{so}, s{so}, s{S_BASE}")
                    if i == 0 and skip: e(f"s_add_u32 s{S_R}, s{S_R}, {skip}")
                e(f"s_add_u32 s{S_R}, s{S_R}, 65536")
                if last_oob:
                    e(f"s_cmp_eq_u32 s{S_CNT}, 1")
                    e(f"s_cselect_b32 s{S_O2}, 0x80000000, s{S_O2}")
                    e(f"s_cselect_b32 s{S_O3}, 0x80000000, s{S_O3}")
            def top(bias):
                if self.fb:
                    e("s_waitcnt lgkmcnt(0)")
                    e("v_readfirstlane_b32 s71, v22")
                if bias: e(f"s_add_u32 s72, s{S_CNT}, {bias}") if not self.diag else e(f"s_add_u32 s97, s{S_CNT}, {bias}")
                src = (f"s72" if not self.diag else "s97") if bias else f"s{S_CNT}"
                e(f"v_mov_b32 v23, {src}")
                e(f"ds_write_b32 v28, v23 offset:{MISC+32}") if False else e(f"ds_write_b32 v{PADDR}, v23 offset:{MISC+32}")
                if self.fb:
                    e(f"ds_read_b32 v22, v79 offset:{MISC+28}")
                    e("s_cmp_eq_u32 s71, 1")
                    e("s_cselect_b64 vcc, -1, 0")
                    e("s_cmp_eq_u32 s71, 2")
            assert 8 < d <= 16
            u = 0
            while not (st["k"] - 8 * u == d and 8 * u >= npro and u % 2 == 0):
                unit(u, False, 0)
                u += 1
            ufirst = u
            if self.diag: e("s_mov_b32 s100, 0"); e("v_mov_b32 v254, 0")
            self.stamp(8)
            if self.fb: e("v_mov_b32 v22, 0")
            e(f"s_add_u32 s{S_R}, s{S_R}, {(ufirst+1)*32768}")
            e(f"v_add_u32 v20, {64*ufirst}, v20")
            e(f"s_mov_b32 s{S_CNT}, {(NT-ufirst)//2 - 1}")
            L = self.lab("kloop")
            e.label(L)
            offsets(False)
            if self.fb: top(NT // 2 + 1)
            unit(ufirst, True, 0); unit(ufirst + 1, True, 1)
            e("v_add_u32 v20, 128, v20")
            e(f"s_sub_u32 s{S_CNT}, s{S_CNT}, 1")
            e(f"s_cmp_lg_u32 s{S_CNT}, 0")
            e(f"s_cbranch_scc1 {L}")
            offsets(False, (32 - NT) * 32768 if self.ns else 0)
            if self.fb: top(NT // 2 + 1)
            st["k"] = 8 * (NT - 2) + d
            unit(NT - 2, True, 0); unit(NT - 1, True, 1)
            e(f"ds_read_b64 v[16:17], v21 offset:{SO}")
            self.cross_rows(MRUN, MX2, "max")
            self.rnd(MRUN)
            e(f"v_mul_f32 v{NRUN}, s{S_C}, v{MRUN}")
            e(f"v_sub_f32 v{NRUN}, 0, v{NRUN}")
            e(f"s_mov_b32 s{S_CNT}, {NT//2}")
            L = self.lab("vloop")
            e.label(L)
            offsets(True)
            top(0)
            PN = 16 * (32 - NT) * 4
            def claim():
                Ln = self.lab("ncl")
                e(f"v_mov_b32 v240, {PN}")
                e("s_cmp_eq_u32 s12, 0")
                e(f"s_cbranch_scc1 {Ln}")
                e.skippable("s_sub_u32 s12, s12, 1")
                e.skippable("v_mov_b32 v240, 1")
                e.skippable("s_mov_b64 exec, 1")
                e.skippable(f"buffer_atomic_add v240, off, s[{R_WS}:{R_WS+3}], s14 sc0 sc1")
                e.skippable("s_mov_b64 exec, -1")
                e.label(Ln)
            if self.ns:
                assert self.rot == 2 and not self.fb
                Lk = self.lab("ncp")
                e(f"s_cmp_lg_u32 s{S_CNT}, 1")
                e(f"s_cbranch_scc1 {Lk}")
                e(f"ds_read_b32 v240, v79 offset:{MISC+16}")
                e("s_lshr_b32 s14, s2, 4")
                e("s_lshl_b32 s14, s14, 8")
                e(f"s_add_u32 s14, s14, {CNTB}")
                e("s_waitcnt lgkmcnt(0)")
                e("v_readfirstlane_b32 s12, v240")
                e("s_sub_u32 s12, s12, 1")
                e("s_cmp_lt_u32 s12, 98")
                e(f"s_cselect_b32 s12, {self.rp}, {PN + 1}")
                claim()
                e.label(Lk)
            unit(NT, True, 0); unit(NT + 1, True, 1)
            e("v_add_u32 v21, 128, v21")
            e(f"s_sub_u32 s{S_CNT}, s{S_CNT}, 1")
            e(f"s_cmp_lg_u32 s{S_CNT}, 0")
            e(f"s_cbranch_scc1 {L}")
            e("s_waitcnt lgkmcnt(0)")
            if self.ns:
                self.stamp(9)
                Lp = self.lab("pool"); Lq = self.lab("poolx")
                e.label(Lp)
                e("s_waitcnt vmcnt(0)")
                e("v_readfirstlane_b32 s13, v240")
                e(f"s_cmp_ge_u32 s13, {PN}")
                e(f"s_cbranch_scc1 {Lq}")
                e("s_bfe_u32 s15, s13, 0x40002")
                e("s_lshr_b32 s65, s13, 6")
                e("s_add_u32 s65, s65, s15")
                e("s_and_b32 s66, s2, 16")
                e("s_add_u32 s65, s65, s66")
                e(f"s_add_u32 s65, s65, {NT}")
                e("s_and_b32 s65, s65, 31")
                e("s_lshl_b32 s65, s65, 15")
                e("s_lshl_b32 s15, s15, 20")
                e("s_add_u32 s65, s65, s15")
                e("s_and_b32 s15, s13, 3")
                e("s_lshl_b32 s15, s15, 13")
                e("s_add_u32 s65, s65, s15")
                e("s_lshr_b32 s15, s2, 4")
                e("s_lshl_b32 s15, s15, 24")
                e("s_add_u32 s65, s65, s15")
                claim()
                for i in range(8): issue(i, i, S_O1)
                for i in range(8): issue(8 * NT + i, 8 + i, S_O1)
                for i in range(8):
                    G, j = i >> 2, i & 3
                    D = D0 if G == 0 else D1
                    c = "0" if j == 0 else f"v[{D}:{D+3}]"
                    e(f"s_waitcnt vmcnt({15-i})")
                    e(f"v_mfma_f32_16x16x32_bf16 v[{D}:{D+3}], {slot_regs(i)}, v[{QF+4*j}:{QF+4*j+3}], {c}")
                softmax(lambda: None)
                for i in range(8):
                    j, hf = i >> 1, i & 1
                    A = ACC0 if hf == 0 else ACC1
                    e(f"s_waitcnt vmcnt({7-i})")
                    e(f"v_mfma_f32_16x16x32_bf16 v[{A}:{A+3}], v[{AF+4*j}:{AF+4*j+3}], {slot_regs(8+i)}, v[{A}:{A+3}]")
                if self.diag: e(f"s_add_u32 s{ST0+20}, s{ST0+20}, 1")
                e(f"s_branch {Lp}")
                e.label(Lq)
                e.fence(8)
            if self.diag:
                e("s_lshl_b32 s98, s2, 2"); e(f"s_add_u32 s98, s98, s{S_HW}"); e("s_lshl_b32 s98, s98, 8"); e(f"s_add_u32 s98, s98, {STAMP + 0x40000}")
                e("v_lshlrev_b32 v23, 2, v1")
                e(f"buffer_store_dword v254, v23, s[{R_WS}:{R_WS+3}], s98 offen")
        else:
            d = self.dist
            NL = NT * 16
            def slot_of(n): return n if n < npro else n % 16
            def consume(n):
                i = n % 16
                if i < 8:
                    G, j = i >> 2, i & 3
                    D = D0 if G == 0 else D1
                    c = "0" if j == 0 else f"v[{D}:{D+3}]"
                    e(f"v_mfma_f32_16x16x32_bf16 v[{D}:{D+3}], {slot_regs(slot_of(n))}, v[{QF+4*j}:{QF+4*j+3}], {c}")
                else:
                    i -= 8
                    j, hf = i >> 1, i & 1
                    A = ACC0 if hf == 0 else ACC1
                    e(f"v_mfma_f32_16x16x32_bf16 v[{A}:{A+3}], v[{AF+4*j}:{AF+4*j+3}], {slot_regs(slot_of(n))}, v[{A}:{A+3}]")
            st = dict(k=npro)
            def tile(t, steady, thr=None):
                thr = self.thr if thr is None else thr
                st["j"] = 0
                st["last"] = 16 * t - 1
                def point():
                    j = st["j"]; st["j"] += 1
                    k = st["k"]
                    want = 16 * t + d + j
                    prev = k - 16 if k - 16 >= npro else k % 16
                    if prev > st["last"]:
                        assert not steady
                        return
                    if k > want and j % 2 == 0: return
                    if steady:
                        assert k == want
                        so = S_O1 if k // 16 == t else S_O2
                    else:
                        if st.get("so") != k // 16:
                            tile_off(S_O2, k // 16)
                            st["so"] = k // 16
                        so = S_O2
                    e(f"s_waitcnt vmcnt({thr-1})")
                    issue(k, slot_of(k), so)
                    st["k"] = k + 1
                for i in range(16):
                    n = 16 * t + i
                    if i == 8: softmax(point)
                    w = st["k"] - 1 - n
                    assert w >= 0
                    if w < thr or not steady: e(f"s_waitcnt vmcnt({min(63, w)})")
                    consume(n)
                    st["last"] = n
                    if i % 8 != 7: point()
            t = 0
            while not (st["k"] - 16 * t == d and 16 * t >= npro):
                tile(t, False)
                t += 1
            tfirst = t
            self.stamp(8)
            tile_off(S_O1, tfirst)
            e(f"s_add_u32 s{S_R}, s{S_R}, {tfirst*32768}")
            e(f"s_mov_b32 s{S_CNT}, {NT-tfirst}")
            for thr, stop in ([(self.thr, self.nl2), (self.thr2, 0)] if self.nl2 else [(self.thr, 0)]):
                L = self.lab("sloop")
                e.label(L)
                e(f"s_add_u32 s{S_R}, s{S_R}, 32768")
                e(f"s_and_b32 s{S_O2}, s{S_R}, 0xfffff")
                e(f"s_add_u32 s{S_O2}, s{S_O2}, s{S_BASE}")
                e(f"v_mov_b32 v23, s{S_CNT}")
                e(f"s_cmp_eq_u32 s{S_CNT}, 1")
                e(f"s_cselect_b32 s{S_O2}, 0x80000000, s{S_O2}")
                e(f"ds_write_b32 v79, v23 offset:{MISC+12}")
                st["k"] = 16 * tfirst + d
                tile(tfirst, True, thr)
                e(f"s_mov_b32 s{S_O1}, s{S_O2}")
                e(f"s_sub_u32 s{S_CNT}, s{S_CNT}, 1")
                e(f"s_cmp_lg_u32 s{S_CNT}, {stop}")
                e(f"s_cbranch_scc1 {L}")
        self.stamp(2)
        self.cross_rows(LRUN, MX2, "add")
        e(f"ds_write_b128 v76, v[{ACC0}:{ACC0+3}] offset:{SO}")
        e(f"ds_write_b128 v76, v[{ACC1}:{ACC1+3}] offset:{SO+512}")
        e("s_mov_b64 exec, 0x101")
        e(f"ds_write2_b32 v77, v{NRUN}, v{LRUN} offset0:{SML//4} offset1:{SML//4+1}") if SML // 4 + 1 < 256 else None
        e("s_mov_b64 exec, 1")
        e(f"ds_add_rtn_u32 v22, v79, v78 offset:{MISC+4}")
        e("s_mov_b64 exec, -1")
        e("s_waitcnt lgkmcnt(0)")
        e("v_readfirstlane_b32 s64, v22")
        e("s_cmp_eq_u32 s64, 3")
        Ld = self.lab("slast")
        e(f"s_cbranch_scc1 {Ld}")
        self.endpgm()
        e.label(Ld)
        e("s_waitcnt vmcnt(0)")
        e.label("L_sfinal")
        e("v_mov_b32 v20, 0")
        e("v_lshlrev_b32 v22, 4, v1")
        for w in range(4):
            e(f"ds_read_b128 v[{24+4*w}:{27+4*w}], v20 offset:{SML+16*w}")
        OB = 80
        for h in range(2):
            for w in range(4):
                r = OB + (h * 4 + w) * 4
                e(f"ds_read_b128 v[{r}:{r+3}], v22 offset:{SO + w*2048 + h*1024}")
        e(f"s_and_b32 s{S_TM}, s{S_TAG}, 0x3f")
        e("v_mov_b32 v21, 0xffffffc0")
        e("s_waitcnt lgkmcnt(8)")
        for h in range(2):
            n = [24 + 4 * w + 2 * h for w in range(4)]
            e(f"v_min3_f32 v{40+h}, v{n[0]}, v{n[1]}, v{n[2]}")
            e(f"v_min_f32 v{40+h}, v{40+h}, v{n[3]}")
        for h in range(2):
            for w in range(4):
                e(f"v_sub_f32 v{44+4*h+w}, v{40+h}, v{24+4*w+2*h}")
        for i in range(8): e(f"v_exp_f32 v{44+i}, v{44+i}")
        for h in range(2):
            e(f"v_mul_f32 v{42+h}, v{44+4*h}, v{25+2*h}")
        for w in range(1, 4):
            for h in range(2):
                e(f"v_fmac_f32 v{42+h}, v{44+4*h+w}, v{25+4*w+2*h}")
        for h in range(2): e(f"v_rcp_f32 v{52+h}, v{42+h}")
        for h in range(2): e(f"v_log_f32 v{54+h}, v{42+h}")
        for h in range(2):
            for w in range(4): e(f"v_mul_f32 v{44+4*h+w}, v{44+4*h+w}, v{52+h}")
        for h in range(2): e(f"v_sub_f32 v{54+h}, v{54+h}, v{40+h}")
        e(f"s_lshl_b32 s64, s2, 11")
        e(f"s_add_u32 s64, s64, {PBUF}")
        for h in range(2):
            e(f"s_waitcnt lgkmcnt({4-4*h})")
            o = 56 + 4 * h
            for i in range(4): e(f"v_mul_f32 v{o+i}, v{44+4*h}, v{OB+h*16+i}")
            for w in range(1, 4):
                for i in range(4): e(f"v_fmac_f32 v{o+i}, v{44+4*h+w}, v{OB+h*16+w*4+i}")
            for i in range(4): self.tagw(o + i, o + i, 21)
        e("v_cmp_eq_u32 vcc, 1, v1")
        e("v_cndmask_b32 v72, v54, v55, vcc")
        e(f"v_mov_b32 v73, s{S_TAG}")
        e("v_lshlrev_b32 v23, 11, v1")
        e("s_lshl_b32 s65, s2, 3")
        e(f"s_add_u32 s65, s65, {HBUF}")
        e("s_cmp_eq_u32 s68, 1")
        e("s_cbranch_scc1 L_sfinal_back")
        for h in range(2):
            o = 56 + 4 * h
            e(f"buffer_store_dwordx4 v[{o}:{o+3}], v22, s[{R_WS}:{R_WS+3}], s64 offen offset:{h*1024} sc1")
        e("s_mov_b64 exec, 3")
        e(f"buffer_store_dwordx2 v[72:73], v23, s[{R_WS}:{R_WS+3}], s65 offen sc1")
        e(f"ds_add_u32 v79, v78 offset:{MISC+4}")
        self.dbgt(34)
        self.stamp(3)
        self.endpgm()

    def h_consts(self):
        e = self.e
        e("v_and_b32 v4, 15, v1")
        e("v_lshrrev_b32 v5, 4, v1")
        e("v_lshrrev_b32 v6, 2, v4")
        e("v_lshl_add_u32 v6, v5, 3, v6")
        e("v_and_b32 v7, 3, v4")
        e("v_lshlrev_b32 v7, 3, v7")
        e("v_and_b32 v8, 1, v1")
        e(f"v_mul_u32_u24 v8, {AVS}, v8")
        e("v_lshl_add_u32 v3, v5, 4, v8")
    def tr_addr(self, lgpitch, sbase):
        e = self.e
        e(f"v_lshl_add_u32 v2, v6, {lgpitch}, v7")
        e(f"v_add_u32 v2, s{sbase}, v2")
    def dma_voff(self, rowbytes, lgpitch, vout):
        e = self.e
        sh = lgpitch - 4
        e(f"v_lshrrev_b32 v{vout}, {sh}, v1")
        e(f"v_mul_u32_u24 v{vout}, {rowbytes}, v{vout}")
        e(f"v_and_b32 v{vout+1}, {(1<<sh)-1}, v1")
        e(f"v_lshl_add_u32 v{vout}, v{vout+1}, 4, v{vout}")
    def dma_loop(self, srd, voff, n, s_src, src_step, s_dst, inflight=None):
        e = self.e
        L = self.lab("dma")
        inflight = self.winfl_cur
        e(f"s_mov_b32 s66, {n}")
        e.label(L)
        e(f"s_mov_b32 m0, s{s_dst}")
        e(f"s_add_u32 s{s_dst}, s{s_dst}, 1024")
        e(f"buffer_load_dwordx4 v{voff}, s[{srd}:{srd+3}], s{s_src} offen {self.wflags} lds")
        e(f"s_add_u32 s{s_src}, s{s_src}, {src_step}")
        if inflight < 32: e(f"s_waitcnt vmcnt({inflight-1})")
        e("s_sub_u32 s66, s66, 1")
        e("s_cmp_lg_u32 s66, 0")
        e(f"s_cbranch_scc1 {L}")
    def h_sync(self):
        e = self.e
        L = self.lab("hs"); Lx = self.lab("hsx")
        e("s_waitcnt vmcnt(0)")
        e("v_mov_b32 v8, 0")
        e("v_mov_b32 v9, 1")
        e("s_mov_b64 exec, 1")
        e(f"ds_add_u32 v8, v9 offset:{MISC+8}")
        e("s_mov_b64 exec, -1")
        e.label(L)
        e(f"ds_read_b32 v9, v8 offset:{MISC+8}")
        e("s_waitcnt lgkmcnt(0)")
        e("v_readfirstlane_b32 s64, v9")
        e("s_cmp_ge_u32 s64, 4")
        e(f"s_cbranch_scc1 {Lx}")
        e("s_sleep 2")
        e(f"s_sub_u32 s{S_TO}, s{S_TO}, 1")
        e(f"s_cbranch_scc0 {L}")
        e(f"s_branch L_hfail")
        e.label(Lx)
    def tr_frags(self, nsteps, off, fbase, lgpitch):
        e = self.e
        for st in range(nsteps):
            f = fbase + 4 * st
            o = off + st * (32 << lgpitch)
            assert o + (4 << lgpitch) < 65536
            e(f"ds_read_b64_tr_b16 v[{f}:{f+1}], v2 offset:{o}")
            e(f"ds_read_b64_tr_b16 v[{f+2}:{f+3}], v2 offset:{o + (4 << lgpitch)}")
            if st % 4 == 3: e("s_waitcnt lgkmcnt(0)")
        e("s_waitcnt lgkmcnt(0)")
    def gemv(self, nsteps, abase, a_lds_off, chains, vaddr=3, ahead=12):
        e = self.e
        AHEAD = ahead
        def rd(st): e(f"ds_read_b128 v[{abase+4*st}:{abase+4*st+3}], v{vaddr} offset:{a_lds_off+st*64}")
        issued = min(nsteps, AHEAD)
        for st in range(issued): rd(st)
        for st in range(nsteps):
            e(f"s_waitcnt lgkmcnt({issued - 1 - st})")
            for D, fb in chains:
                c = "0" if st == 0 else f"v[{D}:{D+3}]"
                e(f"v_mfma_f32_16x16x32_bf16 v[{D}:{D+3}], v[{abase+4*st}:{abase+4*st+3}], v[{fb+4*st}:{fb+4*st+3}], {c}")
            if issued < nsteps:
                rd(issued); issued += 1
    def lds_wait(self, off, cmp, val, sleep=4, sreg=64):
        e = self.e
        L = self.lab("lw"); Lx = self.lab("lwx")
        e("v_mov_b32 v8, 0")
        e.label(L)
        e(f"ds_read_b32 v9, v8 offset:{off}")
        e("s_waitcnt lgkmcnt(0)")
        e(f"v_readfirstlane_b32 s{sreg}, v9")
        e(f"s_cmp_{cmp}_u32 s{sreg}, {val}")
        e(f"s_cbranch_scc1 {Lx}")
        e(f"s_sleep {sleep}")
        e(f"s_sub_u32 s{S_TO}, s{S_TO}, 1")
        e(f"s_cbranch_scc0 {L}")
        e(f"s_branch L_hfail")
        e.label(Lx)
    def lds_set(self, off, src):
        e = self.e
        e("v_mov_b32 v8, 0")
        e(f"v_mov_b32 v9, {src}")
        e(f"ds_write_b32 v8, v9 offset:{off}")
    def bar(self):
        e = self.e
        L = self.lab("nb")
        e("s_cmp_eq_u32 s68, 1")
        e(f"s_cbranch_scc1 {L}")
        e("s_barrier")
        e.label(L)
    def gate_all(self):
        e = self.e
        L = self.lab("gate"); Lx = self.lab("gatex"); Lo = self.lab("gateo"); Le = self.lab("gatee")
        e(f"s_cmp_lg_u32 s{S_HW}, 0")
        e(f"s_cbranch_scc1 {Lo}")
        e("v_lshlrev_b32 v8, 5, v1")
        e(f"s_mov_b32 s64, {HBUF}")
        e.label(L)
        e(f"buffer_load_dwordx4 v[40:43], v8, s[{R_WS}:{R_WS+3}], s64 offen sc1")
        e(f"buffer_load_dwordx4 v[44:47], v8, s[{R_WS}:{R_WS+3}], s64 offen offset:16 sc1")
        e("s_waitcnt vmcnt(0)")
        e(f"v_xor_b32 v41, s{S_TAG}, v41")
        e(f"v_xor_b32 v43, s{S_TAG}, v43")
        e(f"v_xor_b32 v45, s{S_TAG}, v45")
        e(f"v_xor_b32 v47, s{S_TAG}, v47")
        e("v_or3_b32 v41, v41, v43, v45")
        e("v_or_b32 v41, v41, v47")
        e("v_cmp_ne_u32 vcc, 0, v41")
        e("s_bcnt1_i32_b64 s65, vcc")
        e(f"s_cmp_le_u32 s65, {self.gthr}")
        e(f"s_cbranch_scc1 {Lx}")
        e("s_mov_b64 exec, vcc")
        e(f"s_sleep {self.gsleep}")
        e(f"s_sub_u32 s{S_TO}, s{S_TO}, 1")
        e(f"s_cbranch_scc0 {L}")
        e(f"s_branch L_hfail")
        e.label(Lx)
        e("s_mov_b64 exec, -1")
        self.lds_set(MISC + 20, 1)
        e(f"s_branch {Le}")
        e.label(Lo)
        self.lds_wait(MISC + 20, "eq", 1, 2)
        e.label(Le)
    def xcc(self, dst, stride):
        e = self.e
        if self.xcp:
            e(f"s_getreg_b32 s{dst}, hwreg(HW_REG_XCC_ID)")
            e(f"s_and_b32 s{dst}, s{dst}, 7")
            e(f"s_mul_i32 s{dst}, s{dst}, {stride}")
        else:
            e(f"s_mov_b32 s{dst}, 0")
    def ybases(self):
        self.xcc(47, YCP)
        for k in range(8): self.e(f"s_add_u32 s{40+k}, s47, {YBUF + k*3584}")
    def ln_finish(self, mean, var, out_mb, out_rs):
        e = self.e
        for m, o in zip(mean, out_mb):
            if m != o: e(f"v_mov_b32 v{o}, v{m}")
        self.rnd_many(list(out_mb) + list(var))
        for v in var: e(f"v_add_f32 v{v}, {f2u(1e-5):#x}, v{v}")
        self.rnd_many(var)
        for v in var: e(f"v_sqrt_f32 v{v}, v{v}")
        self.rnd_many(var)
        for v, o in zip(var, out_rs): e(f"v_rcp_f32 v{o}, v{v}")

    def q_path(self):
        e = self.e
        e("v_lshlrev_b32 v8, 4, v1")
        e("v_cmp_gt_u32 s[70:71], 56, v1")
        e("v_mov_b32 v9, 0x10000")
        e("v_cndmask_b32 v8, v9, v8, s[70:71]")
        e(f"buffer_load_dwordx4 v[12:15], v8, s[{R_X}:{R_X+3}], 0 offen")
        e(f"buffer_load_dwordx4 v[16:19], v8, s[{R_X}:{R_X+3}], 0 offen offset:896")
        e(f"buffer_load_dword v10, off, s[{R_WS}:{R_WS+3}], 0 offset:{EPOCH} sc1")
        e(f"s_and_b32 s12, s{S_SPL}, 3")
        e(f"s_lshr_b32 s13, s{S_SPL}, 2")
        e(f"s_lshl_b32 s64, s{S_B}, 2")
        e("s_add_u32 s13, s13, s64")
        e(f"s_mul_i32 s64, s12, {112*8192}")
        e(f"s_lshl_b32 s65, s{S_HKV}, 10")
        e("s_add_u32 s64, s64, s65")
        e("s_lshl_b32 s65, s13, 7")
        e("s_add_u32 s64, s64, s65")
        self.srd(R_W, P_WQ, 448 * 8192)
        self.dma_voff(8192, 7, 20)
        for st in range(14):
            e(f"s_mov_b32 m0, {STG + st*1024}")
            if st: e(f"s_add_u32 s64, s64, {8*8192}")
            e(f"buffer_load_dwordx4 v20, s[{R_W}:{R_W+3}], s64 offen {self.qflags} lds")
        self.stamp(9)
        self.h_consts()
        e("v_mov_b32 v20, 0")
        e("v_mov_b32 v21, 0")
        e("v_mov_b32 v21, 0x7fff")
        e(f"ds_write_b64 v20, v[20:21] offset:{MISC+8}")
        e("v_mov_b32 v21, 0")
        e(f"ds_write_b64 v20, v[20:21] offset:{MISC+16}")
        e(f"ds_write_b32 v20, v20 offset:{MISC+4}")
        e(f"ds_write_b32 v20, v20 offset:{MISC+28}")
        e("v_mov_b32 v21, 0x7fff")
        e(f"ds_write_b32 v20, v21 offset:{MISC+32}")
        if self.fb or self.ns:
            Lz = self.lab("nz")
            e(f"s_cmp_lg_u32 s{S_SPL}, 0")
            e(f"s_cbranch_scc1 {Lz}")
            e(f"s_lshl_b32 s64, s{S_GRP}, 8")
            e(f"s_add_u32 s64, s64, {CNTB}")
            e("s_mov_b64 exec, 1")
            e(f"buffer_store_dword v20, off, s[{R_WS}:{R_WS+3}], s64 sc1")
            e("s_mov_b64 exec, -1")
            e.label(Lz)
        e("s_waitcnt vmcnt(15)")
        self.stamp(10)
        for b in range(2):
            for i in range(4):
                e(f"v_lshlrev_b32 v{24+8*b+2*i}, 16, v{12+4*b+i}")
                e(f"v_and_b32 v{25+8*b+2*i}, 0xffff0000, v{12+4*b+i}")
        for b in range(2):
            x = 24 + 8 * b
            e(f"v_add_f32 v{40+b}, v{x}, v{x+1}")
            for i in range(2, 8): e(f"v_add_f32 v{40+b}, v{40+b}, v{x+i}")
        self.wave_sum_to_sgpr([40, 41], [64, 65])
        inv = f2u(1.0 / 448)
        for b in range(2):
            e(f"v_mov_b32 v{42+b}, {inv:#x}")
            e(f"v_mul_f32 v{42+b}, s{64+b}, v{42+b}")
        for b in range(2):
            x = 24 + 8 * b
            e(f"v_sub_f32 v44, v{x}, v{42+b}")
            e(f"v_mul_f32 v{40+b}, v44, v44")
            for i in range(1, 8):
                e(f"v_sub_f32 v44, v{x+i}, v{42+b}")
                e(f"v_fmac_f32 v{40+b}, v44, v44")
            e(f"v_cndmask_b32 v{40+b}, 0, v{40+b}, s[70:71]")
        self.wave_sum_to_sgpr([40, 41], [64, 65])
        for b in range(2):
            e(f"v_mov_b32 v{44+b}, {inv:#x}")
            e(f"v_mul_f32 v{44+b}, s{64+b}, v{44+b}")
        self.ln_finish([42, 43], [44, 45], [42, 43], [46, 47])
        for b in range(2):
            x = 24 + 8 * b
            for i in range(8): e(f"v_sub_f32 v{x+i}, v{x+i}, v{42+b}")
            for i in range(4): e(f"v_cvt_pk_bf16_f32 v{12+4*b+i}, v{x+2*i}, v{x+2*i+1}")
            for i in range(4):
                e(f"v_lshlrev_b32 v{x+2*i}, 16, v{12+4*b+i}")
                e(f"v_and_b32 v{x+2*i+1}, 0xffff0000, v{12+4*b+i}")
            for i in range(8): e(f"v_mul_f32 v{x+i}, v{x+i}, v{46+b}")
            for i in range(4): e(f"v_cvt_pk_bf16_f32 v{12+4*b+i}, v{x+2*i}, v{x+2*i+1}")
        e("v_lshlrev_b32 v8, 4, v1")
        e("s_mov_b64 exec, s[70:71]")
        e(f"ds_write_b128 v8, v[12:15] offset:{AV}")
        e(f"ds_write_b128 v8, v[16:19] offset:{AV+AVS}")
        e("s_mov_b64 exec, -1")
        e("s_waitcnt vmcnt(14)")
        e("v_readfirstlane_b32 s64, v10")
        self.set_tag(64)
        e(f"v_mov_b32 v21, s{S_TAG}")
        e(f"ds_write_b32 v20, v21 offset:{MISC}")
        e("s_waitcnt vmcnt(0) lgkmcnt(0)")
        self.stamp(1)
        e(f"s_mov_b32 s64, {STG}")
        self.tr_addr(7, 64)
        e("s_mul_i32 s64, s12, 224")
        e("v_add_u32 v9, s64, v3")
        for st in range(4): e(f"ds_read_b128 v[{128+4*st}:{131+4*st}], v9 offset:{AV+st*64}")
        for cg in range(4): self.tr_frags(4, cg * 32, 64 + 16 * cg, 7)
        e("v_cmp_gt_u32 vcc, 32, v1")
        for i in range(4): e(f"v_cndmask_b32 v{140+i}, 0, v{140+i}, vcc")
        for cg in range(4):
            for i in range(4): e(f"v_cndmask_b32 v{76+16*cg+i}, 0, v{76+16*cg+i}, vcc")
        for st in range(4):
            for cg in range(4):
                D = 144 + 4 * cg
                c = "0" if st == 0 else f"v[{D}:{D+3}]"
                e(f"v_mfma_f32_16x16x32_bf16 v[{D}:{D+3}], v[{128+4*st}:{131+4*st}], v[{64+16*cg+4*st}:{67+16*cg+4*st}], {c}")
        e("v_cmp_lt_u32 s[64:65], 15, v1")
        e("v_cmp_lt_u32 s[66:67], 31, v1")
        e("v_cmp_lt_u32 vcc, 47, v1")
        e(f"v_mov_b32 v53, s{S_TAG}")
        e(f"v_mov_b32 v55, s{S_TAG}")
        e("v_lshlrev_b32 v8, 3, v1")
        for b in range(2):
            e(f"v_cndmask_b32 v{52+2*b}, v{144+b}, v{148+b}, s[64:65]")
        for b in range(2):
            e(f"v_cndmask_b32 v{52+2*b}, v{52+2*b}, v{152+b}, s[66:67]")
        for b in range(2):
            e(f"v_cndmask_b32 v{52+2*b}, v{52+2*b}, v{156+b}, vcc")
        e(f"s_lshl_b32 s64, s{S_HKV}, 14")
        e("s_lshl_b32 s65, s12, 12")
        e("s_add_u32 s64, s64, s65")
        e("s_lshl_b32 s65, s13, 9")
        e("s_add_u32 s64, s64, s65")
        e(f"s_add_u32 s64, s64, {QBUF}")
        e(f"s_add_u32 s65, s64, {8*16384}")
        e(f"buffer_store_dwordx2 v[52:53], v8, s[{R_WS}:{R_WS+3}], s64 offen sc1")
        e(f"buffer_store_dwordx2 v[54:55], v8, s[{R_WS}:{R_WS+3}], s65 offen sc1")
        self.lds_set(MISC + 24, f"s{S_TAG}")
        self.stamp(2)

    def q_gather(self):
        e = self.e
        e("v_lshlrev_b32 v8, 4, v1")
        e(f"s_lshl_b32 s13, s{S_GRP}, 14")
        e(f"s_lshl_b32 s64, s{S_HW}, 10")
        e("s_add_u32 s13, s13, s64")
        e(f"s_add_u32 s13, s13, {QBUF}")
        for k in range(1, 4): e(f"s_add_u32 s{64+k}, s13, {k*4096}")
        qld = [f"buffer_load_dwordx4 v[{24+4*k}:{27+4*k}], v8, s[{R_WS}:{R_WS+3}], s{64+k if k else 13} offen sc1" for k in range(4)]
        if self.qtrig:
            e("v_mov_b32 v41, v8")
            self.lds_wait(MISC + 48, "eq", 1, 2, 70)
            e("v_mov_b32 v8, v41")
            for l in qld: e(l)
        elif self.qsleep0:
            e(f"s_sleep {self.qsleep0}")
            for l in qld: e(l)
        else:
            e(qld[0])
        for k in range(4):
            L = self.lab("qp"); Lx = self.lab("qpx")
            if k == 1 and not self.qsleep0 and not self.qtrig:
                for l in qld[1:]: e(l)
            e.label(L)
            e("s_waitcnt vmcnt(0)")
            self.check_words([25 + 4 * k, 27 + 4 * k], 40, mant=False)
            e(f"s_cbranch_vccz {Lx}")
            e(f"s_sleep {self.qsleep}")
            e(qld[k])
            e(f"s_sub_u32 s{S_TO}, s{S_TO}, 1")
            e(f"s_cbranch_scc0 {L}")
            e("s_branch L_hfail")
            e.label(Lx)
        e("v_add_f32 v24, v24, v28")
        e("v_add_f32 v26, v26, v30")
        e("v_add_f32 v32, v32, v36")
        e("v_add_f32 v34, v34, v38")
        e("v_add_f32 v24, v24, v32")
        e("v_add_f32 v26, v26, v34")
        e("v_cvt_pk_bf16_f32 v24, v24, v26")
        e("v_lshlrev_b32 v8, 2, v1")
        e(f"s_lshl_b32 s64, s{S_HW}, 8")
        e("v_add_u32 v8, s64, v8")
        e(f"ds_write_b32 v8, v24 offset:{QL}")
        e("s_waitcnt lgkmcnt(0)")

    def stage_a(self):
        e = self.e
        FB, PB = 64, 128
        if self.latea == 1: self.lds_wait(MISC + 4, "ge", 5, 2)
        if self.latea >= 2: self.lds_wait(MISC + 32, "le", self.latea - 1, 4)
        self.winfl_cur = self.winfl2 if self.latea else self.winfl
        self.srd(R_W, P_WO, 4096 * 896)
        e(f"s_mul_i32 s64, s{S_HKV}, {512*896}")
        e(f"s_lshl_b32 s65, s{S_SPL}, 7")
        e("s_add_u32 s64, s64, s65")
        e(f"s_mul_i32 s65, s{S_HW}, {128*896}")
        e("s_add_u32 s64, s64, s65")
        e(f"s_lshl_b32 s65, s{S_HW}, 14")
        e(f"s_add_u32 s65, s65, {STG}")
        self.dma_voff(896, 7, 20)
        self.dma_loop(R_W, 20, 16, 64, 8 * 896, 65)
        self.h_sync()
        e(f"s_lshl_b32 s64, s{S_HW}, 5")
        e(f"s_add_u32 s64, s64, {STG}")
        self.tr_addr(7, 64)
        self.tr_frags(16, 0, FB, 7)
        self.stamp(4)
        e(f"s_lshr_b32 s12, s{S_HW}, 1")
        e(f"s_and_b32 s13, s{S_HW}, 1")
        e("s_lshl_b32 s14, s12, 3")
        e(f"s_add_u32 s14, s14, s{S_HKV}")
        e("s_lshl_b32 s15, s14, 15")
        e("s_lshl_b32 s64, s13, 10")
        e("s_add_u32 s15, s15, s64")
        e(f"s_add_u32 s15, s15, {PBUF}")
        e("s_lshl_b32 s64, s13, 11")
        e("s_lshl_b32 s14, s14, 7")
        e("s_add_u32 s14, s14, s64")
        e(f"s_add_u32 s14, s14, {HBUF}")
        e("v_lshlrev_b32 v5, 4, v1")
        e("v_lshlrev_b32 v6, 3, v4")
        e(f"s_mul_i32 s64, s12, {AVS}")
        e("s_lshl_b32 s65, s13, 9")
        e("s_add_u32 s64, s64, s65")
        e("v_lshlrev_b32 v7, 3, v1")
        e("v_add_u32 v7, s64, v7")
        e("v_lshlrev_b32 v18, 3, v1")
        if self.xcp:
            e("v_lshrrev_b32 v18, 4, v1")
            e(f"v_mul_u32_u24 v18, {YCP}, v18")
            e("v_lshl_add_u32 v18, v4, 3, v18")
        e("v_mov_b32 v19, 0xffffffc0")
        e(f"s_mul_i32 s52, s{S_HKV}, {448*8}")
        e(f"s_lshl_b32 s65, s{S_SPL}, 9")
        e("s_add_u32 s52, s52, s65")
        e(f"s_lshl_b32 s65, s{S_HW}, 7")
        e("s_add_u32 s52, s52, s65")
        e(f"s_add_u32 s52, s52, {YBUF}")
        e(f"s_add_u32 s53, s52, {4*YCP}")
        if self.stouch:
            e(f"buffer_load_dwordx2 v[24:25], v18, s[{R_WS}:{R_WS+3}], s52 offen sc1")
            if self.xcp: e(f"buffer_load_dwordx2 v[26:27], v18, s[{R_WS}:{R_WS+3}], s53 offen sc1")
            e("s_waitcnt vmcnt(0)")
        e("s_mov_b32 s68, 1")
        e("s_branch L_a_go")
        e.label("L_a_poll")
        e("s_mov_b32 s68, 0")
        self.stamp(5)
        self.stamp(6)
        NB = self.aspec
        L = self.lab("asw"); Lz = self.lab("anl"); Li = self.lab("ais"); Lc = self.lab("ack")
        e("s_mov_b32 s69, 0xffff")
        e("s_mov_b32 s70, 0")
        e("v_mov_b32 v12, 0xff800000")
        for i in range(13, 18): e(f"v_mov_b32 v{i}, 0")
        e.label(L)
        e(f"buffer_load_dwordx2 v[10:11], v6, s[{R_WS}:{R_WS+3}], s14 offen sc1")
        for i in range(NB):
            r = PB + 4 * i
            e(f"s_ff1_i32_b32 s{40+i}, s70")
            e(f"s_cmp_lt_i32 s{40+i}, 0")
            e(f"s_cbranch_scc1 {Li}")
            e(f"s_lshl_b32 s64, s{40+i}, 11")
            e(f"s_bitset0_b32 s70, s{40+i}")
            e("s_add_u32 s64, s64, s15")
            e(f"buffer_load_dwordx4 v[{r}:{r+3}], v5, s[{R_WS}:{R_WS+3}], s64 offen sc1")
        e.label(Li)
        e("s_waitcnt vmcnt(0)")
        e(f"v_cmp_eq_u32 s[66:67], s{S_TAG}, v11")
        for i in range(NB):
            r = PB + 4 * i
            nx = self.lab("anx")
            e(f"s_cmp_lt_i32 s{40+i}, 0")
            e(f"s_cbranch_scc1 {Lc}")
            e(f"v_readlane_b32 s64, v10, s{40+i}")
            self.check_words([r, r + 2], 28)
            e(f"s_cbranch_vccnz {nx}")
            e(f"s_bitcmp1_b32 s66, s{40+i}")
            e(f"s_cbranch_scc0 {nx}")
            e("v_max_f32 v28, s64, v12")
            e("v_sub_f32 v24, v12, v28")
            e("v_sub_f32 v26, s64, v28")
            e("v_exp_f32 v24, v24")
            e("v_exp_f32 v26, v26")
            e("v_mov_b32 v12, v28")
            e(f"s_bitset0_b32 s69, s{40+i}")
            e("v_pk_mul_f32 v[14:15], v[14:15], v[24:25] op_sel_hi:[1,0]")
            e("v_pk_mul_f32 v[16:17], v[16:17], v[24:25] op_sel_hi:[1,0]")
            e("v_fma_f32 v13, v13, v24, v26")
            e(f"v_pk_fma_f32 v[14:15], v[{r}:{r+1}], v[26:27], v[14:15] op_sel_hi:[1,0,1]")
            e(f"v_pk_fma_f32 v[16:17], v[{r+2}:{r+3}], v[26:27], v[16:17] op_sel_hi:[1,0,1]")
            e.label(nx)
        e.label(Lc)
        e("s_cmp_eq_u32 s69, 0")
        e("s_cbranch_scc1 L_a_got")
        e("s_and_b32 s70, s69, s66")
        e("s_bcnt1_i32_b32 s64, s69")
        e(f"s_cmp_le_u32 s64, {NB}")
        e("s_cselect_b32 s70, s69, s70")
        e("s_cmp_lg_u32 s70, 0")
        e(f"s_cbranch_scc1 {Lz}")
        e(f"s_sleep {self.gsleep}")
        e.label(Lz)
        e(f"s_sub_u32 s{S_TO}, s{S_TO}, 1")
        e(f"s_cbranch_scc0 {L}")
        e("s_branch L_hfail")
        e.label("L_a_got")
        self.stamp(7)
        e.label("L_a_go")
        e("v_rcp_f32 v24, v13")
        e("v_pk_mul_f32 v[14:15], v[14:15], v[24:25] op_sel_hi:[1,0]")
        e("v_pk_mul_f32 v[16:17], v[16:17], v[24:25] op_sel_hi:[1,0]")
        e("v_cvt_pk_bf16_f32 v14, v14, v15")
        e("v_cvt_pk_bf16_f32 v15, v16, v17")
        e(f"ds_write_b64 v7, v[14:15] offset:{AV}")
        e("s_waitcnt lgkmcnt(0)")
        self.bar()
        self.gemv(16, PB + 64, AV, [(20, FB)])
        self.tagw(24, 20, 19)
        self.tagw(25, 21, 19)
        e("s_cmp_eq_u32 s68, 1")
        e("s_cbranch_scc1 L_a_poll")
        if self.xcp:
            e(f"buffer_store_dwordx2 v[24:25], v18, s[{R_WS}:{R_WS+3}], s52 offen sc1")
            e(f"buffer_store_dwordx2 v[24:25], v18, s[{R_WS}:{R_WS+3}], s53 offen sc1")
        else:
            e("s_mov_b64 exec, 0xffff")
            e(f"buffer_store_dwordx2 v[24:25], v18, s[{R_WS}:{R_WS+3}], s52 offen sc1")
        self.stamp(8)
        self.endpgm()

    def stage_b(self):
        e = self.e
        FG, FU, GB = 64, 120, 176
        UPO = 448 * 128
        self.srd(R_W, P_WG, 448 * 3584)
        self.srd(R_W2, P_WU, 448 * 3584)
        if self.wtouch:
            e(f"v_mul_u32_u24 v20, {7*3584}, v1")
            e("s_lshl_b32 s64, s12, 7")
            e(f"s_bitcmp1_b32 s{S_HW}, 1")
            Lw = self.lab("wt"); e(f"s_cbranch_scc1 {Lw}")
            e(f"s_bitcmp1_b32 s{S_HW}, 0")
            La = self.lab("wt"); e(f"s_cbranch_scc1 {La}")
            e(f"buffer_load_dword v21, v20, s[{R_W}:{R_W+3}], s64 offen nt")
            e(f"s_branch {Lw}")
            e.label(La)
            e(f"buffer_load_dword v21, v20, s[{R_W2}:{R_W2+3}], s64 offen nt")
            e.label(Lw)
        e(f"s_mul_i32 s64, s{S_HW}, 56")
        e("v_min_u32 v5, 55, v1")
        e("v_add_u32 v5, s64, v5")
        e("v_cmp_gt_u32 s[70:71], 56, v1")
        e("v_lshlrev_b32 v14, 2, v5")
        e(f"buffer_load_dword v16, v14, s[{R_X}:{R_X+3}], 0 offen")
        e(f"buffer_load_dword v17, v14, s[{R_X}:{R_X+3}], 0 offen offset:896")
        e("v_lshlrev_b32 v5, 4, v5")
        e("s_waitcnt vmcnt(0)")
        e("v_and_b32 v18, 0xffff0000, v16")
        e("v_and_b32 v19, 0xffff0000, v17")
        e("v_lshlrev_b32 v16, 16, v16")
        e("v_lshlrev_b32 v17, 16, v17")
        self.ybases()
        e(f"s_lshl_b32 s64, s{S_HW}, 4")
        e("v_mov_b32 v10, s64")
        e("v_and_b32 v11, 7, v1")
        e("v_lshlrev_b32 v11, 4, v11")
        e("v_lshlrev_b32 v12, 3, v1")
        if self.xcp:
            e("v_lshrrev_b32 v12, 4, v1")
            e(f"v_mul_u32_u24 v12, {GCP}, v12")
            e("v_lshl_add_u32 v12, v4, 3, v12")
        e("v_and_b32 v8, 16, v1")
        e("v_cmp_ne_u32 s[56:57], 0, v8")
        e("s_lshl_b32 s13, s12, 9")
        e(f"s_lshl_b32 s64, s{S_HW}, 7")
        e("s_add_u32 s13, s13, s64")
        e(f"s_add_u32 s13, s13, {GBUF}")
        e(f"s_add_u32 s58, s13, {4*GCP}")
        if self.stouch:
            e(f"buffer_load_dwordx2 v[24:25], v12, s[{R_WS}:{R_WS+3}], s13 offen sc1")
            if self.xcp: e(f"buffer_load_dwordx2 v[26:27], v12, s[{R_WS}:{R_WS+3}], s58 offen sc1")
            e("s_waitcnt vmcnt(0)")
        e(f"s_mov_b32 s14, {f2u(0.044715):#x}")
        e(f"s_mov_b32 s15, {f2u(112.0):#x}")
        e(f"v_mov_b32 v35, s{S_TAG}")
        e("s_mov_b32 s68, 1")
        e("s_branch L_b_go")
        e.label("L_b_poll")
        e("s_mov_b32 s68, 0")
        self.srd(R_W, P_WG, 448 * 3584)
        if self.lateb == 1: self.lds_wait(MISC + 4, "ge", 5, 2)
        if self.lateb >= 2: self.lds_wait(MISC + 32, "le", self.lateb - 1, 4)
        self.winfl_cur = self.winfl2 if self.lateb else self.winfl
        e("s_waitcnt vmcnt(0)")
        self.dma_voff(3584, 7, 20)
        for m_, srd_ in enumerate((R_W, R_W2)):
            e("s_lshl_b32 s64, s12, 7")
            e(f"s_mul_i32 s65, s{S_HW}, {112*3584}")
            e("s_add_u32 s64, s64, s65")
            e(f"s_mul_i32 s65, s{S_HW}, {112*128}")
            e(f"s_add_u32 s65, s65, {STG + m_*UPO}")
            self.dma_loop(srd_, 20, 14, 64, 8 * 3584, 65)
        self.stamp(5)
        if self.gpos == 0: self.gate_all()
        self.h_sync()
        e(f"s_lshl_b32 s64, s{S_HW}, 5")
        e(f"s_add_u32 s64, s64, {STG}")
        self.tr_addr(7, 64)
        self.tr_frags(14, 0, FG, 7)
        e(f"v_add_u32 v2, {UPO}, v2")
        self.tr_frags(14, 0, FU, 7)
        self.stamp(4)
        if self.gpos == 1: self.gate_all()
        self.stamp(6)
        self.sweep_all([f"buffer_load_dwordx4 v[{GB+4*k}:{GB+4*k+3}], v5, s[{R_WS}:{R_WS+3}], s{40+k} offen sc1" for k in range(8)],
                       [GB + 2 * i for i in range(16)], 240)
        self.stamp(7)
        e.label("L_b_go")
        for k in range(1, 8):
            for j in (0, 2):
                a = GB + j if k == 1 else 20 + j
                e(f"v_pk_add_f32 v[{20+j}:{21+j}], v[{a}:{a+1}], v[{GB+4*k+j}:{GB+4*k+j+1}]")
        def rnd4():
            e("v_cvt_pk_bf16_f32 v24, v20, v21")
            e("v_cvt_pk_bf16_f32 v25, v22, v23")
            e("v_lshlrev_b32 v20, 16, v24")
            e("v_and_b32 v21, 0xffff0000, v24")
            e("v_lshlrev_b32 v22, 16, v25")
            e("v_and_b32 v23, 0xffff0000, v25")
        rnd4()
        e("v_pk_add_f32 v[20:21], v[20:21], v[16:17]")
        e("v_pk_add_f32 v[22:23], v[22:23], v[18:19]")
        rnd4()
        for b in range(2): e(f"v_readfirstlane_b32 s{66+b}, v{20+b}")
        e("v_pk_add_f32 v[36:37], v[20:21], s[66:67] neg_lo:[0,1] neg_hi:[0,1]")
        e("v_pk_add_f32 v[38:39], v[22:23], s[66:67] neg_lo:[0,1] neg_hi:[0,1]")
        for b in range(2): e(f"v_mov_b32 v{24+4*b}, s{66+b}")
        for b in range(2): e(f"v_add_f32 v{25+4*b}, v{36+b}, v{38+b}")
        for b in range(2): e(f"v_mul_f32 v{26+4*b}, v{36+b}, v{36+b}")
        for b in range(2): e(f"v_fmac_f32 v{26+4*b}, v{38+b}, v{38+b}")
        red = [25, 29, 26, 30]
        for v in red: e(f"v_cndmask_b32 v{v}, 0, v{v}, s[70:71]")
        self.row_reduce(red)
        for v in red: e(f"v_add_f32_dpp v{v}, v{v}, v{v} row_bcast:15 row_mask:0xa bank_mask:0xf")
        for v in red: e(f"v_add_f32_dpp v{v}, v{v}, v{v} row_bcast:31 row_mask:0xc bank_mask:0xf")
        e("s_mov_b64 exec, 0x8000000000000000") if False else None
        e("s_mov_b32 exec_lo, 0")
        e("s_mov_b32 exec_hi, 0x80000000")
        e(f"ds_write_b96 v10, v[24:26] offset:{STATS}")
        e(f"ds_write_b96 v10, v[28:30] offset:{STATS+64}")
        e("s_mov_b64 exec, -1")
        e("s_waitcnt lgkmcnt(0)")
        self.bar()
        e(f"ds_read_b96 v[24:26], v11 offset:{STATS}")
        e("s_waitcnt lgkmcnt(0)")
        e(f"v_mul_f32 v27, {f2u(1.0/112):#x}, v25")
        e("v_add_f32 v24, v24, v27")
        e("v_fma_f32 v26, -v27, v25, v26")
        e("v_add_f32_dpp v28, v24, v24 quad_perm:[1,0,3,2] row_mask:0xf bank_mask:0xf")
        e("v_add_f32_dpp v28, v28, v28 quad_perm:[2,3,0,1] row_mask:0xf bank_mask:0xf")
        e(f"v_mul_f32 v28, {f2u(0.25):#x}, v28")
        e("v_sub_f32 v24, v24, v28")
        e("v_mul_f32 v24, v24, v24")
        e("v_fmac_f32 v26, s15, v24")
        e("v_add_f32_dpp v26, v26, v26 quad_perm:[1,0,3,2] row_mask:0xf bank_mask:0xf")
        e("v_add_f32_dpp v26, v26, v26 quad_perm:[2,3,0,1] row_mask:0xf bank_mask:0xf")
        e(f"v_mul_f32 v26, {f2u(1.0/448):#x}, v26")
        e("v_cvt_pk_bf16_f32 v27, v28, v26")
        e("v_and_b32 v26, 0xffff0000, v27")
        e("v_lshlrev_b32 v28, 16, v27")
        e(f"v_add_f32 v26, {f2u(1e-5):#x}, v26")
        e("v_readlane_b32 s52, v28, 0")
        e("v_readlane_b32 s53, v28, 4")
        self.rnd(26)
        e("v_pk_add_f32 v[20:21], v[20:21], s[52:53] neg_lo:[0,1] neg_hi:[0,1]")
        e("v_sqrt_f32 v26, v26")
        e("v_pk_add_f32 v[22:23], v[22:23], s[52:53] neg_lo:[0,1] neg_hi:[0,1]")
        self.rnd(26)
        e("v_cvt_pk_bf16_f32 v24, v20, v21")
        e("v_rcp_f32 v26, v26")
        e("v_cvt_pk_bf16_f32 v25, v22, v23")
        e("v_lshlrev_b32 v20, 16, v24")
        e("v_readlane_b32 s54, v26, 0")
        e("v_readlane_b32 s55, v26, 4")
        e("v_and_b32 v21, 0xffff0000, v24")
        e("v_lshlrev_b32 v22, 16, v25")
        e("v_and_b32 v23, 0xffff0000, v25")
        e("v_pk_mul_f32 v[20:21], v[20:21], s[54:55]")
        e("v_pk_mul_f32 v[22:23], v[22:23], s[54:55]")
        for b in range(2): e(f"v_cvt_pk_bf16_f32 v{20+b}, v{20+b}, v{22+b}")
        e(f"ds_write_b32 v14, v20 offset:{AV}")
        e(f"ds_write_b32 v14, v21 offset:{AV+AVS}")
        e("s_waitcnt lgkmcnt(0)")
        self.bar()
        self.gemv(14, GB, AV, [(24, FG), (28, FU)])
        e("v_cndmask_b32 v24, v24, v25, s[56:57]")
        e("v_cndmask_b32 v29, v28, v29, s[56:57]")
        e("v_cvt_pk_bf16_f32 v29, v24, v29")
        e("v_lshlrev_b32 v28, 16, v29")
        e("v_and_b32 v29, 0xffff0000, v29")
        k0 = math.sqrt(2.0 / math.pi)
        c1 = f2u(-2.0 * k0 * math.log2(math.e))
        e("v_mul_f32 v32, v28, v28")
        e("v_mul_f32 v32, v32, v28")
        e("v_fma_f32 v32, v32, s14, v28")
        e(f"v_mul_f32 v32, {c1:#x}, v32")
        e("v_exp_f32 v32, v32")
        e("v_add_f32 v32, 1.0, v32")
        e("v_rcp_f32 v32, v32")
        e("v_mul_f32 v32, v32, v28")
        self.rnd(32)
        e("v_mul_f32 v32, v32, v29")
        e("v_mov_b32 v33, v32")
        e("v_permlane16_swap_b32 v32, v33")
        e("v_cvt_pk_bf16_f32 v34, v32, v33")
        e("s_cmp_eq_u32 s68, 1")
        e("s_cbranch_scc1 L_b_poll")
        if self.xcp:
            e(f"buffer_store_dwordx2 v[34:35], v12, s[{R_WS}:{R_WS+3}], s13 offen sc1")
            e(f"buffer_store_dwordx2 v[34:35], v12, s[{R_WS}:{R_WS+3}], s58 offen sc1")
        else:
            e("s_mov_b64 exec, 0xffff")
            e(f"buffer_store_dwordx2 v[34:35], v12, s[{R_WS}:{R_WS+3}], s13 offen sc1")
        self.stamp(8)
        self.endpgm()

    def stage_c(self):
        e = self.e
        F0, F1, GB = 64, 120, 176
        self.srd(R_W, P_WD, 1792 * 896)
        self.srd(R_W2, P_OUT, 2 * 448 * 2)
        if self.wtouch:
            e(f"v_mul_u32_u24 v20, {28*896}, v1")
            e("s_lshl_b32 s64, s12, 6")
            e(f"s_cmp_lg_u32 s{S_HW}, 0")
            Lw = self.lab("wt"); e(f"s_cbranch_scc1 {Lw}")
            e(f"buffer_load_dword v21, v20, s[{R_W}:{R_W+3}], s64 offen nt")
            e.label(Lw)
        e(f"s_mul_i32 s65, s{S_HW}, {STGW}")
        e(f"s_add_u32 s65, s65, {STG}")
        self.tr_addr(6, 65)
        e("v_and_b32 v5, 31, v1")
        e("v_lshrrev_b32 v6, 5, v1")
        e("s_lshl_b32 s64, s12, 5")
        e("v_add_u32 v7, s64, v5")
        e("v_mul_u32_u24 v14, 448, v6")
        e("v_add_lshl_u32 v14, v14, v7, 1")
        e(f"buffer_load_ushort v16, v14, s[{R_X}:{R_X+3}], 0 offen")
        if self.otouch: e(f"buffer_load_ushort v18, v14, s[{R_W2}:{R_W2+3}], 0 offen")
        e("v_lshlrev_b32 v7, 3, v7")
        e("v_lshl_add_u32 v7, v6, 2, v7")
        e("s_waitcnt vmcnt(0)")
        e("v_lshlrev_b32 v16, 16, v16")
        e("v_lshlrev_b32 v10, 4, v1")
        e("v_lshlrev_b32 v11, 4, v5")
        e(f"s_mul_i32 s13, s{S_HW}, 3584")
        e(f"s_add_u32 s13, s13, {GBUF}")
        self.xcc(64, GCP)
        e("s_add_u32 s13, s13, s64")
        e(f"s_mul_i32 s14, s{S_HW}, {2*AVS}")
        e("v_lshlrev_b32 v12, 2, v1")
        e("v_add_u32 v12, s14, v12")
        e("v_lshlrev_b32 v13, 2, v5")
        e("v_add_u32 v13, s14, v13")
        e("v_add_u32 v3, s14, v3")
        e(f"s_lshl_b32 s64, s{S_HW}, 8")
        e("v_lshlrev_b32 v18, 3, v1")
        e("v_add_u32 v18, s64, v18")
        e("v_lshlrev_b32 v19, 3, v5")
        e("v_lshl_add_u32 v19, v6, 2, v19")
        e("v_mov_b32 v17, 0")
        e("s_mov_b32 s64, 0x05040100")
        e("s_mov_b32 s65, 0x07060302")
        e("s_mov_b32 s68, 1")
        e("s_branch L_c_go")
        e.label("L_c_poll")
        e("s_mov_b32 s68, 0")
        if self.latec == 1: self.lds_wait(MISC + 4, "ge", 5, 2)
        if self.latec >= 2: self.lds_wait(MISC + 32, "le", self.latec - 1, 4)
        self.winfl_cur = self.winfl2 if self.latec else self.winfl
        e("s_waitcnt vmcnt(0)")
        e(f"s_mul_i32 s64, s{S_HW}, {448*896}")
        e("s_lshl_b32 s65, s12, 6")
        e("s_add_u32 s64, s64, s65")
        e(f"s_mul_i32 s65, s{S_HW}, {STGW}")
        e(f"s_add_u32 s65, s65, {STG}")
        self.dma_voff(896, 6, 20)
        self.dma_loop(R_W, 20, 28, 64, 16 * 896, 65)
        self.stamp(5)
        if self.gpos == 0: self.gate_all()
        e("s_waitcnt vmcnt(0)")
        self.tr_frags(14, 0, F0, 6)
        self.tr_frags(14, 32, F1, 6)
        self.stamp(4)
        if self.gpos == 1: self.gate_all()
        self.stamp(6)
        Ln = self.lab("cnres")
        e(f"s_cmp_lg_u32 s{S_HW}, 0")
        e(f"s_cbranch_scc1 {Ln}")
        self.ybases()
        self.sweep_all([f"buffer_load_dword v{GB+k}, v7, s[{R_WS}:{R_WS+3}], s{40+k} offen sc1" for k in range(8)],
                       [GB + k for k in range(8)], 24)
        for k in range(1, 8): e(f"v_add_f32 v17, v{GB if k == 1 else 17}, v{GB+k}")
        self.rnd(17)
        e("v_add_f32 v17, v17, v16")
        self.rnd(17)
        e.label(Ln)
        e("s_mov_b32 s64, 0x05040100")
        e("s_mov_b32 s65, 0x07060302")
        sc = [24, 48, 232][:self.nset]
        def cput(i):
            g = sc[i]
            for k in range(4):
                e(f"v_perm_b32 v{g+1+4*k}, v{g+2+4*k}, v{g+4*k}, s64")
                e(f"v_perm_b32 v{g+3+4*k}, v{g+2+4*k}, v{g+4*k}, s65")
                a = 12 if k < 3 else 13
                e(f"ds_write_b32 v{a}, v{g+1+4*k} offset:{AV+k*256}")
                e(f"ds_write_b32 v{a}, v{g+3+4*k} offset:{AV+AVS+k*256}")
        self.sweep_pipe([([f"buffer_load_dwordx4 v[{g+4*k}:{g+3+4*k}], v{10 if k < 3 else 11}, s[{R_WS}:{R_WS+3}], s13 offen offset:{k*1024} sc1" for k in range(4)],
                          [g + 1 + 2 * i for i in range(8)]) for g in sc], 248, False, cput, "L_c_go")
        self.gemv(14, GB, AV, [(40, F0), (44, F1)], ahead=7)
        e("s_mov_b64 exec, 0xffff")
        e(f"ds_write_b64 v18, v[40:41] offset:{RED}")
        e(f"ds_write_b64 v18, v[44:45] offset:{RED+128}")
        e("s_mov_b64 exec, -1")
        e("s_waitcnt lgkmcnt(0)")
        self.bar()
        Le = self.lab("cend")
        for w in range(4): e(f"ds_read_b32 v{20+w}, v19 offset:{RED+256*w}")
        e(f"s_cmp_eq_u32 s68, 1")
        e(f"s_cselect_b32 s64, 0, s{S_HW}")
        e(f"s_cmp_lg_u32 s64, 0")
        e(f"s_cbranch_scc1 {Le}")
        e("s_waitcnt lgkmcnt(0)")
        e("v_add_f32 v20, v20, v21")
        e("v_add_f32 v22, v22, v23")
        e("v_add_f32 v20, v20, v22")
        self.rnd(20)
        e("v_add_f32 v20, v20, v17")
        e("v_cvt_pk_bf16_f32 v20, v20, v20")
        e("s_cmp_eq_u32 s68, 1")
        e("s_cbranch_scc1 L_c_poll")
        e(f"buffer_store_short v20, v14, s[{R_W2}:{R_W2+3}], 0 offen")
        if self.dbgtime:
            self.dbgt(35)
            e("s_waitcnt vmcnt(0)")
            e("v_lshlrev_b32 v254, 2, v1")
            e("s_mov_b64 exec, 0xf")
            e("buffer_load_dword v253, v254, s[92:95], 0 offen offset:128 sc1")
            e("s_waitcnt vmcnt(0)")
            e("buffer_atomic_umax v253, v254, s[92:95], 0 offen offset:16 sc1")
            e("s_mov_b64 exec, -1")
        e("s_cmp_lg_u32 s12, 0")
        e(f"s_cbranch_scc1 {Le}")
        e(f"v_mov_b32 v21, s{S_TAG}")
        e("s_mov_b64 exec, 1")
        e(f"buffer_store_dword v21, off, s[{R_WS}:{R_WS+3}], 0 offset:{EPOCH} sc1")
        e.label(Le)
        self.stamp(8)
        self.endpgm()

    def build(self):
        e = self.e
        e("s_cmp_ge_u32 s2, 256")
        e("s_cbranch_scc1 L_exit")
        e("s_load_dwordx16 s[16:31], s[0:1], 0")
        e("s_load_dwordx8 s[32:39], s[0:1], 64")
        self.stamp_init()
        e("v_lshrrev_b32 v2, 6, v0")
        e("v_and_b32 v1, 63, v0")
        e(f"v_readfirstlane_b32 s{S_WAVE}, v2")
        self.stamp(0)
        e(f"s_and_b32 s{S_HW}, s{S_WAVE}, 3")
        e(f"s_cmp_lt_u32 s{S_WAVE}, 4")
        e("s_cbranch_scc1 L_hpath")
        self.s_path()
        e.label("L_hpath")
        self.in_h = True
        e(f"s_lshr_b32 s{S_GRP}, s2, 4")
        e(f"s_and_b32 s{S_SPL}, s2, 15")
        e(f"s_lshr_b32 s{S_B}, s2, 7")
        e(f"s_and_b32 s{S_HKV}, s{S_GRP}, 7")
        e(f"s_mov_b32 s{S_TO}, {TIMEOUT}")
        e("s_waitcnt lgkmcnt(0)")
        self.srd(R_WS, P_WS, WS_SIZE)
        self.srd(R_X, P_X, 1792)
        if self.noq: e("s_branch L_hdone")
        e("s_setprio 2")
        e(f"s_cmp_lg_u32 s{S_HW}, 0")
        e("s_cbranch_scc1 L_hnq")
        self.q_path()
        e("s_branch L_hq")
        e.label("L_hnq")
        if self.dbgtime:
            Ld = self.lab("dt"); e(f"s_cmp_lg_u32 s{S_HW}, 3"); e(f"s_cbranch_scc1 {Ld}")
            self.dbgt(32, True); self.dbgt(33)
            e.label(Ld)
        if self.tstride:
            Lt = self.lab("notouch")
            e(f"s_cmp_eq_u32 s{S_HW}, 3")
            e(f"s_cbranch_scc1 {Lt}")
            e(f"s_cmp_eq_u32 s{S_HW}, 1")
            e(f"s_cselect_b32 s{R_K}, s{P_K}, s{P_V}")
            e(f"s_cselect_b32 s{R_K+1}, s{P_K+1}, s{P_V+1}")
            e(f"s_mov_b32 s{R_K+2}, {1 << 28}")
            e(f"s_mov_b32 s{R_K+3}, 0x20000")
            e(f"v_lshlrev_b32 v11, {self.tstride}, v1")
            e("s_lshl_b32 s64, s2, 20")
            n = (1 << 20) >> self.tstride
            if n < 64: e(f"s_mov_b64 exec, {(1 << n) - 1:#x}")
            e(f"buffer_load_dword v12, v11, s[{R_K}:{R_K+3}], s64 offen nt")
            e("s_mov_b64 exec, -1")
            e.label(Lt)
        e(f"buffer_load_dword v10, off, s[{R_WS}:{R_WS+3}], 0 offset:{EPOCH} sc1")
        self.h_consts()
        e("s_waitcnt vmcnt(0)")
        e("v_readfirstlane_b32 s64, v10")
        self.set_tag(64)
        self.lds_wait(MISC + 24, "eq", f"s{S_TAG}", 2)
        e.label("L_hq")
        self.q_gather()
        e("s_setprio 0")
        e("s_barrier")
        self.stamp(3)
        e(f"s_cmp_lg_u32 s{S_HW}, 1")
        e("s_cbranch_scc1 L_sfinal_back")
        e("s_mov_b32 s68, 1")
        e("s_branch L_sfinal")
        e.label("L_sfinal_back")
        if self.noroles: e("s_branch L_hdone")
        e(f"s_cmp_lg_u32 s{S_HW}, 0")
        e("s_cbranch_scc1 L_rwait")
        if self.ns:
            e("s_mov_b32 s12, 98")
            e(f"s_cmp_eq_u32 s{S_SPL}, 15")
            e("s_cbranch_scc1 L_rpost0")
        self.lds_wait(MISC + 32, "le", self.trig, 8)
        self.srd(R_W, P_DBG, 256)
        e("v_mov_b32 v10, 1")
        e("s_mov_b64 exec, 1")
        e(f"buffer_atomic_add v10, off, s[{R_W}:{R_W+3}], 0 sc0 sc1")
        e("s_waitcnt vmcnt(0)")
        e("s_mov_b64 exec, -1")
        e("v_readfirstlane_b32 s12, v10")
        if self.rorder == 3:
            e("s_add_u32 s12, s12, 42")
            e("s_cmp_lt_u32 s12, 98")
            e("s_cbranch_scc1 L_rpost")
            self.lds_wait(MISC + 32, "le", self.trig2, 4)
            e("v_mov_b32 v10, 1")
            e("s_mov_b64 exec, 1")
            e(f"buffer_atomic_add v10, off, s[{R_W}:{R_W+3}], 0 offset:128 sc0 sc1")
            e("s_waitcnt vmcnt(0)")
            e("s_mov_b64 exec, -1")
            e("v_readfirstlane_b32 s12, v10")
            e("s_add_u32 s12, s12, 14")
            e("s_cmp_lt_u32 s12, 42")
            e("s_cbranch_scc1 L_rpost")
            e("s_sub_u32 s12, s12, 42")
            e("s_cmp_lt_u32 s12, 14")
            e("s_cbranch_scc1 L_rpost")
            e("s_mov_b32 s12, 98")
            e.label("L_rpost")
        e.label("L_rpost0")
        e("s_add_u32 s12, s12, 1")
        self.lds_set(MISC + 16, "s12")
        e("s_branch L_rgot")
        e.label("L_rwait")
        if self.stouch:
            Lt = self.lab("pt")
            e(f"s_cmp_lg_u32 s{S_HW}, 3")
            e(f"s_cbranch_scc1 {Lt}")
            self.lds_wait(MISC + 32, "le", self.trig, 8)
            e("s_lshl_b32 s64, s2, 11")
            e(f"s_add_u32 s64, s64, {PBUF}")
            e("s_lshl_b32 s65, s2, 3")
            e(f"s_add_u32 s65, s65, {HBUF}")
            e("s_mov_b64 exec, 1")
            e(f"buffer_load_dword v10, off, s[{R_WS}:{R_WS+3}], s64 sc1")
            e(f"buffer_load_dword v11, off, s[{R_WS}:{R_WS+3}], s65 sc1")
            e("s_mov_b64 exec, -1")
            e("s_waitcnt vmcnt(0)")
            e.label(Lt)
        if self.fb:
            Lx = self.lab("fbx"); L = self.lab("fb"); Lw = self.lab("fbw")
            e(f"s_cmp_lg_u32 s{S_HW}, 2")
            e(f"s_cbranch_scc1 {Lx}")
            e(f"s_lshl_b32 s12, s{S_GRP}, 8")
            e(f"s_add_u32 s12, s12, {CNTB}")
            e("s_mov_b32 s13, 0x7fff")
            e("s_mov_b32 s14, 0")
            e("v_mov_b32 v8, 0")
            e.label(L)
            e(f"ds_read_b32 v9, v8 offset:{MISC+32}")
            e("s_waitcnt lgkmcnt(0)")
            e("v_readfirstlane_b32 s64, v9")
            e("s_cmp_lt_u32 s64, s13")
            e(f"s_cbranch_scc1 {Lw}")
            e("s_sleep 2")
            e(f"s_sub_u32 s{S_TO}, s{S_TO}, 1")
            e(f"s_cbranch_scc0 {L}")
            e("s_branch L_hfail")
            e.label(Lw)
            e("s_sub_u32 s65, s13, s64")
            e("s_cmp_eq_u32 s13, 0x7fff")
            e("s_cselect_b32 s65, 1, s65")
            e("s_mov_b32 s13, s64")
            e("v_mov_b32 v10, s65")
            e("s_mov_b64 exec, 1")
            e(f"buffer_atomic_add v10, off, s[{R_WS}:{R_WS+3}], s12 sc0 sc1")
            e("s_lshl_b32 s65, s65, 4")
            e("s_add_u32 s14, s14, s65")
            e("s_waitcnt vmcnt(0)")
            e("s_mov_b64 exec, -1")
            e("v_readfirstlane_b32 s64, v10")
            e("s_sub_u32 s64, s64, s14")
            e("s_mov_b32 s65, 0")
            e(f"s_cmp_lt_i32 s64, {self.fbl - 16}")
            e("s_cselect_b32 s65, 1, s65")
            e(f"s_cmp_ge_i32 s64, {-self.fbl}")
            e("s_cselect_b32 s65, 2, s65")
            e("v_mov_b32 v9, s65")
            e(f"ds_write_b32 v8, v9 offset:{MISC+28}")
            e(f"s_cmp_gt_u32 s13, {self.fbend}")
            e(f"s_cbranch_scc1 {L}")
            e.label(Lx)
        self.lds_wait(MISC + 16, "lg", 0, 8, 12)
        e.label("L_rgot")
        e("s_sub_u32 s12, s12, 1")
        e("s_cmp_ge_u32 s12, 98")
        if self.rorder == 2:
            e("s_cmp_ge_u32 s12, 42")
            e("s_cbranch_scc1 L_rord")
            e("s_add_u32 s12, s12, 14")
            e("s_cmp_lt_u32 s12, 42")
            e("s_cbranch_scc1 L_rord")
            e("s_sub_u32 s12, s12, 42")
            e.label("L_rord")
            e("s_cmp_ge_u32 s12, 98")
        if self.rorder == 1:
            e("s_cbranch_scc1 L_rord")
            e("s_sub_u32 s12, 97, s12")
            e.label("L_rord")
            e("s_cmp_ge_u32 s12, 98")
        if self.diag:
            e(f"s_mov_b32 s{ST0+22}, s12")
        e("s_cbranch_scc1 L_hdone")
        self.h_consts()
        e("s_cmp_lt_u32 s12, 14")
        e("s_cbranch_scc0 L_notc")
        self.stage_c()
        e.label("L_notc")
        e("s_sub_u32 s12, s12, 14")
        e("s_cmp_lt_u32 s12, 28")
        e("s_cbranch_scc0 L_notb")
        self.stage_b()
        e.label("L_notb")
        e("s_sub_u32 s12, s12, 28")
        e(f"s_mul_i32 s{S_HKV}, s12, 37")
        e(f"s_lshr_b32 s{S_HKV}, s{S_HKV}, 8")
        e(f"s_mul_i32 s64, s{S_HKV}, 7")
        e(f"s_sub_u32 s{S_SPL}, s12, s64")
        self.stage_a()
        e.label("L_hfail")
        e.label("L_hdone")
        self.endpgm()
        e.label("L_exit")
        e("s_endpgm")
        return e.text()

HEAD = """; Pre-LN GQA decode attention + GEGLU FFN in one persistent launch: 256 workgroups of 8 waves, one per CU.
;
; @launch grid=(256,1,1) block=(512,1,1) lds={lds}
.amdgcn_target "amdgcn-amd-amdhsa--gfx950"
.text
.globl {name}
.p2align 8
.type {name},@function
{name}:
"""
TAIL = """.section .rodata,"a"
.p2align 6
.amdhsa_kernel {name}
  .amdhsa_next_free_vgpr 256
  .amdhsa_next_free_sgpr 102
  .amdhsa_accum_offset 256
  .amdhsa_group_segment_fixed_size 0
  .amdhsa_kernarg_size 96
  .amdhsa_user_sgpr_count 2
  .amdhsa_user_sgpr_kernarg_segment_ptr 1
  .amdhsa_system_sgpr_workgroup_id_x 1
.end_amdhsa_kernel
"""

def make(path, **kw):
    global YBUF, GBUF
    if kw.get("xcp"): YBUF, GBUF = 0xc0000, 0x100000
    g = Gen(**kw)
    body = g.build()
    if g.hf != "sc1": body = body.replace(" sc1\n", f" {g.hf}\n").replace("sc0 sc0", "sc0")
    open(path, "w").write(HEAD.format(lds=LDS_SIZE, name=NAME) + body + TAIL.format(name=NAME))
    return g

if __name__ == "__main__":
    import argparse
    ap = argparse.ArgumentParser()
    ap.add_argument("out")
    ap.add_argument("--diag", action="store_true")
    ap.add_argument("--npro", type=int, default=40)
    ap.add_argument("--kvflags", default="nt")
    ap.add_argument("--wflags", default="nt")
    ap.add_argument("--qflags", default="nt")
    ap.add_argument("--noroles", action="store_true")
    ap.add_argument("--athr", type=int, default=13)
    ap.add_argument("--gsleep", type=int, default=4)
    ap.add_argument("--winfl", type=int, default=6)
    ap.add_argument("--dist", type=int, default=12)
    ap.add_argument("--thr", type=int, default=6)
    ap.add_argument("--vflags", default=None)
    ap.add_argument("--rot", type=int, default=2)
    ap.add_argument("--nt", type=int, default=32)
    ap.add_argument("--thrp", type=int, default=6)
    ap.add_argument("--npl", type=int, default=40)
    ap.add_argument("--gthr", type=int, default=32)
    ap.add_argument("--psleep", type=int, default=0)
    ap.add_argument("--hf", default="sc1")
    ap.add_argument("--nset", type=int, default=1)
    ap.add_argument("--pgap", type=int, default=2)
    ap.add_argument("--thr2", type=int, default=9)
    ap.add_argument("--nl2", type=int, default=0)
    ap.add_argument("--lateb", type=int, default=1)
    ap.add_argument("--latec", type=int, default=1)
    ap.add_argument("--winfl2", type=int, default=8)
    ap.add_argument("--qsleep", type=int, default=8)
    ap.add_argument("--qsleep0", type=int, default=32)
    ap.add_argument("--latea", type=int, default=0)
    ap.add_argument("--tstride", type=int, default=0)
    ap.add_argument("--otouch", type=int, default=0)
    ap.add_argument("--seq", type=int, default=1)
    ap.add_argument("--wtouch", type=int, default=0)
    ap.add_argument("--gpos", type=int, default=1)
    ap.add_argument("--dbgtime", type=int, default=0)
    ap.add_argument("--trig2", type=int, default=1)
    ap.add_argument("--fb", type=int, default=0)
    ap.add_argument("--fbhi", type=int, default=7)
    ap.add_argument("--fblo", type=int, default=5)
    ap.add_argument("--fbl", type=int, default=5)
    ap.add_argument("--fbend", type=int, default=3)
    ap.add_argument("--ns", type=int, default=0)
    ap.add_argument("--rp", type=int, default=0)
    ap.add_argument("--xcp", type=int, default=0)
    ap.add_argument("--stouch", type=int, default=0)
    ap.add_argument("--qtrig", type=int, default=24)
    ap.add_argument("--rorder", type=int, default=1)
    ap.add_argument("--nosoft", action="store_true")
    ap.add_argument("--noq", action="store_true")
    ap.add_argument("--trig", type=int, default=3)
    ap.add_argument("--aspec", type=int, default=6)
    a = ap.parse_args()
    g = make(a.out, diag=a.diag, npro=a.npro, kvflags=a.kvflags, wflags=a.wflags, qflags=a.qflags, noroles=a.noroles, athr=a.athr, gsleep=a.gsleep, winfl=a.winfl, dist=a.dist, nosoft=a.nosoft, noq=a.noq, trig=a.trig, aspec=a.aspec, thr=a.thr, vflags=a.vflags, rot=a.rot, nt=a.nt, thrp=a.thrp, npl=a.npl, gthr=a.gthr, psleep=a.psleep, hf=a.hf, nset=a.nset, pgap=a.pgap, thr2=a.thr2, nl2=a.nl2, lateb=a.lateb, latec=a.latec, winfl2=a.winfl2, qsleep=a.qsleep, qsleep0=a.qsleep0, latea=a.latea, rorder=a.rorder, tstride=a.tstride, otouch=a.otouch, seq=a.seq, wtouch=a.wtouch, gpos=a.gpos, dbgtime=a.dbgtime, trig2=a.trig2, fb=a.fb, fbhi=a.fbhi, fblo=a.fblo, fbl=a.fbl, fbend=a.fbend, ns=a.ns, rp=a.rp, xcp=a.xcp, stouch=a.stouch, qtrig=a.qtrig)
    print("pads inserted:", g.e.npad, "lines:", len(g.e.lines))
```

```python
import sys, struct, math
from emit import Emitter

NAME = "sequential_preLN__gqa_block_cached__geglu_ffn__decode_kernel"
def f2u(x): return struct.unpack("<I", struct.pack("<f", x))[0]

EPOCH = 0
QBUF = 0x140000
HBUF = 0x12000
YBUF = 0x14000
YCP = 0x8000
GBUF = 0x22000
GCP = 0x4000
PBUF = 0x40000
HB2 = 0x30000
CNTB = 0x1c0000
CNTS = 0x1300
STAMP = 0x200000
WS_SIZE = 0x400000
QL = 0x0100
MISC = 0x0080
SML = 0x0000
STATS = 0x0600
AV = 0x0800
AVS = 1056
RED = 0x2A00
SO = 0x3000
STG = 0x5000
STGW = 28 * 1024
LDS_SIZE = STG + 4 * STGW

CSC = f2u(0.0625 * math.log2(math.e))
GOLD = 0x9E3779B9
TIMEOUT = 300000

S_WAVE, S_GRP, S_SPL, S_B, S_HKV, S_HW, S_TAG = 3, 4, 5, 6, 7, 8, 9
P_X, P_K, P_V, P_WQ, P_WO, P_BX, P_WG, P_WU, P_WD, P_OUT, P_DBG, P_WS = [16 + 2 * i for i in range(12)]
R_K, R_V, R_WS, R_W, R_X, R_W2 = 40, 44, 48, 52, 56, 60
S_C = 10
S_TO = 11
ST0 = 72
S_TM = 96

class Gen:
    def __init__(self, diag=False, npro=32, kvflags="nt", wflags="", qflags="", noroles=False, athr=13, gsleep=4, winfl=1, dist=8, nosoft=False, noq=False, trig=2, aspec=2, thr=5, vflags=None, rot=1, nt=32, thrp=6, npl=32, gthr=6, psleep=0, hf="sc1", nset=2, pgap=2, thr2=9, nl2=0, lateb=1, latec=1, winfl2=12, qsleep=8, qsleep0=16, latea=0, rorder=0, tstride=0, otouch=1, seq=0, wtouch=0, gpos=0, dbgtime=0, trig2=1, fb=0, fbhi=7, fblo=5, fbl=5, fbend=3, ns=0, rp=0, xcp=0, stouch=0, qtrig=0, boost=0, bhi=9, btrig=0, fbdiv=1, claimlate=0, anb=0, peek=0, satom=0, hpriv=0):
        self.e = Emitter()
        self.diag = diag
        self.npro = npro
        self.kvflags = kvflags
        self.wflags = wflags
        self.qflags = qflags
        self.noroles = noroles
        self.athr = athr
        self.gsleep = gsleep
        self.winfl = winfl
        self.dist = dist
        self.nosoft = nosoft
        self.noq = noq
        self.trig = trig
        self.aspec = aspec
        self.thr = thr
        self.rot = rot
        self.nt = nt
        self.thrp = thrp
        self.npl = npl
        self.gthr = gthr
        self.psleep = psleep
        self.hf = hf
        self.nset = nset
        self.pgap = pgap
        self.thr2 = thr2
        self.nl2 = nl2
        self.lateb = lateb
        self.latec = latec
        self.winfl2 = winfl2
        self.qsleep = qsleep
        self.qsleep0 = qsleep0
        self.latea = latea
        self.rorder = rorder
        self.tstride = tstride
        self.otouch = otouch
        self.seq = seq
        self.wtouch = wtouch
        self.gpos = gpos
        self.dbgtime = dbgtime
        self.trig2 = trig2
        self.fb = fb
        self.fbhi = fbhi
        self.fblo = fblo
        self.fbl = fbl
        self.fbend = fbend
        self.ns = ns
        self.rp = rp
        self.xcp = xcp
        self.stouch = stouch
        self.qtrig = qtrig
        self.boost = boost
        self.bhi = bhi
        self.btrig = btrig
        self.fbdiv = fbdiv
        self.claimlate = claimlate
        self.anb = anb
        self.peek = peek
        self.satom = satom
        self.hpriv = hpriv
        self.vflags = kvflags if vflags is None else vflags
        self.uid = 0
        self.in_h = False
    def lab(self, s):
        self.uid += 1
        return f"L_{s}_{self.uid}"
    def srd(self, r, p, size):
        e = self.e
        e(f"s_mov_b32 s{r}, s{p}")
        e(f"s_mov_b32 s{r+1}, s{p+1}")
        e(f"s_mov_b32 s{r+2}, {size}")
        e(f"s_mov_b32 s{r+3}, 0x20000")
    def stamp(self, i):
        if self.diag and i in (6, 7) and self.in_h:
            self.e(f"s_mov_b32 s{ST0+2*(i+3)}, s{S_TO}")
        if self.diag:
            self.e(f"s_memrealtime s[{ST0+2*i}:{ST0+2*i+1}]")
            self.e("s_waitcnt lgkmcnt(0)")
    def stamp_init(self):
        if self.diag:
            for i in range(12):
                self.e(f"s_mov_b64 s[{ST0+2*i}:{ST0+2*i+1}], 0")
    def stamp_flush(self):
        if not self.diag: return
        e = self.e
        e("s_mov_b64 exec, -1")
        e(f"s_lshl_b32 s64, s2, 3")
        e(f"s_add_u32 s64, s64, s{S_WAVE}")
        e(f"s_lshl_b32 s64, s64, 6")
        e(f"s_add_u32 s64, s64, {STAMP}")
        e(f"s_getreg_b32 s65, hwreg(HW_REG_XCC_ID)")
        e(f"s_getreg_b32 s66, hwreg(HW_REG_HW_ID)")
        for i in range(12):
            e(f"v_mov_b32 v{2+i}, s{ST0+2*i}")
        e("v_mov_b32 v14, s65")
        e("v_mov_b32 v15, s66")
        e("v_mov_b32 v16, 0")
        e("v_mov_b32 v17, 0")
        e("s_mov_b64 exec, 1")
        for i in range(4):
            e(f"buffer_store_dwordx4 v[{2+4*i}:{5+4*i}], off, s[{R_WS}:{R_WS+3}], s64 offset:{16*i}")
        e("s_waitcnt vmcnt(0)")
    def dbgt(self, slot, neg=False):
        if not self.dbgtime: return
        e = self.e
        e("s_memrealtime s[98:99]")
        e("s_waitcnt lgkmcnt(0)")
        if neg: e("s_not_b32 s98, s98")
        e(f"s_mov_b32 s92, s{P_DBG}"); e(f"s_mov_b32 s93, s{P_DBG+1}"); e("s_mov_b32 s94, 256"); e("s_mov_b32 s95, 0x20000")
        e("s_mov_b64 s[90:91], exec")
        e("s_mov_b64 exec, 1")
        e("v_mov_b32 v255, s98")
        e(f"buffer_atomic_umax v255, off, s[92:95], 0 offset:{4*slot} sc1")
        e("s_mov_b64 exec, s[90:91]")
    def endpgm(self):
        self.stamp_flush()
        self.e("s_endpgm")

    def rnd(self, v):
        self.e(f"v_cvt_pk_bf16_f32 v{v}, v{v}, v{v}")
        self.e(f"v_lshlrev_b32 v{v}, 16, v{v}")
    def rnd_many(self, vs):
        for v in vs: self.e(f"v_cvt_pk_bf16_f32 v{v}, v{v}, v{v}")
        for v in vs: self.e(f"v_lshlrev_b32 v{v}, 16, v{v}")
    def set_tag(self, src):
        self.e(f"s_add_u32 s{S_TAG}, s{src}, {GOLD:#x}")
        self.e(f"s_and_b32 s{S_TM}, s{S_TAG}, 0x3f")
    def tagw(self, dst, src, vmask):
        self.e(f"v_and_or_b32 v{dst}, v{src}, v{vmask}, s{S_TM}")
    def check_words(self, words, tmp, mant=True):
        e = self.e
        T = S_TM if mant else S_TAG
        acc = []
        n = len(words)
        for i in range(0, n - 1, 2):
            e(f"v_bitop3_b32 v{tmp+len(acc)}, v{words[i]}, v{words[i+1]}, s{T} bitop3:0x7e")
            acc.append(tmp + len(acc))
        if n % 2:
            e(f"v_xor_b32 v{tmp+len(acc)}, s{T}, v{words[-1]}")
            acc.append(tmp + len(acc))
        while len(acc) > 1:
            nxt = []
            while len(acc) >= 3:
                a, b, c = acc[:3]; acc = acc[3:]
                e(f"v_or3_b32 v{a}, v{a}, v{b}, v{c}"); nxt.append(a)
            if len(acc) == 2 and not nxt:
                e(f"v_or_b32 v{acc[0]}, v{acc[0]}, v{acc[1]}"); acc = [acc[0]]
            acc = nxt + acc
        if mant: e(f"v_and_b32 v{acc[0]}, 0x3f, v{acc[0]}")
        e(f"v_cmp_ne_u32 vcc, 0, v{acc[0]}")
    def sweep_all(self, loads, words, tmp, mant=True):
        e = self.e
        L = self.lab("sa"); Lx = self.lab("sax")
        e.label(L)
        if self.psleep: e(f"s_sleep {self.psleep}")
        for l in loads: e(l)
        e(f"s_sub_u32 s{S_TO}, s{S_TO}, 1")
        e("s_cbranch_scc1 L_hfail")
        e("s_waitcnt vmcnt(0)")
        self.check_words(words, tmp, mant)
        e(f"s_cbranch_vccnz {L}")
    def sweep_pipe(self, sets, tmp, mant, after, golabel):
        e = self.e
        n = len(sets); m = len(sets[0][0])
        L = self.lab("sp"); Lj = self.lab("spj")
        got = [self.lab("spg") for _ in sets]
        for i, (loads, words) in enumerate(sets):
            for l in loads: e(l)
            if i + 1 < n: e(f"s_sleep {self.pgap}")
        e.label(L)
        for i, (loads, words) in enumerate(sets):
            e(f"s_waitcnt vmcnt({m*(n-1)})")
            self.check_words(words, tmp, mant)
            e(f"s_cbranch_vccz {got[i]}")
            for l in loads: e(l)
        e(f"s_sub_u32 s{S_TO}, s{S_TO}, 1")
        e(f"s_cbranch_scc0 {L}")
        e("s_branch L_hfail")
        for i in reversed(range(n)):
            e.label(got[i])
            self.stamp(7)
            if i == 0: e.label(golabel)
            after(i)
            if i: e(f"s_branch {Lj}")
        e.label(Lj)
    def row_reduce(self, vs, op="add"):
        e = self.e
        for ctl in ("quad_perm:[1,0,3,2]", "quad_perm:[2,3,0,1]", "row_half_mirror", "row_mirror"):
            for v in vs:
                e(f"v_{op}_f32_dpp v{v}, v{v}, v{v} {ctl} row_mask:0xf bank_mask:0xf")
    def wave_sum_to_sgpr(self, vs, ss):
        e = self.e
        self.row_reduce(vs)
        for v in vs: e(f"v_add_f32_dpp v{v}, v{v}, v{v} row_bcast:15 row_mask:0xa bank_mask:0xf")
        for v in vs: e(f"v_add_f32_dpp v{v}, v{v}, v{v} row_bcast:31 row_mask:0xc bank_mask:0xf")
        for v, s in zip(vs, ss): e(f"v_readlane_b32 s{s}, v{v}, 63")
    def cross_rows(self, v, t, op):
        e = self.e
        e(f"v_mov_b32 v{t}, v{v}")
        e(f"v_permlane16_swap_b32 v{v}, v{t}")
        e(f"v_{op}_f32 v{v}, v{v}, v{t}")
        e(f"v_mov_b32 v{t}, v{v}")
        e(f"v_permlane32_swap_b32 v{v}, v{t}")
        e(f"v_{op}_f32 v{v}, v{v}, v{t}")

    def s_path(self):
        e = self.e
        KO0, KO1, VO = 2, 3, 4
        MK = 5
        MRUN, LRUN, NRUN = 9, 10, 11
        T = 12; PK = 16; MX, MX2, AL, ALD, NN = 18, 19, 20, 21, 22
        P = 24
        D0, D1, ACC0, ACC1, AF, QF, SLOT = 28, 32, 36, 40, 44, 60, 80
        S_BASE, S_O1, S_O2, S_CNT, S_R = 64, 65, 66, 67, 69
        PADDR = 0
        def tile_off(dst, t):
            e(f"s_add_u32 s{dst}, s{S_R}, {t*32768}")
            e(f"s_and_b32 s{dst}, s{dst}, 0xfffff")
            e(f"s_add_u32 s{dst}, s{dst}, s{S_BASE}")
        NT = self.ns if self.ns else self.nt
        e("v_and_b32 v12, 15, v1")
        e("v_lshrrev_b32 v13, 4, v1")
        e("v_and_b32 v14, 7, v12")
        e("v_lshrrev_b32 v15, 3, v12")
        e(f"v_lshlrev_b32 v{KO0}, 9, v14")
        e("v_lshl_add_u32 v16, v15, 2, v13")
        e(f"v_lshl_add_u32 v{KO0}, v16, 4, v{KO0}")
        e(f"v_add_u32 v{KO1}, 0x1000, v{KO0}")
        e(f"v_lshlrev_b32 v{VO}, 11, v13")
        e(f"v_lshl_add_u32 v{VO}, v12, 4, v{VO}")
        if self.qtrig:
            e(f"s_lshl_b32 s70, s{S_HW}, 2")
            e(f"v_mov_b32 v{PADDR}, s70")
            e("v_mov_b32 v79, 0")
            e(f"ds_write_b32 v{PADDR}, v79 offset:{MISC+48}")
        e("s_mov_b32 s68, 0")
        e(f"s_lshl_b32 s{S_BASE}, s2, 20")
        e(f"s_lshl_b32 s65, s{S_HW}, 13")
        e(f"s_add_u32 s{S_BASE}, s{S_BASE}, s65")
        if self.rot == 2: e(f"s_and_b32 s{S_R}, s2, 31")
        elif self.rot == 3:
            e(f"s_and_b32 s{S_R}, s2, 7"); e("s_lshr_b32 s65, s2, 6"); e("s_lshl_b32 s65, s65, 3"); e(f"s_or_b32 s{S_R}, s{S_R}, s65")
        elif self.rot == 4:
            e(f"s_and_b32 s{S_R}, s2, 7"); e(f"s_lshl_b32 s{S_R}, s{S_R}, 2"); e("s_lshr_b32 s65, s2, 6"); e(f"s_or_b32 s{S_R}, s{S_R}, s65")
        elif self.rot == 5: e(f"s_and_b32 s{S_R}, s2, 7")
        elif self.rot == 6:
            e(f"s_and_b32 s{S_R}, s2, 7"); e(f"s_lshl_b32 s{S_R}, s{S_R}, 2")
        elif self.rot == 7: e(f"s_and_b32 s{S_R}, s2, 24")
        elif self.rot == 8:
            e(f"s_and_b32 s{S_R}, s2, 15"); e(f"s_lshl_b32 s{S_R}, s{S_R}, 1")
        else: e(f"s_lshr_b32 s{S_R}, s2, 3")
        e(f"s_lshl_b32 s{S_R}, s{S_R}, {15 if self.rot else 20}")
        e("s_waitcnt lgkmcnt(0)")
        self.srd(R_K, P_K, 1 << 28)
        self.srd(R_V, P_V, 1 << 28)
        state = dict(issued=-1)
        def slot_regs(s): return f"v[{SLOT+4*s}:{SLOT+4*s+3}]"
        def issue(n, slot, soff):
            i = n % 16
            if self.seq: i = n % 8 + (8 if n >= 8 * NT else 0)
            if i < 8:
                G, j = i >> 2, i & 3
                e(f"buffer_load_dwordx4 {slot_regs(slot)}, v{KO0+G}, s[{R_K}:{R_K+3}], s{soff} offen offset:{j*128} {self.kvflags}")
            else:
                i -= 8
                e(f"buffer_load_dwordx4 {slot_regs(slot)}, v{VO}, s[{R_V}:{R_V+3}], s{soff} offen offset:{(i>>1)*512+(i&1)*256} {self.vflags}")
        npro = self.npro
        assert 16 <= npro <= 44
        for n in range(npro):
            if n % (8 if self.seq else 16) == 0:
                tile_off(S_O1, n // (8 if self.seq else 16))
            tp = self.thrp if n < self.npl else self.thr
            if n >= tp: e(f"s_waitcnt vmcnt({tp-1})")
            issue(n, n, S_O1)
            if self.qtrig and n == self.qtrig: e(f"ds_write_b32 v{PADDR}, v78 offset:{MISC+48}")
            if n in ((5, 13) if self.ns else (5, 13, 19, 25)): self.stamp({5: 6, 13: 7, 19: 9, 25: 10}[n])
            if n == 7:
                self.stamp(4)
                self.srd(R_WS, P_WS, WS_SIZE)
                e(f"s_mov_b32 s{S_C}, {CSC:#x}")
                e("v_lshrrev_b32 v16, 1, v14")
                e("v_and_b32 v17, 1, v14")
                e("v_mov_b32 v18, 0xffff")
                e("v_lshlrev_b32 v17, 4, v17")
                e("v_lshlrev_b32 v18, v17, v18")
                for i in range(4):
                    e(f"v_cmp_eq_u32 vcc, {i}, v16")
                    e(f"v_cndmask_b32 v{MK+i}, 0, v18, vcc")
                e(f"v_mov_b32 v{MRUN}, 0xff800000")
                e(f"v_mov_b32 v{NRUN}, 0x7f800000")
                e(f"v_mov_b32 v{LRUN}, 0")
                for i in range(8): e(f"v_mov_b32 v{ACC0+i}, 0")
                e("v_bfe_u32 v16, v12, 2, 1")
                e("v_lshl_add_u32 v16, v16, 2, v13")
                e("v_lshlrev_b32 v23, 9, v15")
                e("v_lshl_add_u32 v23, v16, 4, v23")
                e("v_lshrrev_b32 v16, 1, v13")
                e("v_and_b32 v17, 1, v13")
                e("v_lshlrev_b32 v76, 10, v16")
                e("v_lshl_add_u32 v76, v12, 5, v76")
                e("v_lshl_add_u32 v76, v17, 4, v76")
                e(f"s_lshl_b32 s70, s{S_HW}, 11")
                e("v_add_u32 v76, s70, v76")
                e(f"s_lshl_b32 s70, s{S_HW}, 4")
                e("v_add_u32 v77, s70, v1")
                e("v_mov_b32 v78, 1")
                e("v_mov_b32 v79, 0")
                if self.seq:
                    e("v_lshl_add_u32 v20, v15, 2, v13")
                    e("v_lshlrev_b32 v20, 3, v20")
                    e(f"s_lshl_b32 s70, s{S_HW}, 11")
                    e("v_add_u32 v20, s70, v20")
                    e("v_mov_b32 v21, v20")
                    e(f"s_lshl_b32 s70, s{S_HW}, 2")
                    e(f"v_mov_b32 v{PADDR}, s70")
        self.stamp(5)
        if not self.noq: e("s_barrier")
        self.stamp(1)
        for j in range(4):
            e(f"ds_read_b128 v[{QF+4*j}:{QF+4*j+3}], v23 offset:{QL+j*128}")
        e(f"ds_read_b32 v23, v79 offset:{MISC}")
        e("s_waitcnt lgkmcnt(0)")
        e(f"v_readfirstlane_b32 s{S_TAG}, v23")

        def softmax(point):
            for r in range(4): e(f"v_permlane32_swap_b32 v{D0+r}, v{D1+r}")
            for r in range(4): e(f"v_add_f32_dpp v{T+r}, v{D1+r}, v{D0+r} row_half_mirror row_mask:0xf bank_mask:0x5")
            for r in range(4): e(f"v_add_f32_dpp v{T+r}, v{D0+r}, v{D1+r} row_half_mirror row_mask:0xf bank_mask:0xa")
            e(f"v_cvt_pk_bf16_f32 v{PK}, v{T}, v{T+1}")
            e(f"v_cvt_pk_bf16_f32 v{PK+1}, v{T+2}, v{T+3}")
            e(f"v_lshlrev_b32 v{T}, 16, v{PK}")
            e(f"v_and_b32 v{T+1}, 0xffff0000, v{PK}")
            e(f"v_lshlrev_b32 v{T+2}, 16, v{PK+1}")
            e(f"v_and_b32 v{T+3}, 0xffff0000, v{PK+1}")
            point()
            e(f"v_max3_f32 v{MX}, v{T}, v{T+1}, v{T+2}")
            e(f"v_max3_f32 v{MX}, v{MX}, v{T+3}, v{MRUN}")
            self.cross_rows(MX, MX2, "max")
            e(f"v_mov_b32 v{MRUN}, v{MX}")
            e(f"v_mul_f32 v{NN}, s{S_C}, v{MX}")
            e(f"v_sub_f32 v{AL}, 0, v{NN}")
            for r in range(4): e(f"v_fma_f32 v{P+r}, v{T+r}, s{S_C}, v{AL}")
            e(f"v_sub_f32 v{NN}, v{AL}, v{NRUN}")
            e(f"v_mov_b32 v{NRUN}, v{AL}")
            e(f"v_exp_f32 v{AL}, v{NN}")
            for r in range(4): e(f"v_exp_f32 v{P+r}, v{P+r}")
            point()
            e(f"v_mov_b32 v{ALD}, v{AL}")
            e(f"v_mul_f32 v{LRUN}, v{LRUN}, v{AL}")
            e(f"v_mov_b32_dpp v{ALD}, v{AL} row_shr:8 row_mask:0x3 bank_mask:0xc")
            e(f"v_mov_b32_dpp v{ALD}, v{AL} row_shl:8 row_mask:0xc bank_mask:0x3")
            for r in range(4): e(f"v_cvt_pk_bf16_f32 v{T+r}, v{P+r}, v{P+r}")
            e(f"v_add_f32 v{P}, v{P}, v{P+1}")
            e(f"v_add_f32 v{P+2}, v{P+2}, v{P+3}")
            for i in range(4): e(f"v_and_b32 v{AF+i}, v{T}, v{MK+i}")
            for i in range(8): e(f"v_mul_f32 v{ACC0+i}, v{ACC0+i}, v{ALD}")
            e(f"v_add_f32 v{P}, v{P}, v{P+2}")
            for r in range(1, 4):
                for i in range(4): e(f"v_and_b32 v{AF+4*r+i}, v{T+r}, v{MK+i}")
            e(f"v_add_f32 v{LRUN}, v{LRUN}, v{P}")

        if self.seq:
            d = self.dist; thr = self.thr
            NK = 8 * NT
            S_O3 = 70
            def slot_of(n): return n if n < npro else n % 16
            st = dict(k=npro)
            def unit(u, steady, par):
                isk = u < NT
                st["j"] = 0
                st["last"] = 8 * u - 1
                def point():
                    j = st["j"]; st["j"] += 1
                    k = st["k"]
                    want = 8 * u + d + j
                    prev = k - 16 if k - 16 >= npro else k % 16
                    if prev > st["last"]:
                        assert not steady
                        return
                    if k > want and j % 2 == 0: return
                    if steady:
                        assert k == want
                        so = (S_O1, S_O2, S_O3)[k // 8 - (u - par) - 1]
                    else:
                        if st.get("so") != k // 8:
                            tile_off(S_O2, k // 8)
                            st["so"] = k // 8
                        so = S_O2
                    if steady and self.boost and not isk:
                        Ls = self.lab("t")
                        e(f"s_waitcnt vmcnt({self.bhi-1})")
                        e(f"s_cbranch_scc1 {Ls}")
                        e.skippable(f"s_waitcnt vmcnt({thr-1})")
                        e.label(Ls)
                    elif steady and self.fb and j % self.fbdiv == 0:
                        Ls = self.lab("t")
                        e(f"s_waitcnt vmcnt({self.fbhi-1})")
                        e(f"s_cbranch_scc1 {Ls}")
                        e.skippable(f"s_waitcnt vmcnt({thr-1})")
                        e.skippable(f"s_cbranch_vccz {Ls}")
                        e.skippable(f"s_waitcnt vmcnt({self.fblo-1})")
                        e.label(Ls)
                    else:
                        e(f"s_waitcnt vmcnt({thr-1})")
                    issue(k, slot_of(k), so)
                    st["k"] = k + 1
                if not isk:
                    SC = 16 + 2 * par
                    e("s_waitcnt lgkmcnt(0)")
                    e(f"ds_read_b64 v[{18-2*par}:{19-2*par}], v21 offset:{SO + 64*(par+1)}")
                    e(f"v_lshlrev_b32 v{T}, 16, v{SC}")
                    e(f"v_and_b32 v{T+1}, 0xffff0000, v{SC}")
                    e(f"v_lshlrev_b32 v{T+2}, 16, v{SC+1}")
                    e(f"v_and_b32 v{T+3}, 0xffff0000, v{SC+1}")
                    for r in range(4): e(f"v_fma_f32 v{P+r}, v{T+r}, s{S_C}, v{NRUN}")
                    for r in range(4): e(f"v_exp_f32 v{P+r}, v{P+r}")
                    for r in range(4): e(f"v_cvt_pk_bf16_f32 v{T+r}, v{P+r}, v{P+r}")
                    point()
                    for i in range(4): e(f"v_and_b32 v{AF+i}, v{T}, v{MK+i}")
                    e(f"v_add_f32 v{P}, v{P}, v{P+1}")
                    e(f"v_add_f32 v{P+2}, v{P+2}, v{P+3}")
                    for r in range(1, 4):
                        for i in range(4): e(f"v_and_b32 v{AF+4*r+i}, v{T+r}, v{MK+i}")
                    e(f"v_add_f32 v{P}, v{P}, v{P+2}")
                    e(f"v_add_f32 v{LRUN}, v{LRUN}, v{P}")
                for i in range(8):
                    n = 8 * u + i
                    w = st["k"] - 1 - n
                    assert w >= 0
                    if w < max(thr, self.fbhi if self.fb else 0, self.bhi if self.boost else 0) or not steady: e(f"s_waitcnt vmcnt({min(63, w)})")
                    if isk:
                        G, j = i >> 2, i & 3
                        D = D0 if G == 0 else D1
                        c = "0" if j == 0 else f"v[{D}:{D+3}]"
                        e(f"v_mfma_f32_16x16x32_bf16 v[{D}:{D+3}], {slot_regs(slot_of(n))}, v[{QF+4*j}:{QF+4*j+3}], {c}")
                    else:
                        j, hf = i >> 1, i & 1
                        A = ACC0 if hf == 0 else ACC1
                        e(f"v_mfma_f32_16x16x32_bf16 v[{A}:{A+3}], v[{AF+4*j}:{AF+4*j+3}], {slot_regs(slot_of(n))}, v[{A}:{A+3}]")
                    st["last"] = n
                    if i != 7 or isk: point()
                if isk:
                    for r in range(4): e(f"v_permlane32_swap_b32 v{D0+r}, v{D1+r}")
                    for r in range(4): e(f"v_add_f32_dpp v{T+r}, v{D1+r}, v{D0+r} row_half_mirror row_mask:0xf bank_mask:0x5")
                    for r in range(4): e(f"v_add_f32_dpp v{T+r}, v{D0+r}, v{D1+r} row_half_mirror row_mask:0xf bank_mask:0xa")
                    e(f"v_cvt_pk_bf16_f32 v{PK}, v{T}, v{T+1}")
                    e(f"v_cvt_pk_bf16_f32 v{PK+1}, v{T+2}, v{T+3}")
                    e(f"v_max3_f32 v{MRUN}, v{T}, v{T+1}, v{MRUN}")
                    e(f"ds_write_b64 v20, v[{PK}:{PK+1}] offset:{SO + (64*par if steady else 64*u)}")
                    e(f"v_max3_f32 v{MRUN}, v{T+2}, v{T+3}, v{MRUN}")
            def offsets(last_oob, skip=0):
                if self.diag:
                    e("s_memrealtime s[98:99]"); e("s_waitcnt lgkmcnt(0)")
                    e("s_mov_b32 m0, s100"); e("s_nop 0")
                    e("v_writelane_b32 v254, s98, m0"); e("s_add_u32 s100, s100, 1")
                for i, so in enumerate((S_O1, S_O2, S_O3)):
                    e(f"s_add_u32 s{so}, s{S_R}, {i*32768}")
                    e(f"s_and_b32 s{so}, s{so}, 0xfffff")
                    e(f"s_add_u32 s{so}, s{so}, s{S_BASE}")
                    if i == 0 and skip: e(f"s_add_u32 s{S_R}, s{S_R}, {skip}")
                e(f"s_add_u32 s{S_R}, s{S_R}, 65536")
                if last_oob:
                    e(f"s_cmp_eq_u32 s{S_CNT}, 1")
                    e(f"s_cselect_b32 s{S_O2}, 0x80000000, s{S_O2}")
                    e(f"s_cselect_b32 s{S_O3}, 0x80000000, s{S_O3}")
            def top(bias):
                if self.fb:
                    e("s_waitcnt lgkmcnt(0)")
                    e("v_readfirstlane_b32 s71, v22")
                if bias: e(f"s_add_u32 s72, s{S_CNT}, {bias}") if not self.diag else e(f"s_add_u32 s97, s{S_CNT}, {bias}")
                src = (f"s72" if not self.diag else "s97") if bias else f"s{S_CNT}"
                e(f"v_mov_b32 v23, {src}")
                e(f"ds_write_b32 v28, v23 offset:{MISC+32}") if False else e(f"ds_write_b32 v{PADDR}, v23 offset:{MISC+32}")
                if self.fb:
                    e(f"ds_read_b32 v22, v79 offset:{MISC+28}")
                    e("s_cmp_eq_u32 s71, 1")
                    e("s_cselect_b64 vcc, -1, 0")
                    e("s_cmp_eq_u32 s71, 2")
            assert 8 < d <= 16
            u = 0
            while not (st["k"] - 8 * u == d and 8 * u >= npro and u % 2 == 0):
                unit(u, False, 0)
                u += 1
            ufirst = u
            if self.diag: e("s_mov_b32 s100, 0"); e("v_mov_b32 v254, 0")
            self.stamp(8)
            if self.fb: e("v_mov_b32 v22, 0")
            e(f"s_add_u32 s{S_R}, s{S_R}, {(ufirst+1)*32768}")
            e(f"v_add_u32 v20, {64*ufirst}, v20")
            e(f"s_mov_b32 s{S_CNT}, {(NT-ufirst)//2 - 1}")
            L = self.lab("kloop")
            e.label(L)
            offsets(False)
            if self.fb: top(NT // 2 + 1)
            unit(ufirst, True, 0); unit(ufirst + 1, True, 1)
            e("v_add_u32 v20, 128, v20")
            e(f"s_sub_u32 s{S_CNT}, s{S_CNT}, 1")
            e(f"s_cmp_lg_u32 s{S_CNT}, 0")
            e(f"s_cbranch_scc1 {L}")
            offsets(False, (32 - NT) * 32768 if self.ns else 0)
            if self.fb: top(NT // 2 + 1)
            st["k"] = 8 * (NT - 2) + d
            unit(NT - 2, True, 0); unit(NT - 1, True, 1)
            e(f"ds_read_b64 v[16:17], v21 offset:{SO}")
            self.cross_rows(MRUN, MX2, "max")
            self.rnd(MRUN)
            e(f"v_mul_f32 v{NRUN}, s{S_C}, v{MRUN}")
            e(f"v_sub_f32 v{NRUN}, 0, v{NRUN}")
            e(f"s_mov_b32 s{S_CNT}, {NT//2}")
            if self.boost: e("v_mov_b32 v22, 0")
            L = self.lab("vloop")
            e.label(L)
            offsets(True)
            top(0)
            if self.boost:
                e("s_waitcnt lgkmcnt(0)")
                e("v_readfirstlane_b32 s71, v22")
                e(f"ds_read_b32 v22, v79 offset:{MISC + (28 if self.btrig else 16)}")
                e(f"s_cmp_gt_u32 s71, {self.boost}")
            PN = 16 * (32 - NT) * 4
            def claim():
                Ln = self.lab("ncl")
                e(f"v_mov_b32 v240, {PN}")
                e("s_cmp_eq_u32 s12, 0")
                e(f"s_cbranch_scc1 {Ln}")
                e.skippable("s_sub_u32 s12, s12, 1")
                e.skippable("v_mov_b32 v240, 1")
                e.skippable("s_mov_b64 exec, 1")
                e.skippable(f"buffer_atomic_add v240, off, s[{R_WS}:{R_WS+3}], s14 sc0 sc1")
                e.skippable("s_mov_b64 exec, -1")
                e.label(Ln)
            if self.ns:
                assert self.rot == 2 and not self.fb
                Lk = self.lab("ncp")
                e(f"s_cmp_lg_u32 s{S_CNT}, 1")
                e(f"s_cbranch_scc1 {Lk}")
                e(f"ds_read_b32 v240, v79 offset:{MISC+16}")
                e("s_lshr_b32 s14, s2, 4")
                e(f"s_mul_i32 s14, s14, {CNTS}")
                e(f"s_add_u32 s14, s14, {CNTB}")
                e("s_waitcnt lgkmcnt(0)")
                e("v_readfirstlane_b32 s12, v240")
                e("s_sub_u32 s12, s12, 1")
                e("s_cmp_lt_u32 s12, 98")
                e(f"s_cselect_b32 s12, {self.rp}, {PN + 1}")
                claim()
                e.label(Lk)
            unit(NT, True, 0); unit(NT + 1, True, 1)
            e("v_add_u32 v21, 128, v21")
            e(f"s_sub_u32 s{S_CNT}, s{S_CNT}, 1")
            e(f"s_cmp_lg_u32 s{S_CNT}, 0")
            e(f"s_cbranch_scc1 {L}")
            e("s_waitcnt lgkmcnt(0)")
            if self.ns:
                self.stamp(9)
                Lp = self.lab("pool"); Lq = self.lab("poolx")
                e.label(Lp)
                e("s_waitcnt vmcnt(0)")
                e("v_readfirstlane_b32 s13, v240")
                e(f"s_cmp_ge_u32 s13, {PN}")
                e(f"s_cbranch_scc1 {Lq}")
                e("s_bfe_u32 s15, s13, 0x40002")
                e("s_lshr_b32 s65, s13, 6")
                e("s_add_u32 s65, s65, s15")
                e("s_and_b32 s66, s2, 16")
                e("s_add_u32 s65, s65, s66")
                e(f"s_add_u32 s65, s65, {NT}")
                e("s_and_b32 s65, s65, 31")
                e("s_lshl_b32 s65, s65, 15")
                e("s_lshl_b32 s15, s15, 20")
                e("s_add_u32 s65, s65, s15")
                e("s_and_b32 s15, s13, 3")
                e("s_lshl_b32 s15, s15, 13")
                e("s_add_u32 s65, s65, s15")
                e("s_lshr_b32 s15, s2, 4")
                e("s_lshl_b32 s15, s15, 24")
                e("s_add_u32 s65, s65, s15")
                claim()
                for i in range(8): issue(i, i, S_O1)
                for i in range(8): issue(8 * NT + i, 8 + i, S_O1)
                for i in range(8):
                    G, j = i >> 2, i & 3
                    D = D0 if G == 0 else D1
                    c = "0" if j == 0 else f"v[{D}:{D+3}]"
                    e(f"s_waitcnt vmcnt({15-i})")
                    e(f"v_mfma_f32_16x16x32_bf16 v[{D}:{D+3}], {slot_regs(i)}, v[{QF+4*j}:{QF+4*j+3}], {c}")
                softmax(lambda: None)
                for i in range(8):
                    j, hf = i >> 1, i & 1
                    A = ACC0 if hf == 0 else ACC1
                    e(f"s_waitcnt vmcnt({7-i})")
                    e(f"v_mfma_f32_16x16x32_bf16 v[{A}:{A+3}], v[{AF+4*j}:{AF+4*j+3}], {slot_regs(8+i)}, v[{A}:{A+3}]")
                if self.diag: e(f"s_add_u32 s{ST0+20}, s{ST0+20}, 1")
                e(f"s_branch {Lp}")
                e.label(Lq)
                e.fence(8)
            if self.diag:
                e("s_lshl_b32 s98, s2, 2"); e(f"s_add_u32 s98, s98, s{S_HW}"); e("s_lshl_b32 s98, s98, 8"); e(f"s_add_u32 s98, s98, {STAMP + 0x40000}")
                e("v_lshlrev_b32 v23, 2, v1")
                e(f"buffer_store_dword v254, v23, s[{R_WS}:{R_WS+3}], s98 offen")
        else:
            d = self.dist
            NL = NT * 16
            def slot_of(n): return n if n < npro else n % 16
            def consume(n):
                i = n % 16
                if i < 8:
                    G, j = i >> 2, i & 3
                    D = D0 if G == 0 else D1
                    c = "0" if j == 0 else f"v[{D}:{D+3}]"
                    e(f"v_mfma_f32_16x16x32_bf16 v[{D}:{D+3}], {slot_regs(slot_of(n))}, v[{QF+4*j}:{QF+4*j+3}], {c}")
                else:
                    i -= 8
                    j, hf = i >> 1, i & 1
                    A = ACC0 if hf == 0 else ACC1
                    e(f"v_mfma_f32_16x16x32_bf16 v[{A}:{A+3}], v[{AF+4*j}:{AF+4*j+3}], {slot_regs(slot_of(n))}, v[{A}:{A+3}]")
            st = dict(k=npro)
            def tile(t, steady, thr=None):
                thr = self.thr if thr is None else thr
                st["j"] = 0
                st["last"] = 16 * t - 1
                def point():
                    j = st["j"]; st["j"] += 1
                    k = st["k"]
                    want = 16 * t + d + j
                    prev = k - 16 if k - 16 >= npro else k % 16
                    if prev > st["last"]:
                        assert not steady
                        return
                    if k > want and j % 2 == 0: return
                    if steady:
                        assert k == want
                        so = S_O1 if k // 16 == t else S_O2
                    else:
                        if st.get("so") != k // 16:
                            tile_off(S_O2, k // 16)
                            st["so"] = k // 16
                        so = S_O2
                    e(f"s_waitcnt vmcnt({thr-1})")
                    issue(k, slot_of(k), so)
                    st["k"] = k + 1
                for i in range(16):
                    n = 16 * t + i
                    if i == 8: softmax(point)
                    w = st["k"] - 1 - n
                    assert w >= 0
                    if w < thr or not steady: e(f"s_waitcnt vmcnt({min(63, w)})")
                    consume(n)
                    st["last"] = n
                    if i % 8 != 7: point()
            t = 0
            while not (st["k"] - 16 * t == d and 16 * t >= npro):
                tile(t, False)
                t += 1
            tfirst = t
            self.stamp(8)
            tile_off(S_O1, tfirst)
            e(f"s_add_u32 s{S_R}, s{S_R}, {tfirst*32768}")
            e(f"s_mov_b32 s{S_CNT}, {NT-tfirst}")
            for thr, stop in ([(self.thr, self.nl2), (self.thr2, 0)] if self.nl2 else [(self.thr, 0)]):
                L = self.lab("sloop")
                e.label(L)
                e(f"s_add_u32 s{S_R}, s{S_R}, 32768")
                e(f"s_and_b32 s{S_O2}, s{S_R}, 0xfffff")
                e(f"s_add_u32 s{S_O2}, s{S_O2}, s{S_BASE}")
                e(f"v_mov_b32 v23, s{S_CNT}")
                e(f"s_cmp_eq_u32 s{S_CNT}, 1")
                e(f"s_cselect_b32 s{S_O2}, 0x80000000, s{S_O2}")
                e(f"ds_write_b32 v79, v23 offset:{MISC+12}")
                st["k"] = 16 * tfirst + d
                tile(tfirst, True, thr)
                e(f"s_mov_b32 s{S_O1}, s{S_O2}")
                e(f"s_sub_u32 s{S_CNT}, s{S_CNT}, 1")
                e(f"s_cmp_lg_u32 s{S_CNT}, {stop}")
                e(f"s_cbranch_scc1 {L}")
        self.stamp(2)
        self.cross_rows(LRUN, MX2, "add")
        e(f"ds_write_b128 v76, v[{ACC0}:{ACC0+3}] offset:{SO}")
        e(f"ds_write_b128 v76, v[{ACC1}:{ACC1+3}] offset:{SO+512}")
        e("s_mov_b64 exec, 0x101")
        e(f"ds_write2_b32 v77, v{NRUN}, v{LRUN} offset0:{SML//4} offset1:{SML//4+1}") if SML // 4 + 1 < 256 else None
        e("s_mov_b64 exec, 1")
        e(f"ds_add_rtn_u32 v22, v79, v78 offset:{MISC+4}")
        e("s_mov_b64 exec, -1")
        e("s_waitcnt lgkmcnt(0)")
        e("v_readfirstlane_b32 s64, v22")
        e("s_cmp_eq_u32 s64, 3")
        Ld = self.lab("slast")
        e(f"s_cbranch_scc1 {Ld}")
        self.endpgm()
        e.label(Ld)
        e("s_waitcnt vmcnt(0)")
        e.label("L_sfinal")
        e("v_mov_b32 v20, 0")
        e("v_lshlrev_b32 v22, 4, v1")
        for w in range(4):
            e(f"ds_read_b128 v[{24+4*w}:{27+4*w}], v20 offset:{SML+16*w}")
        OB = 80
        for h in range(2):
            for w in range(4):
                r = OB + (h * 4 + w) * 4
                e(f"ds_read_b128 v[{r}:{r+3}], v22 offset:{SO + w*2048 + h*1024}")
        e(f"s_and_b32 s{S_TM}, s{S_TAG}, 0x3f")
        e("v_mov_b32 v21, 0xffffffc0")
        e("s_waitcnt lgkmcnt(8)")
        for h in range(2):
            n = [24 + 4 * w + 2 * h for w in range(4)]
            e(f"v_min3_f32 v{40+h}, v{n[0]}, v{n[1]}, v{n[2]}")
            e(f"v_min_f32 v{40+h}, v{40+h}, v{n[3]}")
        for h in range(2):
            for w in range(4):
                e(f"v_sub_f32 v{44+4*h+w}, v{40+h}, v{24+4*w+2*h}")
        for i in range(8): e(f"v_exp_f32 v{44+i}, v{44+i}")
        for h in range(2):
            e(f"v_mul_f32 v{42+h}, v{44+4*h}, v{25+2*h}")
        for w in range(1, 4):
            for h in range(2):
                e(f"v_fmac_f32 v{42+h}, v{44+4*h+w}, v{25+4*w+2*h}")
        for h in range(2): e(f"v_rcp_f32 v{52+h}, v{42+h}")
        for h in range(2): e(f"v_log_f32 v{54+h}, v{42+h}")
        for h in range(2):
            for w in range(4): e(f"v_mul_f32 v{44+4*h+w}, v{44+4*h+w}, v{52+h}")
        for h in range(2): e(f"v_sub_f32 v{54+h}, v{54+h}, v{40+h}")
        e(f"s_lshl_b32 s64, s2, 11")
        e(f"s_add_u32 s64, s64, {PBUF}")
        for h in range(2):
            e(f"s_waitcnt lgkmcnt({4-4*h})")
            o = 56 + 4 * h
            for i in range(4): e(f"v_mul_f32 v{o+i}, v{44+4*h}, v{OB+h*16+i}")
            for w in range(1, 4):
                for i in range(4): e(f"v_fmac_f32 v{o+i}, v{44+4*h+w}, v{OB+h*16+w*4+i}")
            for i in range(4): self.tagw(o + i, o + i, 21)
        if self.hpriv:
            e("v_cmp_lt_u32 vcc, 15, v1")
            e("v_cndmask_b32 v72, v54, v55, vcc")
            e(f"v_mov_b32 v73, s{S_TAG}")
            e("v_lshlrev_b32 v23, 3, v1")
            e("s_lshl_b32 s65, s2, 8")
            e(f"s_add_u32 s65, s65, {HB2}")
        else:
            e("v_cmp_eq_u32 vcc, 1, v1")
            e("v_cndmask_b32 v72, v54, v55, vcc")
            e(f"v_mov_b32 v73, s{S_TAG}")
            e("v_lshlrev_b32 v23, 11, v1")
            e("s_lshl_b32 s65, s2, 3")
            e(f"s_add_u32 s65, s65, {HBUF}")
        e("s_cmp_eq_u32 s68, 1")
        e("s_cbranch_scc1 L_sfinal_back")
        for h in range(2):
            o = 56 + 4 * h
            e(f"buffer_store_dwordx4 v[{o}:{o+3}], v22, s[{R_WS}:{R_WS+3}], s64 offen offset:{h*1024} sc1")
        e(f"s_mov_b64 exec, {0xffffffff if self.hpriv else 3:#x}")
        e(f"buffer_store_dwordx2 v[72:73], v23, s[{R_WS}:{R_WS+3}], s65 offen sc1")
        e("s_mov_b64 exec, 3")
        e(f"ds_add_u32 v79, v78 offset:{MISC+4}")
        self.dbgt(34)
        self.stamp(3)
        self.endpgm()

    def h_consts(self):
        e = self.e
        e("v_and_b32 v4, 15, v1")
        e("v_lshrrev_b32 v5, 4, v1")
        e("v_lshrrev_b32 v6, 2, v4")
        e("v_lshl_add_u32 v6, v5, 3, v6")
        e("v_and_b32 v7, 3, v4")
        e("v_lshlrev_b32 v7, 3, v7")
        e("v_and_b32 v8, 1, v1")
        e(f"v_mul_u32_u24 v8, {AVS}, v8")
        e("v_lshl_add_u32 v3, v5, 4, v8")
    def tr_addr(self, lgpitch, sbase):
        e = self.e
        e(f"v_lshl_add_u32 v2, v6, {lgpitch}, v7")
        e(f"v_add_u32 v2, s{sbase}, v2")
    def dma_voff(self, rowbytes, lgpitch, vout):
        e = self.e
        sh = lgpitch - 4
        e(f"v_lshrrev_b32 v{vout}, {sh}, v1")
        e(f"v_mul_u32_u24 v{vout}, {rowbytes}, v{vout}")
        e(f"v_and_b32 v{vout+1}, {(1<<sh)-1}, v1")
        e(f"v_lshl_add_u32 v{vout}, v{vout+1}, 4, v{vout}")
    def dma_loop(self, srd, voff, n, s_src, src_step, s_dst, inflight=None):
        e = self.e
        L = self.lab("dma")
        inflight = self.winfl_cur
        e(f"s_mov_b32 s66, {n}")
        e.label(L)
        e(f"s_mov_b32 m0, s{s_dst}")
        e(f"s_add_u32 s{s_dst}, s{s_dst}, 1024")
        e(f"buffer_load_dwordx4 v{voff}, s[{srd}:{srd+3}], s{s_src} offen {self.wflags} lds")
        e(f"s_add_u32 s{s_src}, s{s_src}, {src_step}")
        if inflight < 32: e(f"s_waitcnt vmcnt({inflight-1})")
        e("s_sub_u32 s66, s66, 1")
        e("s_cmp_lg_u32 s66, 0")
        e(f"s_cbranch_scc1 {L}")
    def h_sync(self):
        e = self.e
        L = self.lab("hs"); Lx = self.lab("hsx")
        e("s_waitcnt vmcnt(0)")
        e("v_mov_b32 v8, 0")
        e("v_mov_b32 v9, 1")
        e("s_mov_b64 exec, 1")
        e(f"ds_add_u32 v8, v9 offset:{MISC+8}")
        e("s_mov_b64 exec, -1")
        e.label(L)
        e(f"ds_read_b32 v9, v8 offset:{MISC+8}")
        e("s_waitcnt lgkmcnt(0)")
        e("v_readfirstlane_b32 s64, v9")
        e("s_cmp_ge_u32 s64, 4")
        e(f"s_cbranch_scc1 {Lx}")
        e("s_sleep 2")
        e(f"s_sub_u32 s{S_TO}, s{S_TO}, 1")
        e(f"s_cbranch_scc0 {L}")
        e(f"s_branch L_hfail")
        e.label(Lx)
    def tr_frags(self, nsteps, off, fbase, lgpitch):
        e = self.e
        for st in range(nsteps):
            f = fbase + 4 * st
            o = off + st * (32 << lgpitch)
            assert o + (4 << lgpitch) < 65536
            e(f"ds_read_b64_tr_b16 v[{f}:{f+1}], v2 offset:{o}")
            e(f"ds_read_b64_tr_b16 v[{f+2}:{f+3}], v2 offset:{o + (4 << lgpitch)}")
            if st % 4 == 3: e("s_waitcnt lgkmcnt(0)")
        e("s_waitcnt lgkmcnt(0)")
    def gemv(self, nsteps, abase, a_lds_off, chains, vaddr=3, ahead=12):
        e = self.e
        AHEAD = ahead
        def rd(st): e(f"ds_read_b128 v[{abase+4*st}:{abase+4*st+3}], v{vaddr} offset:{a_lds_off+st*64}")
        issued = min(nsteps, AHEAD)
        for st in range(issued): rd(st)
        for st in range(nsteps):
            e(f"s_waitcnt lgkmcnt({issued - 1 - st})")
            for D, fb in chains:
                c = "0" if st == 0 else f"v[{D}:{D+3}]"
                e(f"v_mfma_f32_16x16x32_bf16 v[{D}:{D+3}], v[{abase+4*st}:{abase+4*st+3}], v[{fb+4*st}:{fb+4*st+3}], {c}")
            if issued < nsteps:
                rd(issued); issued += 1
    def lds_wait(self, off, cmp, val, sleep=4, sreg=64):
        e = self.e
        L = self.lab("lw"); Lx = self.lab("lwx")
        e("v_mov_b32 v8, 0")
        e.label(L)
        e(f"ds_read_b32 v9, v8 offset:{off}")
        e("s_waitcnt lgkmcnt(0)")
        e(f"v_readfirstlane_b32 s{sreg}, v9")
        e(f"s_cmp_{cmp}_u32 s{sreg}, {val}")
        e(f"s_cbranch_scc1 {Lx}")
        e(f"s_sleep {sleep}")
        e(f"s_sub_u32 s{S_TO}, s{S_TO}, 1")
        e(f"s_cbranch_scc0 {L}")
        e(f"s_branch L_hfail")
        e.label(Lx)
    def lds_set(self, off, src):
        e = self.e
        e("v_mov_b32 v8, 0")
        e(f"v_mov_b32 v9, {src}")
        e(f"ds_write_b32 v8, v9 offset:{off}")
    def bar(self):
        e = self.e
        L = self.lab("nb")
        e("s_cmp_eq_u32 s68, 1")
        e(f"s_cbranch_scc1 {L}")
        e("s_barrier")
        e.label(L)
    def gate_all(self):
        e = self.e
        L = self.lab("gate"); Lx = self.lab("gatex"); Lo = self.lab("gateo"); Le = self.lab("gatee")
        e(f"s_cmp_lg_u32 s{S_HW}, 0")
        e(f"s_cbranch_scc1 {Lo}")
        e("v_lshlrev_b32 v8, 5, v1")
        e(f"s_mov_b32 s64, {HBUF}")
        e.label(L)
        e(f"buffer_load_dwordx4 v[40:43], v8, s[{R_WS}:{R_WS+3}], s64 offen sc1")
        e(f"buffer_load_dwordx4 v[44:47], v8, s[{R_WS}:{R_WS+3}], s64 offen offset:16 sc1")
        e("s_waitcnt vmcnt(0)")
        e(f"v_xor_b32 v41, s{S_TAG}, v41")
        e(f"v_xor_b32 v43, s{S_TAG}, v43")
        e(f"v_xor_b32 v45, s{S_TAG}, v45")
        e(f"v_xor_b32 v47, s{S_TAG}, v47")
        e("v_or3_b32 v41, v41, v43, v45")
        e("v_or_b32 v41, v41, v47")
        e("v_cmp_ne_u32 vcc, 0, v41")
        e("s_bcnt1_i32_b64 s65, vcc")
        e(f"s_cmp_le_u32 s65, {self.gthr}")
        e(f"s_cbranch_scc1 {Lx}")
        e("s_mov_b64 exec, vcc")
        e(f"s_sleep {self.gsleep}")
        e(f"s_sub_u32 s{S_TO}, s{S_TO}, 1")
        e(f"s_cbranch_scc0 {L}")
        e(f"s_branch L_hfail")
        e.label(Lx)
        e("s_mov_b64 exec, -1")
        self.lds_set(MISC + 20, 1)
        e(f"s_branch {Le}")
        e.label(Lo)
        self.lds_wait(MISC + 20, "eq", 1, 2)
        e.label(Le)
    def xcc(self, dst, stride):
        e = self.e
        if self.xcp:
            e(f"s_getreg_b32 s{dst}, hwreg(HW_REG_XCC_ID)")
            e(f"s_and_b32 s{dst}, s{dst}, 7")
            e(f"s_mul_i32 s{dst}, s{dst}, {stride}")
        else:
            e(f"s_mov_b32 s{dst}, 0")
    def ybases(self):
        self.xcc(47, YCP)
        for k in range(8): self.e(f"s_add_u32 s{40+k}, s47, {YBUF + k*3584}")
    def ln_finish(self, mean, var, out_mb, out_rs):
        e = self.e
        for m, o in zip(mean, out_mb):
            if m != o: e(f"v_mov_b32 v{o}, v{m}")
        self.rnd_many(list(out_mb) + list(var))
        for v in var: e(f"v_add_f32 v{v}, {f2u(1e-5):#x}, v{v}")
        self.rnd_many(var)
        for v in var: e(f"v_sqrt_f32 v{v}, v{v}")
        self.rnd_many(var)
        for v, o in zip(var, out_rs): e(f"v_rcp_f32 v{o}, v{v}")

    def q_path(self):
        e = self.e
        e("v_lshlrev_b32 v8, 4, v1")
        e("v_cmp_gt_u32 s[70:71], 56, v1")
        e("v_mov_b32 v9, 0x10000")
        e("v_cndmask_b32 v8, v9, v8, s[70:71]")
        e(f"buffer_load_dwordx4 v[12:15], v8, s[{R_X}:{R_X+3}], 0 offen")
        e(f"buffer_load_dwordx4 v[16:19], v8, s[{R_X}:{R_X+3}], 0 offen offset:896")
        e(f"buffer_load_dword v10, off, s[{R_WS}:{R_WS+3}], 0 offset:{EPOCH} sc1")
        e(f"s_and_b32 s12, s{S_SPL}, 3")
        e(f"s_lshr_b32 s13, s{S_SPL}, 2")
        e(f"s_lshl_b32 s64, s{S_B}, 2")
        e("s_add_u32 s13, s13, s64")
        e(f"s_mul_i32 s64, s12, {112*8192}")
        e(f"s_lshl_b32 s65, s{S_HKV}, 10")
        e("s_add_u32 s64, s64, s65")
        e("s_lshl_b32 s65, s13, 7")
        e("s_add_u32 s64, s64, s65")
        self.srd(R_W, P_WQ, 448 * 8192)
        self.dma_voff(8192, 7, 20)
        for st in range(14):
            e(f"s_mov_b32 m0, {STG + st*1024}")
            if st: e(f"s_add_u32 s64, s64, {8*8192}")
            e(f"buffer_load_dwordx4 v20, s[{R_W}:{R_W+3}], s64 offen {self.qflags} lds")
        self.stamp(9)
        self.h_consts()
        e("v_mov_b32 v20, 0")
        e("v_mov_b32 v21, 0")
        e("v_mov_b32 v21, 0x7fff")
        e(f"ds_write_b64 v20, v[20:21] offset:{MISC+8}")
        e("v_mov_b32 v21, 0")
        e(f"ds_write_b64 v20, v[20:21] offset:{MISC+16}")
        e(f"ds_write_b32 v20, v20 offset:{MISC+4}")
        e(f"ds_write_b32 v20, v20 offset:{MISC+28}")
        e("v_mov_b32 v21, 0x7fff")
        e(f"ds_write_b32 v20, v21 offset:{MISC+32}")
        if self.fb or self.ns or self.rorder == 5:
            Lz = self.lab("nz")
            e(f"s_cmp_lg_u32 s{S_SPL}, 0")
            e(f"s_cbranch_scc1 {Lz}")
            e(f"s_mul_i32 s64, s{S_GRP}, {CNTS}")
            e(f"s_add_u32 s64, s64, {CNTB}")
            e("s_mov_b64 exec, 1")
            e("v_mov_b32 v21, 0")
            e(f"buffer_store_dword v20, off, s[{R_WS}:{R_WS+3}], s64 sc1")
            e(f"buffer_store_dword v20, off, s[{R_WS}:{R_WS+3}], s64 offset:2048 sc1")
            e("s_mov_b64 exec, -1")
            e.label(Lz)
        e("s_waitcnt vmcnt(15)")
        self.stamp(10)
        for b in range(2):
            for i in range(4):
                e(f"v_lshlrev_b32 v{24+8*b+2*i}, 16, v{12+4*b+i}")
                e(f"v_and_b32 v{25+8*b+2*i}, 0xffff0000, v{12+4*b+i}")
        for b in range(2):
            x = 24 + 8 * b
            e(f"v_add_f32 v{40+b}, v{x}, v{x+1}")
            for i in range(2, 8): e(f"v_add_f32 v{40+b}, v{40+b}, v{x+i}")
        self.wave_sum_to_sgpr([40, 41], [64, 65])
        inv = f2u(1.0 / 448)
        for b in range(2):
            e(f"v_mov_b32 v{42+b}, {inv:#x}")
            e(f"v_mul_f32 v{42+b}, s{64+b}, v{42+b}")
        for b in range(2):
            x = 24 + 8 * b
            e(f"v_sub_f32 v44, v{x}, v{42+b}")
            e(f"v_mul_f32 v{40+b}, v44, v44")
            for i in range(1, 8):
                e(f"v_sub_f32 v44, v{x+i}, v{42+b}")
                e(f"v_fmac_f32 v{40+b}, v44, v44")
            e(f"v_cndmask_b32 v{40+b}, 0, v{40+b}, s[70:71]")
        self.wave_sum_to_sgpr([40, 41], [64, 65])
        for b in range(2):
            e(f"v_mov_b32 v{44+b}, {inv:#x}")
            e(f"v_mul_f32 v{44+b}, s{64+b}, v{44+b}")
        self.ln_finish([42, 43], [44, 45], [42, 43], [46, 47])
        for b in range(2):
            x = 24 + 8 * b
            for i in range(8): e(f"v_sub_f32 v{x+i}, v{x+i}, v{42+b}")
            for i in range(4): e(f"v_cvt_pk_bf16_f32 v{12+4*b+i}, v{x+2*i}, v{x+2*i+1}")
            for i in range(4):
                e(f"v_lshlrev_b32 v{x+2*i}, 16, v{12+4*b+i}")
                e(f"v_and_b32 v{x+2*i+1}, 0xffff0000, v{12+4*b+i}")
            for i in range(8): e(f"v_mul_f32 v{x+i}, v{x+i}, v{46+b}")
            for i in range(4): e(f"v_cvt_pk_bf16_f32 v{12+4*b+i}, v{x+2*i}, v{x+2*i+1}")
        e("v_lshlrev_b32 v8, 4, v1")
        e("s_mov_b64 exec, s[70:71]")
        e(f"ds_write_b128 v8, v[12:15] offset:{AV}")
        e(f"ds_write_b128 v8, v[16:19] offset:{AV+AVS}")
        e("s_mov_b64 exec, -1")
        e("s_waitcnt vmcnt(14)")
        e("v_readfirstlane_b32 s64, v10")
        self.set_tag(64)
        e(f"v_mov_b32 v21, s{S_TAG}")
        e(f"ds_write_b32 v20, v21 offset:{MISC}")
        e("s_waitcnt vmcnt(0) lgkmcnt(0)")
        self.stamp(1)
        e(f"s_mov_b32 s64, {STG}")
        self.tr_addr(7, 64)
        e("s_mul_i32 s64, s12, 224")
        e("v_add_u32 v9, s64, v3")
        for st in range(4): e(f"ds_read_b128 v[{128+4*st}:{131+4*st}], v9 offset:{AV+st*64}")
        for cg in range(4): self.tr_frags(4, cg * 32, 64 + 16 * cg, 7)
        e("v_cmp_gt_u32 vcc, 32, v1")
        for i in range(4): e(f"v_cndmask_b32 v{140+i}, 0, v{140+i}, vcc")
        for cg in range(4):
            for i in range(4): e(f"v_cndmask_b32 v{76+16*cg+i}, 0, v{76+16*cg+i}, vcc")
        for st in range(4):
            for cg in range(4):
                D = 144 + 4 * cg
                c = "0" if st == 0 else f"v[{D}:{D+3}]"
                e(f"v_mfma_f32_16x16x32_bf16 v[{D}:{D+3}], v[{128+4*st}:{131+4*st}], v[{64+16*cg+4*st}:{67+16*cg+4*st}], {c}")
        e("v_cmp_lt_u32 s[64:65], 15, v1")
        e("v_cmp_lt_u32 s[66:67], 31, v1")
        e("v_cmp_lt_u32 vcc, 47, v1")
        e(f"v_mov_b32 v53, s{S_TAG}")
        e(f"v_mov_b32 v55, s{S_TAG}")
        e("v_lshlrev_b32 v8, 3, v1")
        for b in range(2):
            e(f"v_cndmask_b32 v{52+2*b}, v{144+b}, v{148+b}, s[64:65]")
        for b in range(2):
            e(f"v_cndmask_b32 v{52+2*b}, v{52+2*b}, v{152+b}, s[66:67]")
        for b in range(2):
            e(f"v_cndmask_b32 v{52+2*b}, v{52+2*b}, v{156+b}, vcc")
        e(f"s_lshl_b32 s64, s{S_HKV}, 14")
        e("s_lshl_b32 s65, s12, 12")
        e("s_add_u32 s64, s64, s65")
        e("s_lshl_b32 s65, s13, 9")
        e("s_add_u32 s64, s64, s65")
        e(f"s_add_u32 s64, s64, {QBUF}")
        e(f"s_add_u32 s65, s64, {8*16384}")
        e(f"buffer_store_dwordx2 v[52:53], v8, s[{R_WS}:{R_WS+3}], s64 offen sc1")
        e(f"buffer_store_dwordx2 v[54:55], v8, s[{R_WS}:{R_WS+3}], s65 offen sc1")
        self.lds_set(MISC + 24, f"s{S_TAG}")
        self.stamp(2)

    def q_gather(self):
        e = self.e
        e("v_lshlrev_b32 v8, 4, v1")
        e(f"s_lshl_b32 s13, s{S_GRP}, 14")
        e(f"s_lshl_b32 s64, s{S_HW}, 10")
        e("s_add_u32 s13, s13, s64")
        e(f"s_add_u32 s13, s13, {QBUF}")
        for k in range(1, 4): e(f"s_add_u32 s{64+k}, s13, {k*4096}")
        qld = [f"buffer_load_dwordx4 v[{24+4*k}:{27+4*k}], v8, s[{R_WS}:{R_WS+3}], s{64+k if k else 13} offen sc1" for k in range(4)]
        if self.qtrig:
            e("v_mov_b32 v41, v8")
            self.lds_wait(MISC + 48, "eq", 1, 2, 70)
            e("v_mov_b32 v8, v41")
            for l in qld: e(l)
        elif self.qsleep0:
            e(f"s_sleep {self.qsleep0}")
            for l in qld: e(l)
        else:
            e(qld[0])
        for k in range(4):
            L = self.lab("qp"); Lx = self.lab("qpx")
            if k == 1 and not self.qsleep0 and not self.qtrig:
                for l in qld[1:]: e(l)
            e.label(L)
            e("s_waitcnt vmcnt(0)")
            self.check_words([25 + 4 * k, 27 + 4 * k], 40, mant=False)
            e(f"s_cbranch_vccz {Lx}")
            e(f"s_sleep {self.qsleep}")
            e(qld[k])
            e(f"s_sub_u32 s{S_TO}, s{S_TO}, 1")
            e(f"s_cbranch_scc0 {L}")
            e("s_branch L_hfail")
            e.label(Lx)
        e("v_add_f32 v24, v24, v28")
        e("v_add_f32 v26, v26, v30")
        e("v_add_f32 v32, v32, v36")
        e("v_add_f32 v34, v34, v38")
        e("v_add_f32 v24, v24, v32")
        e("v_add_f32 v26, v26, v34")
        e("v_cvt_pk_bf16_f32 v24, v24, v26")
        e("v_lshlrev_b32 v8, 2, v1")
        e(f"s_lshl_b32 s64, s{S_HW}, 8")
        e("v_add_u32 v8, s64, v8")
        e(f"ds_write_b32 v8, v24 offset:{QL}")
        e("s_waitcnt lgkmcnt(0)")

    def stage_a(self):
        e = self.e
        FB, PB = 64, 128
        if self.latea == 1: self.lds_wait(MISC + 4, "ge", 5, 2)
        if self.latea >= 2: self.lds_wait(MISC + 32, "le", self.latea - 1, 4)
        self.winfl_cur = self.winfl2 if self.latea else self.winfl
        self.srd(R_W, P_WO, 4096 * 896)
        e(f"s_mul_i32 s64, s{S_HKV}, {512*896}")
        e(f"s_lshl_b32 s65, s{S_SPL}, 7")
        e("s_add_u32 s64, s64, s65")
        e(f"s_mul_i32 s65, s{S_HW}, {128*896}")
        e("s_add_u32 s64, s64, s65")
        e(f"s_lshl_b32 s65, s{S_HW}, 14")
        e(f"s_add_u32 s65, s65, {STG}")
        self.dma_voff(896, 7, 20)
        self.dma_loop(R_W, 20, 16, 64, 8 * 896, 65)
        e(f"s_lshl_b32 s64, s{S_HW}, 5")
        e(f"s_add_u32 s64, s64, {STG}")
        self.tr_addr(7, 64)
        if not self.claimlate:
            self.h_sync()
            self.tr_frags(16, 0, FB, 7)
            self.stamp(4)
        e(f"s_lshr_b32 s12, s{S_HW}, 1")
        e(f"s_and_b32 s13, s{S_HW}, 1")
        e("s_lshl_b32 s14, s12, 3")
        e(f"s_add_u32 s14, s14, s{S_HKV}")
        e("s_lshl_b32 s15, s14, 15")
        e("s_lshl_b32 s64, s13, 10")
        e("s_add_u32 s15, s15, s64")
        e(f"s_add_u32 s15, s15, {PBUF}")
        e("s_lshl_b32 s64, s13, 11")
        e("s_lshl_b32 s14, s14, 7")
        e("s_add_u32 s14, s14, s64")
        e(f"s_add_u32 s14, s14, {HBUF}")
        e("v_lshlrev_b32 v5, 4, v1")
        e("v_lshlrev_b32 v6, 3, v4")
        if self.hpriv:
            e("s_lshl_b32 s14, s12, 3")
            e(f"s_add_u32 s14, s14, s{S_HKV}")
            e("s_lshl_b32 s14, s14, 12")
            e("s_lshl_b32 s64, s13, 7")
            e("s_add_u32 s14, s14, s64")
            e(f"s_add_u32 s14, s14, {HB2}")
            e("v_lshlrev_b32 v6, 8, v4")
        e(f"s_mul_i32 s64, s12, {AVS}")
        e("s_lshl_b32 s65, s13, 9")
        e("s_add_u32 s64, s64, s65")
        e("v_lshlrev_b32 v7, 3, v1")
        e("v_add_u32 v7, s64, v7")
        e("v_lshlrev_b32 v18, 3, v1")
        if self.xcp:
            e("v_lshrrev_b32 v18, 4, v1")
            e(f"v_mul_u32_u24 v18, {YCP}, v18")
            e("v_lshl_add_u32 v18, v4, 3, v18")
        e("v_mov_b32 v19, 0xffffffc0")
        e(f"s_mul_i32 s52, s{S_HKV}, {448*8}")
        e(f"s_lshl_b32 s65, s{S_SPL}, 9")
        e("s_add_u32 s52, s52, s65")
        e(f"s_lshl_b32 s65, s{S_HW}, 7")
        e("s_add_u32 s52, s52, s65")
        e(f"s_add_u32 s52, s52, {YBUF}")
        e(f"s_add_u32 s53, s52, {4*YCP}")
        if self.stouch:
            e(f"buffer_load_dwordx2 v[24:25], v18, s[{R_WS}:{R_WS+3}], s52 offen sc1")
            if self.xcp: e(f"buffer_load_dwordx2 v[26:27], v18, s[{R_WS}:{R_WS+3}], s53 offen sc1")
            e("s_waitcnt vmcnt(0)")
        e("s_mov_b32 s68, 1")
        e("s_branch L_a_go")
        e.label("L_a_poll")
        e("s_mov_b32 s68, 0")
        self.stamp(5)
        self.stamp(6)
        NB = self.anb if self.anb else self.aspec
        IX = 16
        L = self.lab("asw"); Lz = self.lab("anl"); Li = self.lab("ais"); Lc = self.lab("ack")
        e("s_mov_b32 s69, 0xffff")
        e(f"s_mov_b32 s70, {0xffff if self.claimlate else 0}")
        e(f"s_mov_b32 s54, {1 if self.claimlate else 0}")
        e("v_mov_b32 v12, 0xff800000")
        for i in range(13, 18): e(f"v_mov_b32 v{i}, 0")
        e.label(L)
        e(f"buffer_load_dwordx2 v[10:11], v6, s[{R_WS}:{R_WS+3}], s14 offen sc1")
        for i in range(NB):
            r = PB + 4 * i
            e(f"s_ff1_i32_b32 s{IX+i}, s70")
            e(f"s_cmp_lt_i32 s{IX+i}, 0")
            e(f"s_cbranch_scc1 {Li}")
            e(f"s_lshl_b32 s64, s{IX+i}, 11")
            e(f"s_bitset0_b32 s70, s{IX+i}")
            e("s_add_u32 s64, s64, s15")
            e(f"buffer_load_dwordx4 v[{r}:{r+3}], v5, s[{R_WS}:{R_WS+3}], s64 offen sc1")
        e.label(Li)
        e("s_waitcnt vmcnt(0)")
        e(f"v_cmp_eq_u32 s[66:67], s{S_TAG}, v11")
        for i in range(NB):
            r = PB + 4 * i
            nx = self.lab("anx")
            e(f"s_cmp_lt_i32 s{IX+i}, 0")
            e(f"s_cbranch_scc1 {Lc}")
            e(f"v_readlane_b32 s64, v10, s{IX+i}")
            self.check_words([r, r + 2], 28)
            e(f"s_cbranch_vccnz {nx}")
            e(f"s_bitcmp1_b32 s66, s{IX+i}")
            e(f"s_cbranch_scc0 {nx}")
            e("v_max_f32 v28, s64, v12")
            e("v_sub_f32 v24, v12, v28")
            e("v_sub_f32 v26, s64, v28")
            e("v_exp_f32 v24, v24")
            e("v_exp_f32 v26, v26")
            e("v_mov_b32 v12, v28")
            e(f"s_bitset0_b32 s69, s{IX+i}")
            e("v_pk_mul_f32 v[14:15], v[14:15], v[24:25] op_sel_hi:[1,0]")
            e("v_pk_mul_f32 v[16:17], v[16:17], v[24:25] op_sel_hi:[1,0]")
            e("v_fma_f32 v13, v13, v24, v26")
            e(f"v_pk_fma_f32 v[14:15], v[{r}:{r+1}], v[26:27], v[14:15] op_sel_hi:[1,0,1]")
            e(f"v_pk_fma_f32 v[16:17], v[{r+2}:{r+3}], v[26:27], v[16:17] op_sel_hi:[1,0,1]")
            e.label(nx)
        e.label(Lc)
        if self.claimlate:
            Lw = self.lab("awd")
            e("s_cmp_eq_u32 s54, 0")
            e(f"s_cbranch_scc1 {Lw}")
            e("s_mov_b32 s54, 0")
            self.h_sync()
            self.tr_frags(16, 0, FB, 7)
            self.stamp(4)
            e.label(Lw)
        e("s_cmp_eq_u32 s69, 0")
        e("s_cbranch_scc1 L_a_got")
        e("s_and_b32 s70, s69, s66")
        e("s_bcnt1_i32_b32 s64, s69")
        e(f"s_cmp_le_u32 s64, {self.aspec}")
        e("s_cselect_b32 s70, s69, s70")
        e("s_cmp_lg_u32 s70, 0")
        e(f"s_cbranch_scc1 {Lz}")
        e(f"s_sleep {self.gsleep}")
        e.label(Lz)
        e(f"s_sub_u32 s{S_TO}, s{S_TO}, 1")
        e(f"s_cbranch_scc0 {L}")
        e("s_branch L_hfail")
        e.label("L_a_got")
        self.stamp(7)
        e.label("L_a_go")
        e("v_rcp_f32 v24, v13")
        e("v_pk_mul_f32 v[14:15], v[14:15], v[24:25] op_sel_hi:[1,0]")
        e("v_pk_mul_f32 v[16:17], v[16:17], v[24:25] op_sel_hi:[1,0]")
        e("v_cvt_pk_bf16_f32 v14, v14, v15")
        e("v_cvt_pk_bf16_f32 v15, v16, v17")
        e(f"ds_write_b64 v7, v[14:15] offset:{AV}")
        e("s_waitcnt lgkmcnt(0)")
        self.bar()
        self.gemv(16, PB + 64, AV, [(20, FB)])
        self.tagw(24, 20, 19)
        self.tagw(25, 21, 19)
        e("s_cmp_eq_u32 s68, 1")
        e("s_cbranch_scc1 L_a_poll")
        if self.xcp:
            e(f"buffer_store_dwordx2 v[24:25], v18, s[{R_WS}:{R_WS+3}], s52 offen sc1")
            e(f"buffer_store_dwordx2 v[24:25], v18, s[{R_WS}:{R_WS+3}], s53 offen sc1")
        else:
            e("s_mov_b64 exec, 0xffff")
            e(f"buffer_store_dwordx2 v[24:25], v18, s[{R_WS}:{R_WS+3}], s52 offen sc1")
        self.stamp(8)
        self.endpgm()

    def stage_b(self):
        e = self.e
        FG, FU, GB = 64, 120, 176
        UPO = 448 * 128
        self.srd(R_W, P_WG, 448 * 3584)
        self.srd(R_W2, P_WU, 448 * 3584)
        if self.wtouch:
            e(f"v_mul_u32_u24 v20, {7*3584}, v1")
            e("s_lshl_b32 s64, s12, 7")
            e(f"s_bitcmp1_b32 s{S_HW}, 1")
            Lw = self.lab("wt"); e(f"s_cbranch_scc1 {Lw}")
            e(f"s_bitcmp1_b32 s{S_HW}, 0")
            La = self.lab("wt"); e(f"s_cbranch_scc1 {La}")
            e(f"buffer_load_dword v21, v20, s[{R_W}:{R_W+3}], s64 offen nt")
            e(f"s_branch {Lw}")
            e.label(La)
            e(f"buffer_load_dword v21, v20, s[{R_W2}:{R_W2+3}], s64 offen nt")
            e.label(Lw)
        e(f"s_mul_i32 s64, s{S_HW}, 56")
        e("v_min_u32 v5, 55, v1")
        e("v_add_u32 v5, s64, v5")
        e("v_cmp_gt_u32 s[70:71], 56, v1")
        e("v_lshlrev_b32 v14, 2, v5")
        e(f"buffer_load_dword v16, v14, s[{R_X}:{R_X+3}], 0 offen")
        e(f"buffer_load_dword v17, v14, s[{R_X}:{R_X+3}], 0 offen offset:896")
        e("v_lshlrev_b32 v5, 4, v5")
        e("s_waitcnt vmcnt(0)")
        e("v_and_b32 v18, 0xffff0000, v16")
        e("v_and_b32 v19, 0xffff0000, v17")
        e("v_lshlrev_b32 v16, 16, v16")
        e("v_lshlrev_b32 v17, 16, v17")
        self.ybases()
        e(f"s_lshl_b32 s64, s{S_HW}, 4")
        e("v_mov_b32 v10, s64")
        e("v_and_b32 v11, 7, v1")
        e("v_lshlrev_b32 v11, 4, v11")
        e("v_lshlrev_b32 v12, 3, v1")
        if self.xcp:
            e("v_lshrrev_b32 v12, 4, v1")
            e(f"v_mul_u32_u24 v12, {GCP}, v12")
            e("v_lshl_add_u32 v12, v4, 3, v12")
        e("v_and_b32 v8, 16, v1")
        e("v_cmp_ne_u32 s[56:57], 0, v8")
        e("s_lshl_b32 s13, s12, 9")
        e(f"s_lshl_b32 s64, s{S_HW}, 7")
        e("s_add_u32 s13, s13, s64")
        e(f"s_add_u32 s13, s13, {GBUF}")
        e(f"s_add_u32 s58, s13, {4*GCP}")
        if self.stouch:
            e(f"buffer_load_dwordx2 v[24:25], v12, s[{R_WS}:{R_WS+3}], s13 offen sc1")
            if self.xcp: e(f"buffer_load_dwordx2 v[26:27], v12, s[{R_WS}:{R_WS+3}], s58 offen sc1")
            e("s_waitcnt vmcnt(0)")
        e(f"s_mov_b32 s14, {f2u(0.044715):#x}")
        e(f"s_mov_b32 s15, {f2u(112.0):#x}")
        e(f"v_mov_b32 v35, s{S_TAG}")
        def wload():
            self.srd(R_W, P_WG, 448 * 3584)
            if self.lateb == 1: self.lds_wait(MISC + 4, "ge", 5, 2)
            if self.lateb >= 2: self.lds_wait(MISC + 32, "le", self.lateb - 1, 4)
            self.winfl_cur = self.winfl2 if self.lateb else self.winfl
            e("s_waitcnt vmcnt(0)")
            self.dma_voff(3584, 7, 20)
            for m_, srd_ in enumerate((R_W, R_W2)):
                e("s_lshl_b32 s64, s12, 7")
                e(f"s_mul_i32 s65, s{S_HW}, {112*3584}")
                e("s_add_u32 s64, s64, s65")
                e(f"s_mul_i32 s65, s{S_HW}, {112*128}")
                e(f"s_add_u32 s65, s65, {STG + m_*UPO}")
                self.dma_loop(srd_, 20, 14, 64, 8 * 3584, 65)
        if self.claimlate: wload()
        e("s_mov_b32 s68, 1")
        e("s_branch L_b_go")
        e.label("L_b_poll")
        e("s_mov_b32 s68, 0")
        if not self.claimlate: wload()
        self.stamp(5)
        if self.gpos == 0: self.gate_all()
        self.h_sync()
        e(f"s_lshl_b32 s64, s{S_HW}, 5")
        e(f"s_add_u32 s64, s64, {STG}")
        self.tr_addr(7, 64)
        self.tr_frags(14, 0, FG, 7)
        e(f"v_add_u32 v2, {UPO}, v2")
        self.tr_frags(14, 0, FU, 7)
        self.stamp(4)
        if self.gpos == 1: self.gate_all()
        self.stamp(6)
        self.sweep_all([f"buffer_load_dwordx4 v[{GB+4*k}:{GB+4*k+3}], v5, s[{R_WS}:{R_WS+3}], s{40+k} offen sc1" for k in range(8)],
                       [GB + 2 * i for i in range(16)], 240)
        self.stamp(7)
        e.label("L_b_go")
        for k in range(1, 8):
            for j in (0, 2):
                a = GB + j if k == 1 else 20 + j
                e(f"v_pk_add_f32 v[{20+j}:{21+j}], v[{a}:{a+1}], v[{GB+4*k+j}:{GB+4*k+j+1}]")
        def rnd4():
            e("v_cvt_pk_bf16_f32 v24, v20, v21")
            e("v_cvt_pk_bf16_f32 v25, v22, v23")
            e("v_lshlrev_b32 v20, 16, v24")
            e("v_and_b32 v21, 0xffff0000, v24")
            e("v_lshlrev_b32 v22, 16, v25")
            e("v_and_b32 v23, 0xffff0000, v25")
        rnd4()
        e("v_pk_add_f32 v[20:21], v[20:21], v[16:17]")
        e("v_pk_add_f32 v[22:23], v[22:23], v[18:19]")
        rnd4()
        for b in range(2): e(f"v_readfirstlane_b32 s{66+b}, v{20+b}")
        e("v_pk_add_f32 v[36:37], v[20:21], s[66:67] neg_lo:[0,1] neg_hi:[0,1]")
        e("v_pk_add_f32 v[38:39], v[22:23], s[66:67] neg_lo:[0,1] neg_hi:[0,1]")
        for b in range(2): e(f"v_mov_b32 v{24+4*b}, s{66+b}")
        for b in range(2): e(f"v_add_f32 v{25+4*b}, v{36+b}, v{38+b}")
        for b in range(2): e(f"v_mul_f32 v{26+4*b}, v{36+b}, v{36+b}")
        for b in range(2): e(f"v_fmac_f32 v{26+4*b}, v{38+b}, v{38+b}")
        red = [25, 29, 26, 30]
        for v in red: e(f"v_cndmask_b32 v{v}, 0, v{v}, s[70:71]")
        self.row_reduce(red)
        for v in red: e(f"v_add_f32_dpp v{v}, v{v}, v{v} row_bcast:15 row_mask:0xa bank_mask:0xf")
        for v in red: e(f"v_add_f32_dpp v{v}, v{v}, v{v} row_bcast:31 row_mask:0xc bank_mask:0xf")
        e("s_mov_b64 exec, 0x8000000000000000") if False else None
        e("s_mov_b32 exec_lo, 0")
        e("s_mov_b32 exec_hi, 0x80000000")
        e(f"ds_write_b96 v10, v[24:26] offset:{STATS}")
        e(f"ds_write_b96 v10, v[28:30] offset:{STATS+64}")
        e("s_mov_b64 exec, -1")
        e("s_waitcnt lgkmcnt(0)")
        self.bar()
        e(f"ds_read_b96 v[24:26], v11 offset:{STATS}")
        e("s_waitcnt lgkmcnt(0)")
        e(f"v_mul_f32 v27, {f2u(1.0/112):#x}, v25")
        e("v_add_f32 v24, v24, v27")
        e("v_fma_f32 v26, -v27, v25, v26")
        e("v_add_f32_dpp v28, v24, v24 quad_perm:[1,0,3,2] row_mask:0xf bank_mask:0xf")
        e("v_add_f32_dpp v28, v28, v28 quad_perm:[2,3,0,1] row_mask:0xf bank_mask:0xf")
        e(f"v_mul_f32 v28, {f2u(0.25):#x}, v28")
        e("v_sub_f32 v24, v24, v28")
        e("v_mul_f32 v24, v24, v24")
        e("v_fmac_f32 v26, s15, v24")
        e("v_add_f32_dpp v26, v26, v26 quad_perm:[1,0,3,2] row_mask:0xf bank_mask:0xf")
        e("v_add_f32_dpp v26, v26, v26 quad_perm:[2,3,0,1] row_mask:0xf bank_mask:0xf")
        e(f"v_mul_f32 v26, {f2u(1.0/448):#x}, v26")
        e("v_cvt_pk_bf16_f32 v27, v28, v26")
        e("v_and_b32 v26, 0xffff0000, v27")
        e("v_lshlrev_b32 v28, 16, v27")
        e(f"v_add_f32 v26, {f2u(1e-5):#x}, v26")
        e("v_readlane_b32 s52, v28, 0")
        e("v_readlane_b32 s53, v28, 4")
        self.rnd(26)
        e("v_pk_add_f32 v[20:21], v[20:21], s[52:53] neg_lo:[0,1] neg_hi:[0,1]")
        e("v_sqrt_f32 v26, v26")
        e("v_pk_add_f32 v[22:23], v[22:23], s[52:53] neg_lo:[0,1] neg_hi:[0,1]")
        self.rnd(26)
        e("v_cvt_pk_bf16_f32 v24, v20, v21")
        e("v_rcp_f32 v26, v26")
        e("v_cvt_pk_bf16_f32 v25, v22, v23")
        e("v_lshlrev_b32 v20, 16, v24")
        e("v_readlane_b32 s54, v26, 0")
        e("v_readlane_b32 s55, v26, 4")
        e("v_and_b32 v21, 0xffff0000, v24")
        e("v_lshlrev_b32 v22, 16, v25")
        e("v_and_b32 v23, 0xffff0000, v25")
        e("v_pk_mul_f32 v[20:21], v[20:21], s[54:55]")
        e("v_pk_mul_f32 v[22:23], v[22:23], s[54:55]")
        for b in range(2): e(f"v_cvt_pk_bf16_f32 v{20+b}, v{20+b}, v{22+b}")
        e(f"ds_write_b32 v14, v20 offset:{AV}")
        e(f"ds_write_b32 v14, v21 offset:{AV+AVS}")
        e("s_waitcnt lgkmcnt(0)")
        self.bar()
        self.gemv(14, GB, AV, [(24, FG), (28, FU)])
        e("v_cndmask_b32 v24, v24, v25, s[56:57]")
        e("v_cndmask_b32 v29, v28, v29, s[56:57]")
        e("v_cvt_pk_bf16_f32 v29, v24, v29")
        e("v_lshlrev_b32 v28, 16, v29")
        e("v_and_b32 v29, 0xffff0000, v29")
        k0 = math.sqrt(2.0 / math.pi)
        c1 = f2u(-2.0 * k0 * math.log2(math.e))
        e("v_mul_f32 v32, v28, v28")
        e("v_mul_f32 v32, v32, v28")
        e("v_fma_f32 v32, v32, s14, v28")
        e(f"v_mul_f32 v32, {c1:#x}, v32")
        e("v_exp_f32 v32, v32")
        e("v_add_f32 v32, 1.0, v32")
        e("v_rcp_f32 v32, v32")
        e("v_mul_f32 v32, v32, v28")
        self.rnd(32)
        e("v_mul_f32 v32, v32, v29")
        e("v_mov_b32 v33, v32")
        e("v_permlane16_swap_b32 v32, v33")
        e("v_cvt_pk_bf16_f32 v34, v32, v33")
        e("s_cmp_eq_u32 s68, 1")
        e("s_cbranch_scc1 L_b_poll")
        if self.xcp:
            e(f"buffer_store_dwordx2 v[34:35], v12, s[{R_WS}:{R_WS+3}], s13 offen sc1")
            e(f"buffer_store_dwordx2 v[34:35], v12, s[{R_WS}:{R_WS+3}], s58 offen sc1")
        else:
            e("s_mov_b64 exec, 0xffff")
            e(f"buffer_store_dwordx2 v[34:35], v12, s[{R_WS}:{R_WS+3}], s13 offen sc1")
        self.stamp(8)
        self.endpgm()

    def stage_c(self):
        e = self.e
        F0, F1, GB = 64, 120, 176
        self.srd(R_W, P_WD, 1792 * 896)
        self.srd(R_W2, P_OUT, 2 * 448 * 2)
        if self.wtouch:
            e(f"v_mul_u32_u24 v20, {28*896}, v1")
            e("s_lshl_b32 s64, s12, 6")
            e(f"s_cmp_lg_u32 s{S_HW}, 0")
            Lw = self.lab("wt"); e(f"s_cbranch_scc1 {Lw}")
            e(f"buffer_load_dword v21, v20, s[{R_W}:{R_W+3}], s64 offen nt")
            e.label(Lw)
        e(f"s_mul_i32 s65, s{S_HW}, {STGW}")
        e(f"s_add_u32 s65, s65, {STG}")
        self.tr_addr(6, 65)
        e("v_and_b32 v5, 31, v1")
        e("v_lshrrev_b32 v6, 5, v1")
        e("s_lshl_b32 s64, s12, 5")
        e("v_add_u32 v7, s64, v5")
        e("v_mul_u32_u24 v14, 448, v6")
        e("v_add_lshl_u32 v14, v14, v7, 1")
        e(f"buffer_load_ushort v16, v14, s[{R_X}:{R_X+3}], 0 offen")
        if self.otouch: e(f"buffer_load_ushort v18, v14, s[{R_W2}:{R_W2+3}], 0 offen")
        e("v_lshlrev_b32 v7, 3, v7")
        e("v_lshl_add_u32 v7, v6, 2, v7")
        e("s_waitcnt vmcnt(0)")
        e("v_lshlrev_b32 v16, 16, v16")
        e("v_lshlrev_b32 v10, 4, v1")
        e("v_lshlrev_b32 v11, 4, v5")
        e(f"s_mul_i32 s13, s{S_HW}, 3584")
        e(f"s_add_u32 s13, s13, {GBUF}")
        self.xcc(64, GCP)
        e("s_add_u32 s13, s13, s64")
        e(f"s_mul_i32 s14, s{S_HW}, {2*AVS}")
        e("v_lshlrev_b32 v12, 2, v1")
        e("v_add_u32 v12, s14, v12")
        e("v_lshlrev_b32 v13, 2, v5")
        e("v_add_u32 v13, s14, v13")
        e("v_add_u32 v3, s14, v3")
        e(f"s_lshl_b32 s64, s{S_HW}, 8")
        e("v_lshlrev_b32 v18, 3, v1")
        e("v_add_u32 v18, s64, v18")
        e("v_lshlrev_b32 v19, 3, v5")
        e("v_lshl_add_u32 v19, v6, 2, v19")
        def wload():
            if self.latec == 1: self.lds_wait(MISC + 4, "ge", 5, 2)
            if self.latec >= 2: self.lds_wait(MISC + 32, "le", self.latec - 1, 4)
            self.winfl_cur = self.winfl2 if self.latec else self.winfl
            e("s_waitcnt vmcnt(0)")
            e(f"s_mul_i32 s64, s{S_HW}, {448*896}")
            e("s_lshl_b32 s65, s12, 6")
            e("s_add_u32 s64, s64, s65")
            e(f"s_mul_i32 s65, s{S_HW}, {STGW}")
            e(f"s_add_u32 s65, s65, {STG}")
            self.dma_voff(896, 6, 20)
            self.dma_loop(R_W, 20, 28, 64, 16 * 896, 65)
        if self.claimlate: wload()
        e("v_mov_b32 v17, 0")
        e("s_mov_b32 s64, 0x05040100")
        e("s_mov_b32 s65, 0x07060302")
        e("s_mov_b32 s68, 1")
        e("s_branch L_c_go")
        e.label("L_c_poll")
        e("s_mov_b32 s68, 0")
        if not self.claimlate: wload()
        self.stamp(5)
        if self.gpos == 0: self.gate_all()
        e("s_waitcnt vmcnt(0)")
        self.tr_frags(14, 0, F0, 6)
        self.tr_frags(14, 32, F1, 6)
        self.stamp(4)
        if self.gpos == 1: self.gate_all()
        self.stamp(6)
        Ln = self.lab("cnres")
        e(f"s_cmp_lg_u32 s{S_HW}, 0")
        e(f"s_cbranch_scc1 {Ln}")
        self.ybases()
        self.sweep_all([f"buffer_load_dword v{GB+k}, v7, s[{R_WS}:{R_WS+3}], s{40+k} offen sc1" for k in range(8)],
                       [GB + k for k in range(8)], 24)
        for k in range(1, 8): e(f"v_add_f32 v17, v{GB if k == 1 else 17}, v{GB+k}")
        self.rnd(17)
        e("v_add_f32 v17, v17, v16")
        self.rnd(17)
        e.label(Ln)
        e("s_mov_b32 s64, 0x05040100")
        e("s_mov_b32 s65, 0x07060302")
        sc = [24, 48, 232][:self.nset]
        def cput(i):
            g = sc[i]
            for k in range(4):
                e(f"v_perm_b32 v{g+1+4*k}, v{g+2+4*k}, v{g+4*k}, s64")
                e(f"v_perm_b32 v{g+3+4*k}, v{g+2+4*k}, v{g+4*k}, s65")
                a = 12 if k < 3 else 13
                e(f"ds_write_b32 v{a}, v{g+1+4*k} offset:{AV+k*256}")
                e(f"ds_write_b32 v{a}, v{g+3+4*k} offset:{AV+AVS+k*256}")
        self.sweep_pipe([([f"buffer_load_dwordx4 v[{g+4*k}:{g+3+4*k}], v{10 if k < 3 else 11}, s[{R_WS}:{R_WS+3}], s13 offen offset:{k*1024} sc1" for k in range(4)],
                          [g + 1 + 2 * i for i in range(8)]) for g in sc], 248, False, cput, "L_c_go")
        self.gemv(14, GB, AV, [(40, F0), (44, F1)], ahead=7)
        e("s_mov_b64 exec, 0xffff")
        e(f"ds_write_b64 v18, v[40:41] offset:{RED}")
        e(f"ds_write_b64 v18, v[44:45] offset:{RED+128}")
        e("s_mov_b64 exec, -1")
        e("s_waitcnt lgkmcnt(0)")
        self.bar()
        Le = self.lab("cend")
        for w in range(4): e(f"ds_read_b32 v{20+w}, v19 offset:{RED+256*w}")
        e(f"s_cmp_eq_u32 s68, 1")
        e(f"s_cselect_b32 s64, 0, s{S_HW}")
        e(f"s_cmp_lg_u32 s64, 0")
        e(f"s_cbranch_scc1 {Le}")
        e("s_waitcnt lgkmcnt(0)")
        e("v_add_f32 v20, v20, v21")
        e("v_add_f32 v22, v22, v23")
        e("v_add_f32 v20, v20, v22")
        self.rnd(20)
        e("v_add_f32 v20, v20, v17")
        e("v_cvt_pk_bf16_f32 v20, v20, v20")
        e("s_cmp_eq_u32 s68, 1")
        e("s_cbranch_scc1 L_c_poll")
        e(f"buffer_store_short v20, v14, s[{R_W2}:{R_W2+3}], 0 offen")
        if self.dbgtime:
            self.dbgt(35)
            e("s_waitcnt vmcnt(0)")
            e("v_lshlrev_b32 v254, 2, v1")
            e("s_mov_b64 exec, 0xf")
            e("buffer_load_dword v253, v254, s[92:95], 0 offen offset:128 sc1")
            e("s_waitcnt vmcnt(0)")
            e("buffer_atomic_umax v253, v254, s[92:95], 0 offen offset:16 sc1")
            e("s_mov_b64 exec, -1")
        e("s_cmp_lg_u32 s12, 0")
        e(f"s_cbranch_scc1 {Le}")
        e(f"v_mov_b32 v21, s{S_TAG}")
        e("s_mov_b64 exec, 1")
        e(f"buffer_store_dword v21, off, s[{R_WS}:{R_WS+3}], 0 offset:{EPOCH} sc1")
        e.label(Le)
        self.stamp(8)
        self.endpgm()

    def build(self):
        e = self.e
        e("s_cmp_ge_u32 s2, 256")
        e("s_cbranch_scc1 L_exit")
        e("s_load_dwordx16 s[16:31], s[0:1], 0")
        e("s_load_dwordx8 s[32:39], s[0:1], 64")
        self.stamp_init()
        e("v_lshrrev_b32 v2, 6, v0")
        e("v_and_b32 v1, 63, v0")
        e(f"v_readfirstlane_b32 s{S_WAVE}, v2")
        self.stamp(0)
        e(f"s_and_b32 s{S_HW}, s{S_WAVE}, 3")
        e(f"s_cmp_lt_u32 s{S_WAVE}, 4")
        e("s_cbranch_scc1 L_hpath")
        self.s_path()
        e.label("L_hpath")
        self.in_h = True
        e(f"s_lshr_b32 s{S_GRP}, s2, 4")
        e(f"s_and_b32 s{S_SPL}, s2, 15")
        e(f"s_lshr_b32 s{S_B}, s2, 7")
        e(f"s_and_b32 s{S_HKV}, s{S_GRP}, 7")
        e(f"s_mov_b32 s{S_TO}, {TIMEOUT}")
        e("s_waitcnt lgkmcnt(0)")
        self.srd(R_WS, P_WS, WS_SIZE)
        self.srd(R_X, P_X, 1792)
        if self.noq: e("s_branch L_hdone")
        e("s_setprio 2")
        e(f"s_cmp_lg_u32 s{S_HW}, 0")
        e("s_cbranch_scc1 L_hnq")
        self.q_path()
        e("s_branch L_hq")
        e.label("L_hnq")
        if self.dbgtime:
            Ld = self.lab("dt"); e(f"s_cmp_lg_u32 s{S_HW}, 3"); e(f"s_cbranch_scc1 {Ld}")
            self.dbgt(32, True); self.dbgt(33)
            e.label(Ld)
        if self.tstride:
            Lt = self.lab("notouch")
            e(f"s_cmp_eq_u32 s{S_HW}, 3")
            e(f"s_cbranch_scc1 {Lt}")
            e(f"s_cmp_eq_u32 s{S_HW}, 1")
            e(f"s_cselect_b32 s{R_K}, s{P_K}, s{P_V}")
            e(f"s_cselect_b32 s{R_K+1}, s{P_K+1}, s{P_V+1}")
            e(f"s_mov_b32 s{R_K+2}, {1 << 28}")
            e(f"s_mov_b32 s{R_K+3}, 0x20000")
            e(f"v_lshlrev_b32 v11, {self.tstride}, v1")
            e("s_lshl_b32 s64, s2, 20")
            n = (1 << 20) >> self.tstride
            if n < 64: e(f"s_mov_b64 exec, {(1 << n) - 1:#x}")
            e(f"buffer_load_dword v12, v11, s[{R_K}:{R_K+3}], s64 offen nt")
            e("s_mov_b64 exec, -1")
            e.label(Lt)
        e(f"buffer_load_dword v10, off, s[{R_WS}:{R_WS+3}], 0 offset:{EPOCH} sc1")
        self.h_consts()
        e("s_waitcnt vmcnt(0)")
        e("v_readfirstlane_b32 s64, v10")
        self.set_tag(64)
        self.lds_wait(MISC + 24, "eq", f"s{S_TAG}", 2)
        e.label("L_hq")
        self.q_gather()
        e("s_setprio 0")
        e("s_barrier")
        self.stamp(3)
        e(f"s_cmp_lg_u32 s{S_HW}, 1")
        e("s_cbranch_scc1 L_sfinal_back")
        e("s_mov_b32 s68, 1")
        e("s_branch L_sfinal")
        e.label("L_sfinal_back")
        if self.noroles: e("s_branch L_hdone")
        e(f"s_cmp_lg_u32 s{S_HW}, 0")
        e("s_cbranch_scc1 L_rwait")
        if self.ns:
            e("s_mov_b32 s12, 98")
            e(f"s_cmp_eq_u32 s{S_SPL}, 15")
            e("s_cbranch_scc1 L_rpost0")
        if self.claimlate: self.lds_wait(MISC + 4, "ge", 5 if self.claimlate == 1 else 1, 2)
        else: self.lds_wait(MISC + 32, "le", self.trig, 8)
        self.srd(R_W, P_DBG, 256)
        if self.peek:
            e("s_mov_b64 exec, 1")
            e(f"buffer_load_dword v10, off, s[{R_W}:{R_W+3}], 0 offset:128 sc1")
            e("s_waitcnt vmcnt(0)")
            e("s_mov_b64 exec, -1")
            e("v_readfirstlane_b32 s12, v10")
            e("s_cmp_ge_u32 s12, 98")
            e("s_cbranch_scc1 L_rpost0")
        if self.rorder == 5:
            e(f"s_mul_i32 s64, s{S_HKV}, {CNTS}")
            e(f"s_add_u32 s64, s64, {CNTB + 2048}")
            e("s_mov_b32 s13, 1")
            e(f"s_atomic_add s13, s[{P_WS}:{P_WS+1}], s64 glc")
            e(f"s_mul_i32 s12, s{S_HKV}, 7")
            e("s_add_u32 s12, s12, 42")
            e("s_waitcnt lgkmcnt(0)")
            e("s_add_u32 s12, s12, s13")
            e("s_cmp_lt_u32 s13, 7")
            e("s_cbranch_scc1 L_rpost0")
            e("s_sub_u32 s13, s13, 7")
            e(f"s_lshl_b32 s64, s13, 3")
            e(f"s_add_u32 s64, s64, s{S_HKV}")
            e("s_add_u32 s12, s64, 14")
            e("s_cmp_lt_u32 s64, 28")
            e("s_cbranch_scc1 L_rpost0")
            e("s_sub_u32 s12, s64, 28")
            e("s_cmp_lt_u32 s12, 14")
            e("s_cbranch_scc1 L_rpost0")
            e("s_mov_b32 s12, 98")
        elif self.satom:
            e("s_mov_b32 s12, 1")
            e(f"s_atomic_add s12, s[{P_DBG}:{P_DBG+1}], 0x0 glc")
            e("s_waitcnt lgkmcnt(0)")
        else:
            e("v_mov_b32 v10, 1")
            e("s_mov_b64 exec, 1")
            e(f"buffer_atomic_add v10, off, s[{R_W}:{R_W+3}], 0 sc0 sc1")
            e("s_waitcnt vmcnt(0)")
            e("s_mov_b64 exec, -1")
            e("v_readfirstlane_b32 s12, v10")
        if self.rorder == 3:
            e("s_add_u32 s12, s12, 42")
            e("s_cmp_lt_u32 s12, 98")
            e("s_cbranch_scc1 L_rpost")
            self.lds_wait(MISC + 32, "le", self.trig2, 4)
            e("v_mov_b32 v10, 1")
            e("s_mov_b64 exec, 1")
            e(f"buffer_atomic_add v10, off, s[{R_W}:{R_W+3}], 0 offset:128 sc0 sc1")
            e("s_waitcnt vmcnt(0)")
            e("s_mov_b64 exec, -1")
            e("v_readfirstlane_b32 s12, v10")
            e("s_add_u32 s12, s12, 14")
            e("s_cmp_lt_u32 s12, 42")
            e("s_cbranch_scc1 L_rpost")
            e("s_sub_u32 s12, s12, 42")
            e("s_cmp_lt_u32 s12, 14")
            e("s_cbranch_scc1 L_rpost")
            e("s_mov_b32 s12, 98")
            e.label("L_rpost")
        if self.peek:
            e("s_cmp_lg_u32 s12, 97")
            e("s_cbranch_scc1 L_rpost0")
            e("v_mov_b32 v10, 98")
            e("s_mov_b64 exec, 1")
            e(f"buffer_store_dword v10, off, s[{R_W}:{R_W+3}], 0 offset:128 sc1")
            e("s_mov_b64 exec, -1")
        e.label("L_rpost0")
        e("s_add_u32 s12, s12, 1")
        self.lds_set(MISC + 16, "s12")
        e("s_branch L_rgot")
        e.label("L_rwait")
        if self.boost and self.btrig:
            Lb = self.lab("brk")
            e(f"s_cmp_lg_u32 s{S_HW}, 2")
            e(f"s_cbranch_scc1 {Lb}")
            self.lds_wait(MISC + 32, "le", self.btrig, 8)
            self.srd(R_W, P_DBG, 256)
            e("v_mov_b32 v10, 1")
            e("s_mov_b64 exec, 1")
            e(f"buffer_atomic_add v10, off, s[{R_W}:{R_W+3}], 0 offset:128 sc0 sc1")
            e("s_waitcnt vmcnt(0)")
            e(f"ds_write_b32 v8, v10 offset:{MISC+28}")
            e("s_mov_b64 exec, -1")
            e.label(Lb)
        if self.stouch:
            Lt = self.lab("pt")
            e(f"s_cmp_lg_u32 s{S_HW}, 3")
            e(f"s_cbranch_scc1 {Lt}")
            self.lds_wait(MISC + 32, "le", self.trig, 8)
            e("s_lshl_b32 s64, s2, 11")
            e(f"s_add_u32 s64, s64, {PBUF}")
            e("s_lshl_b32 s65, s2, 3")
            e(f"s_add_u32 s65, s65, {HBUF}")
            e("s_mov_b64 exec, 1")
            e(f"buffer_load_dword v10, off, s[{R_WS}:{R_WS+3}], s64 sc1")
            e(f"buffer_load_dword v11, off, s[{R_WS}:{R_WS+3}], s65 sc1")
            e("s_mov_b64 exec, -1")
            e("s_waitcnt vmcnt(0)")
            e.label(Lt)
        if self.fb:
            Lx = self.lab("fbx"); L = self.lab("fb"); Lw = self.lab("fbw")
            e(f"s_cmp_lg_u32 s{S_HW}, 2")
            e(f"s_cbranch_scc1 {Lx}")
            e(f"s_mul_i32 s12, s{S_GRP}, {CNTS}")
            e(f"s_add_u32 s12, s12, {CNTB}")
            e("s_mov_b32 s13, 0x7fff")
            e("s_mov_b32 s14, 0")
            e("v_mov_b32 v8, 0")
            e.label(L)
            e(f"ds_read_b32 v9, v8 offset:{MISC+32}")
            e("s_waitcnt lgkmcnt(0)")
            e("v_readfirstlane_b32 s64, v9")
            e("s_cmp_lt_u32 s64, s13")
            e(f"s_cbranch_scc1 {Lw}")
            e("s_sleep 2")
            e(f"s_sub_u32 s{S_TO}, s{S_TO}, 1")
            e(f"s_cbranch_scc0 {L}")
            e("s_branch L_hfail")
            e.label(Lw)
            e("s_sub_u32 s65, s13, s64")
            e("s_cmp_eq_u32 s13, 0x7fff")
            e("s_cselect_b32 s65, 1, s65")
            e("s_mov_b32 s13, s64")
            e("s_mov_b32 s64, s65")
            e(f"s_atomic_add s64, s[{P_WS}:{P_WS+1}], s12 glc")
            e("s_lshl_b32 s65, s65, 4")
            e("s_add_u32 s14, s14, s65")
            e("s_waitcnt lgkmcnt(0)")
            e("s_sub_u32 s64, s64, s14")
            e("s_mov_b32 s65, 0")
            e(f"s_cmp_lt_i32 s64, {self.fbl - 16}")
            e("s_cselect_b32 s65, 1, s65")
            e(f"s_cmp_ge_i32 s64, {-self.fbl}")
            e("s_cselect_b32 s65, 2, s65")
            e("v_mov_b32 v9, s65")
            e(f"ds_write_b32 v8, v9 offset:{MISC+28}")
            e(f"s_cmp_gt_u32 s13, {self.fbend}")
            e(f"s_cbranch_scc1 {L}")
            e.label(Lx)
        self.lds_wait(MISC + 16, "lg", 0, 2 if self.claimlate else 8, 12)
        e.label("L_rgot")
        e("s_sub_u32 s12, s12, 1")
        e("s_cmp_ge_u32 s12, 98")
        if self.rorder == 2:
            e("s_cmp_ge_u32 s12, 42")
            e("s_cbranch_scc1 L_rord")
            e("s_add_u32 s12, s12, 14")
            e("s_cmp_lt_u32 s12, 42")
            e("s_cbranch_scc1 L_rord")
            e("s_sub_u32 s12, s12, 42")
            e.label("L_rord")
            e("s_cmp_ge_u32 s12, 98")
        if self.rorder == 1:
            e("s_cbranch_scc1 L_rord")
            e("s_sub_u32 s12, 97, s12")
            e.label("L_rord")
            e("s_cmp_ge_u32 s12, 98")
        if self.diag:
            e(f"s_mov_b32 s{ST0+22}, s12")
        e("s_cbranch_scc1 L_hdone")
        self.h_consts()
        e("s_cmp_lt_u32 s12, 14")
        e("s_cbranch_scc0 L_notc")
        self.stage_c()
        e.label("L_notc")
        e("s_sub_u32 s12, s12, 14")
        e("s_cmp_lt_u32 s12, 28")
        e("s_cbranch_scc0 L_notb")
        self.stage_b()
        e.label("L_notb")
        e("s_sub_u32 s12, s12, 28")
        e(f"s_mul_i32 s{S_HKV}, s12, 37")
        e(f"s_lshr_b32 s{S_HKV}, s{S_HKV}, 8")
        e(f"s_mul_i32 s64, s{S_HKV}, 7")
        e(f"s_sub_u32 s{S_SPL}, s12, s64")
        self.stage_a()
        e.label("L_hfail")
        e.label("L_hdone")
        self.endpgm()
        e.label("L_exit")
        e("s_endpgm")
        return e.text()

HEAD = """; Pre-LN GQA decode attention + GEGLU FFN in one persistent launch: 256 workgroups of 8 waves, one per CU.
;
; @launch grid=(256,1,1) block=(512,1,1) lds={lds}
.amdgcn_target "amdgcn-amd-amdhsa--gfx950"
.text
.globl {name}
.p2align 8
.type {name},@function
{name}:
"""
TAIL = """.section .rodata,"a"
.p2align 6
.amdhsa_kernel {name}
  .amdhsa_next_free_vgpr 256
  .amdhsa_next_free_sgpr 102
  .amdhsa_accum_offset 256
  .amdhsa_group_segment_fixed_size 0
  .amdhsa_kernarg_size 96
  .amdhsa_user_sgpr_count 2
  .amdhsa_user_sgpr_kernarg_segment_ptr 1
  .amdhsa_system_sgpr_workgroup_id_x 1
.end_amdhsa_kernel
"""

def make(path, **kw):
    global YBUF, GBUF
    if kw.get("xcp"): YBUF, GBUF = 0xc0000, 0x100000
    g = Gen(**kw)
    body = g.build()
    if g.hf != "sc1": body = body.replace(" sc1\n", f" {g.hf}\n").replace("sc0 sc0", "sc0")
    open(path, "w").write(HEAD.format(lds=LDS_SIZE, name=NAME) + body + TAIL.format(name=NAME))
    return g

if __name__ == "__main__":
    import argparse
    ap = argparse.ArgumentParser()
    ap.add_argument("out")
    ap.add_argument("--diag", action="store_true")
    ap.add_argument("--npro", type=int, default=40)
    ap.add_argument("--kvflags", default="nt")
    ap.add_argument("--wflags", default="nt")
    ap.add_argument("--qflags", default="nt")
    ap.add_argument("--noroles", action="store_true")
    ap.add_argument("--athr", type=int, default=13)
    ap.add_argument("--gsleep", type=int, default=4)
    ap.add_argument("--winfl", type=int, default=6)
    ap.add_argument("--dist", type=int, default=12)
    ap.add_argument("--thr", type=int, default=6)
    ap.add_argument("--vflags", default=None)
    ap.add_argument("--rot", type=int, default=2)
    ap.add_argument("--nt", type=int, default=32)
    ap.add_argument("--thrp", type=int, default=6)
    ap.add_argument("--npl", type=int, default=40)
    ap.add_argument("--gthr", type=int, default=32)
    ap.add_argument("--psleep", type=int, default=0)
    ap.add_argument("--hf", default="sc1")
    ap.add_argument("--nset", type=int, default=1)
    ap.add_argument("--pgap", type=int, default=2)
    ap.add_argument("--thr2", type=int, default=9)
    ap.add_argument("--nl2", type=int, default=0)
    ap.add_argument("--lateb", type=int, default=1)
    ap.add_argument("--latec", type=int, default=1)
    ap.add_argument("--winfl2", type=int, default=8)
    ap.add_argument("--qsleep", type=int, default=8)
    ap.add_argument("--qsleep0", type=int, default=32)
    ap.add_argument("--latea", type=int, default=0)
    ap.add_argument("--tstride", type=int, default=0)
    ap.add_argument("--otouch", type=int, default=0)
    ap.add_argument("--seq", type=int, default=1)
    ap.add_argument("--wtouch", type=int, default=0)
    ap.add_argument("--gpos", type=int, default=1)
    ap.add_argument("--dbgtime", type=int, default=0)
    ap.add_argument("--trig2", type=int, default=1)
    ap.add_argument("--fb", type=int, default=0)
    ap.add_argument("--fbhi", type=int, default=7)
    ap.add_argument("--fblo", type=int, default=5)
    ap.add_argument("--fbl", type=int, default=5)
    ap.add_argument("--fbend", type=int, default=3)
    ap.add_argument("--ns", type=int, default=0)
    ap.add_argument("--rp", type=int, default=0)
    ap.add_argument("--xcp", type=int, default=0)
    ap.add_argument("--stouch", type=int, default=0)
    ap.add_argument("--qtrig", type=int, default=24)
    ap.add_argument("--boost", type=int, default=0)
    ap.add_argument("--bhi", type=int, default=9)
    ap.add_argument("--btrig", type=int, default=0)
    ap.add_argument("--fbdiv", type=int, default=1)
    ap.add_argument("--claimlate", type=int, default=0)
    ap.add_argument("--anb", type=int, default=0)
    ap.add_argument("--peek", type=int, default=0)
    ap.add_argument("--satom", type=int, default=0)
    ap.add_argument("--hpriv", type=int, default=0)
    ap.add_argument("--rorder", type=int, default=1)
    ap.add_argument("--nosoft", action="store_true")
    ap.add_argument("--noq", action="store_true")
    ap.add_argument("--trig", type=int, default=3)
    ap.add_argument("--aspec", type=int, default=6)
    a = ap.parse_args()
    g = make(a.out, diag=a.diag, npro=a.npro, kvflags=a.kvflags, wflags=a.wflags, qflags=a.qflags, noroles=a.noroles, athr=a.athr, gsleep=a.gsleep, winfl=a.winfl, dist=a.dist, nosoft=a.nosoft, noq=a.noq, trig=a.trig, aspec=a.aspec, thr=a.thr, vflags=a.vflags, rot=a.rot, nt=a.nt, thrp=a.thrp, npl=a.npl, gthr=a.gthr, psleep=a.psleep, hf=a.hf, nset=a.nset, pgap=a.pgap, thr2=a.thr2, nl2=a.nl2, lateb=a.lateb, latec=a.latec, winfl2=a.winfl2, qsleep=a.qsleep, qsleep0=a.qsleep0, latea=a.latea, rorder=a.rorder, tstride=a.tstride, otouch=a.otouch, seq=a.seq, wtouch=a.wtouch, gpos=a.gpos, dbgtime=a.dbgtime, trig2=a.trig2, fb=a.fb, fbhi=a.fbhi, fblo=a.fblo, fbl=a.fbl, fbend=a.fbend, ns=a.ns, rp=a.rp, xcp=a.xcp, stouch=a.stouch, qtrig=a.qtrig, boost=a.boost, bhi=a.bhi, btrig=a.btrig, fbdiv=a.fbdiv, claimlate=a.claimlate, anb=a.anb, peek=a.peek, satom=a.satom, hpriv=a.hpriv)
    print("pads inserted:", g.e.npad, "lines:", len(g.e.lines))
```
